```python
import torch

def _softmax(x, axis=-1):
    return torch.softmax(x, dim=axis)
def _gelu(x):
    return torch.nn.functional.gelu(x, approximate="tanh")
def _silu(x):
    return torch.nn.functional.silu(x)
def _sigmoid(x):
    return torch.sigmoid(x)
def _layernorm(x, axis=-1, eps=1e-5):
    m = x.mean(dim=axis, keepdim=True)
    v = x.var(dim=axis, keepdim=True, unbiased=False)
    return (x - m) / torch.sqrt(v + eps)
def _scatter_add(tgt, idx, src, axis=0):
    return tgt.clone().index_add_(axis, idx, src)
def _segment_sum(src, seg, n):
    out = torch.zeros((n,) + src.shape[1:], dtype=src.dtype)
    return out.index_add_(0, seg, src)
def _pad(x, pw):
    flat = tuple(v for pair in reversed(pw) for v in pair)
    return torch.nn.functional.pad(x, flat)

kernel_name = 'interleave_layers__linear_attn_block__mixer_token_mlp__prompt'

def setup_inputs():

    _w = (lambda a: (lambda t: t.to(torch.bfloat16) if t.is_floating_point() else t)(torch.as_tensor(a)))
    def _A_setup():
        B, S, D = 1, 2048, 448
        return {
            "x": _w((lambda *s: torch.randn(*s, dtype=torch.bfloat16) * 0.05)(B, S, D)),
            "wqkv": _w((lambda *s: torch.randn(*s, dtype=torch.bfloat16) * 0.1)(D, 3 * D)),
            "wo": _w((lambda *s: torch.randn(*s, dtype=torch.bfloat16) * 0.05)(D, D)),
        }
    _A_in = _A_setup()

    def _B_setup():
        B, S, D, F = 1, 2048, 448, 1792
        return {
            "x": _w((lambda *s: torch.randn(*s, dtype=torch.bfloat16) * 0.05)(B, S, D)),
            "w1": _w((lambda *s: torch.randn(*s, dtype=torch.bfloat16) * 0.8)(S, F) * (S ** -0.5)),
            "b1": _w((lambda *s: torch.randn(*s, dtype=torch.bfloat16) * 12.8)(F) * 0.02),
            "w2": _w((lambda *s: torch.randn(*s, dtype=torch.bfloat16) * 0.4)(F, S) * (F ** -0.5)),
            "b2": _w((lambda *s: torch.randn(*s, dtype=torch.bfloat16) * 6.4)(S) * 0.02),
        }
    _B_in = _B_setup()

    return {
        "A_x": _A_in["x"],
        "A_wqkv": _A_in["wqkv"],
        "A_wo": _A_in["wo"],
        "B_x": _B_in["x"],
        "B_w1": _B_in["w1"],
        "B_b1": _B_in["b1"],
        "B_w2": _B_in["w2"],
        "B_b2": _B_in["b2"],
    }

def reference(A_x, A_wqkv, A_wo, B_x, B_w1, B_b1, B_w2, B_b2):
    def _A_ref(x, wqkv, wo):
        B, S, D = x.shape
        H = 16; Dh = D // H
        qkv = (lambda x, *d: x.permute(*d))((x @ wqkv).reshape(B, S, 3, H, Dh), 2, 0, 3, 1, 4)
        q, k, v = qkv[0], qkv[1], qkv[2]
        phi = lambda t: torch.where(t > 0, t + 1, torch.exp(t)) + 1e-6
        pq, pk = phi(q), phi(k)
        kv = torch.einsum("bhsd,bhse->bhde", pk, v)
        z = torch.einsum("bhsd->bhd", pk)
        num = torch.einsum("bhqd,bhde->bhqe", pq, kv)
        den = torch.einsum("bhqd,bhd->bhq", pq, z)[..., None] + 1e-6
        o = num / den
        return (lambda x, *d: x.permute(*d))(o, 0, 2, 1, 3).reshape(B, S, D) @ wo

    def _B_ref(x, w1, b1, w2, b2):
        B, S, D = x.shape
        h = _layernorm(x, axis=-1)
        u = torch.einsum("bsd,sf->bdf", h, w1) + b1
        u = _gelu(u)
        y = torch.einsum("bdf,fs->bds", u, w2) + b2
        return (lambda x, *d: x.permute(*d))(y, 0, 2, 1)

    x = A_x
    x = x + _A_ref(_layernorm(x, axis=-1), A_wqkv, A_wo)
    x = x + _B_ref(_layernorm(x, axis=-1), B_w1, B_b1, B_w2, B_b2)
    x = x + _A_ref(_layernorm(x, axis=-1), A_wqkv, A_wo)
    x = x + _B_ref(_layernorm(x, axis=-1), B_w1, B_b1, B_w2, B_b2)
    return x
```

```python
NAME = "interleave_layers__linear_attn_block__mixer_token_mlp__prompt"

class Asm:
    def __init__(self):
        self.lines = []
        self.uid = 0
    def __call__(self, s):
        for l in s.split("\n"):
            self.lines.append("    " + l.strip() if l.strip() and not l.strip().endswith(":") else l.strip())
    def label(self, base="L"):
        self.uid += 1
        return f"{base}_{self.uid}"
    def text(self):
        return "\n".join(self.lines) + "\n"

def kernel_begin(a, name):
    a.lines.append(f".globl {name}")
    a.lines.append(".p2align 8")
    a.lines.append(f".type {name},@function")
    a.lines.append(f"{name}:")

def descriptor(name, vgpr, sgpr=102, accum=None):
    if accum is None:
        accum = (vgpr + 3) // 4 * 4
    return f""".p2align 6
.amdhsa_kernel {name}
  .amdhsa_next_free_vgpr {vgpr}
  .amdhsa_next_free_sgpr {sgpr}
  .amdhsa_accum_offset {accum}
  .amdhsa_group_segment_fixed_size 0
  .amdhsa_kernarg_size 88
  .amdhsa_user_sgpr_count 2
  .amdhsa_user_sgpr_kernarg_segment_ptr 1
  .amdhsa_system_sgpr_workgroup_id_x 1
.end_amdhsa_kernel
"""

def file_text(launches, body, descs):
    hdr = ""
    for (k, g, b, lds) in launches:
        hdr += f"; @launch kernel={k} grid=({g},1,1) block=({b},1,1) lds={lds}\n"
    return hdr + '.amdgcn_target "amdgcn-amd-amdhsa--gfx950"\n.text\n' + body + '.section .rodata,"a"\n' + "".join(descs)
```

```python
import re

REG_RE = re.compile(r'^(-?)(?:abs\()?([vas])(?:(\d+)|\[(\d+):(\d+)\])\)?$')

def regs_of(tok):
    tok = tok.strip()
    if tok in ("vcc",): return {("s", "vcc_lo"), ("s", "vcc_hi")}
    if tok in ("vcc_lo", "vcc_hi"): return {("s", tok)}
    if tok == "exec": return {("s", "exec_lo"), ("s", "exec_hi")}
    if tok in ("exec_lo", "exec_hi"): return {("s", tok)}
    if tok == "m0": return {("s", "m0")}
    tok2 = tok.replace("|", "")
    m = REG_RE.match(tok2)
    if not m: return set()
    c = m.group(2)
    if m.group(3) is not None:
        return {(c, int(m.group(3)))}
    return {(c, i) for i in range(int(m.group(4)), int(m.group(5)) + 1)}

TRANS = ("v_exp_f32", "v_log_f32", "v_rcp_f32", "v_rsq_f32", "v_sqrt_f32", "v_sin_f32", "v_cos_f32", "v_rcp_iflag_f32")

class Ins:
    __slots__ = ("text", "op", "kind", "dst", "src", "srcc", "srcab", "passes", "ws", "label", "target", "wide_store_data", "sgpr_src", "is_dpp", "uncond", "lds_dma")
    def __init__(self, text):
        self.text = text
        t = text.split(";")[0].strip()
        self.label = None; self.target = None; self.op = ""; self.kind = "none"
        self.dst = set(); self.src = set(); self.srcc = set(); self.srcab = set()
        self.passes = 0; self.ws = 0; self.wide_store_data = set(); self.is_dpp = False; self.uncond = False
        self.lds_dma = False
        if not t: return
        if t.endswith(":"):
            self.label = t[:-1]; return
        if t.startswith("."): return
        parts = t.split(None, 1)
        op = parts[0]; self.op = op
        rest = parts[1] if len(parts) > 1 else ""
        ops = []; cur = ""; depth = 0
        for ch in rest:
            if ch in "[(": depth += 1
            if ch in "])": depth -= 1
            if ch == "," and depth == 0:
                ops.append(cur.strip()); cur = ""
            else: cur += ch
        if cur.strip(): ops.append(cur.strip())
        mods = ""
        if ops:
            sp = ops[-1].split(None, 1)
            if len(sp) > 1:
                ops[-1] = sp[0]; mods = sp[1]
        self.ws = 1
        base = re.sub(r'_(e32|e64|dpp|sdwa)$', '', op)
        if op == "s_nop":
            self.kind = "nop"; self.ws = int(ops[0], 0) + 1; return
        if op.startswith("s_cbranch") or op == "s_branch":
            self.kind = "branch"; self.target = ops[0]; self.uncond = (op == "s_branch")
            if "vcc" in op: self.src |= regs_of("vcc")
            return
        if op == "s_endpgm":
            self.kind = "end"; self.uncond = True; return
        if op.startswith("v_mfma"):
            self.kind = "mfma"
            self.dst = regs_of(ops[0]); self.srcab = regs_of(ops[1]) | regs_of(ops[2]); self.srcc = regs_of(ops[3])
            self.src = self.srcab | self.srcc
            self.passes = 8 if "32x32x16" in op else 4 if "16x16x32" in op else None
            assert self.passes, op
            return
        if op.startswith("v_"):
            self.kind = "valu"
            self.is_dpp = op.endswith("_dpp") or "quad_perm" in mods or "row_" in mods
            if base.startswith("v_cmp"):
                self.dst = regs_of(ops[0]);
                for o in ops[1:]: self.src |= regs_of(o)
                if base.startswith("v_cmpx"): self.dst |= regs_of("exec")
            elif base in ("v_readfirstlane_b32", "v_readlane_b32"):
                self.dst = regs_of(ops[0])
                for o in ops[1:]: self.src |= regs_of(o)
            elif base.startswith("v_permlane") and "swap" in base:
                self.dst = regs_of(ops[0]) | regs_of(ops[1]); self.src = set(self.dst)
            elif base in ("v_add_co_u32", "v_sub_co_u32", "v_addc_co_u32", "v_subb_co_u32"):
                self.dst = regs_of(ops[0]) | regs_of(ops[1])
                for o in ops[2:]: self.src |= regs_of(o)
            else:
                self.dst = regs_of(ops[0])
                for o in ops[1:]: self.src |= regs_of(o)
                if base in ("v_fmac_f32", "v_dot2c_f32_bf16", "v_writelane_b32") or self.is_dpp:
                    self.src |= self.dst
                if base == "v_cndmask_b32" and len(ops) == 3: self.src |= regs_of("vcc")
            if base in TRANS: self.kind = "trans"
            if base.startswith("v_dot2"): self.kind = "dot"
            return
        if op.startswith("ds_"):
            self.kind = "ds"
            if op.startswith("ds_read") or op.startswith("ds_bpermute") or op.startswith("ds_swizzle") or "_rtn" in op:
                self.dst = regs_of(ops[0])
                for o in ops[1:]: self.src |= regs_of(o)
            else:
                for o in ops: self.src |= regs_of(o)
            return
        if op.startswith("buffer_") or op.startswith("global_"):
            self.kind = "vmem"
            allm = " " + mods + " "
            if op in ("buffer_wbl2", "buffer_inv"): return
            if op.startswith("buffer_load") and " lds " in allm:
                self.lds_dma = True
                for o in ops: self.src |= regs_of(o)
                self.src |= regs_of("m0")
            elif op.startswith("buffer_load") or op.startswith("global_load"):
                self.dst = regs_of(ops[0])
                for o in ops[1:]: self.src |= regs_of(o)
            elif op.startswith("buffer_store") or op.startswith("buffer_atomic"):
                for o in ops: self.src |= regs_of(o)
                if op.endswith("x4") or op.endswith("x3"): self.wide_store_data = regs_of(ops[0])
                if op.startswith("buffer_atomic") and " sc0 " in allm: self.dst = regs_of(ops[0])
            else:
                raise ValueError("unhandled vmem " + text)
            return
        if op.startswith("s_"):
            self.kind = "salu"
            if op.startswith("s_load") or op.startswith("s_memtime") or op.startswith("s_memrealtime") or op.startswith("s_buffer_load"):
                self.kind = "smem"
            if op.startswith("s_cmp") or op.startswith("s_bitcmp") or op in ("s_waitcnt", "s_barrier", "s_sleep", "s_setprio"):
                for o in ops: self.src |= regs_of(o)
            else:
                if ops: self.dst = regs_of(ops[0])
                for o in ops[1:]: self.src |= regs_of(o)
                if "saveexec" in op: self.dst |= regs_of("exec")
            return
        raise ValueError("unhandled instruction: " + text)

def isv(r): return r[0] in ("v", "a")
def iss(r): return r[0] == "s"

def required(p, c):
    need = 0
    pvalu = p.kind in ("valu", "trans", "dot")
    cvalu = c.kind in ("valu", "trans", "dot")
    pdv = {r for r in p.dst if isv(r)}
    pds = {r for r in p.dst if iss(r)}
    if pvalu:
        if c.kind == "mfma" and pdv & c.src: need = max(need, 2 if p.kind != "dot" else 3)
        if c.kind == "mfma" and pds & regs_of("exec"): need = max(need, 4)
        if pds:
            if c.kind == "vmem" and pds & c.src: need = max(need, 5)
            if cvalu and pds & c.src:
                need = max(need, 2)
                if c.op.startswith("v_readlane") or c.op.startswith("v_writelane"): need = max(need, 4)
            if pds & regs_of("exec"):
                if c.is_dpp: need = max(need, 5)
                if c.op.startswith("v_readlane") or c.op.startswith("v_readfirstlane") or c.op.startswith("v_writelane") or c.op.startswith("v_permlane"): need = max(need, 4)
            if c.kind in ("salu", "branch", "smem") and pds & c.src: need = max(need, 1 if c.kind != "branch" else 1)
        if pdv:
            if c.is_dpp and pdv & c.src: need = max(need, 2)
            if (c.op.startswith("v_readlane") or c.op.startswith("v_readfirstlane")) and pdv & c.src: need = max(need, 1)
            if c.op.startswith("v_permlane") and pdv & c.src: need = max(need, 2)
            if p.kind == "trans" and cvalu and c.kind != "trans" and pdv & c.src: need = max(need, 1)
            if p.kind == "trans" and c.kind in ("vmem", "ds") and pdv & c.src: need = max(need, 1)
            if p.kind == "dot":
                if cvalu and (pdv & (c.src | c.dst)):
                    same = c.op == p.op
                    if not same: need = max(need, 3)
                    else:
                        need = max(need, 0)
                if c.kind in ("vmem", "ds") and pdv & c.src: need = max(need, 3)
            if "sdwa" in p.op or "op_sel" in p.text:
                if cvalu and pdv & (c.src | c.dst): need = max(need, 1)
    if p.kind == "mfma":
        n = p.passes
        t_ab = {4: 8, 8: 12}[n]; t_c = {4: 6, 8: 10}[n]; t_war = {4: 3, 8: 7}[n]
        if c.kind == "mfma":
            if p.dst & c.srcab: need = max(need, t_ab)
            if p.dst & c.srcc:
                if not (p.dst == c.srcc and p.passes == c.passes): need = max(need, t_c)
            elif p.dst & c.dst: need = max(need, t_c)
        elif cvalu:
            if p.dst & (c.src | c.dst): need = max(need, t_ab)
            if p.srcc & c.dst: need = max(need, t_war)
        elif c.kind in ("vmem", "ds"):
            if p.dst & (c.src | c.dst): need = max(need, t_ab)
    if p.kind == "salu" and ("s", "m0") in p.dst and c.lds_dma: need = max(need, 1)
    if p.wide_store_data and (p.wide_store_data & c.dst):
        need = max(need, 2 if cvalu or c.kind == "mfma" else 1)
    if p.kind == "salu" and pds & regs_of("exec") and c.kind == "mfma": need = max(need, 0)
    return need

def fix(lines, verbose=False):
    ins = [Ins(l) for l in lines]
    MAXW = 14
    total = 0
    def maps():
        labels = {x.label: i for i, x in enumerate(ins) if x.label}
        preds = {}
        for i, x in enumerate(ins):
            if x.kind == "branch": preds.setdefault(labels[x.target], []).append(i)
        return preds
    changed = True
    while changed:
        changed = False
        preds_br = maps()
        j = 0
        while j < len(ins):
            c = ins[j]
            if c.kind in ("none", "nop") or c.label:
                j += 1; continue
            worst = 0
            stack = [(j - 1, 0, True)]
            seen = set()
            while stack:
                i, dist, fall = stack.pop()
                while i >= 0 and dist < MAXW:
                    if (i, dist) in seen: break
                    seen.add((i, dist))
                    p = ins[i]
                    if p.label:
                        for b in preds_br.get(i, []):
                            stack.append((b, dist, False))
                        i -= 1; fall = True; continue
                    if p.kind == "none": i -= 1; continue
                    if p.uncond and fall: break
                    fall = True
                    r = required(p, c)
                    if r - dist > worst: worst = r - dist
                    dist += p.ws
                    i -= 1
            if worst > 0:
                ins.insert(j, Ins(f"    s_nop {worst-1}"))
                total += 1
                changed = True
                if verbose: print("nop", worst, "before", c.text.strip())
                j += 1
                preds_br = maps()
            j += 1
    return [x.text for x in ins], total
```

```python
import sys
sys.path.insert(0, "work")
from gen import *
import haz

KNAME = NAME + "_kernel"
S, D, F = 2048, 448, 1792
ITB = 0x1000000
PQ, KVP, KVF, ST, HF, UF, XF, ST2 = 0x0, 0x200000, 0x300000, 0x340000, 0x400000, 0x600000, 0x800000, 0x380000
WS_SIZE = 0x10000000
LOG2E = 1.4426950408889634

import struct
def fbits(x): return "0x%08x" % struct.unpack("<I", struct.pack("<f", x))[0]

SX, SWQKV, SWO, SW1, SW2, SB1, SB2, SOUT, SWS, SDBG = [f"s[{i}:{i+3}]" for i in range(4, 44, 4)]
sW, sRB, sH, sDT, sST, sFT, sACT, sIT, sITO = "s3", "s44", "s45", "s46", "s47", "s48", "s49", "s50", "s51"
sBAR = "s52"
sT = [f"s{i}" for i in range(54, 64)]
sCS = "s64"
SC = "sc1"

def vr(b, n=1):
    return f"v{b}" if n == 1 else f"v[{b}:{b+n-1}]"

class K(Asm):
    def barrier_grid(self):
        a = self
        L = a.label("GB")
        a(f"""
        s_waitcnt vmcnt(0) lgkmcnt(0)
        s_barrier
        s_cmp_lg_u32 {sW}, 0
        s_cbranch_scc1 {L}_w
        s_mov_b64 exec, 1
        v_mov_b32 v2, 1
        v_mov_b32 v3, {sBAR}
        buffer_atomic_add v2, v3, {SDBG}, 0 offen sc1
        s_mov_b32 {sT[0]}, 0
        {L}_p:
        buffer_load_dword v2, v3, {SDBG}, 0 offen sc1
        s_add_u32 {sT[0]}, {sT[0]}, 1
        s_waitcnt vmcnt(0)
        v_cmp_gt_u32 vcc, 0x100, v2
        s_cmp_gt_u32 {sT[0]}, 200000
        s_cbranch_scc1 {L}_o
        s_cbranch_vccnz {L}_p
        {L}_o:
        s_mov_b64 exec, -1
        {L}_w:
        s_add_u32 {sBAR}, {sBAR}, 4
        s_barrier
        """)

    def srd(self, dst, ptr, size):
        b = int(dst[2:dst.index(":")])
        self(f"s_mov_b32 s{b}, s{ptr}\n s_mov_b32 s{b+1}, s{ptr+1}\n s_mov_b32 s{b+2}, {size}\n s_mov_b32 s{b+3}, 0x00020000")

    def dma(self, voff, srd, soff, ldsaddr, extra=""):
        self(f"s_mov_b32 m0, {ldsaddr}")
        self(f"buffer_load_dwordx4 {voff}, {srd}, {soff} offen {extra} lds")

    def halfsum(self, v, tmp):
        self(f"v_mov_b32 {tmp}, {v}\n v_permlane32_swap_b32 {v}, {tmp}\n v_add_f32 {v}, {v}, {tmp}")

vLANE, vHH, vL31 = 1, 14, 15
RES = 232
CSQ = 208
CSK, CSV = 224, 225
vL16 = 226

def prologue(a):
    a(f"""
    s_cmp_ge_u32 s2, 256
    s_cbranch_scc1 L_end
    s_load_dwordx16 s[64:79], s[0:1], 0
    s_load_dwordx4 s[80:83], s[0:1], 64
    s_load_dwordx2 s[84:85], s[0:1], 80
    v_lshrrev_b32 v2, 6, v0
    v_and_b32 v{vLANE}, 63, v0
    v_readfirstlane_b32 {sW}, v2
    v_lshrrev_b32 v{vHH}, 5, v{vLANE}
    v_and_b32 v{vL31}, 31, v{vLANE}
    v_lshlrev_b32 v{vL16}, 4, v{vLANE}
    s_and_b32 {sT[0]}, s2, 7            ; xcd
    s_lshr_b32 {sT[1]}, s2, 3           ; j
    s_lshr_b32 {sT[2]}, {sT[0]}, 1      ; xcd>>1
    s_and_b32 {sT[3]}, {sT[0]}, 1       ; dgrp
    s_lshl_b32 {sRB}, {sT[2]}, 2
    s_lshr_b32 {sT[4]}, {sT[1]}, 3
    s_add_u32 {sRB}, {sRB}, {sT[4]}
    s_lshl_b32 {sH}, {sT[3]}, 3
    s_and_b32 {sT[4]}, {sT[1]}, 7
    s_add_u32 {sH}, {sH}, {sT[4]}
    s_lshr_b32 {sT[4]}, {sT[1]}, 2
    s_and_b32 {sT[5]}, {sT[1]}, 3       ; jr
    s_mul_i32 {sT[6]}, {sT[1]}, 43
    s_lshr_b32 {sT[6]}, {sT[6]}, 7      ; j/3
    s_mul_i32 {sT[7]}, {sT[6]}, 3
    s_sub_u32 {sT[7]}, {sT[1]}, {sT[7]} ; j%3
    s_add_u32 {sT[7]}, {sT[7]}, 4
    s_cmp_eq_u32 {sT[3]}, 0
    s_cselect_b32 {sT[4]}, {sT[4]}, {sT[6]}
    s_cselect_b32 {sDT}, {sT[5]}, {sT[7]}
    s_lshl_b32 {sST}, {sT[2]}, 3
    s_add_u32 {sST}, {sST}, {sT[4]}
    s_mul_i32 {sFT}, {sT[2]}, 7
    s_add_u32 {sFT}, {sFT}, {sT[4]}
    s_mov_b32 {sACT}, {sT[4]}
    s_mov_b32 {sIT}, 0
    s_mov_b32 {sITO}, 0
    s_mov_b32 {sBAR}, 0
    s_waitcnt lgkmcnt(0)
    """)
    a.srd(SX, 64, S * D * 2)
    a.srd(SWQKV, 66, D * 3 * D * 2)
    a.srd(SWO, 68, D * D * 2)
    a.srd(SW1, 72, S * F * 2)
    a.srd(SB1, 74, F * 2)
    a.srd(SW2, 76, F * S * 2)
    a.srd(SB2, 78, S * 2)
    a.srd(SOUT, 80, S * D * 2)
    a.srd(SDBG, 82, 256)
    a.srd(SWS, 84, WS_SIZE)

XREG = 64
ACQ, ACK, ACV = 16, 32, 48
WFR = 176
XW = 28672
WA = 114688
def a1_waddr(f):
    if f < 48: return WA + 1024 * f
    fb = f - 48
    return XW * (fb // 9) + 1024 * (fb % 9)
CSL = 10240
RSL = 11264
KVL = 12288

def a1_wdma_setup(a):
    a(f"""
    v_lshrrev_b32 v4, 2, v{vLANE}
    v_mul_u32_u24 v4, 2688, v4
    v_and_b32 v5, 3, v{vLANE}
    v_lshl_add_u32 v4, v5, 4, v4
    s_mul_i32 {sT[8]}, {sH}, 56
    s_and_b32 {sT[8]}, {sT[8]}, 0xfff0
    """)

def a1_wdma(a, part):
    n = 12 if part == 0 else 9
    t0 = 0 if part == 0 else 16
    a(f"s_mul_i32 {sT[0]}, {sW}, {(n//3)*16*2688}")
    a(f"s_add_u32 {sT[0]}, {sT[0]}, {sT[8]}")
    if part == 0:
        a(f"s_mul_i32 {sT[1]}, {sW}, {n*1024}\n s_add_u32 {sT[1]}, {sT[1]}, {WA}")
    else:
        a(f"s_mul_i32 {sT[1]}, {sW}, {XW}")
    for i in range(n):
        goff = (t0 + i // 3) * 16 * 2688 + (i % 3) * 896
        a(f"s_add_u32 {sT[2]}, {sT[0]}, {goff}")
        a(f"s_add_u32 m0, {sT[1]}, {i*1024}")
        a(f"buffer_load_dwordx4 v4, {SWQKV}, {sT[2]} offen lds")

def phase_a1(a):
    L = a.label("A1")
    a1_wdma_setup(a)
    a(f"""
    v_lshrrev_b32 v2, 2, v{vLANE}
    v_and_b32 v2, 3, v2                 ; rho
    v_lshrrev_b32 v3, 4, v{vLANE}
    v_and_b32 v3, 1, v3
    v_lshlrev_b32 v3, 2, v3
    v_and_b32 v5, 3, v{vLANE}
    v_add_u32 v3, v3, v5                ; quad
    s_and_b32 {sT[0]}, {sH}, 1
    v_add_u32 v3, {sT[0]}, v3
    v_and_b32 v3, 7, v3
    v_lshlrev_b32 v3, 3, v3
    v_lshl_add_u32 v6, v2, 6, v3
    s_cmp_eq_u32 {sIT}, 0
    s_cselect_b32 {sT[0]}, 9, 8
    s_sub_u32 {sT[1]}, 17, {sT[0]}
    s_lshl_b32 {sT[1]}, 1, {sT[1]}
    v_lshlrev_b32 v2, {sT[0]}, v{vHH}
    v_add_u32 v6, v6, v2
    v_add_u32 v7, 0x10000, v6
    v_add_u32 v8, 0x20000, v6
    v_add_u32 v9, {sT[1]}, v6
    v_add_u32 v10, {sT[1]}, v7
    v_add_u32 v11, {sT[1]}, v8
    s_cmp_eq_u32 {sIT}, 0
    s_cbranch_scc0 {L}_it1
    """)
    a(f"""
    v_lshrrev_b32 v2, 3, v{vLANE}
    v_mul_u32_u24 v2, 896, v2
    v_and_b32 v3, 7, v{vLANE}
    v_lshrrev_b32 v5, 4, v{vLANE}
    v_xor_b32 v3, v3, v5
    v_lshl_add_u32 v12, v3, 4, v2       ; a even
    v_xor_b32 v13, 64, v12              ; a odd
    s_lshl_b32 {sT[0]}, {sRB}, 2
    s_add_u32 {sT[0]}, {sT[0]}, {sW}
    s_mul_i32 {sT[0]}, {sT[0]}, {32*896}
    s_mul_i32 {sT[1]}, {sW}, {XW}
    """)
    for aa in range(4):
        for j in range(7):
            a(f"s_add_u32 {sT[2]}, {sT[0]}, {aa*8*896 + j*128}")
            a(f"s_add_u32 m0, {sT[1]}, {(aa*7+j)*1024}")
            a(f"buffer_load_dwordx4 v{12 + (aa&1)}, {SX}, {sT[2]} offen lds")
    a1_wdma(a, 0)
    a(f"""
    v_lshrrev_b32 v2, 3, v{vL31}
    v_mul_u32_u24 v2, 7168, v2
    v_and_b32 v3, 7, v{vL31}
    v_lshl_add_u32 v2, v3, 7, v2
    s_mul_i32 {sT[1]}, {sW}, {XW}
    v_add_u32 v2, {sT[1]}, v2
    v_lshrrev_b32 v3, 1, v{vL31}
    v_and_b32 v3, 7, v3                 ; swz
    v_xor_b32 v3, v3, v{vHH}
    """)
    for q in range(4):
        a(f"v_xor_b32 v5, {2*q}, v3\n v_lshl_add_u32 v{200+q}, v5, 4, v2")
    a("s_waitcnt vmcnt(12)")
    for t in range(28):
        a(f"ds_read_b128 {vr(XREG+4*t,4)}, v{200+(t&3)} offset:{(t>>2)*1024}")
        if t == 14: a("s_waitcnt lgkmcnt(0)")
    a("s_waitcnt lgkmcnt(0)")
    a1_wdma(a, 1)
    a(f"""
    v_mov_b32 v2, 0
    v_lshlrev_b32 v3, 3, v{vLANE}
    v_mov_b32 v5, 0
    s_cmp_lg_u32 {sW}, 0
    s_cbranch_scc1 {L}_nz
    ds_write_b32 v3, v2 offset:{CSL}
    ds_write_b32 v3, v2 offset:{CSL+4}
    {L}_nz:
    v_mov_b32 v204, 0
    v_mov_b32 v205, 0
    v_mov_b32 v206, 0
    v_mov_b32 v207, 0
    v_mov_b32 v12, 0x3f803f80
    """)
    for i in range(112):
        a(f"v_dot2c_f32_bf16 v{204+(i&1)}, v{XREG+i}, v12")
        a(f"v_dot2c_f32_bf16 v{206+(i&1)}, v{XREG+i}, v{XREG+i}")
    a(f"""
    v_add_f32 v204, v204, v205
    v_add_f32 v206, v206, v207
    """)
    a.halfsum("v204", "v205")
    a.halfsum("v206", "v207")
    a(f"""
    v_mul_f32 v204, {fbits(1/448)}, v204
    v_mul_f32 v206, {fbits(1/448)}, v206
    v_fma_f32 v206, -v204, v204, v206
    v_max_f32 v206, 0, v206
    s_mov_b32 {sCS}, {sW}
    v_mov_b32 v{CSQ}, 0
    v_mov_b32 v{CSK}, 0
    v_mov_b32 v{CSV}, 0
    s_waitcnt vmcnt(9) lgkmcnt(0)
    s_branch {L}_main
    {L}_it1:
    """)
    a1_wdma(a, 0)
    a1_wdma(a, 1)
    a(f"""
    s_lshl_b32 {sT[0]}, {sRB}, 2
    s_add_u32 {sT[0]}, {sT[0]}, {sW}     ; rt
    s_mul_i32 {sT[1]}, {sT[0]}, {28*1024}
    s_add_u32 {sT[1]}, {sT[1]}, {XF}
    """)
    for t in range(28):
        a(f"s_add_u32 {sT[2]}, {sT[1]}, {(t>>2)*4096}")
        a(f"buffer_load_dwordx4 {vr(XREG+4*t,4)}, v{vL16}, {SWS}, {sT[2]} offen offset:{(t&3)*1024} {SC}")
    a(f"s_lshl_b32 {sT[1]}, {sT[0]}, 12\n s_add_u32 {sT[1]}, {sT[1]}, {ST2}")
    stats_combine(a, sT[1], 176, 204, 206)
    a(f"""
    s_mov_b32 {sCS}, 7
    s_waitcnt vmcnt(0)
    {L}_main:
    s_barrier
    """)
    def rd(t, buf):
        for seg in range(3):
            ad = a1_waddr(3 * t + seg)
            win, off = ad >> 16, ad & 0xffff
            b = WFR + 12 * buf + 4 * seg
            a(f"ds_read_b64_tr_b16 {vr(b,2)}, v{6+win} offset:{off}")
            a(f"ds_read_b64_tr_b16 {vr(b+2,2)}, v{9+win} offset:{off}")
    rd(0, 0)
    for t in range(28):
        buf = t & 1
        if t == 15:
            a("s_waitcnt vmcnt(0)\n s_barrier")
        if t + 1 < 28:
            rd(t + 1, buf ^ 1)
            a("s_waitcnt lgkmcnt(6)")
        else:
            a("s_waitcnt lgkmcnt(0)")
        w = WFR + 12 * buf
        x = vr(XREG + 4 * t, 4)
        c = lambda base: (vr(base, 16) if t else "0")
        a(f"v_mfma_f32_32x32x16_bf16 {vr(ACK,16)}, {x}, {vr(w+4,4)}, {c(ACK)}")
        a(f"v_mfma_f32_32x32x16_bf16 {vr(ACV,16)}, {x}, {vr(w+8,4)}, {c(ACV)}")
        a(f"v_mfma_f32_32x32x16_bf16 {vr(ACQ,16)}, {vr(w,4)}, {x}, {c(ACQ)}")
        a(f"s_cmp_eq_u32 {sCS}, {t&3}\n s_cbranch_scc0 {L}_cs{t}")
        for seg, dst in enumerate((CSQ, CSK, CSV)):
            for i in range(4):
                a(f"v_dot2c_f32_bf16 v{dst}, v{w+4*seg+i}, v12")
        a(f"{L}_cs{t}:")
    a(f"""
    v_add_f32 v206, {fbits(1e-5)}, v206
    v_rsq_f32 v206, v206
    s_mul_i32 {sT[1]}, {sW}, {XW}
    v_cmp_eq_u32 vcc, 0, v{vHH}
    v_lshlrev_b32 v2, 2, v{vLANE}
    v_add_u32 v2, {sT[1]}, v2
    v_cndmask_b32 v3, v204, v206, vcc
    ds_write_b32 v2, v3 offset:{RSL}
    v_lshlrev_b32 v5, 4, v{vHH}
    v_add_u32 v5, {sT[1]}, v5
    s_cmp_eq_u32 {sIT}, 0
    s_cbranch_scc0 {L}_nocs
    v_lshlrev_b32 v3, 2, v{vL31}
    ds_add_f32 v3, v{CSQ} offset:{CSL}
    ds_add_f32 v3, v{CSK} offset:{CSL+128}
    ds_add_f32 v3, v{CSV} offset:{CSL+256}
    s_waitcnt lgkmcnt(0)
    s_barrier
    v_lshlrev_b32 v13, 4, v{vHH}
    ds_read_b32 v{CSK}, v3 offset:{CSL+128}
    ds_read_b32 v{CSV}, v3 offset:{CSL+256}
    """)
    for q in range(4):
        a(f"ds_read_b128 {vr(CSQ+4*q,4)}, v13 offset:{CSL+32*q}")
    a(f"{L}_nocs:")
    RR, MM = 64, 80
    for q in range(4):
        a(f"ds_read_b128 {vr(RR+4*q,4)}, v5 offset:{RSL+32*q}")
        a(f"ds_read_b128 {vr(MM+4*q,4)}, v5 offset:{RSL+128+32*q}")
    a(f"s_mov_b32 {sT[2]}, {fbits(1e-6)}\n s_mov_b32 {sT[3]}, {fbits(LOG2E)}\n v_mov_b32 v13, {fbits(1e-6)}")
    a("s_waitcnt lgkmcnt(0)")
    T0 = 96
    def phi(acc, mfun, csfun, rfun, out):
        for r in range(16):
            a(f"v_fma_f32 v{acc+r}, -{mfun(r)}, {csfun(r)}, v{acc+r}")
        for r in range(16):
            a(f"v_fma_f32 v{acc+r}, v{acc+r}, {rfun(r)}, v13")
        for r in range(16):
            a(f"v_mul_f32 v{T0+r}, {sT[3]}, v{acc+r}")
        for r in range(16):
            a(f"v_exp_f32_e64 v{T0+r}, v{T0+r} clamp")
            a(f"v_max_f32 v{acc+r}, {sT[2]}, v{acc+r}")
        for r in range(16):
            a(f"v_add_f32 v{acc+r}, v{acc+r}, v{T0+r}")
        for r in range(8):
            a(f"v_cvt_pk_bf16_f32 v{out+r}, v{acc+2*r}, v{acc+2*r+1}")
    PK, PV, PQR = 112, 120, 128
    phi(ACK, lambda r: f"v{MM+r}", lambda r: f"v{CSK}", lambda r: f"v{RR+r}", PK)
    for r in range(16):
        a(f"v_fma_f32 v{ACV+r}, -v{MM+r}, v{CSV}, v{ACV+r}")
    for r in range(16):
        a(f"v_mul_f32 v{ACV+r}, v{ACV+r}, v{RR+r}")
    for r in range(8):
        a(f"v_cvt_pk_bf16_f32 v{PV+r}, v{ACV+2*r}, v{ACV+2*r+1}")
    a("s_mov_b32 exec_lo, 0xf0000000\n s_mov_b32 exec_hi, 0xf0000000")
    for r in range(8):
        a(f"v_mov_b32 v{PV+r}, 0x3f803f80")
    a("s_mov_b64 exec, -1")
    KVA = 136
    a(f"v_mfma_f32_32x32x16_bf16 {vr(KVA,16)}, {vr(PK,4)}, {vr(PV,4)}, 0")
    a(f"v_mfma_f32_32x32x16_bf16 {vr(KVA,16)}, {vr(PK+4,4)}, {vr(PV+4,4)}, {vr(KVA,16)}")
    a(f"v_add_u32 v2, {sT[1]}, v{vL16}")
    for q in range(4):
        a(f"ds_write_b128 v2, {vr(KVA+4*q,4)} offset:{KVL+1024*q}")
    a(f"""
    s_lshl_b32 {sT[4]}, {sW}, 10
    v_add_u32 v3, {sT[4]}, v{vL16}
    v_add_u32 v5, 0x10000, v3
    s_waitcnt lgkmcnt(0)
    s_barrier
    """)
    for w2 in range(4):
        ad = XW * w2 + KVL
        a(f"ds_read_b128 {vr(152+4*w2,4)}, v{3 if ad < 65536 else 5} offset:{ad & 0xffff}")
    a(f"""
    s_lshl_b32 {sT[5]}, {sH}, 4
    s_add_u32 {sT[5]}, {sT[5]}, {sRB}
    s_lshl_b32 {sT[5]}, {sT[5]}, 12
    s_add_u32 {sT[5]}, {sT[5]}, {sT[4]}
    s_add_u32 {sT[5]}, {sT[5]}, {sITO}
    s_add_u32 {sT[5]}, {sT[5]}, {KVP}
    s_waitcnt lgkmcnt(0)
    v_pk_add_f32 v[152:153], v[152:153], v[156:157]
    v_pk_add_f32 v[154:155], v[154:155], v[158:159]
    v_pk_add_f32 v[160:161], v[160:161], v[164:165]
    v_pk_add_f32 v[162:163], v[162:163], v[166:167]
    v_pk_add_f32 v[152:153], v[152:153], v[160:161]
    v_pk_add_f32 v[154:155], v[154:155], v[162:163]
    buffer_store_dwordx4 v[152:155], v{vL16}, {SWS}, {sT[5]} offen {SC}
    """)
    phi(ACQ, lambda r: "v204", lambda r: f"v{CSQ+r}", lambda r: "v206", PQR)
    a(f"""
    s_lshl_b32 {sT[0]}, {sRB}, 2
    s_add_u32 {sT[0]}, {sT[0]}, {sW}
    s_lshl_b32 {sT[0]}, {sT[0]}, 4
    s_add_u32 {sT[0]}, {sT[0]}, {sH}
    s_lshl_b32 {sT[0]}, {sT[0]}, 11
    s_add_u32 {sT[0]}, {sT[0]}, {sITO}
    buffer_store_dwordx4 {vr(PQR,4)}, v{vL16}, {SWS}, {sT[0]} offen {SC}
    buffer_store_dwordx4 {vr(PQR+4,4)}, v{vL16}, {SWS}, {sT[0]} offen offset:1024 {SC}
    """)

def stats_combine(a, soff, T, vm, vvar):
    a(f"v_lshlrev_b32 v{T+14}, 3, v{vLANE}")
    for i in range(7):
        a(f"buffer_load_dwordx2 {vr(T+2*i,2)}, v{T+14}, {SWS}, {soff} offen offset:{i*512} {SC}")
    a("s_waitcnt vmcnt(0)")
    stats_math(a, T, vm, vvar)

def stats_math(a, T, vm, vvar):
    a(f"v_add_f32 v{vm}, v{T}, v{T+2}\n v_add_f32 v{vvar}, v{T+1}, v{T+3}")
    for i in range(2, 7):
        a(f"v_add_f32 v{vm}, v{vm}, v{T+2*i}\n v_add_f32 v{vvar}, v{vvar}, v{T+2*i+1}")
    a.halfsum(f"v{vm}", f"v{vm+1}")
    a(f"v_mul_f32 v{vm+1}, {fbits(1/14)}, v{vm}")
    a(f"v_mul_f32 v{vm}, {fbits(1/448)}, v{vm}")
    a(f"v_mov_b32 v{T+15}, 0")
    for i in range(7):
        a(f"v_sub_f32 v{T+2*i}, v{T+2*i}, v{vm+1}")
    for i in range(7):
        a(f"v_fmac_f32 v{T+15}, v{T+2*i}, v{T+2*i}")
    a(f"v_fmac_f32 v{vvar}, {fbits(1/32)}, v{T+15}")
    a.halfsum(f"v{vvar}", f"v{vvar+1}")
    a(f"v_mul_f32 v{vvar}, {fbits(1/448)}, v{vvar}")

def stats_publish(a, X, T, soff):
    for i in range(4):
        a(f"v_pk_add_f32 {vr(T+2*i,2)}, {vr(X+4*i,2)}, {vr(X+4*i+2,2)}")
    a(f"v_pk_add_f32 {vr(T,2)}, {vr(T,2)}, {vr(T+2,2)}")
    a(f"v_pk_add_f32 {vr(T+4,2)}, {vr(T+4,2)}, {vr(T+6,2)}")
    a(f"v_pk_add_f32 {vr(T,2)}, {vr(T,2)}, {vr(T+4,2)}")
    a(f"v_add_f32 v{T+16}, v{T}, v{T+1}")
    a.halfsum(f"v{T+16}", f"v{T+17}")
    a(f"v_mul_f32 v{T+18}, {fbits(-1/32)}, v{T+16}")
    a(f"v_mov_b32 v{T+19}, v{T+18}")
    for i in range(8):
        a(f"v_pk_add_f32 {vr(T+2*i,2)}, {vr(X+2*i,2)}, {vr(T+18,2)}")
    a(f"v_pk_mul_f32 {vr(T+18,2)}, {vr(T,2)}, {vr(T,2)}")
    for i in range(1, 8):
        a(f"v_pk_fma_f32 {vr(T+18,2)}, {vr(T+2*i,2)}, {vr(T+2*i,2)}, {vr(T+18,2)}")
    a(f"v_add_f32 v{T+17}, v{T+18}, v{T+19}")
    a.halfsum(f"v{T+17}", f"v{T+18}")
    a(f"v_lshlrev_b32 v{T}, 3, v{vLANE}")
    a("s_mov_b32 exec_hi, 0")
    a(f"buffer_store_dwordx2 {vr(T+16,2)}, v{T}, {SWS}, {soff} offen {SC}")
    a("s_mov_b64 exec, -1")

def phase_kvred(a):
    L = a.label("KR")
    a(f"""
    s_cmp_lg_u32 {sW}, 0
    s_cbranch_scc1 {L}_end
    s_lshr_b32 {sT[0]}, {sRB}, 2        ; rq
    s_and_b32 {sT[1]}, {sRB}, 3         ; quarter
    v_lshrrev_b32 v2, 4, v{vLANE}       ; pg
    v_and_b32 v3, 15, v{vLANE}
    v_lshlrev_b32 v2, 12, v2
    v_lshl_add_u32 v2, v3, 4, v2
    s_lshl_b32 {sT[2]}, {sH}, 16
    s_lshl_b32 {sT[3]}, {sT[0]}, 10
    s_add_u32 {sT[2]}, {sT[2]}, {sT[3]}
    s_lshl_b32 {sT[3]}, {sT[1]}, 8
    s_add_u32 {sT[2]}, {sT[2]}, {sT[3]}
    s_add_u32 {sT[2]}, {sT[2]}, {sITO}
    s_add_u32 {sT[2]}, {sT[2]}, {KVP}
    """)
    for i in range(4):
        a(f"buffer_load_dwordx4 {vr(16+4*i,4)}, v2, {SWS}, {sT[2]} offen {SC}")
        if i < 3: a(f"s_add_u32 {sT[2]}, {sT[2]}, 0x4000")
    a(f"""
    s_and_b32 {sT[3]}, {sT[1]}, 1
    s_lshl_b32 {sT[3]}, {sT[3]}, 4
    v_add_u32 v3, {sT[3]}, v3           ; e
    v_cmp_le_u32 vcc, 14, v3
    v_cndmask_b32 v4, 0, 1, vcc         ; hh'
    v_mul_u32_u24 v5, 14, v4
    v_sub_u32 v5, v3, v5                ; r
    v_cmp_le_u32 vcc, 28, v3
    v_and_b32 v6, 1, v3
    v_add_u32 v6, 14, v6
    v_cndmask_b32 v5, v5, v6, vcc
    v_bfe_u32 v6, v3, 1, 1
    v_cndmask_b32 v4, v4, v6, vcc
    v_and_b32 v6, 3, v5
    v_lshrrev_b32 v5, 2, v5
    v_lshl_add_u32 v6, v5, 3, v6
    v_lshl_add_u32 v6, v4, 2, v6        ; p
    v_lshlrev_b32 v6, 4, v6
    s_lshr_b32 {sT[3]}, {sT[1]}, 1      ; hh
    s_lshl_b32 {sT[4]}, {sT[3]}, 9
    s_lshl_b32 {sT[5]}, {sH}, 11
    s_add_u32 {sT[4]}, {sT[4]}, {sT[5]}
    s_lshr_b32 {sT[5]}, {sT[0]}, 1
    s_lshl_b32 {sT[5]}, {sT[5]}, 10
    s_add_u32 {sT[4]}, {sT[4]}, {sT[5]}
    s_and_b32 {sT[5]}, {sT[0]}, 1
    s_lshl_b32 {sT[5]}, {sT[5]}, 3
    s_add_u32 {sT[4]}, {sT[4]}, {sT[5]}
    s_add_u32 {sT[4]}, {sT[4]}, {sITO}
    s_add_u32 {sT[4]}, {sT[4]}, {KVF}
    s_waitcnt vmcnt(0)
    v_pk_add_f32 v[16:17], v[16:17], v[20:21]
    v_pk_add_f32 v[18:19], v[18:19], v[22:23]
    v_pk_add_f32 v[24:25], v[24:25], v[28:29]
    v_pk_add_f32 v[26:27], v[26:27], v[30:31]
    v_pk_add_f32 v[16:17], v[16:17], v[24:25]
    v_pk_add_f32 v[18:19], v[18:19], v[26:27]
    """)
    for i in range(4): a(f"v_mov_b32 v{20+i}, v{16+i}")
    for i in range(4): a(f"v_permlane32_swap_b32 v{16+i}, v{20+i}")
    a("v_pk_add_f32 v[16:17], v[16:17], v[20:21]\n v_pk_add_f32 v[18:19], v[18:19], v[22:23]")
    for i in range(4): a(f"v_mov_b32 v{20+i}, v{16+i}")
    for i in range(4): a(f"v_permlane16_swap_b32 v{16+i}, v{20+i}")
    a("v_pk_add_f32 v[16:17], v[16:17], v[20:21]\n v_pk_add_f32 v[18:19], v[18:19], v[22:23]")
    a(f"""
    v_cvt_pk_bf16_f32 v20, v16, v17
    v_cvt_pk_bf16_f32 v21, v18, v19
    s_cmp_ge_u32 {sRB}, 14
    s_cbranch_scc0 {L}_nz
    v_mov_b32 v20, 0
    v_mov_b32 v21, 0
    {L}_nz:
    s_mov_b64 exec, 0xffff
    buffer_store_dwordx2 v[20:21], v6, {SWS}, {sT[4]} offen {SC}
    s_mov_b64 exec, -1
    {L}_end:
    """)

def wtile_dma_voff(a, vdst, rowstride):
    a(f"""
    v_lshrrev_b32 v2, 3, v{vLANE}
    v_mul_u32_u24 v{vdst}, {rowstride}, v2
    v_lshrrev_b32 v2, 4, v{vLANE}
    v_and_b32 v2, 1, v2
    v_lshlrev_b32 v2, 2, v2
    v_and_b32 v3, 7, v{vLANE}
    v_xor_b32 v2, v2, v3
    v_lshl_add_u32 v{vdst}, v2, 4, v{vdst}
    """)

def wtile_tr_addr(a, vdst, hhrows):
    a(f"""
    v_lshrrev_b32 v2, 2, v{vLANE}
    v_and_b32 v2, 3, v2
    v_mul_u32_u24 v3, {hhrows}, v{vHH}
    v_add_u32 v2, v2, v3                ; row
    v_bfe_u32 v3, v2, 1, 1              ; par
    v_lshlrev_b32 v2, 7, v2
    v_lshl_add_u32 v2, v3, 6, v2
    v_lshrrev_b32 v3, 4, v{vLANE}
    v_and_b32 v3, 1, v3
    v_lshl_add_u32 v2, v3, 5, v2
    v_and_b32 v3, 3, v{vLANE}
    v_lshl_add_u32 v{vdst}, v3, 3, v2
    v_xor_b32 v{vdst+1}, 64, v{vdst}
    """)

RED = 0x24000
def pair_reduce(a, acc0, acc1, keep_s, partner_xor):
    L = a.label("PR")
    a(f"""
    s_lshl_b32 {sT[0]}, {sW}, 12
    s_add_u32 {sT[0]}, {sT[0]}, {RED}
    v_add_u32 v2, {sT[0]}, v{vL16}
    s_xor_b32 {sT[1]}, {sW}, {partner_xor}
    s_lshl_b32 {sT[1]}, {sT[1]}, 12
    s_add_u32 {sT[1]}, {sT[1]}, {RED}
    v_add_u32 v3, {sT[1]}, v{vL16}
    s_cmp_eq_u32 {keep_s}, 0
    s_cbranch_scc1 {L}_k0
    """)
    for q in range(4): a(f"ds_write_b128 v2, {vr(acc0+4*q,4)} offset:{1024*q}")
    a("s_waitcnt lgkmcnt(0)")
    for r in range(16): a(f"v_mov_b32 v{acc0+r}, v{acc1+r}")
    a(f"s_branch {L}_j\n {L}_k0:")
    for q in range(4): a(f"ds_write_b128 v2, {vr(acc1+4*q,4)} offset:{1024*q}")
    a(f"{L}_j:\n s_waitcnt lgkmcnt(0)\n s_barrier")
    for q in range(4): a(f"ds_read_b128 {vr(acc1+4*q,4)}, v3 offset:{1024*q}")
    a("s_waitcnt lgkmcnt(0)")
    for r in range(8): a(f"v_pk_add_f32 {vr(acc0+2*r,2)}, {vr(acc0+2*r,2)}, {vr(acc1+2*r,2)}")

def phase_a2a(a):
    L = a.label("A2")
    a(f"s_cmp_ge_u32 {sACT}, 8\n s_cbranch_scc1 {L}_end")
    wtile_dma_voff(a, 4, 896)
    a(f"""
    s_lshl_b32 {sT[0]}, {sDT}, 7
    s_mul_i32 {sT[1]}, {sW}, {8*896}
    s_add_u32 {sT[0]}, {sT[0]}, {sT[1]}
    s_lshl_b32 {sT[1]}, {sW}, 10
    """)
    for i in range(15):
        a(f"s_add_u32 {sT[2]}, {sT[0]}, {i*32*896}")
        a(f"s_add_u32 m0, {sT[1]}, {i*4096}")
        a(f"buffer_load_dwordx4 v4, {SWO}, {sT[2]} offen lds")
    PQR, KVR = 64, 128
    a(f"""
    s_lshr_b32 {sT[3]}, {sW}, 1         ; kh
    s_and_b32 {sT[4]}, {sW}, 1          ; sh
    s_lshl_b32 {sT[5]}, {sST}, 1
    s_add_u32 {sT[5]}, {sT[5]}, {sT[4]} ; rt
    s_lshl_b32 {sT[0]}, {sT[5]}, 15
    s_lshl_b32 {sT[1]}, {sT[3]}, 14
    s_add_u32 {sT[0]}, {sT[0]}, {sT[1]}
    s_add_u32 {sT[0]}, {sT[0]}, {sITO}  ; PQ=0
    s_add_u32 {sT[1]}, {sT[1]}, {sITO}
    s_add_u32 {sT[1]}, {sT[1]}, {KVF}
    """)
    for i in range(16):
        a(f"s_add_u32 {sT[2]}, {sT[0]}, {(i>>2)*4096}")
        a(f"buffer_load_dwordx4 {vr(PQR+4*i,4)}, v{vL16}, {SWS}, {sT[2]} offen offset:{(i&3)*1024} {SC}")
    for i in range(16):
        a(f"s_add_u32 {sT[2]}, {sT[1]}, {(i>>2)*4096}")
        a(f"buffer_load_dwordx4 {vr(KVR+4*i,4)}, v{vL16}, {SWS}, {sT[2]} offen offset:{(i&3)*1024} {SC}")
    a(f"""
    s_cmp_eq_u32 {sIT}, 0
    s_cbranch_scc0 {L}_nores
    v_mul_u32_u24 v5, 896, v{vL31}
    v_lshl_add_u32 v5, v{vHH}, 3, v5
    s_mul_i32 {sT[0]}, {sT[5]}, {32*896}
    s_lshl_b32 {sT[1]}, {sDT}, 7
    s_add_u32 {sT[0]}, {sT[0]}, {sT[1]}
    s_lshl_b32 {sT[1]}, {sT[3]}, 6
    s_add_u32 {sT[0]}, {sT[0]}, {sT[1]}
    """)
    for q in range(4):
        a(f"buffer_load_dwordx2 {vr(192+2*q,2)}, v5, {SX}, {sT[0]} offen offset:{16*q}")
    a("s_waitcnt vmcnt(0)")
    for q in range(8):
        a(f"v_lshlrev_b32 v{RES+2*q}, 16, v{192+q}\n v_and_b32 v{RES+2*q+1}, 0xffff0000, v{192+q}")
    a(f"{L}_nores:")
    wtile_tr_addr(a, 6, 14)
    a(f"""
    s_mul_i32 {sT[0]}, {sT[3]}, {8*28*128}
    v_add_u32 v6, {sT[0]}, v6
    v_add_u32 v7, {sT[0]}, v7
    s_waitcnt vmcnt(0)
    s_barrier
    """)
    AC0, AC1, NUM, OF, WF = 16, 32, 48, 192, 200
    WF = 248 - 0
    WFS = [200, 204, 8, 248]
    a(f"v_mov_b32 v{OF+7}, 0")
    for hd in range(8):
        a(f"v_mfma_f32_32x32x16_bf16 {vr(NUM,16)}, {vr(KVR+8*hd,4)}, {vr(PQR+8*hd,4)}, 0")
        a(f"v_mfma_f32_32x32x16_bf16 {vr(NUM,16)}, {vr(KVR+8*hd+4,4)}, {vr(PQR+8*hd+4,4)}, {vr(NUM,16)}")
        for t in range(2):
            for nb in range(2):
                b = WFS[2*t+nb]
                for u in range(2):
                    a(f"ds_read_b64_tr_b16 {vr(b+2*u,2)}, v{6+nb} offset:{(28*hd+8*t+4*u)*128}")
        a(f"v_add_f32 v12, {fbits(1e-6)}, v{NUM+15}")
        a("v_rcp_f32 v12, v12")
        for r in range(14):
            a(f"v_mul_f32 v{NUM+r}, v{NUM+r}, v12")
        for r in range(7):
            a(f"v_cvt_pk_bf16_f32 v{OF+r}, v{NUM+2*r}, v{NUM+2*r+1}")
        a("s_waitcnt lgkmcnt(0)")
        for t in range(2):
            for nb in range(2):
                acc = (AC0, AC1)[nb]
                c = vr(acc, 16) if (hd or t) else "0"
                a(f"v_mfma_f32_32x32x16_bf16 {vr(acc,16)}, {vr(WFS[2*t+nb],4)}, {vr(OF+4*t,4)}, {c}")
    pair_reduce(a, AC0, AC1, sT[3], 2)
    for r in range(8):
        a(f"v_pk_add_f32 {vr(RES+2*r,2)}, {vr(RES+2*r,2)}, {vr(AC0+2*r,2)}")
    a(f"""
    s_lshl_b32 {sT[0]}, {sT[5]}, 12
    s_lshl_b32 {sT[1]}, {sDT}, 1
    s_add_u32 {sT[1]}, {sT[1]}, {sT[3]}
    s_lshl_b32 {sT[1]}, {sT[1]}, 8
    s_add_u32 {sT[0]}, {sT[0]}, {sT[1]}
    s_add_u32 {sT[0]}, {sT[0]}, {sITO}
    s_add_u32 {sT[0]}, {sT[0]}, {ST}
    """)
    stats_publish(a, RES, 64, sT[0])
    a(f"{L}_end:")

def phase_a2b(a):
    L = a.label("A2b")
    a(f"s_cmp_ge_u32 {sACT}, 8\n s_cbranch_scc1 {L}_end")
    a(f"""
    s_lshr_b32 {sT[3]}, {sW}, 1
    s_and_b32 {sT[4]}, {sW}, 1          ; sh
    s_lshl_b32 {sT[5]}, {sST}, 1
    s_add_u32 {sT[5]}, {sT[5]}, {sT[4]} ; rt
    s_lshl_b32 {sT[0]}, {sT[5]}, 12
    s_add_u32 {sT[0]}, {sT[0]}, {sITO}
    s_add_u32 {sT[0]}, {sT[0]}, {ST}
    """)
    stats_combine(a, sT[0], 64, 80, 82)
    a(f"""
    v_add_f32 v84, {fbits(1e-5)}, v82
    v_rsq_f32 v84, v84
    v_mul_f32 v85, v82, v84
    v_mov_b32 v86, {fbits(1e-5)}
    v_fmac_f32 v86, v85, v84
    v_rsq_f32 v86, v86
    v_mul_f32 v84, v84, v86
    v_mul_f32 v86, v80, v84
    v_sub_f32 v86, 0, v86
    v_mov_b32 v85, v84
    v_mov_b32 v87, v86
    """)
    for r in range(8):
        a(f"v_pk_fma_f32 {vr(96+2*r,2)}, {vr(RES+2*r,2)}, v[84:85], v[86:87]")
    for r in range(8):
        a(f"v_cvt_pk_bf16_f32 v{112+r}, v{96+2*r}, v{96+2*r+1}")
    a(f"""
    s_lshl_b32 {sT[0]}, {sW}, 12
    s_add_u32 {sT[0]}, {sT[0]}, {RED}
    v_lshrrev_b32 v2, 1, v{vL31}
    v_and_b32 v2, 7, v2
    v_xor_b32 v2, v2, v{vHH}
    v_lshlrev_b32 v3, 6, v{vL31}
    v_add_u32 v3, {sT[0]}, v3
    """)
    for q in range(4):
        a(f"v_xor_b32 v4, {2*q}, v2\n v_lshl_add_u32 v4, v4, 3, v3\n ds_write_b64 v4, {vr(112+2*q,2)}")
    a(f"""
    v_lshrrev_b32 v2, 2, v{vLANE}
    v_and_b32 v2, 3, v2
    v_lshl_add_u32 v2, v{vHH}, 3, v2
    v_lshrrev_b32 v3, 4, v{vLANE}
    v_and_b32 v3, 1, v3
    v_lshlrev_b32 v3, 2, v3
    v_and_b32 v4, 3, v{vLANE}
    v_add_u32 v3, v3, v4                ; quad
    v_lshrrev_b32 v4, 1, v2
    v_xor_b32 v3, v3, v4
    v_lshlrev_b32 v2, 6, v2
    v_add_u32 v2, {sT[0]}, v2
    v_lshl_add_u32 v4, v3, 3, v2        ; u=0
    v_xor_b32 v3, 2, v3
    v_lshl_add_u32 v5, v3, 3, v2
    s_waitcnt lgkmcnt(0)
    ds_read_b64_tr_b16 v[120:121], v4
    ds_read_b64_tr_b16 v[122:123], v5 offset:256
    ds_read_b64_tr_b16 v[124:125], v4 offset:1024
    ds_read_b64_tr_b16 v[126:127], v5 offset:1280
    s_lshl_b32 {sT[0]}, {sDT}, 1
    s_add_u32 {sT[0]}, {sT[0]}, {sT[3]}
    s_lshl_b32 {sT[0]}, {sT[0]}, 17
    s_lshl_b32 {sT[1]}, {sT[5]}, 11
    s_add_u32 {sT[0]}, {sT[0]}, {sT[1]}
    s_add_u32 {sT[0]}, {sT[0]}, {sITO}
    s_add_u32 {sT[0]}, {sT[0]}, {HF}
    s_waitcnt lgkmcnt(0)
    buffer_store_dwordx4 v[120:123], v{vL16}, {SWS}, {sT[0]} offen {SC}
    buffer_store_dwordx4 v[124:127], v{vL16}, {SWS}, {sT[0]} offen offset:1024 {SC}
    {L}_end:
    """)

def gemm_big(a, L, srdW, rowstride, s_wcol, nks, hhrows, urows, s_kh, s_act_off, w_is_a):
    CH = 8
    nch = nks // CH
    assert nks % CH == 0
    wtile_dma_voff(a, 4, rowstride)
    wtile_tr_addr(a, 6, hhrows)
    a(f"""
    s_lshl_b32 {sT[0]}, {s_kh}, 16
    v_add_u32 v6, {sT[0]}, v6
    v_add_u32 v7, {sT[0]}, v7
    s_mul_i32 {sT[1]}, {s_kh}, {nks*16*rowstride}
    s_add_u32 {sT[1]}, {sT[1]}, {s_wcol}
    s_mul_i32 {sT[2]}, {sT[9]}, {64*rowstride}
    s_add_u32 {sT[6]}, {sT[1]}, {sT[2]}
    s_lshl_b32 {sT[2]}, {sT[9]}, 13
    s_add_u32 {sT[7]}, {sT[0]}, {sT[2]}
    """)
    def dma_chunk(c):
        for i in range(8):
            a(f"s_add_u32 {sT[2]}, {sT[6]}, {(c*128 + i*8)*rowstride}")
            a(f"s_add_u32 m0, {sT[7]}, {(c&3)*16384 + i*1024}")
            a(f"buffer_load_dwordx4 v4, {srdW}, {sT[2]} offen lds")
    ACT = 64
    WIN = 16
    def act_load(t):
        a(f"s_add_u32 {sT[2]}, {s_act_off}, {(t>>2)*4096}")
        a(f"buffer_load_dwordx4 {vr(ACT+4*(t%WIN),4)}, v{vL16}, {SWS}, {sT[2]} offen offset:{(t&3)*1024} {SC}")
    WF = 128
    def rd(t):
        slot = (t // CH) & 3
        for nb in range(2):
            b = WF + 8 * (t & 1) + 4 * nb
            for u in range(2):
                a(f"ds_read_b64_tr_b16 {vr(b+2*u,2)}, v{6+nb} offset:{slot*16384 + ((t%CH)*16 + urows*u)*128}")
    q = []
    for c in range(4):
        dma_chunk(c); q += [("w", c)] * 8
    for t in range(WIN):
        act_load(t); q.append(("a", t))
    def wait_for(item):
        idx = max(i for i, x in enumerate(q) if x == item)
        n = len(q) - 1 - idx
        a(f"s_waitcnt vmcnt({min(n,63)})")
    for t in range(nks):
        c = t // CH
        if t % CH == 0:
            wait_for(("w", c))
            a("s_waitcnt lgkmcnt(0)\n s_barrier")
            if c >= 1 and c + 3 < nch:
                dma_chunk(c + 3); q += [("w", c + 3)] * 8
            rd(t)
        if (t + 1) % CH != 0:
            rd(t + 1)
            a("s_waitcnt lgkmcnt(4)")
        else:
            a("s_waitcnt lgkmcnt(0)")
        wait_for(("a", t))
        x = vr(ACT + 4 * (t % WIN), 4)
        for nb in range(2):
            acc = 16 + 16 * nb
            w = vr(WF + 8 * (t & 1) + 4 * nb, 4)
            c_ = vr(acc, 16) if t else "0"
            if w_is_a: a(f"v_mfma_f32_32x32x16_bf16 {vr(acc,16)}, {w}, {x}, {c_}")
            else: a(f"v_mfma_f32_32x32x16_bf16 {vr(acc,16)}, {x}, {w}, {c_}")
        if t + WIN < nks:
            act_load(t + WIN); q.append(("a", t + WIN))

def phase_b1(a):
    L = a.label("B1")
    a(f"s_cmp_ge_u32 {sACT}, 7\n s_cbranch_scc1 {L}_end")
    a(f"""
    s_lshr_b32 {sT[3]}, {sW}, 1         ; kh
    s_and_b32 {sT[9]}, {sW}, 1          ; dh
    s_lshl_b32 {sT[4]}, {sFT}, 7
    s_lshl_b32 {sT[5]}, {sDT}, 1
    s_add_u32 {sT[5]}, {sT[5]}, {sT[9]}
    s_lshl_b32 {sT[5]}, {sT[5]}, 17
    s_lshl_b32 {sT[0]}, {sT[3]}, 16
    s_add_u32 {sT[5]}, {sT[5]}, {sT[0]}
    s_add_u32 {sT[5]}, {sT[5]}, {sITO}
    s_add_u32 {sT[5]}, {sT[5]}, {HF}
    v_lshlrev_b32 v5, 3, v{vHH}
    s_lshl_b32 {sT[0]}, {sT[3]}, 6
    s_add_u32 {sT[0]}, {sT[0]}, {sT[4]}
    """)
    for q in range(4):
        a(f"buffer_load_dwordx2 {vr(192+2*q,2)}, v5, {SB1}, {sT[0]} offen offset:{16*q}")
    gemm_big(a, L, SW1, 3584, sT[4], 64, 8, 4, sT[3], sT[5], True)
    pair_reduce(a, 16, 32, sT[3], 2)
    U = 16; T = 64
    for q in range(8):
        a(f"v_lshlrev_b32 v{T+2*q}, 16, v{192+q}\n v_and_b32 v{T+2*q+1}, 0xffff0000, v{192+q}")
    for r in range(8):
        a(f"v_pk_add_f32 {vr(U+2*r,2)}, {vr(U+2*r,2)}, {vr(T+2*r,2)}")
    c0 = -2 * 0.7978845608028654 * LOG2E
    c1 = c0 * 0.044715
    a(f"v_mov_b32 v96, {fbits(c1)}\n v_mov_b32 v97, {fbits(c1)}\n v_mov_b32 v98, {fbits(c0)}\n v_mov_b32 v99, {fbits(c0)}")
    for r in range(8):
        a(f"v_pk_mul_f32 {vr(T+2*r,2)}, {vr(U+2*r,2)}, {vr(U+2*r,2)}")
    for r in range(8):
        a(f"v_pk_fma_f32 {vr(T+2*r,2)}, {vr(T+2*r,2)}, v[96:97], v[98:99]")
    for r in range(8):
        a(f"v_pk_mul_f32 {vr(T+2*r,2)}, {vr(T+2*r,2)}, {vr(U+2*r,2)}")
    for r in range(16):
        a(f"v_exp_f32 v{T+r}, v{T+r}")
    for r in range(16):
        a(f"v_add_f32 v{T+r}, 1.0, v{T+r}")
    for r in range(16):
        a(f"v_rcp_f32 v{T+r}, v{T+r}")
    for r in range(8):
        a(f"v_pk_mul_f32 {vr(T+2*r,2)}, {vr(T+2*r,2)}, {vr(U+2*r,2)}")
    for r in range(8):
        a(f"v_cvt_pk_bf16_f32 v{100+r}, v{T+2*r}, v{T+2*r+1}")
    a(f"""
    s_lshl_b32 {sT[0]}, {sDT}, 1
    s_add_u32 {sT[0]}, {sT[0]}, {sT[9]}
    s_mul_i32 {sT[0]}, {sT[0]}, {112*1024}
    s_lshl_b32 {sT[1]}, {sFT}, 12
    s_add_u32 {sT[0]}, {sT[0]}, {sT[1]}
    s_lshl_b32 {sT[1]}, {sT[3]}, 11
    s_add_u32 {sT[0]}, {sT[0]}, {sT[1]}
    s_add_u32 {sT[0]}, {sT[0]}, {sITO}
    s_add_u32 {sT[0]}, {sT[0]}, {UF}
    buffer_store_dwordx4 v[100:103], v{vL16}, {SWS}, {sT[0]} offen {SC}
    buffer_store_dwordx4 v[104:107], v{vL16}, {SWS}, {sT[0]} offen offset:1024 {SC}
    {L}_end:
    """)

def phase_b2(a):
    L = a.label("B2")
    a(f"s_cmp_ge_u32 {sACT}, 8\n s_cbranch_scc1 {L}_end")
    a(f"""
    s_and_b32 {sT[3]}, {sW}, 1          ; kh
    s_lshr_b32 {sT[9]}, {sW}, 1         ; dh
    s_lshl_b32 {sT[4]}, {sST}, 7
    s_lshl_b32 {sT[5]}, {sDT}, 1
    s_add_u32 {sT[5]}, {sT[5]}, {sT[9]}
    s_mul_i32 {sT[5]}, {sT[5]}, {112*1024}
    s_mul_i32 {sT[0]}, {sT[3]}, {56*1024}
    s_add_u32 {sT[5]}, {sT[5]}, {sT[0]}
    s_add_u32 {sT[5]}, {sT[5]}, {sITO}
    s_add_u32 {sT[5]}, {sT[5]}, {UF}
    v_lshlrev_b32 v5, 1, v{vL31}
    s_lshl_b32 {sT[0]}, {sT[3]}, 6
    s_add_u32 {sT[0]}, {sT[0]}, {sT[4]}
    buffer_load_ushort v192, v5, {SB2}, {sT[0]} offen
    """)
    gemm_big(a, L, SW2, 4096, sT[4], 56, 4, 8, sT[3], sT[5], False)
    pair_reduce(a, 16, 32, sT[3], 1)
    a("v_lshlrev_b32 v192, 16, v192\n v_mov_b32 v193, v192")
    for r in range(8):
        a(f"v_pk_add_f32 {vr(16+2*r,2)}, {vr(16+2*r,2)}, v[192:193]")
    for r in range(8):
        a(f"v_pk_add_f32 {vr(RES+2*r,2)}, {vr(RES+2*r,2)}, {vr(16+2*r,2)}")
    for r in range(8):
        a(f"v_cvt_pk_bf16_f32 v{100+r}, v{RES+2*r}, v{RES+2*r+1}")
    a(f"""
    s_lshl_b32 {sT[5]}, {sST}, 1
    s_add_u32 {sT[5]}, {sT[5]}, {sT[3]} ; rt
    s_lshl_b32 {sT[6]}, {sDT}, 1
    s_add_u32 {sT[6]}, {sT[6]}, {sT[9]} ; dtile32
    s_cmp_eq_u32 {sIT}, 0
    s_cbranch_scc0 {L}_fin
    s_mul_i32 {sT[0]}, {sT[5]}, {28*1024}
    s_lshl_b32 {sT[1]}, {sT[6]}, 11
    s_add_u32 {sT[0]}, {sT[0]}, {sT[1]}
    s_add_u32 {sT[0]}, {sT[0]}, {XF}
    buffer_store_dwordx4 v[100:103], v{vL16}, {SWS}, {sT[0]} offen {SC}
    buffer_store_dwordx4 v[104:107], v{vL16}, {SWS}, {sT[0]} offen offset:1024 {SC}
    s_lshl_b32 {sT[0]}, {sT[5]}, 12
    s_lshl_b32 {sT[1]}, {sT[6]}, 8
    s_add_u32 {sT[0]}, {sT[0]}, {sT[1]}
    s_add_u32 {sT[0]}, {sT[0]}, {ST2}
    """)
    stats_publish(a, RES, 64, sT[0])
    a(f"""
    s_branch {L}_end
    {L}_fin:
    v_mul_u32_u24 v5, 896, v{vL31}
    v_lshl_add_u32 v5, v{vHH}, 3, v5
    s_mul_i32 {sT[0]}, {sT[5]}, {32*896}
    s_lshl_b32 {sT[1]}, {sT[6]}, 6
    s_add_u32 {sT[0]}, {sT[0]}, {sT[1]}
    """)
    for q in range(4):
        a(f"buffer_store_dwordx2 {vr(100+2*q,2)}, v5, {SOUT}, {sT[0]} offen offset:{16*q}")
    a(f"{L}_end:")

def build(stop=99):
    a = K()
    kernel_begin(a, KNAME)
    prologue(a)
    a("L_iter:")
    phases = [phase_a1, phase_kvred, phase_a2a, phase_a2b, phase_b1, phase_b2]
    for i, p in enumerate(phases):
        p(a)
        if i + 1 >= stop:
            a("s_branch L_end"); break
        if i < len(phases) - 1:
            a.barrier_grid()
    else:
        a(f"""
        s_cmp_eq_u32 {sIT}, 1
        s_cbranch_scc1 L_end
        """)
        a.barrier_grid()
        a(f"""
        s_mov_b32 {sIT}, 1
        s_mov_b32 {sITO}, {ITB}
        s_branch L_iter
        """)
    a("L_end:\n s_endpgm")
    lines, n = haz.fix(a.lines)
    hdr = f"; @launch grid=(256,1,1) block=(256,1,1) lds=163840\n"
    txt = hdr + '.amdgcn_target "amdgcn-amd-amdhsa--gfx950"\n.text\n' + "\n".join(lines) + "\n" + '.section .rodata,"a"\n' + descriptor(KNAME, 256)
    return txt

if __name__ == "__main__":
    out = sys.argv[1] if len(sys.argv) > 1 else "v1.s"
    stop = int(sys.argv[2]) if len(sys.argv) > 2 else 99
    open(out, "w").write(build(stop))
```

```python
import sys, struct
sys.path.insert(0, "work")
from gen import *
import haz

KNAME = NAME + "_kernel"
S, D, F = 2048, 448, 1792
ITB = 0x680000 + 0x8000
PQ, KVP, HF, ST, KVF, UF = 0x0, 0x200000, 0x300000, 0x4C0000, 0x4F8000, 0x500000
assert UF + 14 * 112 * 1024 == ITB
XF = 2 * ITB
ST2 = XF + 0x1C0000
FILL_END = ST2 + 0x38000
WQP = 0x1000000
assert FILL_END <= WQP
STAMP_OFF = 0x2000000
WS_SIZE = 0x10000000
LOG2E = 1.4426950408889634
def fbits(x): return "0x%08x" % struct.unpack("<I", struct.pack("<f", x))[0]

SX, SWQKV, SWO, SW1, SW2, SB1, SB2, SOUT, SWS, SDBG = [f"s[{i}:{i+3}]" for i in range(4, 44, 4)]
sW, sRB, sH, sDT, sST, sFT, sACT, sIT, sITO, sBUD = "s3", "s44", "s45", "s46", "s47", "s48", "s49", "s50", "s51", "s52"
sWH, sWL, sLB = "s53", "s54", "s55"
sT = [f"s{i}" for i in range(56, 72)]
sW1T = [f"s{i}" for i in range(72, 80)]
sW2T = [f"s{i}" for i in range(80, 88)]
sAT = [f"s{i}" for i in range(88, 96)]
SC = "sc1"
STAMPS = False
OPT = {}

def vr(b, n=1): return f"v{b}" if n == 1 else f"v[{b}:{b+n-1}]"
def ar(b, n=1): return f"a{b}" if n == 1 else f"a[{b}:{b+n-1}]"
MF = "v_mfma_f32_32x32x16_bf16"

vL16, vL16b, vHH, vL31, vLANE, vL8, vDW1, vDW2, CSK, CSV, vDWO, vMAX, vCNT, vCNA = range(240, 254)
assert CSK % 2 == 0
aRES, aCSQ, aB1, aB2, aWF = 0, 16, 32, 40, 64

class K(Asm):
    nstamp = 0
    stubs = None
    def stamp(self, name=""):
        if not STAMPS: return
        self(f"s_memrealtime s[96:97]\n s_lshl_b32 s98, {sIT}, 5\n s_add_u32 s98, s98, {self.nstamp}\n s_waitcnt lgkmcnt(0)\n s_mov_b32 m0, s98\n v_writelane_b32 v255, s96, m0")
        self.names = getattr(self, "names", []) + [name]
        self.nstamp += 1
        assert self.nstamp <= 32
    def stamp_dump(self):
        if not STAMPS: return
        self(f"""
        s_lshl_b32 s98, s2, 2
        s_add_u32 s98, s98, {sW}
        s_lshl_b32 s98, s98, 8
        s_add_u32 s98, s98, {STAMP_OFF}
        v_lshlrev_b32 v2, 2, v{vLANE}
        buffer_store_dword v255, v2, {SWS}, s98 offen
        """)
    def srd(self, dst, ptr, size):
        b = int(dst[2:dst.index(":")])
        self(f"s_mov_b32 s{b}, s{ptr}\n s_mov_b32 s{b+1}, s{ptr+1}\n s_mov_b32 s{b+2}, {size}\n s_mov_b32 s{b+3}, 0x00020000")
    def halfsum(self, v, tmp):
        self(f"v_mov_b32 {tmp}, {v}\n v_permlane32_swap_b32 {v}, {tmp}\n v_add_f32 {v}, {v}, {tmp}")
    def check_ops(self, regs):
        regs = list(regs); ops = []
        if len(regs) % 2 == 1:
            ops.append(f"v_max3_u32 v{vMAX}, v{regs[0]}, v{regs[1]}, v{regs[2]}"); rest = regs[3:]
        else:
            ops.append(f"v_max_u32 v{vMAX}, v{regs[0]}, v{regs[1]}"); rest = regs[2:]
        for i in range(0, len(rest), 2):
            ops.append(f"v_max3_u32 v{vMAX}, v{vMAX}, v{rest[i]}, v{rest[i+1]}")
        ops.append(f"v_cmp_eq_u32 vcc, -1, v{vMAX}")
        return ops
    def check_branch(self, regs, reissue, wait_after):
        L = self.label("CK")
        self(f"s_cbranch_vccnz {L}_r\n {L}_k:")
        main = self.lines
        self.lines = self.stubs
        self(f"{L}_r:\n s_cmp_eq_u32 {sBUD}, 0\n s_cbranch_scc1 {L}_k\n s_sub_u32 {sBUD}, {sBUD}, 1")
        reissue()
        self(f"s_waitcnt vmcnt({wait_after})")
        for o in self.check_ops(regs): self(o)
        self(f"s_cbranch_vccnz {L}_r\n s_branch {L}_k")
        self.lines = main
    def check(self, regs, reissue, wait_after):
        for o in self.check_ops(regs): self(o)
        self.check_branch(regs, reissue, wait_after)
    def probe(self, voff, soff, vt, nreg=1):
        L = self.label("PB")
        ld = {1: "buffer_load_dword", 4: "buffer_load_dwordx4"}[nreg]
        self(f"{L}_p:\n {ld} {vr(vt,nreg)}, v{voff}, {SWS}, {soff} offen {SC}\n s_waitcnt vmcnt(0)")
        if nreg == 1: self(f"v_cmp_eq_u32 vcc, -1, v{vt}")
        else:
            for o in self.check_ops(range(vt, vt + nreg)): self(o)
        self(f"""
        s_cbranch_vccz {L}_o
        s_cmp_eq_u32 {sBUD}, 0
        s_cbranch_scc1 {L}_o
        s_sub_u32 {sBUD}, {sBUD}, 1
        s_branch {L}_p
        {L}_o:
        """)
    def counter_issue(self, off, nsh):
        self(f"v_min_u32 v{vCNA}, {nsh-1}, v{vLANE}\n v_lshlrev_b32 v{vCNA}, 6, v{vCNA}")
        self(f"buffer_load_dword v{vCNT}, v{vCNA}, {SDBG}, 0 offen offset:{off} sc1")
    def counter_check(self, off, target):
        L = self.label("CC")
        self(f"v_cmp_gt_u32 vcc, {target}, v{vCNT}\n s_cbranch_vccnz {L}_r\n {L}_k:")
        main = self.lines
        self.lines = self.stubs
        self(f"""
        {L}_r:
        s_cmp_eq_u32 {sBUD}, 0
        s_cbranch_scc1 {L}_k
        s_sub_u32 {sBUD}, {sBUD}, 1
        s_sleep 8
        buffer_load_dword v{vCNT}, v{vCNA}, {SDBG}, 0 offen offset:{off} sc1
        s_waitcnt vmcnt(0)
        v_cmp_gt_u32 vcc, {target}, v{vCNT}
        s_cbranch_vccnz {L}_r
        s_branch {L}_k
        """)
        self.lines = main
    def counter_wait(self, off, nsh, target, vt):
        L = self.label("CW")
        self(f"""
        v_lshlrev_b32 v{vt+1}, 6, v{vLANE}
        s_mov_b64 exec, {(1<<nsh)-1}
        {L}_p:
        buffer_load_dword v{vt}, v{vt+1}, {SDBG}, 0 offen offset:{off} sc1
        s_waitcnt vmcnt(0)
        v_cmp_gt_u32 vcc, {target}, v{vt}
        s_cbranch_vccz {L}_o
        s_cmp_eq_u32 {sBUD}, 0
        s_cbranch_scc1 {L}_o
        s_sub_u32 {sBUD}, {sBUD}, 1
        s_sleep 2
        s_branch {L}_p
        {L}_o:
        s_mov_b64 exec, -1
        """)

def wtile_dma_voff(a, vdst, rowstride):
    a(f"""
    v_lshrrev_b32 v2, 3, v{vLANE}
    v_mul_u32_u24 v{vdst}, {rowstride}, v2
    v_lshrrev_b32 v2, 4, v{vLANE}
    v_and_b32 v2, 1, v2
    v_lshlrev_b32 v2, 2, v2
    v_and_b32 v3, 7, v{vLANE}
    v_xor_b32 v2, v2, v3
    v_lshl_add_u32 v{vdst}, v2, 4, v{vdst}
    """)

def wtile_tr_addr(a, vdst, hhrows, s_keep, s_base):
    a(f"""
    v_lshrrev_b32 v2, 2, v{vLANE}
    v_and_b32 v2, 3, v2
    v_mul_u32_u24 v3, {hhrows}, v{vHH}
    v_add_u32 v2, v2, v3
    v_bfe_u32 v3, v2, 1, 1
    v_xor_b32 v3, {s_keep}, v3
    v_lshlrev_b32 v2, 7, v2
    v_lshl_add_u32 v2, v3, 6, v2
    v_lshrrev_b32 v3, 4, v{vLANE}
    v_and_b32 v3, 1, v3
    v_lshl_add_u32 v2, v3, 5, v2
    v_and_b32 v3, 3, v{vLANE}
    v_lshl_add_u32 v{vdst}, v3, 3, v2
    v_add_u32 v{vdst}, {s_base}, v{vdst}
    v_xor_b32 v{vdst+1}, 64, v{vdst}
    """)

def rot_table(a, tab, nch, s_base, step):
    rot = sT[14]
    if OPT.get("rot", 0):
        a(f"s_add_u32 {rot}, {sACT}, {OPT.get('rotadd', 0)}\n s_and_b32 {rot}, {rot}, 7")
        if nch == 7: a(f"s_cmp_eq_u32 {rot}, 7\n s_cselect_b32 {rot}, 0, {rot}")
    else:
        a(f"s_mov_b32 {rot}, 0")
    for c in range(nch):
        a(f"s_mul_i32 {tab[c]}, {rot}, {step}\n s_add_u32 {tab[c]}, {tab[c]}, {s_base}")
        if c + 1 < nch:
            a(f"s_add_u32 {rot}, {rot}, 1\n s_cmp_eq_u32 {rot}, {nch}\n s_cselect_b32 {rot}, 0, {rot}")

def prologue(a):
    a(f"""
    s_cmp_ge_u32 s2, 256
    s_cbranch_scc1 L_end
    s_load_dwordx16 s[72:87], s[0:1], 0
    s_load_dwordx4 s[88:91], s[0:1], 64
    s_load_dwordx2 s[92:93], s[0:1], 80
    v_lshrrev_b32 v2, 6, v0
    v_and_b32 v{vLANE}, 63, v0
    v_readfirstlane_b32 {sW}, v2
    v_lshrrev_b32 v{vHH}, 5, v{vLANE}
    v_and_b32 v{vL31}, 31, v{vLANE}
    v_lshlrev_b32 v{vL16}, 4, v{vLANE}
    v_lshlrev_b32 v{vL8}, 3, v{vLANE}
    v_add_u32 v{vL16b}, 0x1000, v{vL16}
    s_and_b32 {sT[0]}, s2, 7
    s_lshr_b32 {sT[1]}, s2, 3
    s_lshr_b32 {sT[2]}, {sT[0]}, 1
    s_and_b32 {sT[3]}, {sT[0]}, 1
    s_lshl_b32 {sRB}, {sT[2]}, 2
    s_lshr_b32 {sT[4]}, {sT[1]}, 3
    s_add_u32 {sRB}, {sRB}, {sT[4]}
    s_lshl_b32 {sH}, {sT[3]}, 3
    s_and_b32 {sT[4]}, {sT[1]}, 7
    s_add_u32 {sH}, {sH}, {sT[4]}
    s_lshr_b32 {sT[4]}, {sT[1]}, 2
    s_and_b32 {sT[5]}, {sT[1]}, 3
    s_mul_i32 {sT[6]}, {sT[1]}, 43
    s_lshr_b32 {sT[6]}, {sT[6]}, 7
    s_mul_i32 {sT[7]}, {sT[6]}, 3
    s_sub_u32 {sT[7]}, {sT[1]}, {sT[7]}
    s_add_u32 {sT[7]}, {sT[7]}, 4
    s_cmp_eq_u32 {sT[3]}, 0
    s_cselect_b32 {sT[4]}, {sT[4]}, {sT[6]}
    s_cselect_b32 {sDT}, {sT[5]}, {sT[7]}
    s_lshl_b32 {sST}, {sT[2]}, 3
    s_add_u32 {sST}, {sST}, {sT[4]}
    s_mul_i32 {sFT}, {sT[2]}, 7
    s_add_u32 {sFT}, {sFT}, {sT[4]}
    s_mov_b32 {sACT}, {sT[4]}
    s_mov_b32 {sIT}, 0
    s_mov_b32 {sITO}, 0
    s_mov_b32 {sBUD}, 60000
    s_lshr_b32 {sWH}, {sW}, 1
    s_and_b32 {sWL}, {sW}, 1
    s_waitcnt lgkmcnt(0)
    """)
    a.srd(SX, 72, S * D * 2)
    a.srd(SWQKV, 74, D * 3 * D * 2)
    a.srd(SWS, 92, WS_SIZE)
    a.srd(SWO, 76, D * D * 2)
    a.srd(SW1, 80, S * F * 2)
    a.srd(SB1, 82, F * 2)
    a.srd(SW2, 84, F * S * 2)
    a.srd(SB2, 86, S * 2)
    a.srd(SOUT, 88, S * D * 2)
    a.srd(SDBG, 90, 256)

def late_setup(a):
    wtile_dma_voff(a, vDW1, 3584)
    wtile_dma_voff(a, vDW2, 4096)
    wtile_dma_voff(a, vDWO, 896)
    for which, tab in ((1, sW1T), (2, sW2T)):
        stride, nks, scol = (3584, 64, sFT) if which == 1 else (4096, 56, sST)
        a(f"""
        s_mul_i32 {sT[10]}, {sWH}, {nks*16*stride}
        s_mul_i32 {sT[2]}, {sWL}, {64*stride}
        s_add_u32 {sT[10]}, {sT[10]}, {sT[2]}
        s_lshl_b32 {sT[2]}, {scol}, 7
        s_add_u32 {sT[10]}, {sT[10]}, {sT[2]}
        """)
        rot_table(a, tab, nks // 8, sT[10], 128 * stride)
    a(f"s_lshl_b32 {sLB}, {sWH}, 16\n s_lshl_b32 {sT[2]}, {sWL}, 13\n s_add_u32 {sLB}, {sLB}, {sT[2]}")

XREG = 64
ACQ, ACK, ACV = 16, 32, 48
WFR = 192
TRA = 4
vM, vR, vC, vRS = 12, 13, 14, 15
XBASE = [0x8000, 0x18000, 0x20000, 0x10000]
def a1_lds(f):
    if f < 32: return 1024 * f
    if f < 56: return 0x10000 + 1024 * (f - 32)
    return 0x20000 + 1024 * (f - 56)
def a1_src(f):
    if f < 56: t, seg = f >> 1, 1 + (f & 1)
    else: t, seg = f - 56, 0
    return t * 16 * 2688 + seg * 896
CSL, RSL, KVL = 0x27000, 0x27400, 0x0
sKRL, sKRS, sKRM = 's99', 's100', 's101'
aKRL, aKRS = 41, 42

def a1_wraw_ops(f0, f1, vo, s_kv, s_q, s_w10):
    o = []
    for f in range(f0, f1, 4):
        sb = s_kv if f < 56 else s_q
        o.append(f"s_add_u32 {sT[2]}, {sb}, {a1_src(f)}\n s_add_u32 m0, {s_w10}, {a1_lds(f)}\n buffer_load_dwordx4 v{vo}, {SWQKV}, {sT[2]} offen lds")
    return o

def a1_wpk_setup(a):
    a(f"s_mul_i32 {sT[13]}, {sH}, {84*1024}\n s_lshl_b32 {sT[15]}, {sW}, 10\n s_add_u32 {sT[13]}, {sT[13]}, {sT[15]}\n s_add_u32 {sT[13]}, {sT[13]}, {WQP}")
def a1_wpk_ops(f0, f1):
    return [f"s_add_u32 {sT[2]}, {sT[13]}, {f*1024}\n s_add_u32 m0, {sT[15]}, {a1_lds(f)}\n buffer_load_dwordx4 v{vL16}, {SWS}, {sT[2]} offen {SC} lds" for f in range(f0, f1, 4)]

def wo_dma(a):
    a(f"""
    s_mul_i32 {sT[0]}, {sWH}, {224*896}
    s_mul_i32 {sT[1]}, {sWL}, {8*896}
    s_add_u32 {sT[0]}, {sT[0]}, {sT[1]}
    s_lshl_b32 {sT[1]}, {sDT}, 7
    s_add_u32 {sT[0]}, {sT[0]}, {sT[1]}
    s_lshl_b32 {sT[1]}, {sWH}, 16
    s_lshl_b32 {sT[2]}, {sWL}, 10
    s_add_u32 {sT[1]}, {sT[1]}, {sT[2]}
    """)
    for j in range(15):
        a(f"s_add_u32 {sT[2]}, {sT[0]}, {j*16*896}\n s_add_u32 m0, {sT[1]}, {0x8000 + j*2048}\n buffer_load_dwordx4 v{vDWO}, {SWO}, {sT[2]} offen lds")

def big_dma_ops(which, c):
    stride, srd, vo, tab = (3584, SW1, vDW1, sW1T) if which == 1 else (4096, SW2, vDW2, sW2T)
    return [f"s_add_u32 {sT[2]}, {tab[c]}, {i*8*stride}\n s_add_u32 m0, {sLB}, {(c&3)*16384 + i*1024}\n buffer_load_dwordx4 v{vo}, {srd}, {sT[2]} offen lds" for i in range(8)]
def big_dma_chunk(a, which, c):
    for o in big_dma_ops(which, c): a(o)

def stats_loads(a, soff, T):
    for i in range(7):
        a(f"buffer_load_dwordx2 {vr(T+2*i,2)}, v{vL8}, {SWS}, {soff} offen offset:{i*512} {SC}")

def stats_math_ops(T, vm, vvar, U, pk=True):
    o = []
    if pk:
        for i in range(3): o.append(f"v_pk_add_f32 {vr(U+2*i,2)}, {vr(T+4*i,2)}, {vr(T+4*i+2,2)}")
        o.append(f"v_pk_add_f32 {vr(U,2)}, {vr(U,2)}, {vr(U+2,2)}")
        o.append(f"v_pk_add_f32 {vr(U+4,2)}, {vr(U+4,2)}, {vr(T+12,2)}")
        o.append(f"v_pk_add_f32 {vr(U,2)}, {vr(U,2)}, {vr(U+4,2)}")
    else:
        o.append(f"v_add_f32 v{U}, v{T}, v{T+2}"); o.append(f"v_add_f32 v{U+1}, v{T+1}, v{T+3}")
        for i in range(2, 7):
            o.append(f"v_add_f32 v{U}, v{U}, v{T+2*i}"); o.append(f"v_add_f32 v{U+1}, v{U+1}, v{T+2*i+1}")
    o += [f"v_mov_b32 v{vm}, v{U}", f"v_permlane32_swap_b32 v{vm}, v{U}", f"v_add_f32 v{vm}, v{vm}, v{U}"]
    o.append(f"v_mul_f32 v{U+2}, {fbits(1/14)}, v{vm}")
    o.append(f"v_mul_f32 v{vm}, {fbits(1/448)}, v{vm}")
    for i in range(7): o.append(f"v_sub_f32 v{T+2*i}, v{T+2*i}, v{U+2}")
    o += [f"v_mul_f32 v{U+3}, v{T}, v{T}", f"v_mul_f32 v{U+4}, v{T+2}, v{T+2}"]
    for i in range(2, 7): o.append(f"v_fmac_f32 v{U+3+(i&1)}, v{T+2*i}, v{T+2*i}")
    o.append(f"v_add_f32 v{U+3}, v{U+3}, v{U+4}")
    o.append(f"v_fmac_f32 v{U+1}, {fbits(1/32)}, v{U+3}")
    o += [f"v_mov_b32 v{vvar}, v{U+1}", f"v_permlane32_swap_b32 v{vvar}, v{U+1}", f"v_add_f32 v{vvar}, v{vvar}, v{U+1}"]
    o.append(f"v_mul_f32 v{vvar}, {fbits(1/448)}, v{vvar}")
    return o

def stats_publish(a, X, T, soff):
    for i in range(4): a(f"v_pk_add_f32 {vr(T+2*i,2)}, {vr(X+4*i,2)}, {vr(X+4*i+2,2)}")
    a(f"v_pk_add_f32 {vr(T,2)}, {vr(T,2)}, {vr(T+2,2)}")
    a(f"v_pk_add_f32 {vr(T+4,2)}, {vr(T+4,2)}, {vr(T+6,2)}")
    a(f"v_pk_add_f32 {vr(T,2)}, {vr(T,2)}, {vr(T+4,2)}")
    a(f"v_add_f32 v{T+16}, v{T}, v{T+1}")
    a.halfsum(f"v{T+16}", f"v{T+17}")
    a(f"v_mul_f32 v{T+18}, {fbits(-1/32)}, v{T+16}")
    for i in range(8): a(f"v_pk_add_f32 {vr(T+2*i,2)}, {vr(X+2*i,2)}, {vr(T+18,2)} op_sel_hi:[1,0]")
    a(f"v_pk_mul_f32 {vr(T+18,2)}, {vr(T,2)}, {vr(T,2)}")
    a(f"v_pk_mul_f32 {vr(T+20,2)}, {vr(T+2,2)}, {vr(T+2,2)}")
    for i in range(2, 8):
        d = T + 18 + 2 * (i & 1)
        a(f"v_pk_fma_f32 {vr(d,2)}, {vr(T+2*i,2)}, {vr(T+2*i,2)}, {vr(d,2)}")
    a(f"v_pk_add_f32 {vr(T+18,2)}, {vr(T+18,2)}, {vr(T+20,2)}")
    a(f"v_add_f32 v{T+17}, v{T+18}, v{T+19}")
    a.halfsum(f"v{T+17}", f"v{T+18}")
    a("s_mov_b32 exec_hi, 0")
    a(f"buffer_store_dwordx2 {vr(T+16,2)}, v{vL8}, {SWS}, {soff} offen {SC}")
    a("s_mov_b64 exec, -1")

def a1_tr_setup(a, it):
    sh, delta = (9, 256) if it == 0 else (8, 512)
    a(f"""
    v_lshrrev_b32 v2, 2, v{vLANE}
    v_and_b32 v2, 3, v2
    v_lshrrev_b32 v3, 4, v{vLANE}
    v_and_b32 v3, 1, v3
    v_lshlrev_b32 v3, 2, v3
    v_and_b32 v10, 3, v{vLANE}
    v_add_u32 v3, v3, v10
    s_and_b32 {sT[0]}, {sH}, 1
    v_add_u32 v3, {sT[0]}, v3
    v_and_b32 v3, 7, v3
    v_lshlrev_b32 v3, 3, v3
    v_lshl_add_u32 v{TRA}, v2, 6, v3
    v_lshl_add_u32 v{TRA}, v{vHH}, {sh}, v{TRA}
    v_add_u32 v{TRA+1}, 0x10000, v{TRA}
    v_add_u32 v{TRA+2}, 0x20000, v{TRA}
    v_add_u32 v{TRA+3}, {delta}, v{TRA}
    v_add_u32 v{TRA+4}, {delta}, v{TRA+1}
    v_add_u32 v{TRA+5}, {delta}, v{TRA+2}
    s_lshl_b32 {sT[0]}, {sW}, 8
    s_add_u32 {sT[0]}, {sT[0]}, {RSL}
    v_lshlrev_b32 v11, 2, v{vLANE}
    v_add_u32 v11, {sT[0]}, v11
    v_lshlrev_b32 v{vRS}, 4, v{vHH}
    v_add_u32 v{vRS}, {sT[0]}, v{vRS}
    """)

def rowstats_ops():
    return [f"v_add_f32 v{vR}, {fbits(1e-5)}, v{vR}", f"v_rsq_f32 v{vR}, v{vR}", f"v_cmp_eq_u32 vcc, 0, v{vHH}",
            f"v_cndmask_b32 v3, v{vM}, v{vR}, vcc", f"ds_write_b32 v11, v3"]

def kvred_setup(a):
    a(f"""
    s_lshr_b32 {sT[0]}, {sRB}, 2
    s_and_b32 {sT[4]}, {sRB}, 3
    v_lshrrev_b32 v2, 4, v{vLANE}
    v_and_b32 v3, 15, v{vLANE}
    v_lshlrev_b32 v2, 12, v2
    v_lshl_add_u32 v2, v3, 4, v2
    v_accvgpr_write_b32 a{aKRL}, v2
    s_lshl_b32 {sKRL}, {sH}, 16
    s_lshl_b32 {sT[3]}, {sT[0]}, 10
    s_add_u32 {sKRL}, {sKRL}, {sT[3]}
    s_lshl_b32 {sT[3]}, {sT[4]}, 8
    s_add_u32 {sKRL}, {sKRL}, {sT[3]}
    s_add_u32 {sKRL}, {sKRL}, {KVP}
    s_and_b32 {sT[3]}, {sT[4]}, 1
    s_lshl_b32 {sT[3]}, {sT[3]}, 4
    v_add_u32 v3, {sT[3]}, v3
    v_cmp_le_u32 vcc, 14, v3
    v_cndmask_b32 v24, 0, 1, vcc
    v_mul_u32_u24 v25, 14, v24
    v_sub_u32 v25, v3, v25
    v_cmp_le_u32 vcc, 28, v3
    v_and_b32 v26, 1, v3
    v_add_u32 v26, 14, v26
    v_cndmask_b32 v25, v25, v26, vcc
    v_bfe_u32 v26, v3, 1, 1
    v_cndmask_b32 v24, v24, v26, vcc
    v_and_b32 v26, 3, v25
    v_lshrrev_b32 v25, 2, v25
    v_lshl_add_u32 v26, v25, 3, v26
    v_lshl_add_u32 v26, v24, 2, v26
    v_lshlrev_b32 v26, 4, v26
    v_accvgpr_write_b32 a{aKRS}, v26
    s_lshr_b32 {sT[3]}, {sT[4]}, 1
    s_lshl_b32 {sKRS}, {sT[3]}, 9
    s_lshl_b32 {sT[5]}, {sH}, 11
    s_add_u32 {sKRS}, {sKRS}, {sT[5]}
    s_lshr_b32 {sT[5]}, {sT[0]}, 1
    s_lshl_b32 {sT[5]}, {sT[5]}, 10
    s_add_u32 {sKRS}, {sKRS}, {sT[5]}
    s_and_b32 {sT[5]}, {sT[0]}, 1
    s_lshl_b32 {sT[5]}, {sT[5]}, 3
    s_add_u32 {sKRS}, {sKRS}, {sT[5]}
    s_add_u32 {sKRS}, {sKRS}, {KVF}
    s_cmp_ge_u32 {sRB}, 14
    s_cselect_b32 {sKRM}, 0, -1
    """)

vWQ = 10
def a1_front_it0(a):
    L = a.label("A1f")
    a(f"""
    v_lshrrev_b32 v2, 3, v{vLANE}
    v_mul_u32_u24 v2, 896, v2
    v_and_b32 v3, 7, v{vLANE}
    v_lshrrev_b32 v5, 4, v{vLANE}
    v_xor_b32 v3, v3, v5
    v_lshl_add_u32 v6, v3, 4, v2
    v_xor_b32 v7, 64, v6
    s_lshl_b32 {sT[0]}, {sRB}, 2
    s_add_u32 {sT[0]}, {sT[0]}, {sW}
    s_mul_i32 {sT[0]}, {sT[0]}, {32*896}
    s_mov_b32 {sT[7]}, {XBASE[0]}
    s_cmp_eq_u32 {sW}, 1
    s_cselect_b32 {sT[7]}, {XBASE[1]}, {sT[7]}
    s_cmp_eq_u32 {sW}, 2
    s_cselect_b32 {sT[7]}, {XBASE[2]}, {sT[7]}
    s_cmp_eq_u32 {sW}, 3
    s_cselect_b32 {sT[7]}, {XBASE[3]}, {sT[7]}
    """)
    for aa in range(4):
        for j in range(7):
            a(f"s_add_u32 {sT[2]}, {sT[0]}, {aa*8*896 + j*128}\n s_add_u32 m0, {sT[7]}, {(aa*7+j)*1024}\n buffer_load_dwordx4 v{6 + (aa&1)}, {SX}, {sT[2]} offen lds")
    a(f"""
    v_lshrrev_b32 v1, 2, v{vLANE}
    v_mul_u32_u24 v1, 2688, v1
    v_and_b32 v5, 3, v{vLANE}
    v_lshl_add_u32 v1, v5, 4, v1
    s_mul_i32 {sT[8]}, {sH}, 56
    s_and_b32 {sT[8]}, {sT[8]}, 0xfff0
    s_mul_i32 {sT[9]}, {sW}, {16*2688}
    s_add_u32 {sT[9]}, {sT[9]}, {sT[8]}
    s_mul_i32 {sT[2]}, {sWH}, {16*2688}
    s_add_u32 {sT[8]}, {sT[8]}, {sT[2]}
    s_mul_i32 {sT[2]}, {sWL}, 896
    s_add_u32 {sT[8]}, {sT[8]}, {sT[2]}
    s_lshl_b32 {sT[11]}, {sW}, 10
    """)
    for o in a1_wraw_ops(0, 32, 1, sT[8], sT[9], sT[11]): a(o)
    ntouch = 0
    if OPT.get("t1", 1):
        a(f"v_mul_u32_u24 v30, 2688, v{vLANE}\n s_mul_i32 {sT[12]}, {sH}, 56\n s_and_b32 {sT[12]}, {sT[12]}, 0xfff0")
        groups = [(256 + 64 * i) * 2688 + seg * 896 for i in range(3) for seg in (1, 2)] + [64 * i * 2688 for i in range(7)] + [0, 0, 0]
        for i in range(4):
            a(f"s_mov_b32 {sT[2]}, {groups[4*i]}")
            for w in range(1, 4):
                a(f"s_cmp_eq_u32 {sW}, {w}\n s_cselect_b32 {sT[2]}, {groups[4*i+w]}, {sT[2]}")
            a(f"s_add_u32 {sT[2]}, {sT[2]}, {sT[12]}")
            a(f"buffer_load_dword v31, v30, {SWQKV}, {sT[2]} offen\n buffer_load_dword v31, v30, {SWQKV}, {sT[2]} offen offset:60"); ntouch += 2
    if OPT.get("t2", 1):
        a(f"v_lshlrev_b32 v30, 7, v{vLANE}\n s_lshl_b32 {sT[2]}, s2, 2\n s_add_u32 {sT[2]}, {sT[2]}, {sW}\n s_lshl_b32 {sT[2]}, {sT[2]}, 13")
        for srd in (SWO, SW1) + ((SW2,) if OPT.get("t2", 1) > 1 else ()):
            a(f"buffer_load_dword v31, v30, {srd}, {sT[2]} offen"); ntouch += 1
    late_setup(a)
    kvred_setup(a)
    a1_tr_setup(a, 0)
    a(f"""
    v_lshrrev_b32 v2, 3, v{vL31}
    v_mul_u32_u24 v2, 7168, v2
    v_and_b32 v3, 7, v{vL31}
    v_lshl_add_u32 v2, v3, 7, v2
    v_add_u32 v2, {sT[7]}, v2
    v_lshrrev_b32 v3, 1, v{vL31}
    v_and_b32 v3, 7, v3
    v_xor_b32 v3, v3, v{vHH}
    """)
    for q in range(4): a(f"v_xor_b32 v10, {2*q}, v3\n v_lshl_add_u32 v{WFR+q}, v10, 4, v2")
    a(f"""
    v_mov_b32 v2, 0
    v_add_u32 v3, {CSL}, v{vL8}
    ds_write_b32 v3, v2
    ds_write_b32 v3, v2 offset:4
    v_mov_b32 v16, 0
    v_mov_b32 v17, 0
    v_mov_b32 v18, 0
    v_mov_b32 v19, 0
    v_mov_b32 v{vC}, 0x3f803f80
    s_add_u32 {sT[12]}, {sH}, 1
    s_and_b32 {sT[12]}, {sT[12]}, 6
    s_cmp_eq_u32 {sT[12]}, 0
    s_cbranch_scc0 {L}_np
    v_mov_b32 v20, -1
    v_mov_b32 v21, -1
    v_mov_b32 v22, -1
    v_mov_b32 v23, -1
    s_lshl_b32 {sT[0]}, {sRB}, 2
    s_lshr_b32 {sT[1]}, {sH}, 3
    s_lshl_b32 {sT[1]}, {sT[1]}, 1
    s_add_u32 {sT[0]}, {sT[0]}, {sT[1]}
    s_and_b32 {sT[1]}, {sH}, 1
    s_add_u32 {sT[0]}, {sT[0]}, {sT[1]}
    s_lshl_b32 {sT[0]}, {sT[0]}, 2
    s_add_u32 {sT[0]}, {sT[0]}, {sW}
    s_mul_i32 {sT[0]}, {sT[0]}, {20*1024}
    """)
    for i in range(20):
        a(f"buffer_store_dwordx4 v[20:23], v{vL16}, {SWS}, {sT[0]} offen offset:{(i&3)*1024} {SC}")
        if i % 4 == 3: a(f"s_add_u32 {sT[0]}, {sT[0]}, 4096")
    a(f"""
    s_waitcnt vmcnt(0)
    {L}_np:
    s_waitcnt vmcnt({8+ntouch})
    """)
    a.stamp("a1_xland")
    for t in range(28):
        a(f"ds_read_b128 {vr(XREG+4*t,4)}, v{WFR+(t&3)} offset:{(t>>2)*1024}")
        if t == 13: a("s_waitcnt lgkmcnt(0)")
    a("s_waitcnt lgkmcnt(0)\n s_barrier")
    a(f"""
    s_add_u32 {sT[12]}, {sT[12]}, {sW}
    s_cmp_lg_u32 {sT[12]}, 0
    s_cbranch_scc1 {L}_ns
    s_and_b32 {sT[0]}, {sRB}, 3
    s_lshl_b32 {sT[0]}, {sT[0]}, 6
    v_mov_b32 v2, 1
    v_mov_b32 v3, {sT[0]}
    s_mov_b64 exec, 1
    buffer_atomic_add v2, v3, {SDBG}, 0 offen sc1
    s_mov_b64 exec, -1
    {L}_ns:
    """)
    vm = a1_wraw_ops(32, 56, 1, sT[8], sT[9], sT[11])
    for i in range(112):
        if i % 16 == 0 and vm: a(vm.pop(0))
        a(f"v_dot2c_f32_bf16 v{16+(i&1)}, v{XREG+i}, v{vC}")
        a(f"v_dot2c_f32_bf16 v{18+(i&1)}, v{XREG+i}, v{XREG+i}")
    assert not vm
    a(f"v_add_f32 v{vM}, v16, v17\n v_add_f32 v{vR}, v18, v19")
    a.halfsum(f"v{vM}", "v16")
    a.halfsum(f"v{vR}", "v17")
    a(f"""
    v_mul_f32 v{vM}, {fbits(1/448)}, v{vM}
    v_mul_f32 v{vR}, {fbits(1/448)}, v{vR}
    v_fma_f32 v{vR}, -v{vM}, v{vM}, v{vR}
    v_max_f32 v{vR}, 0, v{vR}
    v_mov_b32 v{CSK}, 0
    v_mov_b32 v{CSV}, 0
    """)
    for o in rowstats_ops(): a(o)
    a(f"s_waitcnt vmcnt({6+ntouch})\n s_barrier")

def a1_rd(a, f, dst):
    ad = a1_lds(f); win, off = ad >> 16, ad & 0xffff
    a(f"ds_read_b64_tr_b16 {dst(0)}, v{TRA+win} offset:{off}")
    a(f"ds_read_b64_tr_b16 {dst(2)}, v{TRA+3+win} offset:{off}")

def a1_kvloop(a, it):
    L = a.label("A1k")
    LA = 3
    def xload(t):
        a(f"buffer_load_dwordx4 {vr(XREG+4*t,4)}, v{vL16b if t&4 else vL16}, {SWS}, {sAT[t>>3]} offen offset:{(t&3)*1024} {SC}")
    def rd(t):
        for s_ in range(2):
            b = WFR + 8 * (t & 3) + 4 * s_
            a1_rd(a, 2 * t + s_, lambda o, b=b: vr(b + o, 2))
    qd = []
    if it == 1:
        stats_loads(a, sT[8], 176)
        a("s_waitcnt vmcnt(0)")
        a.check(range(176, 190), lambda: stats_loads(a, sT[8], 176), 0)
        for t in range(28): xload(t)
        a.nstamp -= 2
        a.stamp()
        a("s_barrier")
        for o in stats_math_ops(176, vM, vR, 224) + rowstats_ops(): a(o)
        a.stamp()
        if STAMPS: a.names = a.names[:-2]
    else:
        qd = a1_wraw_ops(56, 84, 1, sT[8], sT[9], sT[11])
    for t in range(LA): rd(t)
    for t in range(28):
        if it == 0 and t + LA == 16:
            a("s_waitcnt vmcnt(7)\n s_barrier")
        if it == 1 and t % 4 == 0:
            g = t // 4
            n = 4 * (6 - g)
            a(f"s_waitcnt vmcnt({n})")
            a.check(range(XREG + 16 * g, XREG + 16 * g + 16), lambda g=g: [xload(tt) for tt in range(4 * g, 28)], n)
        if t + LA < 28: rd(t + LA)
        a(f"s_waitcnt lgkmcnt({4*min(LA, 27-t)})")
        w = WFR + 8 * (t & 3)
        x = vr(XREG + 4 * t, 4)
        c = lambda base: (vr(base, 16) if t else "0")
        a(f"{MF} {vr(ACK,16)}, {x}, {vr(w,4)}, {c(ACK)}")
        a(f"{MF} {vr(ACV,16)}, {x}, {vr(w+4,4)}, {c(ACV)}")
        if it == 0:
            if qd: a(qd.pop(0))
            a(f"s_cmp_eq_u32 {sW}, {t&3}\n s_cbranch_scc0 {L}_cs{t}")
            for s_, dst in enumerate((CSK, CSV)):
                for i in range(4): a(f"v_dot2c_f32_bf16 v{dst}, v{w+4*s_+i}, v{vC}")
            a(f"{L}_cs{t}:")

def phase_a1(a):
    L = a.label("A1")
    RR, MM, T0 = 176, 224, 192
    a(f"s_cmp_eq_u32 {sIT}, 0\n s_cbranch_scc0 {L}_it1")
    a1_front_it0(a)
    a.stamp("a1_main")
    a1_kvloop(a, 0)
    a.counter_issue(0, 4)
    a(f"""
    v_lshlrev_b32 v10, 2, v{vL31}
    v_add_u32 v10, {CSL}, v10
    ds_add_f32 v10, v{CSK} offset:128
    ds_add_f32 v10, v{CSV} offset:256
    s_waitcnt lgkmcnt(0)
    s_barrier
    ds_read_b32 v{CSK}, v10 offset:128
    ds_read_b32 v{CSV}, v10 offset:256
    s_branch {L}_epi
    {L}_it1:
    """)
    a1_tr_setup(a, 1)
    a(f"""
    s_lshl_b32 {sT[0]}, {sRB}, 2
    s_add_u32 {sT[0]}, {sT[0]}, {sW}
    s_mul_i32 {sAT[0]}, {sT[0]}, {28*1024}
    s_add_u32 {sAT[0]}, {sAT[0]}, {XF}
    s_add_u32 {sAT[1]}, {sAT[0]}, 0x2000
    s_add_u32 {sAT[2]}, {sAT[0]}, 0x4000
    s_add_u32 {sAT[3]}, {sAT[0]}, 0x6000
    s_mul_i32 {sT[8]}, {sT[0]}, 3584
    s_add_u32 {sT[8]}, {sT[8]}, {ST2}
    v_mov_b32 v{vCNT}, 64
    """)
    a1_kvloop(a, 1)
    a("s_barrier")
    a(f"{L}_epi:")
    a.stamp("a1_epi")
    for q in range(4):
        a(f"ds_read_b128 {vr(MM+4*q,4)}, v{vRS} offset:{128+32*q}")
        a(f"ds_read_b128 {vr(RR+4*q,4)}, v{vRS} offset:{32*q}")
    a(f"""
    s_mov_b32 {sT[3]}, {fbits(1e-6)}
    v_mov_b32 v0, {fbits(1e-6)}
    v_mov_b32 v1, {fbits(LOG2E)}
    s_lshl_b32 {sT[0]}, {sW}, 12
    v_add_u32 v2, {sT[0]}, v{vL16}
    s_lshl_b32 {sT[5]}, {sW}, 10
    v_add_u32 v3, {sT[5]}, v{vL16}
    s_lshl_b32 {sT[6]}, {sH}, 4
    s_add_u32 {sT[6]}, {sT[6]}, {sRB}
    s_lshl_b32 {sT[6]}, {sT[6]}, 12
    s_add_u32 {sT[6]}, {sT[6]}, {sT[5]}
    s_add_u32 {sT[6]}, {sT[6]}, {sITO}
    s_add_u32 {sT[6]}, {sT[6]}, {KVP}
    s_waitcnt lgkmcnt(0)
    """)
    k0, v0 = ACK, ACV
    P = lambda b, r: vr(b + 2 * r, 2)
    CS = vr(CSK, 2)
    for r in range(8): a(f"v_pk_fma_f32 {P(k0,r)}, {P(MM,r)}, {CS}, {P(k0,r)} op_sel_hi:[1,0,1] neg_lo:[1,0,0] neg_hi:[1,0,0]")
    for r in range(8): a(f"v_pk_fma_f32 {P(k0,r)}, {P(k0,r)}, {P(RR,r)}, v[0:1] op_sel_hi:[1,1,0]")
    for r in range(8): a(f"v_pk_mul_f32 {P(T0,r)}, {P(k0,r)}, v[0:1] op_sel:[0,1] op_sel_hi:[1,1]")
    for r in range(8):
        a(f"v_exp_f32_e64 v{T0+2*r}, v{T0+2*r} clamp")
        a(f"v_max_f32 v{k0+2*r}, {sT[3]}, v{k0+2*r}")
        a(f"v_exp_f32_e64 v{T0+2*r+1}, v{T0+2*r+1} clamp")
        a(f"v_max_f32 v{k0+2*r+1}, {sT[3]}, v{k0+2*r+1}")
        a(f"v_pk_fma_f32 {P(v0,r)}, {P(MM,r)}, {CS}, {P(v0,r)} op_sel:[0,1,0] op_sel_hi:[1,1,1] neg_lo:[1,0,0] neg_hi:[1,0,0]")
    for r in range(8): a(f"v_pk_mul_f32 {P(v0,r)}, {P(v0,r)}, {P(RR,r)}")
    for r in range(8): a(f"v_pk_add_f32 {P(k0,r)}, {P(k0,r)}, {P(T0,r)}")
    for r in range(8): a(f"v_cvt_pk_bf16_f32 v{v0+r}, v{v0+2*r}, v{v0+2*r+1}")
    a("s_mov_b32 exec_lo, 0xf0000000\n s_mov_b32 exec_hi, 0xf0000000")
    for r in range(8): a(f"v_mov_b32 v{ACV+r}, 0x3f803f80")
    a("s_mov_b64 exec, -1")
    for r in range(8): a(f"v_cvt_pk_bf16_f32 v{k0+r}, v{k0+2*r}, v{k0+2*r+1}")
    KVA = 176
    a(f"{MF} {vr(KVA,16)}, {vr(ACK,4)}, {vr(ACV,4)}, 0")
    a(f"{MF} {vr(KVA,16)}, {vr(ACK+4,4)}, {vr(ACV+4,4)}, {vr(KVA,16)}")
    for q in range(4): a(f"ds_write_b128 v2, {vr(KVA+4*q,4)} offset:{KVL+1024*q}")
    a("s_waitcnt vmcnt(0) lgkmcnt(0)\n s_barrier")
    for w2 in range(4): a(f"ds_read_b128 {vr(192+4*w2,4)}, v3 offset:{KVL+4096*w2}")
    QLA = 5
    def qrd(t): a1_rd(a, 56 + t, lambda o, t=t: ar(aWF + 4 * (t & 7) + o, 2))
    for t in range(QLA): qrd(t)
    a.counter_check(0, 16)
    a(f"""
    s_waitcnt lgkmcnt({2*QLA})
    v_pk_add_f32 v[192:193], v[192:193], v[196:197]
    v_pk_add_f32 v[194:195], v[194:195], v[198:199]
    v_pk_add_f32 v[200:201], v[200:201], v[204:205]
    v_pk_add_f32 v[202:203], v[202:203], v[206:207]
    v_pk_add_f32 v[192:193], v[192:193], v[200:201]
    v_pk_add_f32 v[194:195], v[194:195], v[202:203]
    buffer_store_dwordx4 v[192:195], v{vL16}, {SWS}, {sT[6]} offen {SC}
    """)
    a.stamp("a1_kvp")
    T1 = 224
    va = [f"v_accvgpr_read_b32 v{T1+r}, a{aCSQ+r}" for r in range(16)]
    va += [f"v_accvgpr_read_b32 v2, a{aKRL}", f"v_accvgpr_read_b32 v3, a{aKRS}"]
    for t in range(28):
        if t + QLA < 28: qrd(t + QLA)
        a(f"s_waitcnt lgkmcnt({2*min(QLA, 27-t)})")
        a(f"{MF} {vr(ACQ,16)}, {ar(aWF+4*(t&7),4)}, {vr(XREG+4*t,4)}, {vr(ACQ,16) if t else '0'}")
        if va: a(va.pop(0))
    a(f"""
    s_add_u32 {sT[6]}, {sKRL}, {sITO}
    s_add_u32 {sT[7]}, {sKRS}, {sITO}
    s_cmp_lg_u32 {sW}, 0
    s_cbranch_scc1 {L}_nr
    """)
    def rloads():
        for i in range(4):
            a(f"s_add_u32 {sT[2]}, {sT[6]}, {i*0x4000}")
            a(f"buffer_load_dwordx4 {vr(176+4*i,4)}, v2, {SWS}, {sT[2]} offen {SC}")
    rloads()
    a(f"{L}_nr:\n s_cmp_eq_u32 {sIT}, 0\n s_cbranch_scc0 {L}_ncq")
    a(f"s_lshl_b32 {sT[0]}, {sW}, 10\n v_add_u32 v32, {sT[0]}, v{TRA+2}\n v_add_u32 v33, {sT[0]}, v{TRA+5}\n v_mov_b32 v34, 0")
    for i in range(7):
        a(f"ds_read_b64_tr_b16 {vr(WFR+4*i,2)}, v32 offset:{4096*i}")
        a(f"ds_read_b64_tr_b16 {vr(WFR+4*i+2,2)}, v33 offset:{4096*i}")
    a("s_waitcnt lgkmcnt(0)")
    for j in range(28): a(f"v_dot2c_f32_bf16 v34, v{WFR+j}, v{vC}")
    a(f"""
    ds_add_f32 v10, v34
    v_lshlrev_b32 v32, 4, v{vHH}
    v_add_u32 v32, {CSL}, v32
    s_waitcnt lgkmcnt(0)
    s_barrier
    """)
    for q in range(4): a(f"ds_read_b128 {vr(T1+4*q,4)}, v32 offset:{32*q}")
    a("s_waitcnt lgkmcnt(0)")
    for r in range(16): a(f"v_accvgpr_write_b32 a{aCSQ+r}, v{T1+r}")
    a(f"s_branch {L}_q\n {L}_ncq:\n s_barrier\n {L}_q:")
    for r in range(8): a(f"v_pk_fma_f32 {P(ACQ,r)}, {P(T1,r)}, v[{vM}:{vR}], {P(ACQ,r)} op_sel_hi:[1,0,1] neg_lo:[1,0,0] neg_hi:[1,0,0]")
    for r in range(8): a(f"v_pk_fma_f32 {P(ACQ,r)}, {P(ACQ,r)}, v[{vM}:{vR}], v[0:1] op_sel:[0,1,0] op_sel_hi:[1,1,0]")
    for r in range(8): a(f"v_pk_mul_f32 {P(T1,r)}, {P(ACQ,r)}, v[0:1] op_sel:[0,1] op_sel_hi:[1,1]")
    for r in range(16):
        a(f"v_exp_f32_e64 v{T1+r}, v{T1+r} clamp")
        a(f"v_max_f32 v{ACQ+r}, {sT[3]}, v{ACQ+r}")
    for r in range(8): a(f"v_pk_add_f32 {P(ACQ,r)}, {P(ACQ,r)}, {P(T1,r)}")
    for r in range(8): a(f"v_cvt_pk_bf16_f32 v{T1+r}, v{ACQ+2*r}, v{ACQ+2*r+1}")
    a(f"""
    s_lshl_b32 {sT[0]}, {sRB}, 2
    s_add_u32 {sT[0]}, {sT[0]}, {sW}
    s_lshl_b32 {sT[0]}, {sT[0]}, 4
    s_add_u32 {sT[0]}, {sT[0]}, {sH}
    s_lshl_b32 {sT[0]}, {sT[0]}, 11
    s_add_u32 {sT[0]}, {sT[0]}, {sITO}
    buffer_store_dwordx4 {vr(T1,4)}, v{vL16}, {SWS}, {sT[0]} offen {SC}
    buffer_store_dwordx4 {vr(T1+4,4)}, v{vL16}, {SWS}, {sT[0]} offen offset:1024 {SC}
    """)
    a.stamp("a1_end")
    a(f"s_cmp_lg_u32 {sW}, 0\n s_cbranch_scc1 {L}_end\n s_waitcnt vmcnt(2)")
    a.check(range(176, 192), rloads, 0)
    a(f"""
    v_pk_add_f32 v[176:177], v[176:177], v[180:181]
    v_pk_add_f32 v[178:179], v[178:179], v[182:183]
    v_pk_add_f32 v[184:185], v[184:185], v[188:189]
    v_pk_add_f32 v[186:187], v[186:187], v[190:191]
    v_pk_add_f32 v[176:177], v[176:177], v[184:185]
    v_pk_add_f32 v[178:179], v[178:179], v[186:187]
    v_permlane32_swap_b32 v176, v178
    v_permlane32_swap_b32 v177, v179
    v_pk_add_f32 v[176:177], v[176:177], v[178:179]
    v_permlane16_swap_b32 v176, v177
    v_add_f32 v176, v176, v177
    v_mov_b32 v177, v176
    v_permlane16_swap_b32 v176, v177
    v_cvt_pk_bf16_f32 v180, v176, v177
    v_and_b32 v180, {sKRM}, v180
    v_mov_b32 v181, v180
    v_permlane32_swap_b32 v180, v181
    s_mov_b64 exec, 0xffff
    buffer_store_dwordx2 v[180:181], v3, {SWS}, {sT[7]} offen {SC}
    s_mov_b64 exec, -1
    {L}_end:
    """)

RED = 0x24000
def red_addrs(a, base, partner_xor, v_own, v_par):
    a(f"""
    s_lshl_b32 {sT[0]}, {sW}, 12
    s_add_u32 {sT[0]}, {sT[0]}, {base}
    v_add_u32 v{v_own}, {sT[0]}, v{vL16}
    v_xor_b32 v{v_par}, {partner_xor*4096}, v{v_own}
    """)
def pair_reduce(a, acc0, acc1, v_own, v_par, after_barrier=None):
    for q in range(4): a(f"ds_write_b128 v{v_own}, {vr(acc1+4*q,4)} offset:{1024*q}")
    a("s_waitcnt lgkmcnt(0)\n s_barrier")
    for q in range(4): a(f"ds_read_b128 {vr(acc1+4*q,4)}, v{v_par} offset:{1024*q}")
    if after_barrier: after_barrier()
    for q in range(4):
        a(f"s_waitcnt lgkmcnt({3-q})")
        for r in range(2): a(f"v_pk_add_f32 {vr(acc0+4*q+2*r,2)}, {vr(acc0+4*q+2*r,2)}, {vr(acc1+4*q+2*r,2)}")

def helper_work(a):
    L = a.label("HW")
    a(f"""
    s_and_b32 {sT[0]}, s2, 7
    s_lshr_b32 {sT[0]}, {sT[0]}, 1
    s_lshl_b32 {sT[0]}, {sT[0]}, 3
    s_lshr_b32 {sT[1]}, s2, 3
    s_add_u32 {sT[0]}, {sT[0]}, {sT[1]}
    s_sub_u32 {sT[0]}, {sT[0]}, 24
    s_lshl_b32 {sT[0]}, {sT[0]}, 2
    s_add_u32 {sT[0]}, {sT[0]}, {sW}         ; hw 0..127
    v_lshrrev_b32 v4, 2, v{vLANE}
    v_mul_u32_u24 v4, 2688, v4
    v_and_b32 v5, 3, v{vLANE}
    v_lshl_add_u32 v4, v5, 4, v4
    """)
    for i in range(11):
        a(f"""
        s_add_u32 {sT[1]}, {sT[0]}, {128*i}
        s_min_u32 {sT[1]}, {sT[1]}, 1343
        s_mul_i32 {sT[2]}, {sT[1]}, 3121
        s_lshr_b32 {sT[2]}, {sT[2]}, 18
        s_mul_i32 {sT[3]}, {sT[2]}, 84
        s_sub_u32 {sT[3]}, {sT[1]}, {sT[3]}
        s_mul_i32 {sT[2]}, {sT[2]}, 56
        s_and_b32 {sT[2]}, {sT[2]}, 0xfff0
        s_lshr_b32 {sT[4]}, {sT[3]}, 1
        s_and_b32 {sT[5]}, {sT[3]}, 1
        s_add_u32 {sT[5]}, {sT[5]}, 1
        s_sub_u32 {sT[6]}, {sT[3]}, 56
        s_cmp_lt_u32 {sT[3]}, 56
        s_cselect_b32 {sT[4]}, {sT[4]}, {sT[6]}
        s_cselect_b32 {sT[5]}, {sT[5]}, 0
        s_mul_i32 {sT[4]}, {sT[4]}, {16*2688}
        s_mul_i32 {sT[5]}, {sT[5]}, 896
        s_add_u32 {sT[2]}, {sT[2]}, {sT[4]}
        s_add_u32 {sT[2]}, {sT[2]}, {sT[5]}
        buffer_load_dwordx4 {vr(16+4*i,4)}, v4, {SWQKV}, {sT[2]} offen
        """)
    a(f"""
    v_mov_b32 v8, -1
    v_mov_b32 v9, -1
    v_mov_b32 v10, -1
    v_mov_b32 v11, -1
    s_lshl_b32 {sT[1]}, {sT[0]}, 10
    s_add_u32 {sT[1]}, {sT[1]}, {UF}
    {L}_f:
    buffer_store_dwordx4 v[8:11], v{vL16}, {SWS}, {sT[1]} offen {SC}
    s_add_u32 {sT[1]}, {sT[1]}, {128*1024}
    s_cmp_lt_u32 {sT[1]}, {FILL_END}
    s_cbranch_scc1 {L}_f
    s_waitcnt vmcnt(60)
    """)
    for i in range(11):
        a(f"""
        s_add_u32 {sT[1]}, {sT[0]}, {128*i}
        s_min_u32 {sT[1]}, {sT[1]}, 1343
        s_lshl_b32 {sT[2]}, {sT[1]}, 10
        s_add_u32 {sT[2]}, {sT[2]}, {WQP}
        buffer_store_dwordx4 {vr(16+4*i,4)}, v{vL16}, {SWS}, {sT[2]} offen {SC}
        """)
    a(f"""
    s_waitcnt vmcnt(0)
    s_barrier
    s_cmp_lg_u32 {sW}, 0
    s_cbranch_scc1 {L}_ns
    v_mov_b32 v2, 1
    v_mov_b32 v3, 4
    s_mov_b64 exec, 1
    buffer_atomic_add v2, v3, {SDBG}, 0 offen sc1
    s_mov_b64 exec, -1
    {L}_ns:
    """)
    if OPT.get("warm", 1):
        for srd in (SW1, SW2):
            LL = a.label("HWW")
            a(f"""
            s_lshl_b32 {sT[1]}, {sT[0]}, 10
            {LL}:
            buffer_load_dwordx4 v[16:19], v{vL16}, {srd}, {sT[1]} offen
            s_add_u32 {sT[1]}, {sT[1]}, {128*1024}
            s_cmp_lt_u32 {sT[1]}, {F*S*2}
            s_cbranch_scc1 {LL}
            """)
    a.counter_wait(4, 1, 32, 2)
    a("s_barrier")
    a1_wpk_setup(a)
    for o in a1_wpk_ops(0, 84): a(o)

def phase_a2(a):
    L = a.label("A2")
    PQR, KVR = 64, 128
    AC0, AC1 = 16, 32
    a(f"""
    s_lshl_b32 {sT[5]}, {sST}, 1
    s_add_u32 {sT[5]}, {sT[5]}, {sWL}
    s_lshl_b32 {sAT[0]}, {sT[5]}, 15
    s_lshl_b32 {sT[1]}, {sWH}, 14
    s_add_u32 {sAT[0]}, {sAT[0]}, {sT[1]}
    s_add_u32 {sAT[0]}, {sAT[0]}, {sITO}
    s_add_u32 {sAT[1]}, {sAT[0]}, 0x2000
    s_add_u32 {sAT[2]}, {sT[1]}, {sITO}
    s_add_u32 {sAT[2]}, {sAT[2]}, {KVF}
    s_add_u32 {sAT[3]}, {sAT[2]}, 0x2000
    """)
    def pq_loads():
        for i in range(16):
            a(f"buffer_load_dwordx4 {vr(PQR+4*i,4)}, v{vL16b if i&4 else vL16}, {SWS}, {sAT[i>>3]} offen offset:{(i&3)*1024} {SC}")
    def kv_loads(i0=0):
        for i in range(i0, 16):
            a(f"buffer_load_dwordx4 {vr(KVR+4*i,4)}, v{vL16b if i&4 else vL16}, {SWS}, {sAT[2+(i>>3)]} offen offset:{(i&3)*1024} {SC}")
    wo_dma(a)
    a(f"s_cmp_eq_u32 {sIT}, 0\n s_cbranch_scc0 {L}_nm")
    a(f"""
    v_mul_u32_u24 v2, 896, v{vL31}
    v_lshl_add_u32 v2, v{vHH}, 3, v2
    s_mul_i32 {sT[0]}, {sT[5]}, {32*896}
    s_lshl_b32 {sT[1]}, {sDT}, 7
    s_add_u32 {sT[0]}, {sT[0]}, {sT[1]}
    s_lshl_b32 {sT[1]}, {sWH}, 6
    s_add_u32 {sT[0]}, {sT[0]}, {sT[1]}
    """)
    for q in range(4): a(f"buffer_load_dwordx2 {vr(224+2*q,2)}, v2, {SX}, {sT[0]} offen offset:{16*q}")
    a(f"""
    v_lshlrev_b32 v3, 3, v{vHH}
    s_min_u32 {sT[0]}, {sFT}, 27
    s_lshl_b32 {sT[0]}, {sT[0]}, 7
    s_add_u32 {sT[0]}, {sT[0]}, {sT[1]}
    """)
    for q in range(4): a(f"buffer_load_dwordx2 {ar(aB1+2*q,2)}, v3, {SB1}, {sT[0]} offen offset:{16*q}")
    a(f"""
    v_lshlrev_b32 v4, 1, v{vL31}
    s_lshl_b32 {sT[0]}, {sT[5]}, 6
    buffer_load_ushort a{aB2}, v4, {SB2}, {sT[0]} offen
    {L}_nm:
    """)
    pq_loads()
    a(f"s_lshl_b32 {sT[0]}, {sWH}, 16\n s_add_u32 {sT[0]}, {sT[0]}, 0x8000")
    wtile_tr_addr(a, 6, 14, sWH, sT[0])
    red_addrs(a, RED, 2, 8, 9)
    for r in range(16): a(f"v_accvgpr_read_b32 v{AC0+r}, a{aRES+r}")
    a(f"""
    s_mul_i32 {sT[8]}, {sT[5]}, 3584
    s_add_u32 {sT[8]}, {sT[8]}, {sITO}
    s_add_u32 {sT[8]}, {sT[8]}, {ST}
    s_lshl_b32 {sT[1]}, {sDT}, 1
    s_add_u32 {sT[1]}, {sT[1]}, {sWH}
    s_lshl_b32 {sT[9]}, {sT[1]}, 8
    s_add_u32 {sT[9]}, {sT[9]}, {sT[8]}
    s_lshl_b32 {sT[12]}, {sT[1]}, 17
    s_lshl_b32 {sT[0]}, {sT[5]}, 11
    s_add_u32 {sT[12]}, {sT[12]}, {sT[0]}
    s_add_u32 {sT[12]}, {sT[12]}, {sITO}
    s_add_u32 {sT[12]}, {sT[12]}, {HF}
    s_lshl_b32 {sT[0]}, {sW}, 11
    s_add_u32 {sT[0]}, {sT[0]}, 0x20000
    v_lshrrev_b32 v2, 1, v{vL31}
    v_and_b32 v2, 7, v2
    v_xor_b32 v2, v2, v{vHH}
    v_lshlrev_b32 v3, 6, v{vL31}
    v_add_u32 v3, {sT[0]}, v3
    """)
    TW = 208
    for q in range(4): a(f"v_xor_b32 v4, {2*q}, v2\n v_lshl_add_u32 v{TW+q}, v4, 3, v3")
    a(f"""
    v_lshrrev_b32 v2, 2, v{vLANE}
    v_and_b32 v2, 3, v2
    v_lshl_add_u32 v2, v{vHH}, 3, v2
    v_lshrrev_b32 v3, 4, v{vLANE}
    v_and_b32 v3, 1, v3
    v_lshlrev_b32 v3, 2, v3
    v_and_b32 v4, 3, v{vLANE}
    v_add_u32 v3, v3, v4
    v_lshrrev_b32 v4, 1, v2
    v_xor_b32 v3, v3, v4
    v_lshlrev_b32 v2, 6, v2
    v_add_u32 v2, {sT[0]}, v2
    v_lshl_add_u32 v{TW+4}, v3, 3, v2
    v_xor_b32 v3, 2, v3
    v_lshl_add_u32 v{TW+5}, v3, 3, v2
    v_mov_b32 v199, 0
    v_mov_b32 v207, 0
    v_lshrrev_b32 v2, 1, v{vLANE}
    v_lshlrev_b32 v2, 9, v2
    v_and_b32 v3, 1, v{vLANE}
    v_mul_u32_u24 v3, 96, v3
    v_add_u32 v11, v2, v3
    s_waitcnt vmcnt(0)
    s_cmp_eq_u32 {sIT}, 0
    s_cbranch_scc0 {L}_nu
    """)
    for q in range(8): a(f"v_lshlrev_b32 v{AC0+2*q}, 16, v{224+q}\n v_and_b32 v{AC0+2*q+1}, 0xffff0000, v{224+q}")
    a(f"{L}_nu:")
    a.check(range(PQR, PQR + 64), lambda: (a("s_sleep 4"), pq_loads()), 0)
    a("s_barrier")
    a.stamp("a2_pq")
    a.probe(11, sAT[2], 12, 4)
    kv_loads()
    NB = [48, 224]
    OB = [192, 200]
    def num_ops(hd):
        n = NB[hd & 1]
        return [f"{MF} {vr(n,16)}, {vr(KVR+8*hd,4)}, {vr(PQR+8*hd,4)}, 0",
                f"{MF} {vr(n,16)}, {vr(KVR+8*hd+4,4)}, {vr(PQR+8*hd+4,4)}, {vr(n,16)}"]
    p1 = big_dma_ops(1, 0) + big_dma_ops(1, 1)
    nd = [0]
    def kvchk(hd):
        a(f"s_waitcnt vmcnt({14-2*hd+nd[0]})")
        a.check(range(KVR + 8 * hd, KVR + 8 * hd + 8), lambda hd=hd: kv_loads(2 * hd), 0)
    def wrd(hd):
        for t in range(2):
            for nb in range(2):
                b = aWF + 16 * (hd & 1) + 4 * (2 * t + nb)
                for u in range(2):
                    a(f"ds_read_b64_tr_b16 {ar(b+2*u,2)}, v{6+nb} offset:{(28*hd+8*t+4*u)*128}")
    def div_ops(hd):
        n, o = NB[hd & 1], OB[hd & 1]
        ops = [f"v_add_f32 v10, {fbits(1e-6)}, v{n+15}", "v_rcp_f32 v10, v10"]
        for r in range(7):
            ops += [f"v_mul_f32 v{n+2*r}, v{n+2*r}, v10", f"v_mul_f32 v{n+2*r+1}, v{n+2*r+1}, v10"]
        for r in range(7): ops.append(f"v_cvt_pk_bf16_f32 v{o+r}, v{n+2*r}, v{n+2*r+1}")
        return ops
    def out_ops(hd):
        ops = []
        for t in range(2):
            for nb in range(2):
                acc = (AC0, AC1)[nb]
                c = vr(acc, 16) if (hd or t or nb == 0) else "0"
                ops.append(f"{MF} {vr(acc,16)}, {ar(aWF+16*(hd&1)+4*(2*t+nb),4)}, {vr(OB[hd&1]+4*t,4)}, {c}")
        return ops
    wrd(0)
    kvchk(0)
    for o in num_ops(0): a(o)
    a.stamp("a2_kv")
    kvchk(1)
    for o in num_ops(1): a(o)
    for o in div_ops(0): a(o)
    for hd in range(8):
        if hd + 1 < 8: wrd(hd + 1)
        a(f"s_waitcnt lgkmcnt({8 if hd + 1 < 8 else 0})")
        va = div_ops(hd + 1) if hd + 1 < 8 else []
        for j, o in enumerate(out_ops(hd)):
            a(o)
            if j & 1 and p1:
                a(p1.pop(0)); nd[0] += 1
            for _ in range(6):
                if va: a(va.pop(0))
        while va: a(va.pop(0))
        if hd + 2 < 8:
            kvchk(hd + 2)
            for o in num_ops(hd + 2): a(o)
    a.stamp("a2_mm")
    pair_reduce(a, AC0, AC1, 8, 9)
    stats_publish(a, AC0, 64, sT[9])
    a(f"s_cmp_ge_u32 {sACT}, 7\n s_cbranch_scc1 {L}_nop2")
    big_dma_chunk(a, 1, 2)
    a(f"{L}_nop2:")
    stats_loads(a, sT[8], 96)
    for r in range(16): a(f"v_accvgpr_write_b32 a{aRES+r}, v{AC0+r}")
    a("s_waitcnt vmcnt(0)")
    a.check(range(96, 110), lambda: stats_loads(a, sT[8], 96), 0)
    a.stamp("a2_st")
    for o in stats_math_ops(96, 80, 82, 112): a(o)
    a(f"""
    v_add_f32 v84, {fbits(1e-5)}, v82
    v_rsq_f32 v84, v84
    v_mov_b32 v86, {fbits(1e-5)}
    v_mul_f32 v85, v82, v84
    v_fmac_f32 v86, v85, v84
    v_rsq_f32 v86, v86
    v_mul_f32 v84, v84, v86
    v_mul_f32 v86, -v80, v84
    """)
    for r in range(8): a(f"v_pk_fma_f32 {vr(32+2*r,2)}, {vr(AC0+2*r,2)}, v[84:85], v[86:87] op_sel_hi:[1,0,0]")
    for r in range(8): a(f"v_cvt_pk_bf16_f32 v{112+r}, v{32+2*r}, v{32+2*r+1}")
    for q in range(4): a(f"ds_write_b64 v{TW+q}, {vr(112+2*q,2)}")
    a(f"""
    ds_read_b64_tr_b16 v[120:121], v{TW+4}
    ds_read_b64_tr_b16 v[122:123], v{TW+5} offset:256
    ds_read_b64_tr_b16 v[124:125], v{TW+4} offset:1024
    ds_read_b64_tr_b16 v[126:127], v{TW+5} offset:1280
    s_waitcnt lgkmcnt(2)
    buffer_store_dwordx4 v[120:123], v{vL16}, {SWS}, {sT[12]} offen {SC}
    s_waitcnt lgkmcnt(0)
    buffer_store_dwordx4 v[124:127], v{vL16}, {SWS}, {sT[12]} offen offset:1024 {SC}
    """)

def gemm_big(a, which, s_base, setup, cont):
    nks, urows, w_is_a = (64, 4, True) if which == 1 else (56, 8, False)
    CH = 8; nch = nks // CH
    ACT, WIN, LA = 64, OPT.get("win", 32), 3
    def act_load(t):
        a(f"buffer_load_dwordx4 {vr(ACT+4*(t%WIN),4)}, v{vL16b if t&4 else vL16}, {SWS}, {sAT[t>>3]} offen offset:{(t&3)*1024} {SC}")
    def rd(t):
        slot = (t // CH) & 3
        for nb in range(2):
            b = aWF + 8 * (t & 3) + 4 * nb
            for u in range(2):
                a(f"ds_read_b64_tr_b16 {ar(b+2*u,2)}, v{6+nb} offset:{slot*16384 + ((t%CH)*16 + urows*u)*128}")
    rot_table(a, sAT, nch, s_base, 8192)
    setup()
    a(f"v_min_u32 v11, {nks-1}, v{vLANE}\n v_lshlrev_b32 v11, 10, v11\n v_add_u32 v11, 1020, v11")
    a("s_waitcnt vmcnt(0)\n s_barrier")
    for t in range(LA): rd(t)
    a.probe(11, s_base, 13, 1)
    a.stamp("probe")
    q = []
    for t in range(WIN):
        act_load(t); q.append(("a", t))
    def cnt(item):
        idx = max(i for i, x in enumerate(q) if x == item)
        return min(len(q) - 1 - idx, 63)
    first_dma = [False]
    pend = []
    def grp_regs(t): return range(ACT + 4 * (t % WIN), ACT + 4 * (t % WIN) + 16)
    def grp_check_full(t):
        n = cnt(("a", t + 3))
        a(f"s_waitcnt vmcnt({n})")
        hi = max(x[1] for x in q if x[0] == "a") + 1
        a.check(grp_regs(t), lambda t=t, hi=hi: [act_load(tt) for tt in range(t, hi)], n if not first_dma[0] else 0)
    for t in range(nks):
        if t % 4 == 0:
            grp_check_full(t)
            if t == 0: a.stamp("acq")
        if (t + LA) % CH == 0 and t + LA < nks:
            cn = (t + LA) // CH
            if cn >= 4: a(f"s_waitcnt vmcnt({cnt(('w', cn))})")
            if cn >= 2: a("s_barrier")
            assert not pend
            if cn >= 2 and cn + 2 < nch:
                pend = [(o, ("w", cn + 2)) for o in big_dma_ops(which, cn + 2)]
            elif cn in cont:
                pend = [(o, ("x", cn)) for o in cont[cn]]
        if t + LA < nks: rd(t + LA)
        a(f"s_waitcnt lgkmcnt({4*min(LA, nks-1-t)})")
        x = vr(ACT + 4 * (t % WIN), 4)
        for nb in range(2):
            acc = 16 + 16 * nb
            w = ar(aWF + 8 * (t & 3) + 4 * nb, 4)
            c_ = vr(acc, 16) if (t or nb == 0) else "0"
            if w_is_a: a(f"{MF} {vr(acc,16)}, {w}, {x}, {c_}")
            else: a(f"{MF} {vr(acc,16)}, {x}, {w}, {c_}")
            if pend and nb == 0:
                o, tag = pend.pop(0)
                a(o); q.append(tag); first_dma[0] = True
        if t + WIN < nks:
            act_load(t + WIN); q.append(("a", t + WIN))
    assert not pend

def phase_b1(a):
    a("s_barrier")
    big_dma_chunk(a, 1, 3)
    a.counter_issue(4, 1)
    a(f"""
    s_lshl_b32 {sT[5]}, {sDT}, 1
    s_add_u32 {sT[5]}, {sT[5]}, {sWL}
    s_lshl_b32 {sT[6]}, {sT[5]}, 17
    s_lshl_b32 {sT[3]}, {sWH}, 16
    s_add_u32 {sT[6]}, {sT[6]}, {sT[3]}
    s_add_u32 {sT[6]}, {sT[6]}, {sITO}
    s_add_u32 {sT[6]}, {sT[6]}, {HF}
    """)
    c0 = -2 * 0.7978845608028654 * LOG2E
    c1 = c0 * 0.044715
    def setup():
        wtile_tr_addr(a, 6, 8, sWH, sT[3])
        red_addrs(a, RED, 2, 8, 9)
        a(f"""
        s_mul_i32 {sT[7]}, {sT[5]}, {112*1024}
        s_lshl_b32 {sT[1]}, {sFT}, 12
        s_add_u32 {sT[7]}, {sT[7]}, {sT[1]}
        s_lshl_b32 {sT[1]}, {sWH}, 11
        s_add_u32 {sT[7]}, {sT[7]}, {sT[1]}
        s_add_u32 {sT[7]}, {sT[7]}, {sITO}
        s_add_u32 {sT[7]}, {sT[7]}, {UF}
        """)
        for q in range(8): a(f"v_accvgpr_read_b32 v2, a{aB1+q}\n v_lshlrev_b32 v{16+2*q}, 16, v2\n v_and_b32 v{16+2*q+1}, 0xffff0000, v2")
        a(f"v_mov_b32 v10, {fbits(c1)}\n v_mov_b32 v12, {fbits(c0)}")
    gemm_big(a, 1, sT[6], setup, {6: big_dma_ops(2, 0), 7: big_dma_ops(2, 1)})
    a.stamp("b1_mm")
    pair_reduce(a, 16, 32, 8, 9, lambda: a.counter_check(4, 32))
    U, T = 16, 64
    for r in range(8): a(f"v_pk_mul_f32 {vr(T+2*r,2)}, {vr(U+2*r,2)}, {vr(U+2*r,2)}")
    for r in range(8): a(f"v_pk_fma_f32 {vr(T+2*r,2)}, {vr(T+2*r,2)}, v[10:11], v[12:13] op_sel_hi:[1,0,0]")
    for r in range(8): a(f"v_pk_mul_f32 {vr(T+2*r,2)}, {vr(T+2*r,2)}, {vr(U+2*r,2)}")
    for r in range(16): a(f"v_exp_f32 v{T+r}, v{T+r}")
    for r in range(8): a(f"v_pk_add_f32 {vr(T+2*r,2)}, {vr(T+2*r,2)}, 1.0 op_sel_hi:[1,0]")
    for r in range(16): a(f"v_rcp_f32 v{T+r}, v{T+r}")
    for r in range(8): a(f"v_pk_mul_f32 {vr(T+2*r,2)}, {vr(T+2*r,2)}, {vr(U+2*r,2)}")
    for r in range(8): a(f"v_cvt_pk_bf16_f32 v{100+r}, v{T+2*r}, v{T+2*r+1}")
    a(f"""
    buffer_store_dwordx4 v[100:103], v{vL16}, {SWS}, {sT[7]} offen {SC}
    buffer_store_dwordx4 v[104:107], v{vL16}, {SWS}, {sT[7]} offen offset:1024 {SC}
    """)

def phase_b2(a):
    L = a.label("B2")
    big_dma_chunk(a, 2, 2); big_dma_chunk(a, 2, 3)
    a(f"""
    s_lshl_b32 {sT[5]}, {sDT}, 1
    s_add_u32 {sT[5]}, {sT[5]}, {sWH}
    s_mul_i32 {sT[6]}, {sT[5]}, {112*1024}
    s_mul_i32 {sT[0]}, {sWL}, {56*1024}
    s_add_u32 {sT[6]}, {sT[6]}, {sT[0]}
    s_add_u32 {sT[6]}, {sT[6]}, {sITO}
    s_add_u32 {sT[6]}, {sT[6]}, {UF}
    """)
    def setup():
        a(f"""
        s_lshl_b32 {sT[7]}, {sST}, 1
        s_add_u32 {sT[7]}, {sT[7]}, {sWL}
        s_lshl_b32 {sT[3]}, {sWL}, 16
        """)
        wtile_tr_addr(a, 6, 4, sWL, sT[3])
        red_addrs(a, 0xC000, 1, 8, 9)
        a1_wpk_setup(a)
        a(f"""
        s_mul_i32 {sT[8]}, {sT[7]}, {28*1024}
        s_lshl_b32 {sT[1]}, {sT[5]}, 11
        s_add_u32 {sT[8]}, {sT[8]}, {sT[1]}
        s_add_u32 {sT[8]}, {sT[8]}, {XF}
        s_mul_i32 {sT[9]}, {sT[7]}, 3584
        s_lshl_b32 {sT[1]}, {sT[5]}, 8
        s_add_u32 {sT[9]}, {sT[9]}, {sT[1]}
        s_add_u32 {sT[9]}, {sT[9]}, {ST2}
        v_mul_u32_u24 v10, 896, v{vL31}
        v_lshl_add_u32 v10, v{vHH}, 3, v10
        s_mul_i32 {sT[12]}, {sT[7]}, {32*896}
        s_lshl_b32 {sT[1]}, {sT[5]}, 6
        s_add_u32 {sT[12]}, {sT[12]}, {sT[1]}
        v_accvgpr_read_b32 v2, a{aB2}
        v_lshlrev_b32 v2, 16, v2
        """)
        for r in range(16): a(f"v_accvgpr_read_b32 v{16+r}, a{aRES+r}")
        for r in range(16): a(f"v_add_f32 v{16+r}, v{16+r}, v2")
    gemm_big(a, 2, sT[6], setup, {5: a1_wpk_ops(56, 84), 6: a1_wpk_ops(0, 16) + a1_wpk_ops(32, 48)})
    a.stamp("b2_mm")
    pair_reduce(a, 16, 32, 8, 9)
    for r in range(8): a(f"v_cvt_pk_bf16_f32 v{100+r}, v{16+2*r}, v{16+2*r+1}")
    a(f"""
    s_cmp_eq_u32 {sIT}, 0
    s_cbranch_scc0 {L}_fin
    buffer_store_dwordx4 v[100:103], v{vL16}, {SWS}, {sT[8]} offen {SC}
    buffer_store_dwordx4 v[104:107], v{vL16}, {SWS}, {sT[8]} offen offset:1024 {SC}
    """)
    stats_publish(a, 16, 64, sT[9])
    for o in a1_wpk_ops(16, 32) + a1_wpk_ops(48, 56): a(o)
    for r in range(16): a(f"v_accvgpr_write_b32 a{aRES+r}, v{16+r}")
    a(f"s_branch {L}_end\n {L}_fin:")
    for q in range(4): a(f"buffer_store_dwordx2 {vr(100+2*q,2)}, v10, {SOUT}, {sT[12]} offen offset:{16*q}")
    a(f"{L}_end:")

def build():
    a = K(); a.stubs = []
    kernel_begin(a, KNAME)
    prologue(a)
    if STAMPS: a("v_mov_b32 v255, 0")
    a("L_iter:")
    a.stamp("start")
    phase_a1(a)
    a.stamp("kvred")
    a(f"s_cmp_ge_u32 {sACT}, 8\n s_cbranch_scc1 L_helper")
    phase_a2(a)
    a.stamp("a2_end")
    a(f"s_cmp_ge_u32 {sACT}, 7\n s_cbranch_scc1 L_skipb1")
    phase_b1(a)
    a("s_branch L_b2\n L_skipb1:\n s_barrier")
    big_dma_chunk(a, 2, 0); big_dma_chunk(a, 2, 1)
    a.counter_wait(4, 1, 32, 2)
    a("L_b2:")
    a.stamp("b1_end")
    phase_b2(a)
    a.stamp("b2_end")
    a(f"""
    L_next:
    s_cmp_eq_u32 {sIT}, 1
    s_cbranch_scc1 L_fin
    s_mov_b32 {sIT}, 1
    s_mov_b32 {sITO}, {ITB}
    s_branch L_iter
    L_helper:
    s_cmp_eq_u32 {sIT}, 1
    s_cbranch_scc1 L_fin
    """)
    helper_work(a)
    a("s_branch L_next")
    a("L_fin:")
    a.stamp_dump()
    a("L_end:\n s_endpgm")
    a.lines += a.stubs
    if STAMPS: open("stamps.txt", "w").write("\n".join(a.names))
    lines, n = haz.fix(a.lines)
    hdr = f"; @launch grid=(256,1,1) block=(256,1,1) lds=163840\n"
    return hdr + '.amdgcn_target "amdgcn-amd-amdhsa--gfx950"\n.text\n' + "\n".join(lines) + "\n" + '.section .rodata,"a"\n' + descriptor(KNAME, 384, accum=256)

if __name__ == "__main__":
    out = sys.argv[1]
    for o in sys.argv[2:]:
        if o == "stamps": STAMPS = True
        else:
            k_, v_ = o.split("="); OPT[k_] = int(v_)
    open(out, "w").write(build())
```

```python
import sys, struct
sys.path.insert(0, "work")
from gen import *
import haz

KNAME = NAME + "_kernel"
S, D, F = 2048, 448, 1792
ITB = 0x680000 + 0x8000
PQ, KVP, HF, ST, KVF, UF = 0x0, 0x200000, 0x300000, 0x4C0000, 0x4F8000, 0x500000
assert UF + 14 * 112 * 1024 == ITB
XF = 2 * ITB
ST2 = XF + 0x1C0000
FILL_END = ST2 + 0x38000
WQP = 0x1000000
assert FILL_END <= WQP
STAMP_OFF = 0x2000000
WS_SIZE = 0x10000000
LOG2E = 1.4426950408889634
def fbits(x): return "0x%08x" % struct.unpack("<I", struct.pack("<f", x))[0]

SX, SWQKV, SWO, SW1, SW2, SB1, SB2, SOUT, SWS, SDBG = [f"s[{i}:{i+3}]" for i in range(4, 44, 4)]
sW, sRB, sH, sDT, sST, sFT, sACT, sIT, sITO, sBUD = "s3", "s44", "s45", "s46", "s47", "s48", "s49", "s50", "s51", "s52"
sWH, sWL, sLB = "s53", "s54", "s55"
sT = [f"s{i}" for i in range(56, 72)]
sW1T = [f"s{i}" for i in range(72, 80)]
sW2T = [f"s{i}" for i in range(80, 88)]
sAT = [f"s{i}" for i in range(88, 96)]
SC = "sc1"
STAMPS = False
OPT = {}

def vr(b, n=1): return f"v{b}" if n == 1 else f"v[{b}:{b+n-1}]"
def ar(b, n=1): return f"a{b}" if n == 1 else f"a[{b}:{b+n-1}]"
MF = "v_mfma_f32_32x32x16_bf16"

vL16, vL16b, vHH, vL31, vLANE, vL8, vDW1, vDW2, CSK, CSV, vDWO, vMAX, vCNT, vCNA = range(240, 254)
assert CSK % 2 == 0
aRES, aCSQ, aB1, aB2, aWF = 0, 16, 32, 40, 64

class K(Asm):
    nstamp = 0
    stubs = None
    def stamp(self, name=""):
        if not STAMPS: return
        self(f"s_memrealtime s[96:97]\n s_lshl_b32 s98, {sIT}, 5\n s_add_u32 s98, s98, {self.nstamp}\n s_waitcnt lgkmcnt(0)\n s_mov_b32 m0, s98\n v_writelane_b32 v255, s96, m0")
        self.names = getattr(self, "names", []) + [name]
        self.nstamp += 1
        assert self.nstamp <= 32
    def stamp_dump(self):
        if not STAMPS: return
        self(f"""
        s_lshl_b32 s98, s2, 2
        s_add_u32 s98, s98, {sW}
        s_lshl_b32 s98, s98, 8
        s_add_u32 s98, s98, {STAMP_OFF}
        v_lshlrev_b32 v2, 2, v{vLANE}
        buffer_store_dword v255, v2, {SWS}, s98 offen
        """)
        if "dbg" in OPT:
            sel = {0: list(range(0, 14)), 1: [0, 12, 14, 15, 16, 18, 19, 35, 37, 40, 43, 46, 50, 51]}[OPT["dbg"]]
            L = self.label("DS")
            self(f"s_lshl_b32 s98, s2, 2\n s_add_u32 s98, s98, {sW}\n s_cmp_eq_u32 s98, {OPT.get('dbgw', 1)}\n s_cbranch_scc0 {L}")
            self("v_readlane_b32 s97, v255, 0")
            for i, ln in enumerate(sel):
                self(f"v_readlane_b32 s96, v255, {ln}\n s_sub_u32 s96, s96, s97\n v_writelane_b32 v3, s96, {i}")
            self(f"s_mov_b64 exec, 0x3fff\n buffer_store_dword v3, v2, {SDBG}, 0 offen offset:8\n s_mov_b64 exec, -1\n {L}:")
    def srd(self, dst, ptr, size):
        b = int(dst[2:dst.index(":")])
        self(f"s_mov_b32 s{b}, s{ptr}\n s_mov_b32 s{b+1}, s{ptr+1}\n s_mov_b32 s{b+2}, {size}\n s_mov_b32 s{b+3}, 0x00020000")
    def halfsum(self, v, tmp):
        self(f"v_mov_b32 {tmp}, {v}\n v_permlane32_swap_b32 {v}, {tmp}\n v_add_f32 {v}, {v}, {tmp}")
    def check_ops(self, regs):
        regs = list(regs); ops = []
        if len(regs) % 2 == 1:
            ops.append(f"v_max3_u32 v{vMAX}, v{regs[0]}, v{regs[1]}, v{regs[2]}"); rest = regs[3:]
        else:
            ops.append(f"v_max_u32 v{vMAX}, v{regs[0]}, v{regs[1]}"); rest = regs[2:]
        for i in range(0, len(rest), 2):
            ops.append(f"v_max3_u32 v{vMAX}, v{vMAX}, v{rest[i]}, v{rest[i+1]}")
        ops.append(f"v_cmp_eq_u32 vcc, -1, v{vMAX}")
        return ops
    def check_branch(self, regs, reissue, wait_after):
        L = self.label("CK")
        self(f"s_cbranch_vccnz {L}_r\n {L}_k:")
        main = self.lines
        self.lines = self.stubs
        self(f"{L}_r:\n s_cmp_eq_u32 {sBUD}, 0\n s_cbranch_scc1 {L}_k\n s_sub_u32 {sBUD}, {sBUD}, 1")
        reissue()
        self(f"s_waitcnt vmcnt({wait_after})")
        for o in self.check_ops(regs): self(o)
        self(f"s_cbranch_vccnz {L}_r\n s_branch {L}_k")
        self.lines = main
    def check(self, regs, reissue, wait_after):
        for o in self.check_ops(regs): self(o)
        self.check_branch(regs, reissue, wait_after)
    def probe(self, voff, soff, vt, nreg=1):
        L = self.label("PB")
        ld = {1: "buffer_load_dword", 4: "buffer_load_dwordx4"}[nreg]
        self(f"{L}_p:\n {ld} {vr(vt,nreg)}, v{voff}, {SWS}, {soff} offen {SC}\n s_waitcnt vmcnt(0)")
        if nreg == 1: self(f"v_cmp_eq_u32 vcc, -1, v{vt}")
        else:
            for o in self.check_ops(range(vt, vt + nreg)): self(o)
        self(f"""
        s_cbranch_vccz {L}_o
        s_cmp_eq_u32 {sBUD}, 0
        s_cbranch_scc1 {L}_o
        s_sub_u32 {sBUD}, {sBUD}, 1
        s_branch {L}_p
        {L}_o:
        """)
    def counter_issue(self, off, nsh):
        self(f"v_min_u32 v{vCNA}, {nsh-1}, v{vLANE}\n v_lshlrev_b32 v{vCNA}, 6, v{vCNA}")
        self(f"buffer_load_dword v{vCNT}, v{vCNA}, {SDBG}, 0 offen offset:{off} sc1")
    def counter_check(self, off, target):
        L = self.label("CC")
        self(f"v_cmp_gt_u32 vcc, {target}, v{vCNT}\n s_cbranch_vccnz {L}_r\n {L}_k:")
        main = self.lines
        self.lines = self.stubs
        self(f"""
        {L}_r:
        s_cmp_eq_u32 {sBUD}, 0
        s_cbranch_scc1 {L}_k
        s_sub_u32 {sBUD}, {sBUD}, 1
        s_sleep 8
        buffer_load_dword v{vCNT}, v{vCNA}, {SDBG}, 0 offen offset:{off} sc1
        s_waitcnt vmcnt(0)
        v_cmp_gt_u32 vcc, {target}, v{vCNT}
        s_cbranch_vccnz {L}_r
        s_branch {L}_k
        """)
        self.lines = main
    def counter_wait(self, off, nsh, target, vt):
        L = self.label("CW")
        self(f"""
        v_lshlrev_b32 v{vt+1}, 6, v{vLANE}
        s_mov_b64 exec, {(1<<nsh)-1}
        {L}_p:
        buffer_load_dword v{vt}, v{vt+1}, {SDBG}, 0 offen offset:{off} sc1
        s_waitcnt vmcnt(0)
        v_cmp_gt_u32 vcc, {target}, v{vt}
        s_cbranch_vccz {L}_o
        s_cmp_eq_u32 {sBUD}, 0
        s_cbranch_scc1 {L}_o
        s_sub_u32 {sBUD}, {sBUD}, 1
        s_sleep 2
        s_branch {L}_p
        {L}_o:
        s_mov_b64 exec, -1
        """)

def wtile_dma_voff(a, vdst, rowstride):
    a(f"""
    v_lshrrev_b32 v2, 3, v{vLANE}
    v_mul_u32_u24 v{vdst}, {rowstride}, v2
    v_lshrrev_b32 v2, 4, v{vLANE}
    v_and_b32 v2, 1, v2
    v_lshlrev_b32 v2, 2, v2
    v_and_b32 v3, 7, v{vLANE}
    v_xor_b32 v2, v2, v3
    v_lshl_add_u32 v{vdst}, v2, 4, v{vdst}
    """)

def wtile_tr_addr(a, vdst, hhrows, s_keep, s_base):
    a(f"""
    v_lshrrev_b32 v2, 2, v{vLANE}
    v_and_b32 v2, 3, v2
    v_mul_u32_u24 v3, {hhrows}, v{vHH}
    v_add_u32 v2, v2, v3
    v_bfe_u32 v3, v2, 1, 1
    v_xor_b32 v3, {s_keep}, v3
    v_lshlrev_b32 v2, 7, v2
    v_lshl_add_u32 v2, v3, 6, v2
    v_lshrrev_b32 v3, 4, v{vLANE}
    v_and_b32 v3, 1, v3
    v_lshl_add_u32 v2, v3, 5, v2
    v_and_b32 v3, 3, v{vLANE}
    v_lshl_add_u32 v{vdst}, v3, 3, v2
    v_add_u32 v{vdst}, {s_base}, v{vdst}
    v_xor_b32 v{vdst+1}, 64, v{vdst}
    """)

def rot_table(a, tab, nch, s_base, step):
    rot = sT[14]
    if OPT.get("rot", 0):
        a(f"s_add_u32 {rot}, {sACT}, {OPT.get('rotadd', 0)}\n s_and_b32 {rot}, {rot}, 7")
        if nch == 7: a(f"s_cmp_eq_u32 {rot}, 7\n s_cselect_b32 {rot}, 0, {rot}")
    else:
        a(f"s_mov_b32 {rot}, 0")
    for c in range(nch):
        a(f"s_mul_i32 {tab[c]}, {rot}, {step}\n s_add_u32 {tab[c]}, {tab[c]}, {s_base}")
        if c + 1 < nch:
            a(f"s_add_u32 {rot}, {rot}, 1\n s_cmp_eq_u32 {rot}, {nch}\n s_cselect_b32 {rot}, 0, {rot}")

def prologue(a):
    a(f"""
    s_cmp_ge_u32 s2, 256
    s_cbranch_scc1 L_end
    s_load_dwordx16 s[72:87], s[0:1], 0
    s_load_dwordx4 s[88:91], s[0:1], 64
    s_load_dwordx2 s[92:93], s[0:1], 80
    v_lshrrev_b32 v2, 6, v0
    v_and_b32 v{vLANE}, 63, v0
    v_readfirstlane_b32 {sW}, v2
    v_lshrrev_b32 v{vHH}, 5, v{vLANE}
    v_and_b32 v{vL31}, 31, v{vLANE}
    v_lshlrev_b32 v{vL16}, 4, v{vLANE}
    v_lshlrev_b32 v{vL8}, 3, v{vLANE}
    v_add_u32 v{vL16b}, 0x1000, v{vL16}
    s_and_b32 {sT[0]}, s2, 7
    s_lshr_b32 {sT[1]}, s2, 3
    s_lshr_b32 {sT[2]}, {sT[0]}, 1
    s_and_b32 {sT[3]}, {sT[0]}, 1
    s_lshl_b32 {sRB}, {sT[2]}, 2
    s_lshr_b32 {sT[4]}, {sT[1]}, 3
    s_add_u32 {sRB}, {sRB}, {sT[4]}
    s_lshl_b32 {sH}, {sT[3]}, 3
    s_and_b32 {sT[4]}, {sT[1]}, 7
    s_add_u32 {sH}, {sH}, {sT[4]}
    s_lshr_b32 {sT[4]}, {sT[1]}, 2
    s_and_b32 {sT[5]}, {sT[1]}, 3
    s_mul_i32 {sT[6]}, {sT[1]}, 43
    s_lshr_b32 {sT[6]}, {sT[6]}, 7
    s_mul_i32 {sT[7]}, {sT[6]}, 3
    s_sub_u32 {sT[7]}, {sT[1]}, {sT[7]}
    s_add_u32 {sT[7]}, {sT[7]}, 4
    s_cmp_eq_u32 {sT[3]}, 0
    s_cselect_b32 {sT[4]}, {sT[4]}, {sT[6]}
    s_cselect_b32 {sDT}, {sT[5]}, {sT[7]}
    s_lshl_b32 {sST}, {sT[2]}, 3
    s_add_u32 {sST}, {sST}, {sT[4]}
    s_mul_i32 {sFT}, {sT[2]}, 7
    s_add_u32 {sFT}, {sFT}, {sT[4]}
    s_mov_b32 {sACT}, {sT[4]}
    s_mov_b32 {sIT}, 0
    s_mov_b32 {sITO}, 0
    s_mov_b32 {sBUD}, 60000
    s_lshr_b32 {sWH}, {sW}, 1
    s_and_b32 {sWL}, {sW}, 1
    s_waitcnt lgkmcnt(0)
    """)
    a.srd(SX, 72, S * D * 2)
    a.srd(SWQKV, 74, D * 3 * D * 2)
    a.srd(SWS, 92, WS_SIZE)
    a.srd(SWO, 76, D * D * 2)
    a.srd(SW1, 80, S * F * 2)
    a.srd(SB1, 82, F * 2)
    a.srd(SW2, 84, F * S * 2)
    a.srd(SB2, 86, S * 2)
    a.srd(SOUT, 88, S * D * 2)
    a.srd(SDBG, 90, 256)

def late_setup(a):
    wtile_dma_voff(a, vDW1, 3584)
    wtile_dma_voff(a, vDW2, 4096)
    wtile_dma_voff(a, vDWO, 896)
    for which, tab in ((1, sW1T), (2, sW2T)):
        stride, nks, scol = (3584, 64, sFT) if which == 1 else (4096, 56, sST)
        a(f"""
        s_mul_i32 {sT[10]}, {sWH}, {nks*16*stride}
        s_mul_i32 {sT[2]}, {sWL}, {64*stride}
        s_add_u32 {sT[10]}, {sT[10]}, {sT[2]}
        s_lshl_b32 {sT[2]}, {scol}, 7
        s_add_u32 {sT[10]}, {sT[10]}, {sT[2]}
        """)
        rot_table(a, tab, nks // 8, sT[10], 128 * stride)
    a(f"s_lshl_b32 {sLB}, {sWH}, 16\n s_lshl_b32 {sT[2]}, {sWL}, 13\n s_add_u32 {sLB}, {sLB}, {sT[2]}")

XREG = 64
ACQ, ACK, ACV = 16, 32, 48
WFR = 192
TRA = 4
vM, vR, vC, vRS = 12, 13, 14, 15
XBASE = [0x8000, 0x18000, 0x20000, 0x10000]
def a1_lds(f):
    if f < 32: return 1024 * f
    if f < 56: return 0x10000 + 1024 * (f - 32)
    return 0x20000 + 1024 * (f - 56)
def a1_src(f):
    if f < 56: t, seg = f >> 1, 1 + (f & 1)
    else: t, seg = f - 56, 0
    return t * 16 * 2688 + seg * 896
CSL, RSL, KVL = 0x27000, 0x27400, 0x0
sKRL, sKRS, sKRM = 's99', 's100', 's101'
aKRL, aKRS = 41, 42

def a1_wraw_ops(f0, f1, vo, s_kv, s_q, s_w10):
    o = []
    for f in range(f0, f1, 4):
        sb = s_kv if f < 56 else s_q
        o.append(f"s_add_u32 {sT[2]}, {sb}, {a1_src(f)}\n s_add_u32 m0, {s_w10}, {a1_lds(f)}\n buffer_load_dwordx4 v{vo}, {SWQKV}, {sT[2]} offen lds")
    return o

def a1_wpk_setup(a):
    a(f"s_mul_i32 {sT[13]}, {sH}, {84*1024}\n s_lshl_b32 {sT[15]}, {sW}, 10\n s_add_u32 {sT[13]}, {sT[13]}, {sT[15]}\n s_add_u32 {sT[13]}, {sT[13]}, {WQP}")
def a1_wpk_ops(f0, f1):
    return [f"s_add_u32 {sT[2]}, {sT[13]}, {f*1024}\n s_add_u32 m0, {sT[15]}, {a1_lds(f)}\n buffer_load_dwordx4 v{vL16}, {SWS}, {sT[2]} offen {SC} lds" for f in range(f0, f1, 4)]

def wo_dma(a):
    a(f"""
    s_mul_i32 {sT[0]}, {sWH}, {224*896}
    s_mul_i32 {sT[1]}, {sWL}, {8*896}
    s_add_u32 {sT[0]}, {sT[0]}, {sT[1]}
    s_lshl_b32 {sT[1]}, {sDT}, 7
    s_add_u32 {sT[0]}, {sT[0]}, {sT[1]}
    s_lshl_b32 {sT[1]}, {sWH}, 16
    s_lshl_b32 {sT[2]}, {sWL}, 10
    s_add_u32 {sT[1]}, {sT[1]}, {sT[2]}
    """)
    for j in range(15):
        a(f"s_add_u32 {sT[2]}, {sT[0]}, {j*16*896}\n s_add_u32 m0, {sT[1]}, {0x8000 + j*2048}\n buffer_load_dwordx4 v{vDWO}, {SWO}, {sT[2]} offen lds")

def big_dma_ops(which, c):
    stride, srd, vo, tab = (3584, SW1, vDW1, sW1T) if which == 1 else (4096, SW2, vDW2, sW2T)
    return [f"s_add_u32 {sT[2]}, {tab[c]}, {i*8*stride}\n s_add_u32 m0, {sLB}, {(c&3)*16384 + i*1024}\n buffer_load_dwordx4 v{vo}, {srd}, {sT[2]} offen lds" for i in range(8)]
def big_dma_chunk(a, which, c):
    for o in big_dma_ops(which, c): a(o)

def stats_loads(a, soff, T):
    for i in range(7):
        a(f"buffer_load_dwordx2 {vr(T+2*i,2)}, v{vL8}, {SWS}, {soff} offen offset:{i*512} {SC}")

def stats_math_ops(T, vm, vvar, U, pk=True):
    o = []
    if pk:
        for i in range(3): o.append(f"v_pk_add_f32 {vr(U+2*i,2)}, {vr(T+4*i,2)}, {vr(T+4*i+2,2)}")
        o.append(f"v_pk_add_f32 {vr(U,2)}, {vr(U,2)}, {vr(U+2,2)}")
        o.append(f"v_pk_add_f32 {vr(U+4,2)}, {vr(U+4,2)}, {vr(T+12,2)}")
        o.append(f"v_pk_add_f32 {vr(U,2)}, {vr(U,2)}, {vr(U+4,2)}")
    else:
        o.append(f"v_add_f32 v{U}, v{T}, v{T+2}"); o.append(f"v_add_f32 v{U+1}, v{T+1}, v{T+3}")
        for i in range(2, 7):
            o.append(f"v_add_f32 v{U}, v{U}, v{T+2*i}"); o.append(f"v_add_f32 v{U+1}, v{U+1}, v{T+2*i+1}")
    o += [f"v_mov_b32 v{vm}, v{U}", f"v_permlane32_swap_b32 v{vm}, v{U}", f"v_add_f32 v{vm}, v{vm}, v{U}"]
    o.append(f"v_mul_f32 v{U+2}, {fbits(1/14)}, v{vm}")
    o.append(f"v_mul_f32 v{vm}, {fbits(1/448)}, v{vm}")
    for i in range(7): o.append(f"v_sub_f32 v{T+2*i}, v{T+2*i}, v{U+2}")
    o += [f"v_mul_f32 v{U+3}, v{T}, v{T}", f"v_mul_f32 v{U+4}, v{T+2}, v{T+2}"]
    for i in range(2, 7): o.append(f"v_fmac_f32 v{U+3+(i&1)}, v{T+2*i}, v{T+2*i}")
    o.append(f"v_add_f32 v{U+3}, v{U+3}, v{U+4}")
    o.append(f"v_fmac_f32 v{U+1}, {fbits(1/32)}, v{U+3}")
    o += [f"v_mov_b32 v{vvar}, v{U+1}", f"v_permlane32_swap_b32 v{vvar}, v{U+1}", f"v_add_f32 v{vvar}, v{vvar}, v{U+1}"]
    o.append(f"v_mul_f32 v{vvar}, {fbits(1/448)}, v{vvar}")
    return o

def stats_publish(a, X, T, soff):
    for i in range(4): a(f"v_pk_add_f32 {vr(T+2*i,2)}, {vr(X+4*i,2)}, {vr(X+4*i+2,2)}")
    a(f"v_pk_add_f32 {vr(T,2)}, {vr(T,2)}, {vr(T+2,2)}")
    a(f"v_pk_add_f32 {vr(T+4,2)}, {vr(T+4,2)}, {vr(T+6,2)}")
    a(f"v_pk_add_f32 {vr(T,2)}, {vr(T,2)}, {vr(T+4,2)}")
    a(f"v_add_f32 v{T+16}, v{T}, v{T+1}")
    a.halfsum(f"v{T+16}", f"v{T+17}")
    a(f"v_mul_f32 v{T+18}, {fbits(-1/32)}, v{T+16}")
    for i in range(8): a(f"v_pk_add_f32 {vr(T+2*i,2)}, {vr(X+2*i,2)}, {vr(T+18,2)} op_sel_hi:[1,0]")
    a(f"v_pk_mul_f32 {vr(T+18,2)}, {vr(T,2)}, {vr(T,2)}")
    a(f"v_pk_mul_f32 {vr(T+20,2)}, {vr(T+2,2)}, {vr(T+2,2)}")
    for i in range(2, 8):
        d = T + 18 + 2 * (i & 1)
        a(f"v_pk_fma_f32 {vr(d,2)}, {vr(T+2*i,2)}, {vr(T+2*i,2)}, {vr(d,2)}")
    a(f"v_pk_add_f32 {vr(T+18,2)}, {vr(T+18,2)}, {vr(T+20,2)}")
    a(f"v_add_f32 v{T+17}, v{T+18}, v{T+19}")
    a.halfsum(f"v{T+17}", f"v{T+18}")
    a("s_mov_b32 exec_hi, 0")
    a(f"buffer_store_dwordx2 {vr(T+16,2)}, v{vL8}, {SWS}, {soff} offen {SC}")
    a("s_mov_b64 exec, -1")

def a1_tr_setup(a, it):
    sh, delta = (9, 256) if it == 0 else (8, 512)
    a(f"""
    v_lshrrev_b32 v2, 2, v{vLANE}
    v_and_b32 v2, 3, v2
    v_lshrrev_b32 v3, 4, v{vLANE}
    v_and_b32 v3, 1, v3
    v_lshlrev_b32 v3, 2, v3
    v_and_b32 v10, 3, v{vLANE}
    v_add_u32 v3, v3, v10
    s_and_b32 {sT[0]}, {sH}, 1
    v_add_u32 v3, {sT[0]}, v3
    v_and_b32 v3, 7, v3
    v_lshlrev_b32 v3, 3, v3
    v_lshl_add_u32 v{TRA}, v2, 6, v3
    v_lshl_add_u32 v{TRA}, v{vHH}, {sh}, v{TRA}
    v_add_u32 v{TRA+1}, 0x10000, v{TRA}
    v_add_u32 v{TRA+2}, 0x20000, v{TRA}
    v_add_u32 v{TRA+3}, {delta}, v{TRA}
    v_add_u32 v{TRA+4}, {delta}, v{TRA+1}
    v_add_u32 v{TRA+5}, {delta}, v{TRA+2}
    s_lshl_b32 {sT[0]}, {sW}, 8
    s_add_u32 {sT[0]}, {sT[0]}, {RSL}
    v_lshlrev_b32 v11, 2, v{vLANE}
    v_add_u32 v11, {sT[0]}, v11
    v_lshlrev_b32 v{vRS}, 4, v{vHH}
    v_add_u32 v{vRS}, {sT[0]}, v{vRS}
    """)

def rowstats_ops():
    return [f"v_add_f32 v{vR}, {fbits(1e-5)}, v{vR}", f"v_rsq_f32 v{vR}, v{vR}", f"v_cmp_eq_u32 vcc, 0, v{vHH}",
            f"v_cndmask_b32 v3, v{vM}, v{vR}, vcc", f"ds_write_b32 v11, v3"]

def kvred_setup(a):
    a(f"""
    s_lshr_b32 {sT[0]}, {sRB}, 2
    s_and_b32 {sT[4]}, {sRB}, 3
    v_lshrrev_b32 v2, 4, v{vLANE}
    v_and_b32 v3, 15, v{vLANE}
    v_lshlrev_b32 v2, 12, v2
    v_lshl_add_u32 v2, v3, 4, v2
    v_accvgpr_write_b32 a{aKRL}, v2
    s_lshl_b32 {sKRL}, {sH}, 16
    s_lshl_b32 {sT[3]}, {sT[0]}, 10
    s_add_u32 {sKRL}, {sKRL}, {sT[3]}
    s_lshl_b32 {sT[3]}, {sT[4]}, 8
    s_add_u32 {sKRL}, {sKRL}, {sT[3]}
    s_add_u32 {sKRL}, {sKRL}, {KVP}
    s_and_b32 {sT[3]}, {sT[4]}, 1
    s_lshl_b32 {sT[3]}, {sT[3]}, 4
    v_add_u32 v3, {sT[3]}, v3
    v_cmp_le_u32 vcc, 14, v3
    v_cndmask_b32 v24, 0, 1, vcc
    v_mul_u32_u24 v25, 14, v24
    v_sub_u32 v25, v3, v25
    v_cmp_le_u32 vcc, 28, v3
    v_and_b32 v26, 1, v3
    v_add_u32 v26, 14, v26
    v_cndmask_b32 v25, v25, v26, vcc
    v_bfe_u32 v26, v3, 1, 1
    v_cndmask_b32 v24, v24, v26, vcc
    v_and_b32 v26, 3, v25
    v_lshrrev_b32 v25, 2, v25
    v_lshl_add_u32 v26, v25, 3, v26
    v_lshl_add_u32 v26, v24, 2, v26
    v_lshlrev_b32 v26, 4, v26
    v_accvgpr_write_b32 a{aKRS}, v26
    s_lshr_b32 {sT[3]}, {sT[4]}, 1
    s_lshl_b32 {sKRS}, {sT[3]}, 9
    s_lshl_b32 {sT[5]}, {sH}, 11
    s_add_u32 {sKRS}, {sKRS}, {sT[5]}
    s_lshr_b32 {sT[5]}, {sT[0]}, 1
    s_lshl_b32 {sT[5]}, {sT[5]}, 10
    s_add_u32 {sKRS}, {sKRS}, {sT[5]}
    s_and_b32 {sT[5]}, {sT[0]}, 1
    s_lshl_b32 {sT[5]}, {sT[5]}, 3
    s_add_u32 {sKRS}, {sKRS}, {sT[5]}
    s_add_u32 {sKRS}, {sKRS}, {KVF}
    s_cmp_ge_u32 {sRB}, 14
    s_cselect_b32 {sKRM}, 0, -1
    """)

vWQ = 10
def a1_front_it0(a):
    L = a.label("A1f")
    a(f"""
    v_lshrrev_b32 v2, 3, v{vLANE}
    v_mul_u32_u24 v2, 896, v2
    v_and_b32 v3, 7, v{vLANE}
    v_lshrrev_b32 v5, 4, v{vLANE}
    v_xor_b32 v3, v3, v5
    v_lshl_add_u32 v6, v3, 4, v2
    v_xor_b32 v7, 64, v6
    s_lshl_b32 {sT[0]}, {sRB}, 2
    s_add_u32 {sT[0]}, {sT[0]}, {sW}
    s_mul_i32 {sT[0]}, {sT[0]}, {32*896}
    s_mov_b32 {sT[7]}, {XBASE[0]}
    s_cmp_eq_u32 {sW}, 1
    s_cselect_b32 {sT[7]}, {XBASE[1]}, {sT[7]}
    s_cmp_eq_u32 {sW}, 2
    s_cselect_b32 {sT[7]}, {XBASE[2]}, {sT[7]}
    s_cmp_eq_u32 {sW}, 3
    s_cselect_b32 {sT[7]}, {XBASE[3]}, {sT[7]}
    """)
    for aa in range(4):
        for j in range(7):
            a(f"s_add_u32 {sT[2]}, {sT[0]}, {aa*8*896 + j*128}\n s_add_u32 m0, {sT[7]}, {(aa*7+j)*1024}\n buffer_load_dwordx4 v{6 + (aa&1)}, {SX}, {sT[2]} offen lds")
    a(f"""
    v_lshrrev_b32 v1, 2, v{vLANE}
    v_mul_u32_u24 v1, 2688, v1
    v_and_b32 v5, 3, v{vLANE}
    v_lshl_add_u32 v1, v5, 4, v1
    s_mul_i32 {sT[8]}, {sH}, 56
    s_and_b32 {sT[8]}, {sT[8]}, 0xfff0
    s_mul_i32 {sT[9]}, {sW}, {16*2688}
    s_add_u32 {sT[9]}, {sT[9]}, {sT[8]}
    s_mul_i32 {sT[2]}, {sWH}, {16*2688}
    s_add_u32 {sT[8]}, {sT[8]}, {sT[2]}
    s_mul_i32 {sT[2]}, {sWL}, 896
    s_add_u32 {sT[8]}, {sT[8]}, {sT[2]}
    s_lshl_b32 {sT[11]}, {sW}, 10
    """)
    for o in a1_wraw_ops(0, 32, 1, sT[8], sT[9], sT[11]): a(o)
    ntouch = 0
    if OPT.get("t1", 1):
        a(f"v_mul_u32_u24 v30, 2688, v{vLANE}\n s_mul_i32 {sT[12]}, {sH}, 56\n s_and_b32 {sT[12]}, {sT[12]}, 0xfff0")
        groups = [(256 + 64 * i) * 2688 + seg * 896 for i in range(3) for seg in (1, 2)] + [64 * i * 2688 for i in range(7)] + [0, 0, 0]
        for i in range(4):
            a(f"s_mov_b32 {sT[2]}, {groups[4*i]}")
            for w in range(1, 4):
                a(f"s_cmp_eq_u32 {sW}, {w}\n s_cselect_b32 {sT[2]}, {groups[4*i+w]}, {sT[2]}")
            a(f"s_add_u32 {sT[2]}, {sT[2]}, {sT[12]}")
            a(f"buffer_load_dword v31, v30, {SWQKV}, {sT[2]} offen\n buffer_load_dword v31, v30, {SWQKV}, {sT[2]} offen offset:60"); ntouch += 2
    if OPT.get("t2", 1):
        a(f"v_lshlrev_b32 v30, 7, v{vLANE}\n s_lshl_b32 {sT[2]}, s2, 2\n s_add_u32 {sT[2]}, {sT[2]}, {sW}\n s_lshl_b32 {sT[2]}, {sT[2]}, 13")
        for srd in (SWO, SW1) + ((SW2,) if OPT.get("t2", 1) > 1 else ()):
            a(f"buffer_load_dword v31, v30, {srd}, {sT[2]} offen"); ntouch += 1
    late_setup(a)
    kvred_setup(a)
    a1_tr_setup(a, 0)
    a(f"""
    v_lshrrev_b32 v2, 3, v{vL31}
    v_mul_u32_u24 v2, 7168, v2
    v_and_b32 v3, 7, v{vL31}
    v_lshl_add_u32 v2, v3, 7, v2
    v_add_u32 v2, {sT[7]}, v2
    v_lshrrev_b32 v3, 1, v{vL31}
    v_and_b32 v3, 7, v3
    v_xor_b32 v3, v3, v{vHH}
    """)
    for q in range(4): a(f"v_xor_b32 v10, {2*q}, v3\n v_lshl_add_u32 v{WFR+q}, v10, 4, v2")
    a(f"""
    v_mov_b32 v2, 0
    v_add_u32 v3, {CSL}, v{vL8}
    ds_write_b32 v3, v2
    ds_write_b32 v3, v2 offset:4
    v_mov_b32 v16, 0
    v_mov_b32 v17, 0
    v_mov_b32 v18, 0
    v_mov_b32 v19, 0
    v_mov_b32 v{vC}, 0x3f803f80
    s_add_u32 {sT[12]}, {sH}, 1
    s_and_b32 {sT[12]}, {sT[12]}, 6
    s_cmp_eq_u32 {sT[12]}, 0
    s_cbranch_scc0 {L}_np
    v_mov_b32 v20, -1
    v_mov_b32 v21, -1
    v_mov_b32 v22, -1
    v_mov_b32 v23, -1
    s_lshl_b32 {sT[0]}, {sRB}, 2
    s_lshr_b32 {sT[1]}, {sH}, 3
    s_lshl_b32 {sT[1]}, {sT[1]}, 1
    s_add_u32 {sT[0]}, {sT[0]}, {sT[1]}
    s_and_b32 {sT[1]}, {sH}, 1
    s_add_u32 {sT[0]}, {sT[0]}, {sT[1]}
    s_lshl_b32 {sT[0]}, {sT[0]}, 2
    s_add_u32 {sT[0]}, {sT[0]}, {sW}
    s_mul_i32 {sT[0]}, {sT[0]}, {20*1024}
    """)
    for i in range(20):
        a(f"buffer_store_dwordx4 v[20:23], v{vL16}, {SWS}, {sT[0]} offen offset:{(i&3)*1024} {SC}")
        if i % 4 == 3: a(f"s_add_u32 {sT[0]}, {sT[0]}, 4096")
    a(f"""
    s_waitcnt vmcnt(0)
    {L}_np:
    s_waitcnt vmcnt({8+ntouch})
    """)
    a.stamp("a1_xland")
    for t in range(28):
        a(f"ds_read_b128 {vr(XREG+4*t,4)}, v{WFR+(t&3)} offset:{(t>>2)*1024}")
        if t == 13: a("s_waitcnt lgkmcnt(0)")
    a("s_waitcnt lgkmcnt(0)\n s_barrier")
    a(f"""
    s_add_u32 {sT[12]}, {sT[12]}, {sW}
    s_cmp_lg_u32 {sT[12]}, 0
    s_cbranch_scc1 {L}_ns
    s_and_b32 {sT[0]}, {sRB}, 3
    s_lshl_b32 {sT[0]}, {sT[0]}, 6
    v_mov_b32 v2, 1
    v_mov_b32 v3, {sT[0]}
    s_mov_b64 exec, 1
    buffer_atomic_add v2, v3, {SDBG}, 0 offen sc1
    s_mov_b64 exec, -1
    {L}_ns:
    """)
    vm = a1_wraw_ops(32, 56, 1, sT[8], sT[9], sT[11])
    for i in range(112):
        if i % 16 == 0 and vm: a(vm.pop(0))
        a(f"v_dot2c_f32_bf16 v{16+(i&1)}, v{XREG+i}, v{vC}")
        a(f"v_dot2c_f32_bf16 v{18+(i&1)}, v{XREG+i}, v{XREG+i}")
    assert not vm
    a(f"v_add_f32 v{vM}, v16, v17\n v_add_f32 v{vR}, v18, v19")
    a.halfsum(f"v{vM}", "v16")
    a.halfsum(f"v{vR}", "v17")
    a(f"""
    v_mul_f32 v{vM}, {fbits(1/448)}, v{vM}
    v_mul_f32 v{vR}, {fbits(1/448)}, v{vR}
    v_fma_f32 v{vR}, -v{vM}, v{vM}, v{vR}
    v_max_f32 v{vR}, 0, v{vR}
    v_mov_b32 v{CSK}, 0
    v_mov_b32 v{CSV}, 0
    """)
    for o in rowstats_ops(): a(o)
    a(f"s_waitcnt vmcnt({6+ntouch})\n s_barrier")

def a1_rd(a, f, dst):
    ad = a1_lds(f); win, off = ad >> 16, ad & 0xffff
    a(f"ds_read_b64_tr_b16 {dst(0)}, v{TRA+win} offset:{off}")
    a(f"ds_read_b64_tr_b16 {dst(2)}, v{TRA+3+win} offset:{off}")

def a1_kvloop(a, it):
    L = a.label("A1k")
    LA = 3
    def xload(t):
        a(f"buffer_load_dwordx4 {vr(XREG+4*t,4)}, v{vL16b if t&4 else vL16}, {SWS}, {sAT[t>>3]} offen offset:{(t&3)*1024} {SC}")
    def rd(t):
        for s_ in range(2):
            b = WFR + 8 * (t & 3) + 4 * s_
            a1_rd(a, 2 * t + s_, lambda o, b=b: vr(b + o, 2))
    qd = []
    if it == 1:
        stats_loads(a, sT[8], 176)
        a("s_waitcnt vmcnt(0)")
        a.check(range(176, 190), lambda: stats_loads(a, sT[8], 176), 0)
        for t in range(28): xload(t)
        a.nstamp -= 2
        a.stamp()
        a("s_barrier")
        for o in stats_math_ops(176, vM, vR, 224) + rowstats_ops(): a(o)
        a.stamp()
        if STAMPS: a.names = a.names[:-2]
    else:
        qd = a1_wraw_ops(56, 84, 1, sT[8], sT[9], sT[11])
    for t in range(LA): rd(t)
    for t in range(28):
        if it == 0 and t + LA == 16:
            a("s_waitcnt vmcnt(7)\n s_barrier")
        if it == 1 and t % 4 == 0:
            g = t // 4
            n = 4 * (6 - g)
            a(f"s_waitcnt vmcnt({n})")
            a.check(range(XREG + 16 * g, XREG + 16 * g + 16), lambda g=g: [xload(tt) for tt in range(4 * g, 28)], n)
        if t + LA < 28: rd(t + LA)
        a(f"s_waitcnt lgkmcnt({4*min(LA, 27-t)})")
        w = WFR + 8 * (t & 3)
        x = vr(XREG + 4 * t, 4)
        c = lambda base: (vr(base, 16) if t else "0")
        a(f"{MF} {vr(ACK,16)}, {x}, {vr(w,4)}, {c(ACK)}")
        a(f"{MF} {vr(ACV,16)}, {x}, {vr(w+4,4)}, {c(ACV)}")
        if it == 0:
            if qd: a(qd.pop(0))
            a(f"s_cmp_eq_u32 {sW}, {t&3}\n s_cbranch_scc0 {L}_cs{t}")
            for s_, dst in enumerate((CSK, CSV)):
                for i in range(4): a(f"v_dot2c_f32_bf16 v{dst}, v{w+4*s_+i}, v{vC}")
            a(f"{L}_cs{t}:")

def phase_a1(a):
    L = a.label("A1")
    RR, MM, T0 = 176, 224, 192
    a(f"s_cmp_eq_u32 {sIT}, 0\n s_cbranch_scc0 {L}_it1")
    a1_front_it0(a)
    a.stamp("a1_main")
    a1_kvloop(a, 0)
    a.counter_issue(0, 4)
    a(f"""
    v_lshlrev_b32 v10, 2, v{vL31}
    v_add_u32 v10, {CSL}, v10
    ds_add_f32 v10, v{CSK} offset:128
    ds_add_f32 v10, v{CSV} offset:256
    s_waitcnt lgkmcnt(0)
    s_barrier
    ds_read_b32 v{CSK}, v10 offset:128
    ds_read_b32 v{CSV}, v10 offset:256
    s_branch {L}_epi
    {L}_it1:
    """)
    a1_tr_setup(a, 1)
    a(f"""
    s_lshl_b32 {sT[0]}, {sRB}, 2
    s_add_u32 {sT[0]}, {sT[0]}, {sW}
    s_mul_i32 {sAT[0]}, {sT[0]}, {28*1024}
    s_add_u32 {sAT[0]}, {sAT[0]}, {XF}
    s_add_u32 {sAT[1]}, {sAT[0]}, 0x2000
    s_add_u32 {sAT[2]}, {sAT[0]}, 0x4000
    s_add_u32 {sAT[3]}, {sAT[0]}, 0x6000
    s_mul_i32 {sT[8]}, {sT[0]}, 3584
    s_add_u32 {sT[8]}, {sT[8]}, {ST2}
    v_mov_b32 v{vCNT}, 64
    """)
    a1_kvloop(a, 1)
    a("s_barrier")
    a(f"{L}_epi:")
    a.stamp("a1_epi")
    for q in range(4):
        a(f"ds_read_b128 {vr(MM+4*q,4)}, v{vRS} offset:{128+32*q}")
        a(f"ds_read_b128 {vr(RR+4*q,4)}, v{vRS} offset:{32*q}")
    a(f"""
    s_mov_b32 {sT[3]}, {fbits(1e-6)}
    v_mov_b32 v0, {fbits(1e-6)}
    v_mov_b32 v1, {fbits(LOG2E)}
    s_lshl_b32 {sT[0]}, {sW}, 12
    v_add_u32 v2, {sT[0]}, v{vL16}
    s_lshl_b32 {sT[5]}, {sW}, 10
    v_add_u32 v3, {sT[5]}, v{vL16}
    s_lshl_b32 {sT[6]}, {sH}, 4
    s_add_u32 {sT[6]}, {sT[6]}, {sRB}
    s_lshl_b32 {sT[6]}, {sT[6]}, 12
    s_add_u32 {sT[6]}, {sT[6]}, {sT[5]}
    s_add_u32 {sT[6]}, {sT[6]}, {sITO}
    s_add_u32 {sT[6]}, {sT[6]}, {KVP}
    s_waitcnt lgkmcnt(0)
    """)
    k0, v0 = ACK, ACV
    P = lambda b, r: vr(b + 2 * r, 2)
    CS = vr(CSK, 2)
    for r in range(8): a(f"v_pk_fma_f32 {P(k0,r)}, {P(MM,r)}, {CS}, {P(k0,r)} op_sel_hi:[1,0,1] neg_lo:[1,0,0] neg_hi:[1,0,0]")
    for r in range(8): a(f"v_pk_fma_f32 {P(k0,r)}, {P(k0,r)}, {P(RR,r)}, v[0:1] op_sel_hi:[1,1,0]")
    for r in range(8): a(f"v_pk_mul_f32 {P(T0,r)}, {P(k0,r)}, v[0:1] op_sel:[0,1] op_sel_hi:[1,1]")
    for r in range(8):
        a(f"v_exp_f32_e64 v{T0+2*r}, v{T0+2*r} clamp")
        a(f"v_max_f32 v{k0+2*r}, {sT[3]}, v{k0+2*r}")
        a(f"v_exp_f32_e64 v{T0+2*r+1}, v{T0+2*r+1} clamp")
        a(f"v_max_f32 v{k0+2*r+1}, {sT[3]}, v{k0+2*r+1}")
        a(f"v_pk_fma_f32 {P(v0,r)}, {P(MM,r)}, {CS}, {P(v0,r)} op_sel:[0,1,0] op_sel_hi:[1,1,1] neg_lo:[1,0,0] neg_hi:[1,0,0]")
    for r in range(8): a(f"v_pk_mul_f32 {P(v0,r)}, {P(v0,r)}, {P(RR,r)}")
    for r in range(8): a(f"v_pk_add_f32 {P(k0,r)}, {P(k0,r)}, {P(T0,r)}")
    for r in range(8): a(f"v_cvt_pk_bf16_f32 v{v0+r}, v{v0+2*r}, v{v0+2*r+1}")
    a("s_mov_b32 exec_lo, 0xf0000000\n s_mov_b32 exec_hi, 0xf0000000")
    for r in range(8): a(f"v_mov_b32 v{ACV+r}, 0x3f803f80")
    a("s_mov_b64 exec, -1")
    for r in range(8): a(f"v_cvt_pk_bf16_f32 v{k0+r}, v{k0+2*r}, v{k0+2*r+1}")
    KVA = 176
    a(f"{MF} {vr(KVA,16)}, {vr(ACK,4)}, {vr(ACV,4)}, 0")
    a(f"{MF} {vr(KVA,16)}, {vr(ACK+4,4)}, {vr(ACV+4,4)}, {vr(KVA,16)}")
    for q in range(4): a(f"ds_write_b128 v2, {vr(KVA+4*q,4)} offset:{KVL+1024*q}")
    a("s_waitcnt vmcnt(0) lgkmcnt(0)\n s_barrier")
    for w2 in range(4): a(f"ds_read_b128 {vr(192+4*w2,4)}, v3 offset:{KVL+4096*w2}")
    QLA = 5
    def qrd(t): a1_rd(a, 56 + t, lambda o, t=t: ar(aWF + 4 * (t & 7) + o, 2))
    for t in range(QLA): qrd(t)
    a.counter_check(0, 16)
    a(f"""
    s_waitcnt lgkmcnt({2*QLA})
    v_pk_add_f32 v[192:193], v[192:193], v[196:197]
    v_pk_add_f32 v[194:195], v[194:195], v[198:199]
    v_pk_add_f32 v[200:201], v[200:201], v[204:205]
    v_pk_add_f32 v[202:203], v[202:203], v[206:207]
    v_pk_add_f32 v[192:193], v[192:193], v[200:201]
    v_pk_add_f32 v[194:195], v[194:195], v[202:203]
    buffer_store_dwordx4 v[192:195], v{vL16}, {SWS}, {sT[6]} offen {SC}
    """)
    a.stamp("a1_kvp")
    T1 = 224
    va = [f"v_accvgpr_read_b32 v{T1+r}, a{aCSQ+r}" for r in range(16)]
    va += [f"v_accvgpr_read_b32 v2, a{aKRL}", f"v_accvgpr_read_b32 v3, a{aKRS}"]
    for t in range(28):
        if t + QLA < 28: qrd(t + QLA)
        a(f"s_waitcnt lgkmcnt({2*min(QLA, 27-t)})")
        a(f"{MF} {vr(ACQ,16)}, {ar(aWF+4*(t&7),4)}, {vr(XREG+4*t,4)}, {vr(ACQ,16) if t else '0'}")
        if va: a(va.pop(0))
    a(f"""
    s_add_u32 {sT[6]}, {sKRL}, {sITO}
    s_add_u32 {sT[7]}, {sKRS}, {sITO}
    s_cmp_lg_u32 {sW}, 0
    s_cbranch_scc1 {L}_nr
    """)
    def rloads():
        for i in range(4):
            a(f"s_add_u32 {sT[2]}, {sT[6]}, {i*0x4000}")
            a(f"buffer_load_dwordx4 {vr(176+4*i,4)}, v2, {SWS}, {sT[2]} offen {SC}")
    rloads()
    a(f"{L}_nr:\n s_cmp_eq_u32 {sIT}, 0\n s_cbranch_scc0 {L}_ncq")
    a(f"s_lshl_b32 {sT[0]}, {sW}, 10\n v_add_u32 v32, {sT[0]}, v{TRA+2}\n v_add_u32 v33, {sT[0]}, v{TRA+5}\n v_mov_b32 v34, 0")
    for i in range(7):
        a(f"ds_read_b64_tr_b16 {vr(WFR+4*i,2)}, v32 offset:{4096*i}")
        a(f"ds_read_b64_tr_b16 {vr(WFR+4*i+2,2)}, v33 offset:{4096*i}")
    a("s_waitcnt lgkmcnt(0)")
    for j in range(28): a(f"v_dot2c_f32_bf16 v34, v{WFR+j}, v{vC}")
    a(f"""
    ds_add_f32 v10, v34
    v_lshlrev_b32 v32, 4, v{vHH}
    v_add_u32 v32, {CSL}, v32
    s_waitcnt lgkmcnt(0)
    s_barrier
    """)
    for q in range(4): a(f"ds_read_b128 {vr(T1+4*q,4)}, v32 offset:{32*q}")
    a("s_waitcnt lgkmcnt(0)")
    for r in range(16): a(f"v_accvgpr_write_b32 a{aCSQ+r}, v{T1+r}")
    a(f"s_branch {L}_q\n {L}_ncq:\n s_barrier\n {L}_q:")
    for r in range(8): a(f"v_pk_fma_f32 {P(ACQ,r)}, {P(T1,r)}, v[{vM}:{vR}], {P(ACQ,r)} op_sel_hi:[1,0,1] neg_lo:[1,0,0] neg_hi:[1,0,0]")
    for r in range(8): a(f"v_pk_fma_f32 {P(ACQ,r)}, {P(ACQ,r)}, v[{vM}:{vR}], v[0:1] op_sel:[0,1,0] op_sel_hi:[1,1,0]")
    for r in range(8): a(f"v_pk_mul_f32 {P(T1,r)}, {P(ACQ,r)}, v[0:1] op_sel:[0,1] op_sel_hi:[1,1]")
    for r in range(16):
        a(f"v_exp_f32_e64 v{T1+r}, v{T1+r} clamp")
        a(f"v_max_f32 v{ACQ+r}, {sT[3]}, v{ACQ+r}")
    for r in range(8): a(f"v_pk_add_f32 {P(ACQ,r)}, {P(ACQ,r)}, {P(T1,r)}")
    for r in range(8): a(f"v_cvt_pk_bf16_f32 v{T1+r}, v{ACQ+2*r}, v{ACQ+2*r+1}")
    a(f"""
    s_lshl_b32 {sT[0]}, {sRB}, 2
    s_add_u32 {sT[0]}, {sT[0]}, {sW}
    s_lshl_b32 {sT[0]}, {sT[0]}, 4
    s_add_u32 {sT[0]}, {sT[0]}, {sH}
    s_lshl_b32 {sT[0]}, {sT[0]}, 11
    s_add_u32 {sT[0]}, {sT[0]}, {sITO}
    buffer_store_dwordx4 {vr(T1,4)}, v{vL16}, {SWS}, {sT[0]} offen {SC}
    buffer_store_dwordx4 {vr(T1+4,4)}, v{vL16}, {SWS}, {sT[0]} offen offset:1024 {SC}
    """)
    a.stamp("a1_end")
    a(f"s_cmp_lg_u32 {sW}, 0\n s_cbranch_scc1 {L}_end\n s_waitcnt vmcnt(2)")
    a.check(range(176, 192), rloads, 0)
    a(f"""
    v_pk_add_f32 v[176:177], v[176:177], v[180:181]
    v_pk_add_f32 v[178:179], v[178:179], v[182:183]
    v_pk_add_f32 v[184:185], v[184:185], v[188:189]
    v_pk_add_f32 v[186:187], v[186:187], v[190:191]
    v_pk_add_f32 v[176:177], v[176:177], v[184:185]
    v_pk_add_f32 v[178:179], v[178:179], v[186:187]
    v_permlane32_swap_b32 v176, v178
    v_permlane32_swap_b32 v177, v179
    v_pk_add_f32 v[176:177], v[176:177], v[178:179]
    v_permlane16_swap_b32 v176, v177
    v_add_f32 v176, v176, v177
    v_mov_b32 v177, v176
    v_permlane16_swap_b32 v176, v177
    v_cvt_pk_bf16_f32 v180, v176, v177
    v_and_b32 v180, {sKRM}, v180
    v_mov_b32 v181, v180
    v_permlane32_swap_b32 v180, v181
    s_mov_b64 exec, 0xffff
    buffer_store_dwordx2 v[180:181], v3, {SWS}, {sT[7]} offen {SC}
    s_mov_b64 exec, -1
    {L}_end:
    """)

RED = 0x24000
def red_addrs(a, base, partner_xor, v_own, v_par):
    a(f"""
    s_lshl_b32 {sT[0]}, {sW}, 12
    s_add_u32 {sT[0]}, {sT[0]}, {base}
    v_add_u32 v{v_own}, {sT[0]}, v{vL16}
    v_xor_b32 v{v_par}, {partner_xor*4096}, v{v_own}
    """)
def pair_reduce(a, acc0, acc1, v_own, v_par, after_barrier=None):
    for q in range(4): a(f"ds_write_b128 v{v_own}, {vr(acc1+4*q,4)} offset:{1024*q}")
    a("s_waitcnt lgkmcnt(0)\n s_barrier")
    for q in range(4): a(f"ds_read_b128 {vr(acc1+4*q,4)}, v{v_par} offset:{1024*q}")
    if after_barrier: after_barrier()
    for q in range(4):
        a(f"s_waitcnt lgkmcnt({3-q})")
        for r in range(2): a(f"v_pk_add_f32 {vr(acc0+4*q+2*r,2)}, {vr(acc0+4*q+2*r,2)}, {vr(acc1+4*q+2*r,2)}")

def helper_work(a):
    L = a.label("HW")
    a(f"""
    s_and_b32 {sT[0]}, s2, 7
    s_lshr_b32 {sT[0]}, {sT[0]}, 1
    s_lshl_b32 {sT[0]}, {sT[0]}, 3
    s_lshr_b32 {sT[1]}, s2, 3
    s_add_u32 {sT[0]}, {sT[0]}, {sT[1]}
    s_sub_u32 {sT[0]}, {sT[0]}, 24
    s_lshl_b32 {sT[0]}, {sT[0]}, 2
    s_add_u32 {sT[0]}, {sT[0]}, {sW}         ; hw 0..127
    v_lshrrev_b32 v4, 2, v{vLANE}
    v_mul_u32_u24 v4, 2688, v4
    v_and_b32 v5, 3, v{vLANE}
    v_lshl_add_u32 v4, v5, 4, v4
    """)
    for i in range(11):
        a(f"""
        s_add_u32 {sT[1]}, {sT[0]}, {128*i}
        s_min_u32 {sT[1]}, {sT[1]}, 1343
        s_mul_i32 {sT[2]}, {sT[1]}, 3121
        s_lshr_b32 {sT[2]}, {sT[2]}, 18
        s_mul_i32 {sT[3]}, {sT[2]}, 84
        s_sub_u32 {sT[3]}, {sT[1]}, {sT[3]}
        s_mul_i32 {sT[2]}, {sT[2]}, 56
        s_and_b32 {sT[2]}, {sT[2]}, 0xfff0
        s_lshr_b32 {sT[4]}, {sT[3]}, 1
        s_and_b32 {sT[5]}, {sT[3]}, 1
        s_add_u32 {sT[5]}, {sT[5]}, 1
        s_sub_u32 {sT[6]}, {sT[3]}, 56
        s_cmp_lt_u32 {sT[3]}, 56
        s_cselect_b32 {sT[4]}, {sT[4]}, {sT[6]}
        s_cselect_b32 {sT[5]}, {sT[5]}, 0
        s_mul_i32 {sT[4]}, {sT[4]}, {16*2688}
        s_mul_i32 {sT[5]}, {sT[5]}, 896
        s_add_u32 {sT[2]}, {sT[2]}, {sT[4]}
        s_add_u32 {sT[2]}, {sT[2]}, {sT[5]}
        buffer_load_dwordx4 {vr(16+4*i,4)}, v4, {SWQKV}, {sT[2]} offen
        """)
    a(f"""
    v_mov_b32 v8, -1
    v_mov_b32 v9, -1
    v_mov_b32 v10, -1
    v_mov_b32 v11, -1
    s_lshl_b32 {sT[1]}, {sT[0]}, 10
    s_add_u32 {sT[1]}, {sT[1]}, {UF}
    {L}_f:
    buffer_store_dwordx4 v[8:11], v{vL16}, {SWS}, {sT[1]} offen {SC}
    s_add_u32 {sT[1]}, {sT[1]}, {128*1024}
    s_cmp_lt_u32 {sT[1]}, {FILL_END}
    s_cbranch_scc1 {L}_f
    s_waitcnt vmcnt(60)
    """)
    for i in range(11):
        a(f"""
        s_add_u32 {sT[1]}, {sT[0]}, {128*i}
        s_min_u32 {sT[1]}, {sT[1]}, 1343
        s_lshl_b32 {sT[2]}, {sT[1]}, 10
        s_add_u32 {sT[2]}, {sT[2]}, {WQP}
        buffer_store_dwordx4 {vr(16+4*i,4)}, v{vL16}, {SWS}, {sT[2]} offen {SC}
        """)
    a(f"""
    s_waitcnt vmcnt(0)
    s_barrier
    s_cmp_lg_u32 {sW}, 0
    s_cbranch_scc1 {L}_ns
    v_mov_b32 v2, 1
    v_mov_b32 v3, 4
    s_mov_b64 exec, 1
    buffer_atomic_add v2, v3, {SDBG}, 0 offen sc1
    s_mov_b64 exec, -1
    {L}_ns:
    """)
    if OPT.get("warm", 1):
        for srd in (SW1, SW2):
            LL = a.label("HWW")
            a(f"""
            s_lshl_b32 {sT[1]}, {sT[0]}, 10
            {LL}:
            buffer_load_dwordx4 v[16:19], v{vL16}, {srd}, {sT[1]} offen
            s_add_u32 {sT[1]}, {sT[1]}, {128*1024}
            s_cmp_lt_u32 {sT[1]}, {F*S*2}
            s_cbranch_scc1 {LL}
            """)
    a.counter_wait(4, 1, 32, 2)
    a("s_barrier")
    a1_wpk_setup(a)
    for o in a1_wpk_ops(0, 84): a(o)

def phase_a2(a):
    L = a.label("A2")
    PQR, KVR = 64, 128
    AC0, AC1 = 16, 32
    a(f"""
    s_lshl_b32 {sT[5]}, {sST}, 1
    s_add_u32 {sT[5]}, {sT[5]}, {sWL}
    s_lshl_b32 {sAT[0]}, {sT[5]}, 15
    s_lshl_b32 {sT[1]}, {sWH}, 14
    s_add_u32 {sAT[0]}, {sAT[0]}, {sT[1]}
    s_add_u32 {sAT[0]}, {sAT[0]}, {sITO}
    s_add_u32 {sAT[1]}, {sAT[0]}, 0x2000
    s_add_u32 {sAT[2]}, {sT[1]}, {sITO}
    s_add_u32 {sAT[2]}, {sAT[2]}, {KVF}
    s_add_u32 {sAT[3]}, {sAT[2]}, 0x2000
    """)
    def pq_loads():
        for i in range(16):
            a(f"buffer_load_dwordx4 {vr(PQR+4*i,4)}, v{vL16b if i&4 else vL16}, {SWS}, {sAT[i>>3]} offen offset:{(i&3)*1024} {SC}")
    def kv_loads(i0=0):
        for i in range(i0, 16):
            a(f"buffer_load_dwordx4 {vr(KVR+4*i,4)}, v{vL16b if i&4 else vL16}, {SWS}, {sAT[2+(i>>3)]} offen offset:{(i&3)*1024} {SC}")
    wo_dma(a)
    a(f"s_cmp_eq_u32 {sIT}, 0\n s_cbranch_scc0 {L}_nm")
    a(f"""
    v_mul_u32_u24 v2, 896, v{vL31}
    v_lshl_add_u32 v2, v{vHH}, 3, v2
    s_mul_i32 {sT[0]}, {sT[5]}, {32*896}
    s_lshl_b32 {sT[1]}, {sDT}, 7
    s_add_u32 {sT[0]}, {sT[0]}, {sT[1]}
    s_lshl_b32 {sT[1]}, {sWH}, 6
    s_add_u32 {sT[0]}, {sT[0]}, {sT[1]}
    """)
    for q in range(4): a(f"buffer_load_dwordx2 {vr(224+2*q,2)}, v2, {SX}, {sT[0]} offen offset:{16*q}")
    a(f"""
    v_lshlrev_b32 v3, 3, v{vHH}
    s_min_u32 {sT[0]}, {sFT}, 27
    s_lshl_b32 {sT[0]}, {sT[0]}, 7
    s_add_u32 {sT[0]}, {sT[0]}, {sT[1]}
    """)
    for q in range(4): a(f"buffer_load_dwordx2 {ar(aB1+2*q,2)}, v3, {SB1}, {sT[0]} offen offset:{16*q}")
    a(f"""
    v_lshlrev_b32 v4, 1, v{vL31}
    s_lshl_b32 {sT[0]}, {sT[5]}, 6
    buffer_load_ushort a{aB2}, v4, {SB2}, {sT[0]} offen
    {L}_nm:
    """)
    pq_loads()
    a(f"s_lshl_b32 {sT[0]}, {sWH}, 16\n s_add_u32 {sT[0]}, {sT[0]}, 0x8000")
    wtile_tr_addr(a, 6, 14, sWH, sT[0])
    red_addrs(a, RED, 2, 8, 9)
    for r in range(16): a(f"v_accvgpr_read_b32 v{AC0+r}, a{aRES+r}")
    a(f"""
    s_mul_i32 {sT[8]}, {sT[5]}, 3584
    s_add_u32 {sT[8]}, {sT[8]}, {sITO}
    s_add_u32 {sT[8]}, {sT[8]}, {ST}
    s_lshl_b32 {sT[1]}, {sDT}, 1
    s_add_u32 {sT[1]}, {sT[1]}, {sWH}
    s_lshl_b32 {sT[9]}, {sT[1]}, 8
    s_add_u32 {sT[9]}, {sT[9]}, {sT[8]}
    s_lshl_b32 {sT[12]}, {sT[1]}, 17
    s_lshl_b32 {sT[0]}, {sT[5]}, 11
    s_add_u32 {sT[12]}, {sT[12]}, {sT[0]}
    s_add_u32 {sT[12]}, {sT[12]}, {sITO}
    s_add_u32 {sT[12]}, {sT[12]}, {HF}
    s_lshl_b32 {sT[0]}, {sW}, 11
    s_add_u32 {sT[0]}, {sT[0]}, 0x20000
    v_lshrrev_b32 v2, 1, v{vL31}
    v_and_b32 v2, 7, v2
    v_xor_b32 v2, v2, v{vHH}
    v_lshlrev_b32 v3, 6, v{vL31}
    v_add_u32 v3, {sT[0]}, v3
    """)
    TW = 208
    for q in range(4): a(f"v_xor_b32 v4, {2*q}, v2\n v_lshl_add_u32 v{TW+q}, v4, 3, v3")
    a(f"""
    v_lshrrev_b32 v2, 2, v{vLANE}
    v_and_b32 v2, 3, v2
    v_lshl_add_u32 v2, v{vHH}, 3, v2
    v_lshrrev_b32 v3, 4, v{vLANE}
    v_and_b32 v3, 1, v3
    v_lshlrev_b32 v3, 2, v3
    v_and_b32 v4, 3, v{vLANE}
    v_add_u32 v3, v3, v4
    v_lshrrev_b32 v4, 1, v2
    v_xor_b32 v3, v3, v4
    v_lshlrev_b32 v2, 6, v2
    v_add_u32 v2, {sT[0]}, v2
    v_lshl_add_u32 v{TW+4}, v3, 3, v2
    v_xor_b32 v3, 2, v3
    v_lshl_add_u32 v{TW+5}, v3, 3, v2
    v_mov_b32 v199, 0
    v_mov_b32 v207, 0
    v_lshrrev_b32 v2, 1, v{vLANE}
    v_lshlrev_b32 v2, 9, v2
    v_and_b32 v3, 1, v{vLANE}
    v_mul_u32_u24 v3, 96, v3
    v_add_u32 v11, v2, v3
    s_waitcnt vmcnt(0)
    s_cmp_eq_u32 {sIT}, 0
    s_cbranch_scc0 {L}_nu
    """)
    for q in range(8): a(f"v_lshlrev_b32 v{AC0+2*q}, 16, v{224+q}\n v_and_b32 v{AC0+2*q+1}, 0xffff0000, v{224+q}")
    a(f"{L}_nu:")
    a.check(range(PQR, PQR + 64), lambda: (a("s_sleep 4"), pq_loads()), 0)
    a("s_barrier")
    a.stamp("a2_pq")
    a.probe(11, sAT[2], 12, 4)
    kv_loads()
    NB = [48, 224]
    OB = [192, 200]
    def num_ops(hd):
        n = NB[hd & 1]
        return [f"{MF} {vr(n,16)}, {vr(KVR+8*hd,4)}, {vr(PQR+8*hd,4)}, 0",
                f"{MF} {vr(n,16)}, {vr(KVR+8*hd+4,4)}, {vr(PQR+8*hd+4,4)}, {vr(n,16)}"]
    p1 = big_dma_ops(1, 0) + big_dma_ops(1, 1)
    nd = [0]
    def kvchk(hd):
        a(f"s_waitcnt vmcnt({14-2*hd+nd[0]})")
        a.check(range(KVR + 8 * hd, KVR + 8 * hd + 8), lambda hd=hd: kv_loads(2 * hd), 0)
    def wrd(hd):
        for t in range(2):
            for nb in range(2):
                b = aWF + 16 * (hd & 1) + 4 * (2 * t + nb)
                for u in range(2):
                    a(f"ds_read_b64_tr_b16 {ar(b+2*u,2)}, v{6+nb} offset:{(28*hd+8*t+4*u)*128}")
    def div_ops(hd):
        n, o = NB[hd & 1], OB[hd & 1]
        ops = [f"v_add_f32 v10, {fbits(1e-6)}, v{n+15}", "v_rcp_f32 v10, v10"]
        for r in range(7):
            ops += [f"v_mul_f32 v{n+2*r}, v{n+2*r}, v10", f"v_mul_f32 v{n+2*r+1}, v{n+2*r+1}, v10"]
        for r in range(7): ops.append(f"v_cvt_pk_bf16_f32 v{o+r}, v{n+2*r}, v{n+2*r+1}")
        return ops
    def out_ops(hd):
        ops = []
        for t in range(2):
            for nb in range(2):
                acc = (AC0, AC1)[nb]
                c = vr(acc, 16) if (hd or t or nb == 0) else "0"
                ops.append(f"{MF} {vr(acc,16)}, {ar(aWF+16*(hd&1)+4*(2*t+nb),4)}, {vr(OB[hd&1]+4*t,4)}, {c}")
        return ops
    wrd(0)
    kvchk(0)
    for o in num_ops(0): a(o)
    a.stamp("a2_kv")
    kvchk(1)
    for o in num_ops(1): a(o)
    for o in div_ops(0): a(o)
    for hd in range(8):
        if hd + 1 < 8: wrd(hd + 1)
        a(f"s_waitcnt lgkmcnt({8 if hd + 1 < 8 else 0})")
        va = div_ops(hd + 1) if hd + 1 < 8 else []
        for j, o in enumerate(out_ops(hd)):
            a(o)
            if j & 1 and p1:
                a(p1.pop(0)); nd[0] += 1
            for _ in range(6):
                if va: a(va.pop(0))
        while va: a(va.pop(0))
        if hd + 2 < 8:
            kvchk(hd + 2)
            for o in num_ops(hd + 2): a(o)
    a.stamp("a2_mm")
    pair_reduce(a, AC0, AC1, 8, 9)
    stats_publish(a, AC0, 64, sT[9])
    a(f"s_cmp_ge_u32 {sACT}, 7\n s_cbranch_scc1 {L}_nop2")
    big_dma_chunk(a, 1, 2)
    a(f"{L}_nop2:")
    stats_loads(a, sT[8], 96)
    for r in range(16): a(f"v_accvgpr_write_b32 a{aRES+r}, v{AC0+r}")
    a("s_waitcnt vmcnt(0)")
    a.check(range(96, 110), lambda: stats_loads(a, sT[8], 96), 0)
    a.stamp("a2_st")
    for o in stats_math_ops(96, 80, 82, 112): a(o)
    a(f"""
    v_add_f32 v84, {fbits(1e-5)}, v82
    v_rsq_f32 v84, v84
    v_mov_b32 v86, {fbits(1e-5)}
    v_mul_f32 v85, v82, v84
    v_fmac_f32 v86, v85, v84
    v_rsq_f32 v86, v86
    v_mul_f32 v84, v84, v86
    v_mul_f32 v86, -v80, v84
    """)
    for r in range(8): a(f"v_pk_fma_f32 {vr(32+2*r,2)}, {vr(AC0+2*r,2)}, v[84:85], v[86:87] op_sel_hi:[1,0,0]")
    for r in range(8): a(f"v_cvt_pk_bf16_f32 v{112+r}, v{32+2*r}, v{32+2*r+1}")
    for q in range(4): a(f"ds_write_b64 v{TW+q}, {vr(112+2*q,2)}")
    a(f"""
    ds_read_b64_tr_b16 v[120:121], v{TW+4}
    ds_read_b64_tr_b16 v[122:123], v{TW+5} offset:256
    ds_read_b64_tr_b16 v[124:125], v{TW+4} offset:1024
    ds_read_b64_tr_b16 v[126:127], v{TW+5} offset:1280
    s_waitcnt lgkmcnt(2)
    buffer_store_dwordx4 v[120:123], v{vL16}, {SWS}, {sT[12]} offen {SC}
    s_waitcnt lgkmcnt(0)
    buffer_store_dwordx4 v[124:127], v{vL16}, {SWS}, {sT[12]} offen offset:1024 {SC}
    """)

def gemm_big(a, which, s_base, setup, cont):
    nks, urows, w_is_a = (64, 4, True) if which == 1 else (56, 8, False)
    CH = 8; nch = nks // CH
    ACT, WIN, LA = 64, OPT.get("win", 32), 3
    def act_load(t):
        a(f"buffer_load_dwordx4 {vr(ACT+4*(t%WIN),4)}, v{vL16b if t&4 else vL16}, {SWS}, {sAT[t>>3]} offen offset:{(t&3)*1024} {SC}")
    def rd(t):
        slot = (t // CH) & 3
        for nb in range(2):
            b = aWF + 8 * (t & 3) + 4 * nb
            for u in range(2):
                a(f"ds_read_b64_tr_b16 {ar(b+2*u,2)}, v{6+nb} offset:{slot*16384 + ((t%CH)*16 + urows*u)*128}")
    rot_table(a, sAT, nch, s_base, 8192)
    setup()
    a(f"v_min_u32 v11, {nks-1}, v{vLANE}\n v_lshlrev_b32 v11, 10, v11\n v_add_u32 v11, 1020, v11")
    a("s_waitcnt vmcnt(0)\n s_barrier")
    for t in range(LA): rd(t)
    a.probe(11, s_base, 13, 1)
    a.stamp("probe")
    q = []
    for t in range(WIN):
        act_load(t); q.append(("a", t))
    def cnt(item):
        idx = max(i for i, x in enumerate(q) if x == item)
        return min(len(q) - 1 - idx, 63)
    first_dma = [False]
    pend = []
    def grp_regs(t): return range(ACT + 4 * (t % WIN), ACT + 4 * (t % WIN) + 16)
    def grp_check_full(t):
        n = cnt(("a", t + 3))
        a(f"s_waitcnt vmcnt({n})")
        hi = max(x[1] for x in q if x[0] == "a") + 1
        a.check(grp_regs(t), lambda t=t, hi=hi: [act_load(tt) for tt in range(t, hi)], n if not first_dma[0] else 0)
    for t in range(nks):
        if t % 4 == 0:
            grp_check_full(t)
            if t == 0: a.stamp("acq")
        if (t + LA) % CH == 0 and t + LA < nks:
            cn = (t + LA) // CH
            if cn >= 4: a(f"s_waitcnt vmcnt({cnt(('w', cn))})")
            if cn >= 2: a("s_barrier")
            assert not pend
            if cn >= 2 and cn + 2 < nch:
                pend = [(o, ("w", cn + 2)) for o in big_dma_ops(which, cn + 2)]
            elif cn in cont:
                pend = [(o, ("x", cn)) for o in cont[cn]]
        if t + LA < nks: rd(t + LA)
        a(f"s_waitcnt lgkmcnt({4*min(LA, nks-1-t)})")
        x = vr(ACT + 4 * (t % WIN), 4)
        for nb in range(2):
            acc = 16 + 16 * nb
            w = ar(aWF + 8 * (t & 3) + 4 * nb, 4)
            c_ = vr(acc, 16) if (t or nb == 0) else "0"
            if w_is_a: a(f"{MF} {vr(acc,16)}, {w}, {x}, {c_}")
            else: a(f"{MF} {vr(acc,16)}, {x}, {w}, {c_}")
            if pend and nb == 0:
                o, tag = pend.pop(0)
                a(o); q.append(tag); first_dma[0] = True
        if t + WIN < nks:
            act_load(t + WIN); q.append(("a", t + WIN))
    assert not pend

def phase_b1(a):
    a("s_barrier")
    big_dma_chunk(a, 1, 3)
    a.counter_issue(4, 1)
    a(f"""
    s_lshl_b32 {sT[5]}, {sDT}, 1
    s_add_u32 {sT[5]}, {sT[5]}, {sWL}
    s_lshl_b32 {sT[6]}, {sT[5]}, 17
    s_lshl_b32 {sT[3]}, {sWH}, 16
    s_add_u32 {sT[6]}, {sT[6]}, {sT[3]}
    s_add_u32 {sT[6]}, {sT[6]}, {sITO}
    s_add_u32 {sT[6]}, {sT[6]}, {HF}
    """)
    c0 = -2 * 0.7978845608028654 * LOG2E
    c1 = c0 * 0.044715
    def setup():
        wtile_tr_addr(a, 6, 8, sWH, sT[3])
        red_addrs(a, RED, 2, 8, 9)
        a(f"""
        s_mul_i32 {sT[7]}, {sT[5]}, {112*1024}
        s_lshl_b32 {sT[1]}, {sFT}, 12
        s_add_u32 {sT[7]}, {sT[7]}, {sT[1]}
        s_lshl_b32 {sT[1]}, {sWH}, 11
        s_add_u32 {sT[7]}, {sT[7]}, {sT[1]}
        s_add_u32 {sT[7]}, {sT[7]}, {sITO}
        s_add_u32 {sT[7]}, {sT[7]}, {UF}
        """)
        for q in range(8): a(f"v_accvgpr_read_b32 v2, a{aB1+q}\n v_lshlrev_b32 v{16+2*q}, 16, v2\n v_and_b32 v{16+2*q+1}, 0xffff0000, v2")
        a(f"v_mov_b32 v10, {fbits(c1)}\n v_mov_b32 v12, {fbits(c0)}")
    gemm_big(a, 1, sT[6], setup, {6: big_dma_ops(2, 0), 7: big_dma_ops(2, 1)})
    a.stamp("b1_mm")
    pair_reduce(a, 16, 32, 8, 9, lambda: a.counter_check(4, 32))
    U, T = 16, 64
    for r in range(8): a(f"v_pk_mul_f32 {vr(T+2*r,2)}, {vr(U+2*r,2)}, {vr(U+2*r,2)}")
    for r in range(8): a(f"v_pk_fma_f32 {vr(T+2*r,2)}, {vr(T+2*r,2)}, v[10:11], v[12:13] op_sel_hi:[1,0,0]")
    for r in range(8): a(f"v_pk_mul_f32 {vr(T+2*r,2)}, {vr(T+2*r,2)}, {vr(U+2*r,2)}")
    for r in range(16): a(f"v_exp_f32 v{T+r}, v{T+r}")
    for r in range(8): a(f"v_pk_add_f32 {vr(T+2*r,2)}, {vr(T+2*r,2)}, 1.0 op_sel_hi:[1,0]")
    for r in range(16): a(f"v_rcp_f32 v{T+r}, v{T+r}")
    for r in range(8): a(f"v_pk_mul_f32 {vr(T+2*r,2)}, {vr(T+2*r,2)}, {vr(U+2*r,2)}")
    for r in range(8): a(f"v_cvt_pk_bf16_f32 v{100+r}, v{T+2*r}, v{T+2*r+1}")
    a(f"""
    buffer_store_dwordx4 v[100:103], v{vL16}, {SWS}, {sT[7]} offen {SC}
    buffer_store_dwordx4 v[104:107], v{vL16}, {SWS}, {sT[7]} offen offset:1024 {SC}
    """)

def phase_b2(a):
    L = a.label("B2")
    big_dma_chunk(a, 2, 2); big_dma_chunk(a, 2, 3)
    a(f"""
    s_lshl_b32 {sT[5]}, {sDT}, 1
    s_add_u32 {sT[5]}, {sT[5]}, {sWH}
    s_mul_i32 {sT[6]}, {sT[5]}, {112*1024}
    s_mul_i32 {sT[0]}, {sWL}, {56*1024}
    s_add_u32 {sT[6]}, {sT[6]}, {sT[0]}
    s_add_u32 {sT[6]}, {sT[6]}, {sITO}
    s_add_u32 {sT[6]}, {sT[6]}, {UF}
    """)
    def setup():
        a(f"""
        s_lshl_b32 {sT[7]}, {sST}, 1
        s_add_u32 {sT[7]}, {sT[7]}, {sWL}
        s_lshl_b32 {sT[3]}, {sWL}, 16
        """)
        wtile_tr_addr(a, 6, 4, sWL, sT[3])
        red_addrs(a, 0xC000, 1, 8, 9)
        a1_wpk_setup(a)
        a(f"""
        s_mul_i32 {sT[8]}, {sT[7]}, {28*1024}
        s_lshl_b32 {sT[1]}, {sT[5]}, 11
        s_add_u32 {sT[8]}, {sT[8]}, {sT[1]}
        s_add_u32 {sT[8]}, {sT[8]}, {XF}
        s_mul_i32 {sT[9]}, {sT[7]}, 3584
        s_lshl_b32 {sT[1]}, {sT[5]}, 8
        s_add_u32 {sT[9]}, {sT[9]}, {sT[1]}
        s_add_u32 {sT[9]}, {sT[9]}, {ST2}
        v_mul_u32_u24 v10, 896, v{vL31}
        v_lshl_add_u32 v10, v{vHH}, 3, v10
        s_mul_i32 {sT[12]}, {sT[7]}, {32*896}
        s_lshl_b32 {sT[1]}, {sT[5]}, 6
        s_add_u32 {sT[12]}, {sT[12]}, {sT[1]}
        v_accvgpr_read_b32 v2, a{aB2}
        v_lshlrev_b32 v2, 16, v2
        """)
        for r in range(16): a(f"v_accvgpr_read_b32 v{16+r}, a{aRES+r}")
        for r in range(16): a(f"v_add_f32 v{16+r}, v{16+r}, v2")
    gemm_big(a, 2, sT[6], setup, {5: a1_wpk_ops(56, 84), 6: a1_wpk_ops(0, 16) + a1_wpk_ops(32, 48)})
    a.stamp("b2_mm")
    pair_reduce(a, 16, 32, 8, 9)
    for r in range(8): a(f"v_cvt_pk_bf16_f32 v{100+r}, v{16+2*r}, v{16+2*r+1}")
    a(f"""
    s_cmp_eq_u32 {sIT}, 0
    s_cbranch_scc0 {L}_fin
    buffer_store_dwordx4 v[100:103], v{vL16}, {SWS}, {sT[8]} offen {SC}
    buffer_store_dwordx4 v[104:107], v{vL16}, {SWS}, {sT[8]} offen offset:1024 {SC}
    """)
    stats_publish(a, 16, 64, sT[9])
    for o in a1_wpk_ops(16, 32) + a1_wpk_ops(48, 56): a(o)
    for r in range(16): a(f"v_accvgpr_write_b32 a{aRES+r}, v{16+r}")
    a(f"s_branch {L}_end\n {L}_fin:")
    for q in range(4): a(f"buffer_store_dwordx2 {vr(100+2*q,2)}, v10, {SOUT}, {sT[12]} offen offset:{16*q}")
    a(f"{L}_end:")

def build():
    a = K(); a.stubs = []
    kernel_begin(a, KNAME)
    prologue(a)
    if STAMPS: a("v_mov_b32 v255, 0")
    a("L_iter:")
    a.stamp("start")
    phase_a1(a)
    a.stamp("kvred")
    a(f"s_cmp_ge_u32 {sACT}, 8\n s_cbranch_scc1 L_helper")
    phase_a2(a)
    a.stamp("a2_end")
    a(f"s_cmp_ge_u32 {sACT}, 7\n s_cbranch_scc1 L_skipb1")
    phase_b1(a)
    a("s_branch L_b2\n L_skipb1:\n s_barrier")
    big_dma_chunk(a, 2, 0); big_dma_chunk(a, 2, 1)
    a.counter_wait(4, 1, 32, 2)
    a("L_b2:")
    a.stamp("b1_end")
    phase_b2(a)
    a.stamp("b2_end")
    a(f"""
    L_next:
    s_cmp_eq_u32 {sIT}, 1
    s_cbranch_scc1 L_fin
    s_mov_b32 {sIT}, 1
    s_mov_b32 {sITO}, {ITB}
    s_branch L_iter
    L_helper:
    s_cmp_eq_u32 {sIT}, 1
    s_cbranch_scc1 L_fin
    """)
    helper_work(a)
    a("s_branch L_next")
    a("L_fin:")
    a.stamp_dump()
    a("L_end:\n s_endpgm")
    a.lines += a.stubs
    if STAMPS: open("stamps.txt", "w").write("\n".join(a.names))
    lines, n = haz.fix(a.lines)
    hdr = f"; @launch grid=(256,1,1) block=(256,1,1) lds=163840\n"
    return hdr + '.amdgcn_target "amdgcn-amd-amdhsa--gfx950"\n.text\n' + "\n".join(lines) + "\n" + '.section .rodata,"a"\n' + descriptor(KNAME, 384, accum=256)

if __name__ == "__main__":
    out = sys.argv[1]
    for o in sys.argv[2:]:
        if o == "stamps": STAMPS = True
        else:
            k_, v_ = o.split("="); OPT[k_] = int(v_)
    open(out, "w").write(build())
```

```python
import sys, struct
sys.path.insert(0, "work")
from gen import *
import haz, align

KNAME = NAME + "_kernel"
S, D, F = 2048, 448, 1792
ITB = 0x680000 + 0x8000
PQ, KVP, KVF, ST, HF, UF = 0x0, 0x200000, 0x300000, 0x308000, 0x340000, 0x500000
assert UF + 14 * 112 * 1024 == ITB
XF = 2 * ITB
ST2 = XF + 0x1C0000
FILL_END = ST2 + 0x38000
WQP = 0x1000000
assert FILL_END <= WQP
STAMP_OFF = 0x2000000
WS_SIZE = 0x10000000
LOG2E = 1.4426950408889634
def fbits(x): return "0x%08x" % struct.unpack("<I", struct.pack("<f", x))[0]

SX, SWQKV, SWO, SW1, SW2, SB1, SB2, SOUT, SWS, SDBG = [f"s[{i}:{i+3}]" for i in range(4, 44, 4)]
sW, sRB, sH, sDT, sST, sFT, sACT, sIT, sITO, sBUD = "s3", "s44", "s45", "s46", "s47", "s48", "s49", "s50", "s51", "s52"
sWH, sWL, sLB = "s53", "s54", "s55"
sT = [f"s{i}" for i in range(56, 72)]
sW1B, sW2B = 's72', 's73'
sAT = [f"s{i}" for i in range(88, 96)]
SC = "sc1"
STAMPS = False
OPT = {}

def vr(b, n=1): return f"v{b}" if n == 1 else f"v[{b}:{b+n-1}]"
def ar(b, n=1): return f"a{b}" if n == 1 else f"a[{b}:{b+n-1}]"
MF = "v_mfma_f32_32x32x16_bf16"

vL16, vL16b, vHH, vL31, vLANE, vL8, vDW1, vDW2, CSK, CSV, vDWO, vMAX, vCNT, vCNA = range(240, 254)
assert CSK % 2 == 0
RES = 224
vKRS = 254
aW1, aW2 = 0, 128

class K(Asm):
    nstamp = 0
    stubs = None
    def stamp(self, name=""):
        if not STAMPS: return
        self(f"{'s_memtime' if OPT.get('clk') else 's_memrealtime'} s[96:97]\n s_lshl_b32 s98, {sIT}, 5\n s_add_u32 s98, s98, {self.nstamp}\n s_waitcnt lgkmcnt(0)\n s_mov_b32 m0, s98\n v_writelane_b32 v255, s96, m0")
        self.names = getattr(self, "names", []) + [name]
        self.nstamp += 1
        assert self.nstamp <= 32
    def xstamp(self, idx):
        if not STAMPS: return
        self(f"{'s_memtime' if OPT.get('clk') else 's_memrealtime'} s[96:97]\n s_waitcnt lgkmcnt(0)\n v_writelane_b32 v255, s96, {idx}")
    def stamp_dump(self):
        if not STAMPS: return
        self(f"""
        s_lshl_b32 s98, s2, 2
        s_add_u32 s98, s98, {sW}
        s_lshl_b32 s98, s98, 8
        s_add_u32 s98, s98, {STAMP_OFF}
        v_lshlrev_b32 v2, 2, v{vLANE}
        buffer_store_dword v255, v2, {SWS}, s98 offen
        """)
        if "dbg" in OPT:
            sel = {0: list(range(0, 14)), 1: [0, 12, 14, 15, 16, 18, 19, 35, 37, 40, 43, 46, 50, 51]}[OPT["dbg"]]
            L = self.label("DS")
            self(f"s_lshl_b32 s98, s2, 2\n s_add_u32 s98, s98, {sW}\n s_cmp_eq_u32 s98, {OPT.get('dbgw', 1)}\n s_cbranch_scc0 {L}")
            self("v_readlane_b32 s97, v255, 0")
            for i, ln in enumerate(sel):
                self(f"v_readlane_b32 s96, v255, {ln}\n s_sub_u32 s96, s96, s97\n v_writelane_b32 v3, s96, {i}")
            self(f"s_mov_b64 exec, 0x3fff\n buffer_store_dword v3, v2, {SDBG}, 0 offen offset:8\n s_mov_b64 exec, -1\n {L}:")
    def srd(self, dst, ptr, size):
        b = int(dst[2:dst.index(":")])
        self(f"s_mov_b32 s{b}, s{ptr}\n s_mov_b32 s{b+1}, s{ptr+1}\n s_mov_b32 s{b+2}, {size}\n s_mov_b32 s{b+3}, 0x00020000")
    def halfsum(self, v, tmp):
        self(f"v_mov_b32 {tmp}, {v}\n v_permlane32_swap_b32 {v}, {tmp}\n v_add_f32 {v}, {v}, {tmp}")
    def check_ops(self, regs):
        regs = list(regs); ops = []
        if len(regs) % 2 == 1:
            ops.append(f"v_max3_u32 v{vMAX}, v{regs[0]}, v{regs[1]}, v{regs[2]}"); rest = regs[3:]
        else:
            ops.append(f"v_max_u32 v{vMAX}, v{regs[0]}, v{regs[1]}"); rest = regs[2:]
        for i in range(0, len(rest), 2):
            ops.append(f"v_max3_u32 v{vMAX}, v{vMAX}, v{rest[i]}, v{rest[i+1]}")
        ops.append(f"v_cmp_eq_u32 vcc, -1, v{vMAX}")
        return ops
    def check_branch(self, regs, reissue, wait_after):
        L = self.label("CK")
        self(f"s_cbranch_vccnz {L}_r\n {L}_k:")
        main = self.lines
        self.lines = self.stubs
        self(f"{L}_r:\n s_cmp_le_i32 {sBUD}, 0\n s_cbranch_scc1 {L}_k\n s_sub_u32 {sBUD}, {sBUD}, 1")
        reissue()
        self(f"s_waitcnt vmcnt({wait_after})")
        for o in self.check_ops(regs): self(o)
        self(f"s_cbranch_vccnz {L}_r\n s_branch {L}_k")
        self.lines = main
    def check(self, regs, reissue, wait_after):
        for o in self.check_ops(regs): self(o)
        self.check_branch(regs, reissue, wait_after)
    def probe_issue(self, voff, soff, vt, nreg=1):
        ld = {1: "buffer_load_dword", 4: "buffer_load_dwordx4"}[nreg]
        self(f"{ld} {vr(vt,nreg)}, v{voff}, {SWS}, {soff} offen {SC}")
    def probe(self, voff, soff, vt, nreg=1, issued=False, sleep=0):
        L = self.label("PB")
        if issued: self(f"s_branch {L}_c")
        if sleep: self(f"s_branch {L}_q")
        self(f"{L}_p:")
        if sleep: self(f"s_sleep {sleep}\n {L}_q:")
        self.probe_issue(voff, soff, vt, nreg)
        self(f"s_sub_u32 {sBUD}, {sBUD}, 1\n {L}_c:\n s_waitcnt vmcnt(0)")
        if nreg == 1: self(f"v_cmp_eq_u32 vcc, -1, v{vt}")
        else:
            for o in self.check_ops(range(vt, vt + nreg)): self(o)
        self(f"""
        s_cmp_gt_i32 {sBUD}, 0
        s_cselect_b64 vcc, vcc, 0
        s_cbranch_vccnz {L}_p
        """)
    def counter_issue(self, off, nsh):
        self(f"v_min_u32 v{vCNA}, {nsh-1}, v{vLANE}\n v_lshlrev_b32 v{vCNA}, 6, v{vCNA}")
        self(f"buffer_load_dword v{vCNT}, v{vCNA}, {SDBG}, 0 offen offset:{off} sc1")
    def counter_check(self, off, target):
        L = self.label("CC")
        self(f"v_cmp_gt_u32 vcc, {target}, v{vCNT}\n s_cbranch_vccnz {L}_r\n {L}_k:")
        main = self.lines
        self.lines = self.stubs
        self(f"""
        {L}_r:
        s_cmp_le_i32 {sBUD}, 0
        s_cbranch_scc1 {L}_k
        s_sub_u32 {sBUD}, {sBUD}, 1
        s_sleep 8
        buffer_load_dword v{vCNT}, v{vCNA}, {SDBG}, 0 offen offset:{off} sc1
        s_waitcnt vmcnt(0)
        v_cmp_gt_u32 vcc, {target}, v{vCNT}
        s_cbranch_vccnz {L}_r
        s_branch {L}_k
        """)
        self.lines = main
    def counter_wait(self, off, nsh, target, vt):
        L = self.label("CW")
        self(f"""
        v_lshlrev_b32 v{vt+1}, 6, v{vLANE}
        s_mov_b64 exec, {(1<<nsh)-1}
        {L}_p:
        buffer_load_dword v{vt}, v{vt+1}, {SDBG}, 0 offen offset:{off} sc1
        s_waitcnt vmcnt(0)
        v_cmp_gt_u32 vcc, {target}, v{vt}
        s_cbranch_vccz {L}_o
        s_cmp_le_i32 {sBUD}, 0
        s_cbranch_scc1 {L}_o
        s_sub_u32 {sBUD}, {sBUD}, 1
        s_sleep 2
        s_branch {L}_p
        {L}_o:
        s_mov_b64 exec, -1
        """)

def wtile_dma_voff(a, vdst, rowstride):
    a(f"""
    v_lshrrev_b32 v2, 3, v{vLANE}
    v_mul_u32_u24 v{vdst}, {rowstride}, v2
    v_lshrrev_b32 v2, 4, v{vLANE}
    v_and_b32 v2, 1, v2
    v_lshlrev_b32 v2, 2, v2
    v_and_b32 v3, 7, v{vLANE}
    v_xor_b32 v2, v2, v3
    v_lshl_add_u32 v{vdst}, v2, 4, v{vdst}
    """)

def wtile_tr_addr(a, vdst, hhrows, s_keep, s_base):
    a(f"""
    v_lshrrev_b32 v2, 2, v{vLANE}
    v_and_b32 v2, 3, v2
    v_mul_u32_u24 v3, {hhrows}, v{vHH}
    v_add_u32 v2, v2, v3
    v_bfe_u32 v3, v2, 1, 1
    v_xor_b32 v3, {s_keep}, v3
    v_lshlrev_b32 v2, 7, v2
    v_lshl_add_u32 v2, v3, 6, v2
    v_lshrrev_b32 v3, 4, v{vLANE}
    v_and_b32 v3, 1, v3
    v_lshl_add_u32 v2, v3, 5, v2
    v_and_b32 v3, 3, v{vLANE}
    v_lshl_add_u32 v{vdst}, v3, 3, v2
    v_add_u32 v{vdst}, {s_base}, v{vdst}
    v_xor_b32 v{vdst+1}, 64, v{vdst}
    """)

def prologue(a):
    a(f"""
    s_cmp_ge_u32 s2, 256
    s_cbranch_scc1 L_end
    {"s_lshr_b32 s3, s2, 5" if OPT.get("bad") else ""}
    {"s_and_b32 s2, s2, 31" if OPT.get("bad") else ""}
    {"s_lshl_b32 s2, s2, 3" if OPT.get("bad") else ""}
    {"s_or_b32 s2, s2, s3" if OPT.get("bad") else ""}
    s_load_dwordx16 s[72:87], s[0:1], 0
    s_load_dwordx4 s[88:91], s[0:1], 64
    s_load_dwordx2 s[92:93], s[0:1], 80
    v_lshrrev_b32 v2, 6, v0
    v_and_b32 v{vLANE}, 63, v0
    v_readfirstlane_b32 {sW}, v2
    v_lshrrev_b32 v{vHH}, 5, v{vLANE}
    v_and_b32 v{vL31}, 31, v{vLANE}
    v_lshlrev_b32 v{vL16}, 4, v{vLANE}
    v_lshlrev_b32 v{vL8}, 3, v{vLANE}
    v_add_u32 v{vL16b}, 0x1000, v{vL16}
    s_and_b32 {sT[0]}, s2, 7
    s_lshr_b32 {sT[1]}, s2, 3
    s_lshr_b32 {sT[2]}, {sT[0]}, 1
    s_and_b32 {sT[3]}, {sT[0]}, 1
    s_lshl_b32 {sRB}, {sT[2]}, 2
    s_lshr_b32 {sT[4]}, {sT[1]}, 3
    s_add_u32 {sRB}, {sRB}, {sT[4]}
    s_lshl_b32 {sH}, {sT[3]}, 3
    s_and_b32 {sT[4]}, {sT[1]}, 7
    s_add_u32 {sH}, {sH}, {sT[4]}
    s_mul_i32 {sT[4]}, {sT[1]}, 43
    s_lshr_b32 {sT[4]}, {sT[4]}, 7          ; j/3
    s_mul_i32 {sT[7]}, {sT[4]}, 3
    s_sub_u32 {sT[7]}, {sT[1]}, {sT[7]}     ; j%3
    s_lshl_b32 {sT[5]}, {sT[3]}, 2          ; 4p
    s_add_u32 {sDT}, {sT[7]}, {sT[5]}
    s_add_u32 {sT[6]}, {sT[5]}, {sT[1]}
    s_sub_u32 {sT[6]}, {sT[6]}, 24
    s_cmp_ge_u32 {sT[1]}, 24
    s_cselect_b32 {sT[4]}, {sT[6]}, {sT[4]}
    s_cselect_b32 {sDT}, 3, {sDT}
    s_cmp_ge_u32 {sT[1]}, 28
    s_cselect_b32 {sT[4]}, 8, {sT[4]}
    s_lshl_b32 {sST}, {sT[2]}, 3
    s_add_u32 {sST}, {sST}, {sT[4]}
    s_mul_i32 {sFT}, {sT[2]}, 7
    s_add_u32 {sFT}, {sFT}, {sT[4]}
    s_mov_b32 {sACT}, {sT[4]}
    s_mov_b32 {sIT}, 0
    s_mov_b32 {sITO}, 0
    s_mov_b32 {sBUD}, 60000
    s_lshr_b32 {sWH}, {sW}, 1
    s_and_b32 {sWL}, {sW}, 1
    s_waitcnt lgkmcnt(0)
    """)
    a.srd(SX, 72, S * D * 2)
    a.srd(SWQKV, 74, D * 3 * D * 2)
    a.srd(SWS, 92, WS_SIZE)
    a.srd(SWO, 76, D * D * 2)
    a.srd(SW1, 80, S * F * 2)
    a.srd(SB1, 82, F * 2)
    a.srd(SW2, 84, F * S * 2)
    a.srd(SB2, 86, S * 2)
    a.srd(SOUT, 88, S * D * 2)
    a.srd(SDBG, 90, 256)

def late_setup(a):
    wtile_dma_voff(a, vDW1, 3584)
    wtile_dma_voff(a, vDW2, 4096)
    wtile_dma_voff(a, vDWO, 896)
    a(f"""
    s_mul_i32 {sW1B}, {sW}, {512*3584}
    s_min_u32 {sT[2]}, {sFT}, 27
    s_lshl_b32 {sT[2]}, {sT[2]}, 7
    s_add_u32 {sW1B}, {sW1B}, {sT[2]}
    s_mul_i32 {sW2B}, {sW}, {448*4096}
    s_min_u32 {sT[2]}, {sST}, 31
    s_lshl_b32 {sT[2]}, {sT[2]}, 7
    s_add_u32 {sW2B}, {sW2B}, {sT[2]}
    """)

XREG = 64
ACQ, ACK, ACV = 16, 32, 48
WFR = 176
TRA = 4
vM, vR, vC, vRS = 12, 13, 14, 15
XBASE = [0x8000, 0x18000, 0x20000, 0x10000]
def a1_lds(f):
    if f < 32: return 1024 * f
    if f < 64: return 0x10000 + 1024 * (f - 32)
    return 0x20000 + 1024 * (f - 64)
def a1_src(f):
    if f < 56: t, seg = f >> 1, 1 + (f & 1)
    else: t, seg = f - 56, 0
    return t * 16 * 2688 + seg * 896
CSL, RSL, KVL = 0x27000, 0x27400, 0x0
sKRL, sKRS, sKRM = 's99', 's100', 's101'


def a1_wraw_ops(f0, f1, vo, s_kv, s_q, s_w10):
    o = []
    for f in range(f0, f1, 4):
        sb = s_kv if f < 56 else s_q
        o.append(f"s_add_u32 {sT[2]}, {sb}, {a1_src(f)}\n s_add_u32 m0, {s_w10}, {a1_lds(f)}\n buffer_load_dwordx4 v{vo}, {SWQKV}, {sT[2]} offen lds")
    return o

def a1_wpk_setup(a):
    a(f"""
    s_mul_i32 {sT[13]}, {sH}, {84*1024}
    s_add_u32 {sT[13]}, {sT[13]}, {WQP}
    s_lshl_b32 {sT[15]}, {sW}, 10
    s_lshl_b32 {sT[14]}, {sW}, 14
    s_add_u32 {sT[14]}, {sT[14]}, {sT[13]}
    s_add_u32 {sT[13]}, {sT[13]}, {sT[15]}
    """)
def a1_wpk_hi_ops():
    return [f"s_add_u32 {sT[2]}, {sT[13]}, {f*1024}\n s_add_u32 m0, {sT[15]}, {a1_lds(f)}\n buffer_load_dwordx4 v{vL16}, {SWS}, {sT[2]} offen {SC} lds" for f in range(64, 84, 4)]
def a1_wpk_own_ops():
    return [f"s_add_u32 {sT[2]}, {sT[14]}, {i*1024}\n s_add_u32 m0, {sLB}, {i*1024}\n buffer_load_dwordx4 v{vL16}, {SWS}, {sT[2]} offen {SC} lds" for i in range(16)]

sWOG, sWOL = "s74", "s75"
def wo_setup(a):
    a(f"""
    s_mul_i32 {sWOG}, {sWH}, {224*896}
    s_mul_i32 {sT[2]}, {sWL}, {8*896}
    s_add_u32 {sWOG}, {sWOG}, {sT[2]}
    s_lshl_b32 {sT[2]}, {sDT}, 7
    s_add_u32 {sWOG}, {sWOG}, {sT[2]}
    s_lshl_b32 {sWOL}, {sWH}, 16
    s_lshl_b32 {sT[2]}, {sWL}, 10
    s_add_u32 {sWOL}, {sWOL}, {sT[2]}
    """)
def wo_ops():
    return [f"s_add_u32 {sT[2]}, {sWOG}, {j*16*896}\n s_add_u32 m0, {sWOL}, {0x8000 + j*2048}\n buffer_load_dwordx4 v{vDWO}, {SWO}, {sT[2]} offen lds" for j in range(15)]

def big_dma_ops(which, ks0, nks, ldsoff):
    stride, srd, vo, sb = (3584, SW1, vDW1, sW1B) if which == 1 else (4096, SW2, vDW2, sW2B)
    return [f"s_add_u32 {sT[2]}, {sb}, {(ks0*16 + i*8)*stride}\n s_add_u32 m0, {sLB}, {ldsoff + i*1024}\n buffer_load_dwordx4 v{vo}, {srd}, {sT[2]} offen lds" for i in range(2 * nks)]

def stats_loads(a, soff, T):
    for i in range(7):
        a(f"buffer_load_dwordx2 {vr(T+2*i,2)}, v{vL8}, {SWS}, {soff} offen offset:{i*512} {SC}")

def stats_math_ops(T, vm, vvar, U, pk=True):
    o = []
    if pk:
        for i in range(3): o.append(f"v_pk_add_f32 {vr(U+2*i,2)}, {vr(T+4*i,2)}, {vr(T+4*i+2,2)}")
        o.append(f"v_pk_add_f32 {vr(U,2)}, {vr(U,2)}, {vr(U+2,2)}")
        o.append(f"v_pk_add_f32 {vr(U+4,2)}, {vr(U+4,2)}, {vr(T+12,2)}")
        o.append(f"v_pk_add_f32 {vr(U,2)}, {vr(U,2)}, {vr(U+4,2)}")
    else:
        o.append(f"v_add_f32 v{U}, v{T}, v{T+2}"); o.append(f"v_add_f32 v{U+1}, v{T+1}, v{T+3}")
        for i in range(2, 7):
            o.append(f"v_add_f32 v{U}, v{U}, v{T+2*i}"); o.append(f"v_add_f32 v{U+1}, v{U+1}, v{T+2*i+1}")
    o += [f"v_mov_b32 v{vm}, v{U}", f"v_permlane32_swap_b32 v{vm}, v{U}", f"v_add_f32 v{vm}, v{vm}, v{U}"]
    o.append(f"v_mul_f32 v{U+2}, {fbits(1/14)}, v{vm}")
    o.append(f"v_mul_f32 v{vm}, {fbits(1/448)}, v{vm}")
    for i in range(7): o.append(f"v_sub_f32 v{T+2*i}, v{T+2*i}, v{U+2}")
    o += [f"v_mul_f32 v{U+3}, v{T}, v{T}", f"v_mul_f32 v{U+4}, v{T+2}, v{T+2}"]
    for i in range(2, 7): o.append(f"v_fmac_f32 v{U+3+(i&1)}, v{T+2*i}, v{T+2*i}")
    o.append(f"v_add_f32 v{U+3}, v{U+3}, v{U+4}")
    o.append(f"v_fmac_f32 v{U+1}, {fbits(1/32)}, v{U+3}")
    o += [f"v_mov_b32 v{vvar}, v{U+1}", f"v_permlane32_swap_b32 v{vvar}, v{U+1}", f"v_add_f32 v{vvar}, v{vvar}, v{U+1}"]
    o.append(f"v_mul_f32 v{vvar}, {fbits(1/448)}, v{vvar}")
    return o

def stats_publish(a, X, T, soff):
    for i in range(4): a(f"v_pk_add_f32 {vr(T+2*i,2)}, {vr(X+4*i,2)}, {vr(X+4*i+2,2)}")
    a(f"v_pk_add_f32 {vr(T,2)}, {vr(T,2)}, {vr(T+2,2)}")
    a(f"v_pk_add_f32 {vr(T+4,2)}, {vr(T+4,2)}, {vr(T+6,2)}")
    a(f"v_pk_add_f32 {vr(T,2)}, {vr(T,2)}, {vr(T+4,2)}")
    a(f"v_add_f32 v{T+16}, v{T}, v{T+1}")
    a.halfsum(f"v{T+16}", f"v{T+17}")
    a(f"v_mul_f32 v{T+18}, {fbits(-1/32)}, v{T+16}")
    for i in range(8): a(f"v_pk_add_f32 {vr(T+2*i,2)}, {vr(X+2*i,2)}, {vr(T+18,2)} op_sel_hi:[1,0]")
    a(f"v_pk_mul_f32 {vr(T+18,2)}, {vr(T,2)}, {vr(T,2)}")
    a(f"v_pk_mul_f32 {vr(T+20,2)}, {vr(T+2,2)}, {vr(T+2,2)}")
    for i in range(2, 8):
        d = T + 18 + 2 * (i & 1)
        a(f"v_pk_fma_f32 {vr(d,2)}, {vr(T+2*i,2)}, {vr(T+2*i,2)}, {vr(d,2)}")
    a(f"v_pk_add_f32 {vr(T+18,2)}, {vr(T+18,2)}, {vr(T+20,2)}")
    a(f"v_add_f32 v{T+17}, v{T+18}, v{T+19}")
    a.halfsum(f"v{T+17}", f"v{T+18}")
    a("s_mov_b32 exec_hi, 0")
    a(f"buffer_store_dwordx2 {vr(T+16,2)}, v{vL8}, {SWS}, {soff} offen {SC}")
    a("s_mov_b64 exec, -1")

def a1_tr_setup(a, it):
    sh, delta = (9, 256) if it == 0 else (8, 512)
    a(f"""
    v_lshrrev_b32 v2, 2, v{vLANE}
    v_and_b32 v2, 3, v2
    v_lshrrev_b32 v3, 4, v{vLANE}
    v_and_b32 v3, 1, v3
    v_lshlrev_b32 v3, 2, v3
    v_and_b32 v10, 3, v{vLANE}
    v_add_u32 v3, v3, v10
    s_and_b32 {sT[0]}, {sH}, 1
    v_add_u32 v3, {sT[0]}, v3
    v_and_b32 v3, 7, v3
    v_lshlrev_b32 v3, 3, v3
    v_lshl_add_u32 v{TRA}, v2, 6, v3
    v_lshl_add_u32 v{TRA}, v{vHH}, {sh}, v{TRA}
    v_add_u32 v{TRA+1}, 0x10000, v{TRA}
    v_add_u32 v{TRA+2}, 0x20000, v{TRA}
    v_add_u32 v{TRA+3}, {delta}, v{TRA}
    v_add_u32 v{TRA+4}, {delta}, v{TRA+1}
    v_add_u32 v{TRA+5}, {delta}, v{TRA+2}
    s_lshl_b32 {sT[0]}, {sW}, 8
    s_add_u32 {sT[0]}, {sT[0]}, {RSL}
    v_lshlrev_b32 v11, 2, v{vLANE}
    v_add_u32 v11, {sT[0]}, v11
    v_lshlrev_b32 v{vRS}, 4, v{vHH}
    v_add_u32 v{vRS}, {sT[0]}, v{vRS}
    """)

def rowstats_ops():
    return [f"v_add_f32 v{vR}, {fbits(1e-5)}, v{vR}", f"v_rsq_f32 v{vR}, v{vR}", f"v_cmp_eq_u32 vcc, 0, v{vHH}",
            f"v_cndmask_b32 v3, v{vM}, v{vR}, vcc", f"ds_write_b32 v11, v3"]

def a1_rd(a, f, dst):
    ad = a1_lds(f); win, off = ad >> 16, ad & 0xffff
    a(f"ds_read_b64_tr_b16 {dst(0)}, v{TRA+win} offset:{off}")
    a(f"ds_read_b64_tr_b16 {dst(2)}, v{TRA+3+win} offset:{off}")

def a1_tail(a, it, tq0, pre_q=None, ex=None):
    ex = ex or []
    T1 = 208
    QLA = 5
    def qrd(t): a1_rd(a, 56 + t, lambda o, t=t: vr(WFR + 4 * (t & 7) + o, 2))
    a(f"""
    s_mov_b32 {sT[3]}, {fbits(1e-6)}
    s_mov_b32 {sT[4]}, {fbits(LOG2E)}
    v_mov_b32 v0, {fbits(1e-6)}
    v_lshlrev_b32 v11, 4, v{vHH}
    v_add_u32 v11, {CSL}, v11
    s_lshl_b32 {sT[5]}, {sRB}, 2
    s_add_u32 {sT[5]}, {sT[5]}, {sW}
    s_lshl_b32 {sT[5]}, {sT[5]}, 4
    s_add_u32 {sT[5]}, {sT[5]}, {sH}
    s_lshl_b32 {sT[5]}, {sT[5]}, 11
    s_add_u32 {sT[5]}, {sT[5]}, {sITO}
    """)
    if it == 1:
        for q in range(4): a(f"ds_read_b128 {vr(T1+4*q,4)}, v11 offset:{32*q}")
    for t in range(tq0, tq0 + QLA): qrd(t)
    for t in range(tq0, 28):
        if pre_q: pre_q(t)
        if it == 0 and OPT.get("sub") and t % 4 == 0: a.xstamp(52 + t // 4)
        if t + QLA < 28: qrd(t + QLA)
        a(f"s_waitcnt lgkmcnt({2*min(QLA, 27-t)})")
        a(f"{MF} {vr(ACQ,16)}, {vr(WFR+4*(t&7),4)}, {vr(XREG+4*t,4)}, {vr(ACQ,16) if t else '0'}")
    LA = 3
    def rd(t):
        for s_ in range(2):
            b = WFR + 8 * (t & 3) + 4 * s_
            a1_rd(a, 2 * t + s_, lambda o, b=b: vr(b + o, 2))
    if it == 0:
        a.counter_issue(0, 4)
        a.xstamp(21)
        a("s_barrier")
        for k in range(3): a(f"ds_read_b128 {vr(T1+4*k,4)}, v1 offset:{512*k}")
        a(f"""
        s_waitcnt lgkmcnt(2)
        v_add_f32 v{T1}, v{T1}, v{T1+1}
        v_add_f32 v{T1+2}, v{T1+2}, v{T1+3}
        v_add_f32 v{T1}, v{T1}, v{T1+2}
        ds_write_b32 v10, v{T1}
        s_waitcnt lgkmcnt(1)
        v_add_f32 v{T1+4}, v{T1+4}, v{T1+5}
        v_add_f32 v{T1+6}, v{T1+6}, v{T1+7}
        v_add_f32 v{T1+8}, v{T1+8}, v{T1+9}
        v_add_f32 v{T1+10}, v{T1+10}, v{T1+11}
        v_add_f32 v{CSK}, v{T1+4}, v{T1+6}
        v_add_f32 v{CSV}, v{T1+8}, v{T1+10}
        s_waitcnt lgkmcnt(0)
        """)
        for q in range(4): a(f"ds_read_b128 {vr(T1+4*q,4)}, v11 offset:{32*q}")
    for t in range(16, 16 + LA): rd(t)
    va = []
    for r in range(16): va.append(f"v_fma_f32 v{ACQ+r}, -v{vM}, v{T1+r}, v{ACQ+r}")
    for r in range(16): va.append(f"v_fma_f32 v{ACQ+r}, v{ACQ+r}, v{vR}, v0")
    for r in range(16): va.append(f"v_mul_f32 v{T1+r}, {sT[4]}, v{ACQ+r}")
    for r in range(16):
        va.append(f"v_exp_f32_e64 v{T1+r}, v{T1+r} clamp")
        va.append(f"v_max_f32 v{ACQ+r}, {sT[3]}, v{ACQ+r}")
    for r in range(16): va.append(f"v_add_f32 v{ACQ+r}, v{ACQ+r}, v{T1+r}")
    for r in range(8): va.append(f"v_cvt_pk_bf16_f32 v{ACQ+r}, v{ACQ+2*r}, v{ACQ+2*r+1}")
    for t in range(16, 28):
        if t + LA < 28: rd(t + LA)
        a(f"s_waitcnt lgkmcnt({4*min(LA, 27-t)})")
        w = WFR + 8 * (t & 3)
        x = vr(XREG + 4 * t, 4)
        for acc, wo_ in ((ACK, 0), (ACV, 4)):
            a(f"{MF} {vr(acc,16)}, {x}, {vr(w+wo_,4)}, {vr(acc,16)}")
            for _ in range(5 if t >= 25 else 4):
                if va: a(va.pop(0))
        if ex: a(ex.pop(0))
    while va: a(va.pop(0))
    return ex

def w1_touch(r):
    return f"""s_lshl_b32 {sT[0]}, s2, 2
    s_add_u32 {sT[0]}, {sT[0]}, {sW}
    s_add_u32 {sT[0]}, {sT[0]}, {r*1024}
    s_mul_i32 {sT[1]}, {sT[0]}, 9363
    s_lshr_b32 {sT[1]}, {sT[1]}, 22
    s_mul_i32 {sT[2]}, {sT[1]}, 448
    s_sub_u32 {sT[0]}, {sT[0]}, {sT[2]}
    s_lshl_b32 {sT[0]}, {sT[0]}, 11
    s_lshl_b32 {sT[2]}, {sT[1]}, 1
    s_add_u32 {sT[15]}, {sT[2]}, 1
    s_sub_u32 {sT[2]}, {sT[2]}, 8
    s_cmp_lt_u32 {sT[1]}, 4
    s_cselect_b32 {sT[1]}, {sT[15]}, {sT[2]}
    s_mul_i32 {sT[1]}, {sT[1]}, {256*3584}
    s_add_u32 {sT[0]}, {sT[0]}, {sT[1]}
    buffer_load_dword v234, v{vKRS}, {SW1}, {sT[0]} offen"""

def code_warm(a, tag):
    L = a.label("CWM")
    a(f"""
    s_getpc_b64 s[76:77]
    {L}:
    s_sub_u32 s76, s76, {L}-{KNAME}
    s_subb_u32 s77, s77, 0
    s_lshr_b32 {sT[2]}, s2, 3
    s_lshl_b32 {sT[2]}, {sT[2]}, 2
    s_add_u32 {sT[2]}, {sT[2]}, {sW}
    s_mul_i32 {sT[2]}, {sT[2]}, 640
    v_min_u32 v2, 4, v{vLANE}
    v_lshlrev_b32 v2, 7, v2
    v_add_u32 v2, {sT[2]}, v2
    s_mov_b32 {sT[2]}, L_codeend-{KNAME}-4
    v_min_u32 v2, {sT[2]}, v2
    v_mov_b32 v3, s77
    v_add_co_u32 v2, vcc, s76, v2
    v_addc_co_u32 v3, vcc, 0, v3, vcc
    global_load_dword v{vMAX}, v[2:3], off
    """)

def a1_it0(a):
    L = a.label("A1f")
    XA, XV, DA = 224, 228, 230
    a(f"""
    v_lshrrev_b32 v2, 3, v{vLANE}
    v_mul_u32_u24 v2, 896, v2
    v_and_b32 v3, 7, v{vLANE}
    v_lshrrev_b32 v5, 4, v{vLANE}
    v_xor_b32 v3, v3, v5
    v_lshl_add_u32 v{XV}, v3, 4, v2
    v_xor_b32 v{XV+1}, 64, v{XV}
    s_lshl_b32 {sT[10]}, {sRB}, 2
    s_add_u32 {sT[10]}, {sT[10]}, {sW}
    s_mul_i32 {sT[10]}, {sT[10]}, {32*896}
    s_lshl_b32 {sLB}, {sWH}, 16
    s_lshl_b32 {sT[2]}, {sWL}, 14
    s_add_u32 {sLB}, {sLB}, {sT[2]}
    """)
    def xdma(j0, j1):
        return [f"s_add_u32 {sT[2]}, {sT[10]}, {aa*8*896 + j*128}\n s_add_u32 m0, {sLB}, {0x8000 + aa*4096 + (j-j0)*1024}\n buffer_load_dwordx4 v{XV + (aa&1)}, {SX}, {sT[2]} offen lds"
                for aa in range(4) for j in range(j0, j1)]
    for o in xdma(0, 4): a(o)
    a(f"""
    v_lshrrev_b32 v1, 2, v{vLANE}
    v_mul_u32_u24 v1, 2688, v1
    v_and_b32 v5, 3, v{vLANE}
    v_lshl_add_u32 v1, v5, 4, v1
    s_mul_i32 {sT[8]}, {sH}, 56
    s_and_b32 {sT[8]}, {sT[8]}, 0xfff0
    s_mul_i32 {sT[9]}, {sW}, {16*2688}
    s_add_u32 {sT[9]}, {sT[9]}, {sT[8]}
    s_mul_i32 {sT[2]}, {sWH}, {16*2688}
    s_add_u32 {sT[8]}, {sT[8]}, {sT[2]}
    s_mul_i32 {sT[2]}, {sWL}, 896
    s_add_u32 {sT[8]}, {sT[8]}, {sT[2]}
    s_lshl_b32 {sT[11]}, {sW}, 10
    """)
    a.xstamp(22)
    ncw = 0
    if OPT.get("cw", 1):
        code_warm(a, 0); ncw = 1
    for o in a1_wraw_ops(0, 32, 1, sT[8], sT[9], sT[11]): a(o)
    a.xstamp(23)
    a(f"""
    s_lshr_b32 {sT[12]}, 0xc1a3, {sH}
    s_and_b32 {sT[12]}, {sT[12]}, 1
    s_lshl_b32 {sT[0]}, 1, {sH}
    s_sub_u32 {sT[0]}, {sT[0]}, 1
    s_and_b32 {sT[0]}, {sT[0]}, 0xc1a3
    s_bcnt1_i32_b32 {sT[0]}, {sT[0]}
    s_lshl_b32 {sT[0]}, {sT[0]}, 4
    s_add_u32 {sT[0]}, {sT[0]}, {sRB}
    s_lshl_b32 {sT[0]}, {sT[0]}, 2
    s_add_u32 {sT[0]}, {sT[0]}, {sW}
    s_lshl_b32 {sT[14]}, {sT[0]}, 13
    s_cmp_ge_u32 {sT[14]}, {ST + 0x18000}
    s_cselect_b32 {sT[12]}, 0, {sT[12]}
    s_cmp_eq_u32 {sT[12]}, 0
    s_cselect_b32 {sT[14]}, 0x20000000, {sT[14]}
    v_mov_b32 v236, -1
    v_mov_b32 v237, -1
    v_mov_b32 v238, -1
    v_mov_b32 v239, -1
    """)
    fills = [f"buffer_store_dwordx4 v[236:239], v{vL16b if i&4 else vL16}, {SWS}, {sT[14]} offen offset:{(i&3)*1024} {SC}" for i in range(8)]
    late_setup(a)
    wo_setup(a)
    a1_tr_setup(a, 0)
    a(f"""
    v_lshrrev_b32 v2, 3, v{vL31}
    v_lshlrev_b32 v2, 12, v2
    v_and_b32 v3, 7, v{vL31}
    v_lshl_add_u32 v2, v3, 7, v2
    v_add_u32 v2, {sLB}, v2
    v_lshrrev_b32 v3, 1, v{vL31}
    v_and_b32 v3, 7, v3
    v_xor_b32 v3, v3, v{vHH}
    """)
    for q in range(4): a(f"v_xor_b32 v10, {2*q}, v3\n v_lshl_add_u32 v{XA+q}, v10, 4, v2")
    a(f"""
    v_mov_b32 v{DA}, 0
    v_mov_b32 v{DA+1}, 0
    v_mov_b32 v{DA+2}, 0
    v_mov_b32 v{DA+3}, 0
    v_mov_b32 v{CSK}, 0
    v_mov_b32 v{CSV}, 0
    v_mov_b32 v{vC}, 0x3f803f80
    v_lshlrev_b32 v235, 7, v{vLANE}
    v_min_u32 v{vKRS}, 0x780, v235
    s_lshr_b32 {sT[13]}, s2, 2
    s_lshl_b32 {sT[13]}, {sT[13]}, 13
    s_cmp_eq_u32 {sW}, 3
    s_cselect_b32 {sT[13]}, {sT[13]}, 0x1000000
    s_waitcnt vmcnt({8+ncw}) lgkmcnt(0)
    """)
    a.stamp("a1_xland")
    def xrd(t0, t1):
        for t in range(t0, t1):
            a(f"ds_read_b128 {vr(XREG+4*t,4)}, v{XA+(t&3)} offset:{0x8000 + ((t-t0)>>2)*1024}")
            if t - t0 == 11: a("s_waitcnt lgkmcnt(4)")
        a("s_waitcnt lgkmcnt(0)")
    def dots(i0, i1, vm, every):
        for i in range(i0, i1):
            if vm and (i - i0) % every == 0: a(vm.pop(0))
            a(f"v_dot2c_f32_bf16 v{DA+(i&1)}, v{XREG+i}, v{vC}")
            a(f"v_dot2c_f32_bf16 v{DA+2+(i&1)}, v{XREG+i}, v{XREG+i}")
        assert not vm
    xrd(0, 16)
    vm = fills + xdma(4, 7)
    wl = a1_wraw_ops(32, 84, 1, sT[8], sT[9], sT[11]) + [f"buffer_load_dword v234, v235, {SWO}, {sT[13]} offen"]
    a.xstamp(24)
    dots(0, 64, vm, 3)
    a.xstamp(25)
    a(f"""
    s_waitcnt vmcnt(12)
    s_barrier
    s_sub_u32 {sT[12]}, {sT[12]}, {sW}
    s_cmp_eq_u32 {sT[12]}, 1
    s_cbranch_scc1 {L}_sg
    {L}_sgr:
    """)
    a.stubs += [l for l in f"""{L}_sg:
    s_and_b32 {sT[0]}, {sRB}, 3
    s_lshl_b32 {sT[0]}, {sT[0]}, 6
    v_mov_b32 v2, 1
    v_mov_b32 v3, {sT[0]}
    s_mov_b64 exec, 1
    buffer_atomic_add v2, v3, {SDBG}, 0 offen sc1
    s_mov_b64 exec, -1
    s_branch {L}_sgr""".split("\n")]
    a.stamp("a1_main")
    LA = 3
    def rd(t):
        for s_ in range(2):
            b = WFR + 8 * (t & 3) + 4 * s_
            a1_rd(a, 2 * t + s_, lambda o, b=b: vr(b + o, 2))
    def cs(win, n):
        a(f"s_lshl_b32 {sT[0]}, {sW}, 11\n v_add_u32 v2, {sT[0]}, v{TRA+win}\n v_add_u32 v3, {sT[0]}, v{TRA+3+win}")
        regs = [16, 24, 208, 216]
        for i in range(n):
            for s_ in range(2):
                a(f"ds_read_b64_tr_b16 {vr(regs[i]+4*s_,2)}, v2 offset:{8192*i+1024*s_}")
                a(f"ds_read_b64_tr_b16 {vr(regs[i]+4*s_+2,2)}, v3 offset:{8192*i+1024*s_}")
        a("s_waitcnt lgkmcnt(0)")
        for i in range(n):
            for k in range(4):
                a(f"v_dot2c_f32_bf16 v{CSK}, v{regs[i]+k}, v{vC}")
                a(f"v_dot2c_f32_bf16 v{CSV}, v{regs[i]+4+k}, v{vC}")
    def loop(t0, t1):
        for t in range(t0, t0 + LA): rd(t)
        for t in range(t0, t1):
            if t + LA < t1: rd(t + LA)
            a(f"s_waitcnt lgkmcnt({4*min(LA, t1-1-t)})")
            w = WFR + 8 * (t & 3)
            x = vr(XREG + 4 * t, 4)
            c = lambda base: (vr(base, 16) if t else "0")
            a(f"{MF} {vr(ACK,16)}, {x}, {vr(w,4)}, {c(ACK)}")
            a(f"{MF} {vr(ACV,16)}, {x}, {vr(w+4,4)}, {c(ACV)}")
            if wl: a(wl.pop(0))
    loop(0, 16)
    assert not wl
    a.xstamp(26)
    a(w1_touch(0))
    cs(0, 4)
    a.xstamp(27)
    a("s_waitcnt vmcnt(15)")
    a.xstamp(28)
    xrd(16, 28)
    dots(64, 112, [], 1)
    a(f"v_add_f32 v{vM}, v{DA}, v{DA+1}\n v_add_f32 v{vR}, v{DA+2}, v{DA+3}")
    a.halfsum(f"v{vM}", f"v{DA}")
    a.halfsum(f"v{vR}", f"v{DA+1}")
    a(f"""
    v_mul_f32 v{vM}, {fbits(1/448)}, v{vM}
    v_mul_f32 v{vR}, {fbits(1/448)}, v{vR}
    v_fma_f32 v{vR}, -v{vM}, v{vM}, v{vR}
    v_max_f32 v{vR}, 0, v{vR}
    """)
    for o in rowstats_ops(): a(o)
    a.xstamp(29)
    a("s_waitcnt vmcnt(2)\n s_barrier")
    a.xstamp(30)
    cs(1, 3)
    a(f"""
    s_lshl_b32 {sT[0]}, {sW}, 10
    v_add_u32 v16, {sT[0]}, v{TRA+1}
    v_add_u32 v17, {sT[0]}, v{TRA+4}
    v_add_u32 v18, {sT[0]}, v{TRA+2}
    v_add_u32 v19, {sT[0]}, v{TRA+5}
    v_mov_b32 v20, 0
    """)
    for i in range(7):
        ad = a1_lds(56 + 4 * i); b = 16 if (ad >> 16) == 1 else 18
        a(f"ds_read_b64_tr_b16 {vr(WFR+4*i,2)}, v{b} offset:{ad & 0xffff}")
        a(f"ds_read_b64_tr_b16 {vr(WFR+4*i+2,2)}, v{b+1} offset:{ad & 0xffff}")
    a(f"""
    v_lshlrev_b32 v10, 2, v{vL31}
    v_add_u32 v10, {CSL}, v10
    s_waitcnt lgkmcnt(0)
    """)
    for j in range(28): a(f"v_dot2c_f32_bf16 v20, v{WFR+j}, v{vC}")
    a(f"""
    v_mov_b32 v21, v20
    v_mov_b32 v22, v{CSK}
    v_mov_b32 v23, v{CSV}
    v_permlane32_swap_b32 v20, v21
    v_permlane32_swap_b32 v{CSK}, v22
    v_permlane32_swap_b32 v{CSV}, v23
    v_add_f32 v20, v20, v21
    v_add_f32 v22, v{CSK}, v22
    v_add_f32 v23, v{CSV}, v23
    s_lshl_b32 {sT[0]}, {sW}, 2
    v_lshlrev_b32 v1, 4, v{vL31}
    v_add_u32 v1, 0x27800, v1
    v_add_u32 v21, {sT[0]}, v1
    ds_write_b32 v21, v20
    ds_write_b32 v21, v22 offset:512
    ds_write_b32 v21, v23 offset:1024
    """)
    a.xstamp(31)
    wq = (wo_ops() if OPT.get("wot", 1) else [""] * 15) + [w1_touch(1)] + [""] * 3 + [w1_touch(2)] + [""] * 3 + [w1_touch(3)]
    def pre_q(t):
        if t % 2 == 0 and wq: a(wq.pop(0))
    a1_tail(a, 0, 0, pre_q, wq)
    assert not wq
    a.xstamp(20)
    a(f"s_waitcnt vmcnt({4 if OPT.get('wot', 1) else 3})")
    a.counter_check(0, 25)

def a1_it1(a):
    LA = 2
    a1_tr_setup(a, 1)
    a(f"""
    s_lshl_b32 {sT[0]}, {sRB}, 2
    s_add_u32 {sT[0]}, {sT[0]}, {sW}
    s_mul_i32 {sAT[0]}, {sT[0]}, {28*1024}
    s_add_u32 {sAT[0]}, {sAT[0]}, {XF}
    s_add_u32 {sAT[1]}, {sAT[0]}, 0x2000
    s_add_u32 {sAT[2]}, {sAT[0]}, 0x4000
    s_add_u32 {sAT[3]}, {sAT[0]}, 0x6000
    s_mul_i32 {sT[8]}, {sT[0]}, 3584
    s_add_u32 {sT[8]}, {sT[8]}, {ST2}
    """)
    a.counter_issue(132, 1)
    def xload(t):
        a(f"buffer_load_dwordx4 {vr(XREG+4*t,4)}, v{vL16b if t&4 else vL16}, {SWS}, {sAT[t>>3]} offen offset:{(t&3)*1024} {SC}")
    def rd(t):
        for s_, f in enumerate((2 * t, 2 * t + 1, 56 + t)):
            b = WFR + 12 * (t % 3) + 4 * s_
            a1_rd(a, f, lambda o, b=b: vr(b + o, 2))
    stats_loads(a, sT[8], 32)
    a("s_waitcnt vmcnt(7)\n s_barrier")
    for t in range(LA): rd(t)
    a("s_waitcnt vmcnt(0)")
    a.check(range(32, 46), lambda: stats_loads(a, sT[8], 32), 0)
    NX = OPT.get("nx", 12)
    for t in range(NX): xload(t)
    a.nstamp -= 2
    a.stamp()
    for o in stats_math_ops(32, vM, vR, 16) + rowstats_ops(): a(o)
    a.counter_check(132, 32)
    a.stamp()
    if STAMPS: a.names = a.names[:-2]
    a("s_waitcnt lgkmcnt(0)")
    def xchk(t):
        if t % 4 == 0:
            hi = min(28, t + NX)
            n = hi - t - 4
            a(f"s_waitcnt vmcnt({n})")
            a.check(range(XREG + 4 * t, XREG + 4 * t + 16), lambda t=t, hi=hi: [xload(tt) for tt in range(t, hi)], n)
    assert NX >= 12
    for t in range(16):
        xchk(t)
        if t + LA < 16: rd(t + LA)
        a(f"s_waitcnt lgkmcnt({6*min(LA, 15-t)})")
        w = WFR + 12 * (t % 3)
        x = vr(XREG + 4 * t, 4)
        c = lambda base: (vr(base, 16) if t else "0")
        a(f"{MF} {vr(ACK,16)}, {x}, {vr(w,4)}, {c(ACK)}")
        if t + NX < 28: xload(t + NX)
        a(f"{MF} {vr(ACV,16)}, {x}, {vr(w+4,4)}, {c(ACV)}")
        a(f"{MF} {vr(ACQ,16)}, {vr(w+8,4)}, {x}, {c(ACQ)}")
    a.wo_rest = a1_tail(a, 1, 16, xchk, wo_ops()) if OPT.get("wot", 1) else (a1_tail(a, 1, 16, xchk, []) + wo_ops())

def phase_a1(a):
    L = a.label("A1")
    RR, MM, T0 = 176, 192, 208
    a(f"s_cmp_eq_u32 {sIT}, 0\n s_cbranch_scc0 {L}_it1")
    a1_it0(a)
    a(f"s_branch {L}_epi\n {L}_it1:")
    a1_it1(a)
    a(f"""
    {L}_epi:
    buffer_store_dwordx4 {vr(ACQ,4)}, v{vL16}, {SWS}, {sT[5]} offen {SC}
    buffer_store_dwordx4 {vr(ACQ+4,4)}, v{vL16}, {SWS}, {sT[5]} offen offset:1024 {SC}
    s_barrier
    """)
    a.stamp("a1_epi")
    for q in range(4):
        a(f"ds_read_b128 {vr(MM+4*q,4)}, v{vRS} offset:{128+32*q}")
        a(f"ds_read_b128 {vr(RR+4*q,4)}, v{vRS} offset:{32*q}")
    a(f"""
    s_mov_b32 {sT[3]}, {fbits(1e-6)}
    v_mov_b32 v0, {fbits(1e-6)}
    v_mov_b32 v1, {fbits(LOG2E)}
    s_lshl_b32 {sT[0]}, {sW}, 12
    v_add_u32 v2, {sT[0]}, v{vL16}
    s_lshl_b32 {sT[5]}, {sW}, 10
    v_add_u32 v3, {sT[5]}, v{vL16}
    s_lshl_b32 {sT[6]}, {sH}, 4
    s_add_u32 {sT[6]}, {sT[6]}, {sRB}
    s_lshl_b32 {sT[6]}, {sT[6]}, 12
    s_add_u32 {sT[6]}, {sT[6]}, {sT[5]}
    s_add_u32 {sT[6]}, {sT[6]}, {sITO}
    s_add_u32 {sT[6]}, {sT[6]}, {KVP}
    s_waitcnt lgkmcnt(0)
    """)
    k0, v0 = ACK, ACV
    P = lambda b, r: vr(b + 2 * r, 2)
    CS = vr(CSK, 2)
    for r in range(8): a(f"v_pk_fma_f32 {P(k0,r)}, {P(MM,r)}, {CS}, {P(k0,r)} op_sel_hi:[1,0,1] neg_lo:[1,0,0] neg_hi:[1,0,0]")
    for r in range(8): a(f"v_pk_fma_f32 {P(k0,r)}, {P(k0,r)}, {P(RR,r)}, v[0:1] op_sel_hi:[1,1,0]")
    for r in range(8): a(f"v_pk_mul_f32 {P(T0,r)}, {P(k0,r)}, v[0:1] op_sel:[0,1] op_sel_hi:[1,1]")
    for r in range(8):
        a(f"v_exp_f32_e64 v{T0+2*r}, v{T0+2*r} clamp")
        a(f"v_max_f32 v{k0+2*r}, {sT[3]}, v{k0+2*r}")
        a(f"v_exp_f32_e64 v{T0+2*r+1}, v{T0+2*r+1} clamp")
        a(f"v_max_f32 v{k0+2*r+1}, {sT[3]}, v{k0+2*r+1}")
        a(f"v_pk_fma_f32 {P(v0,r)}, {P(MM,r)}, {CS}, {P(v0,r)} op_sel:[0,1,0] op_sel_hi:[1,1,1] neg_lo:[1,0,0] neg_hi:[1,0,0]")
    for r in range(8): a(f"v_pk_mul_f32 {P(v0,r)}, {P(v0,r)}, {P(RR,r)}")
    for r in range(8): a(f"v_pk_add_f32 {P(k0,r)}, {P(k0,r)}, {P(T0,r)}")
    for r in range(8): a(f"v_cvt_pk_bf16_f32 v{v0+r}, v{v0+2*r}, v{v0+2*r+1}")
    a("s_mov_b32 exec_lo, 0xf0000000\n s_mov_b32 exec_hi, 0xf0000000")
    for r in range(8): a(f"v_mov_b32 v{ACV+r}, 0x3f803f80")
    a("s_mov_b64 exec, -1")
    for r in range(8): a(f"v_cvt_pk_bf16_f32 v{k0+r}, v{k0+2*r}, v{k0+2*r+1}")
    KVA = 176
    a(f"{MF} {vr(KVA,16)}, {vr(ACK,4)}, {vr(ACV,4)}, 0")
    a(f"{MF} {vr(KVA,16)}, {vr(ACK+4,4)}, {vr(ACV+4,4)}, {vr(KVA,16)}")
    for q in range(4): a(f"ds_write_b128 v2, {vr(KVA+4*q,4)} offset:{KVL+1024*q}")
    a("s_waitcnt lgkmcnt(0)\n s_barrier")
    for w2 in range(4): a(f"ds_read_b128 {vr(192+4*w2,4)}, v3 offset:{KVL+4096*w2}")
    a(f"""
    s_waitcnt lgkmcnt(0)
    v_pk_add_f32 v[192:193], v[192:193], v[196:197]
    v_pk_add_f32 v[194:195], v[194:195], v[198:199]
    v_pk_add_f32 v[200:201], v[200:201], v[204:205]
    v_pk_add_f32 v[202:203], v[202:203], v[206:207]
    v_pk_add_f32 v[192:193], v[192:193], v[200:201]
    v_pk_add_f32 v[194:195], v[194:195], v[202:203]
    buffer_store_dwordx4 v[192:195], v{vL16}, {SWS}, {sT[6]} offen {SC}
    """)
    a.stamp("a1_kvp")

def helper_index(a):
    a(f"""
    s_and_b32 {sT[0]}, s2, 7
    s_lshl_b32 {sT[0]}, {sT[0]}, 2
    s_lshr_b32 {sT[1]}, s2, 3
    s_add_u32 {sT[0]}, {sT[0]}, {sT[1]}
    s_sub_u32 {sT[0]}, {sT[0]}, 28
    s_lshl_b32 {sT[0]}, {sT[0]}, 2
    s_add_u32 {sT[0]}, {sT[0]}, {sW}         ; hw 0..127
    """)

def kv_reduce(a):
    helper_index(a)
    a(f"""
    v_lshrrev_b32 v2, 4, v{vLANE}
    v_and_b32 v3, 15, v{vLANE}
    v_lshlrev_b32 v2, 12, v2
    v_lshl_add_u32 v2, v3, 4, v2
    s_lshr_b32 {sT[1]}, {sT[0]}, 3           ; h
    s_lshr_b32 {sT[3]}, {sT[0]}, 2
    s_and_b32 {sT[3]}, {sT[3]}, 1            ; t
    s_lshl_b32 {sT[6]}, {sT[1]}, 16
    s_lshl_b32 {sT[4]}, {sT[3]}, 11
    s_add_u32 {sT[6]}, {sT[6]}, {sT[4]}
    s_lshl_b32 {sT[4]}, {sW}, 8
    s_add_u32 {sT[6]}, {sT[6]}, {sT[4]}
    s_add_u32 {sT[6]}, {sT[6]}, {sITO}
    s_add_u32 {sT[6]}, {sT[6]}, {KVP}
    """)
    def rloads():
        for i in range(4):
            a(f"s_add_u32 {sT[2]}, {sT[6]}, {i*0x4000}")
            a(f"buffer_load_dwordx4 {vr(16+4*i,4)}, v2, {SWS}, {sT[2]} offen {SC}")
            a(f"buffer_load_dwordx4 {vr(32+4*i,4)}, v2, {SWS}, {sT[2]} offen offset:1024 {SC}")
    rloads()
    a(f"""
    s_lshl_b32 {sT[4]}, {sWL}, 4
    v_add_u32 v3, {sT[4]}, v3
    v_cmp_le_u32 vcc, 14, v3
    v_cndmask_b32 v4, 0, 1, vcc
    v_mul_u32_u24 v5, 14, v4
    v_sub_u32 v5, v3, v5
    v_cmp_le_u32 vcc, 28, v3
    v_and_b32 v6, 1, v3
    v_add_u32 v6, 14, v6
    v_cndmask_b32 v5, v5, v6, vcc
    v_bfe_u32 v6, v3, 1, 1
    v_cndmask_b32 v4, v4, v6, vcc
    v_and_b32 v6, 3, v5
    v_lshrrev_b32 v5, 2, v5
    v_lshl_add_u32 v6, v5, 3, v6
    v_lshl_add_u32 v6, v4, 2, v6
    v_lshlrev_b32 v6, 4, v6
    s_lshr_b32 {sT[7]}, {sT[0]}, 2
    s_lshl_b32 {sT[7]}, {sT[7]}, 10
    s_lshl_b32 {sT[4]}, {sWH}, 9
    s_add_u32 {sT[7]}, {sT[7]}, {sT[4]}
    s_add_u32 {sT[7]}, {sT[7]}, {sITO}
    s_add_u32 {sT[7]}, {sT[7]}, {KVF}
    s_and_b32 {sT[4]}, {sT[3]}, {sWH}
    s_cmp_eq_u32 {sT[4]}, 1
    s_cselect_b32 {sT[5]}, 0, -1
    s_waitcnt vmcnt(0)
    """)
    a.check(range(16, 48), rloads, 0)
    for b in (16, 32):
        a(f"""
        v_pk_add_f32 v[{b}:{b+1}], v[{b}:{b+1}], v[{b+4}:{b+5}]
        v_pk_add_f32 v[{b+2}:{b+3}], v[{b+2}:{b+3}], v[{b+6}:{b+7}]
        v_pk_add_f32 v[{b+8}:{b+9}], v[{b+8}:{b+9}], v[{b+12}:{b+13}]
        v_pk_add_f32 v[{b+10}:{b+11}], v[{b+10}:{b+11}], v[{b+14}:{b+15}]
        v_pk_add_f32 v[{b}:{b+1}], v[{b}:{b+1}], v[{b+8}:{b+9}]
        v_pk_add_f32 v[{b+2}:{b+3}], v[{b+2}:{b+3}], v[{b+10}:{b+11}]
        """)
    for b in (16, 32): a(f"v_permlane32_swap_b32 v{b}, v{b+2}\n v_permlane32_swap_b32 v{b+1}, v{b+3}")
    for b in (16, 32): a(f"v_pk_add_f32 v[{b}:{b+1}], v[{b}:{b+1}], v[{b+2}:{b+3}]")
    for b in (16, 32): a(f"v_permlane16_swap_b32 v{b}, v{b+1}")
    for b in (16, 32): a(f"v_add_f32 v{b}, v{b}, v{b+1}")
    for b in (16, 32): a(f"v_mov_b32 v{b+1}, v{b}")
    for b in (16, 32): a(f"v_permlane16_swap_b32 v{b}, v{b+1}")
    a(f"""
    v_cvt_pk_bf16_f32 v48, v16, v17
    v_cvt_pk_bf16_f32 v50, v32, v33
    v_and_b32 v50, {sT[5]}, v50
    v_mov_b32 v49, v48
    v_mov_b32 v51, v50
    v_permlane32_swap_b32 v48, v49
    v_permlane32_swap_b32 v50, v51
    s_mov_b64 exec, 0xffff
    buffer_store_dwordx4 v[48:51], v6, {SWS}, {sT[7]} offen {SC}
    s_mov_b64 exec, -1
    """)

RED = 0x20000
def red_addrs(a, base, partner_xor, v_own, v_par):
    a(f"""
    s_lshl_b32 {sT[0]}, {sW}, 12
    s_add_u32 {sT[0]}, {sT[0]}, {base}
    v_add_u32 v{v_own}, {sT[0]}, v{vL16}
    v_xor_b32 v{v_par}, {partner_xor*4096}, v{v_own}
    """)
def pair_reduce(a, acc0, acc1, v_own, v_par, after_barrier=None):
    for q in range(4): a(f"ds_write_b128 v{v_own}, {vr(acc1+4*q,4)} offset:{1024*q}")
    a("s_waitcnt lgkmcnt(0)\n s_barrier")
    for q in range(4): a(f"ds_read_b128 {vr(acc1+4*q,4)}, v{v_par} offset:{1024*q}")
    if after_barrier: after_barrier()
    for q in range(4):
        a(f"s_waitcnt lgkmcnt({3-q})")
        for r in range(2): a(f"v_pk_add_f32 {vr(acc0+4*q+2*r,2)}, {vr(acc0+4*q+2*r,2)}, {vr(acc1+4*q+2*r,2)}")

def helper_work(a):
    L = a.label("HW")
    a(f"""
    v_lshrrev_b32 v4, 2, v{vLANE}
    v_mul_u32_u24 v4, 2688, v4
    v_and_b32 v5, 3, v{vLANE}
    v_lshl_add_u32 v4, v5, 4, v4
    v_mov_b32 v8, -1
    v_mov_b32 v9, -1
    v_mov_b32 v10, -1
    v_mov_b32 v11, -1
    v_lshlrev_b32 v6, 7, v{vLANE}
    """)
    def warm(srd, lo, hi):
        if not OPT.get("warm", 1): return
        LL = a.label("HWW")
        a(f"""
        s_lshl_b32 {sT[1]}, {sT[0]}, 13
        s_add_u32 {sT[1]}, {sT[1]}, {lo}
        {LL}:
        buffer_load_dword v7, v6, {srd}, {sT[1]} offen
        s_add_u32 {sT[1]}, {sT[1]}, {128*8192}
        s_cmp_lt_u32 {sT[1]}, {hi}
        s_cbranch_scc1 {LL}
        """)
    def fill(lo, hi):
        LL = a.label("HWF")
        a(f"""
        s_lshl_b32 {sT[1]}, {sT[0]}, 10
        s_add_u32 {sT[1]}, {sT[1]}, {lo}
        {LL}:
        buffer_store_dwordx4 v[8:11], v{vL16}, {SWS}, {sT[1]} offen {SC}
        s_add_u32 {sT[1]}, {sT[1]}, {128*1024}
        s_cmp_lt_u32 {sT[1]}, {hi}
        s_cbranch_scc1 {LL}
        """)
    def signal(off):
        LL = a.label("HWS")
        a(f"""
        s_waitcnt vmcnt(0)
        s_barrier
        s_cmp_lg_u32 {sW}, 0
        s_cbranch_scc1 {LL}
        v_mov_b32 v2, 1
        v_mov_b32 v3, {off}
        s_mov_b64 exec, 1
        buffer_atomic_add v2, v3, {SDBG}, 0 offen sc1
        s_mov_b64 exec, -1
        {LL}:
        """)
    fill(ST, UF)
    signal(196)
    fill(UF, ITB)
    signal(4)
    warm(SW2, 0, F * S * 2)
    for i in range(11):
        a(f"""
        s_add_u32 {sT[1]}, {sT[0]}, {128*i}
        s_min_u32 {sT[1]}, {sT[1]}, 1343
        s_mul_i32 {sT[2]}, {sT[1]}, 3121
        s_lshr_b32 {sT[2]}, {sT[2]}, 18
        s_mul_i32 {sT[3]}, {sT[2]}, 84
        s_sub_u32 {sT[3]}, {sT[1]}, {sT[3]}
        s_mul_i32 {sT[2]}, {sT[2]}, 56
        s_and_b32 {sT[2]}, {sT[2]}, 0xfff0
        s_lshr_b32 {sT[4]}, {sT[3]}, 1
        s_and_b32 {sT[5]}, {sT[3]}, 1
        s_add_u32 {sT[5]}, {sT[5]}, 1
        s_sub_u32 {sT[6]}, {sT[3]}, 56
        s_cmp_lt_u32 {sT[3]}, 56
        s_cselect_b32 {sT[4]}, {sT[4]}, {sT[6]}
        s_cselect_b32 {sT[5]}, {sT[5]}, 0
        s_mul_i32 {sT[4]}, {sT[4]}, {16*2688}
        s_mul_i32 {sT[5]}, {sT[5]}, 896
        s_add_u32 {sT[2]}, {sT[2]}, {sT[4]}
        s_add_u32 {sT[2]}, {sT[2]}, {sT[5]}
        buffer_load_dwordx4 {vr(16+4*i,4)}, v4, {SWQKV}, {sT[2]} offen
        """)
    a("s_waitcnt vmcnt(0)")
    for i in range(11):
        a(f"""
        s_add_u32 {sT[1]}, {sT[0]}, {128*i}
        s_min_u32 {sT[1]}, {sT[1]}, 1343
        s_lshl_b32 {sT[2]}, {sT[1]}, 10
        s_add_u32 {sT[2]}, {sT[2]}, {WQP}
        buffer_store_dwordx4 {vr(16+4*i,4)}, v{vL16}, {SWS}, {sT[2]} offen {SC}
        """)
    fill(XF, FILL_END)
    signal(68)
    fill(ITB, XF)
    signal(132)
    a.counter_wait(68, 1, 32, 2)
    a("s_barrier")
    a1_wpk_setup(a)
    for o in a1_wpk_own_ops() + a1_wpk_hi_ops(): a(o)

def phase_a2(a):
    L = a.label("A2")
    PQR, KVR, WB = 64, 128, 192
    AC0, AC1 = 16, 32
    a(f"""
    s_lshl_b32 {sT[5]}, {sST}, 1
    s_add_u32 {sT[5]}, {sT[5]}, {sWL}
    s_lshl_b32 {sAT[0]}, {sT[5]}, 15
    s_lshl_b32 {sT[1]}, {sWH}, 14
    s_add_u32 {sAT[0]}, {sAT[0]}, {sT[1]}
    s_add_u32 {sAT[0]}, {sAT[0]}, {sITO}
    s_add_u32 {sAT[1]}, {sAT[0]}, 0x2000
    s_add_u32 {sAT[2]}, {sT[1]}, {sITO}
    s_add_u32 {sAT[2]}, {sAT[2]}, {KVF}
    s_add_u32 {sAT[3]}, {sAT[2]}, 0x2000
    """)
    def pq_loads():
        for i in range(16):
            a(f"buffer_load_dwordx4 {vr(PQR+4*i,4)}, v{vL16b if i&4 else vL16}, {SWS}, {sAT[i>>3]} offen offset:{(i&3)*1024} {SC}")
    def kv_loads(i0=0):
        for i in range(i0, 16):
            a(f"buffer_load_dwordx4 {vr(KVR+4*i,4)}, v{vL16b if i&4 else vL16}, {SWS}, {sAT[2+(i>>3)]} offen offset:{(i&3)*1024} {SC}")
    a(f"""
    s_cmp_eq_u32 {sIT}, 0
    s_cbranch_scc0 {L}_nm
    v_mul_u32_u24 v2, 896, v{vL31}
    v_lshl_add_u32 v2, v{vHH}, 3, v2
    s_mul_i32 {sT[0]}, {sT[5]}, {32*896}
    s_lshl_b32 {sT[1]}, {sDT}, 7
    s_add_u32 {sT[0]}, {sT[0]}, {sT[1]}
    s_lshl_b32 {sT[1]}, {sWH}, 6
    s_add_u32 {sT[0]}, {sT[0]}, {sT[1]}
    """)
    for q in range(4): a(f"buffer_load_dwordx2 {vr(48+2*q,2)}, v2, {SX}, {sT[0]} offen offset:{16*q}")
    wtile_tr_addr(a, 14, 8, sWH, sLB)
    def stage(ks0):
        for t in range(8):
            for i in range(2):
                for u in range(2):
                    a(f"ds_read_b64_tr_b16 {ar(aW1 + 8*(ks0-16+t) + 4*i + 2*u, 2)}, v{14+i} offset:{t*2048 + 4*u*128}")
        a("s_waitcnt lgkmcnt(0)")
    a(f"""
    {L}_nm:
    v_lshrrev_b32 v2, 1, v{vLANE}
    v_lshlrev_b32 v2, 9, v2
    v_and_b32 v3, 1, v{vLANE}
    v_mul_u32_u24 v3, 96, v3
    v_add_u32 v11, v2, v3
    """)
    def pqp():
        pq_loads()
    a(f"v_min_u32 v4, 15, v{vLANE}\n v_lshlrev_b32 v4, 10, v4\n v_add_u32 v4, 1020, v4")
    a.probe(4, sAT[0], 5, 1)
    if not OPT.get('sub'): a.xstamp(55)
    pqp()
    for o in a.wo_rest: a(o)
    a(f"s_cmp_eq_u32 {sIT}, 0\n s_cbranch_scc1 {L}_s1\n {L}_s1r:")
    main = a.lines; a.lines = a.stubs
    a(f"{L}_s1:\n s_barrier")
    for o in big_dma_ops(1, 16, 8, 0): a(o)
    a(f"s_branch {L}_s1r")
    a.lines = main
    if not OPT.get('sub'): a.xstamp(56)
    a(f"s_lshl_b32 {sT[0]}, {sWH}, 16\n s_add_u32 {sT[0]}, {sT[0]}, 0x8000")
    wtile_tr_addr(a, 6, 14, sWH, sT[0])
    red_addrs(a, RED, 2, 8, 9)
    for r in range(16): a(f"v_mov_b32 v{AC0+r}, v{RES+r}")
    a(f"""
    s_mul_i32 {sT[8]}, {sT[5]}, 3584
    s_add_u32 {sT[8]}, {sT[8]}, {sITO}
    s_add_u32 {sT[8]}, {sT[8]}, {ST}
    s_lshl_b32 {sT[1]}, {sDT}, 1
    s_add_u32 {sT[1]}, {sT[1]}, {sWH}
    s_lshl_b32 {sT[9]}, {sT[1]}, 8
    s_add_u32 {sT[9]}, {sT[9]}, {sT[8]}
    s_lshl_b32 {sT[12]}, {sT[1]}, 17
    s_lshl_b32 {sT[0]}, {sT[5]}, 11
    s_add_u32 {sT[12]}, {sT[12]}, {sT[0]}
    s_add_u32 {sT[12]}, {sT[12]}, {sITO}
    s_add_u32 {sT[12]}, {sT[12]}, {HF}
    """)
    if not OPT.get('sub'): a.xstamp(57)
    a(f"""
    s_waitcnt vmcnt(0)
    """)
    if not OPT.get('sub'): a.xstamp(58)
    a(f"""
    s_cmp_eq_u32 {sIT}, 0
    s_cbranch_scc0 {L}_nu
    """)
    for q in range(8): a(f"v_lshlrev_b32 v{AC0+2*q}, 16, v{48+q}\n v_and_b32 v{AC0+2*q+1}, 0xffff0000, v{48+q}")
    stage(16)
    for o in big_dma_ops(1, 24, 8, 0): a(o)
    a(f"{L}_nu:")
    a.check(range(PQR, PQR + 64), lambda: (a("s_sleep 8"), pqp()), 0)
    a.stamp("a2_pq")
    a(f"s_cmp_eq_u32 {sWL}, 0\n s_cbranch_scc0 {L}_npb")
    a.probe(11, sAT[2], 12, 1, sleep=OPT.get("kvsl", 6))
    a(f"{L}_npb:")
    if not OPT.get('sub'): a.xstamp(59)
    a("s_barrier")
    NB = [48, RES]
    def num_ops(hd):
        n = NB[hd & 1]
        return [f"{MF} {vr(n,16)}, {vr(KVR+8*hd,4)}, {vr(PQR+8*hd,4)}, 0",
                f"{MF} {vr(n,16)}, {vr(KVR+8*hd+4,4)}, {vr(PQR+8*hd+4,4)}, {vr(n,16)}"]
    p1 = big_dma_ops(1, 0, 8, 0)
    nd = [0]; ndc = [0]
    def kvchk(hd):
        a(f"s_waitcnt vmcnt({14-2*hd+nd[0]})")
        a.check(range(KVR + 8 * hd, KVR + 8 * hd + 8), lambda hd=hd: kv_loads(2 * hd), 0)
    def wrd(hd):
        for t in range(2):
            for nb in range(2):
                b = WB + 16 * (hd & 1) + 4 * (2 * t + nb)
                for u in range(2):
                    a(f"ds_read_b64_tr_b16 {vr(b+2*u,2)}, v{6+nb} offset:{(28*hd+8*t+4*u)*128}")
    def div_ops(hd):
        n = NB[hd & 1]
        ops = [f"v_add_f32 v10, {fbits(1e-6)}, v{n+15}", "v_rcp_f32 v10, v10"]
        for r in range(14): ops.append(f"v_mul_f32 v{n+r}, v{n+r}, v10")
        for r in range(7): ops.append(f"v_cvt_pk_bf16_f32 v{n+r}, v{n+2*r}, v{n+2*r+1}")
        ops.append(f"v_mov_b32 v{n+7}, 0")
        return ops
    def out_ops(hd):
        ops = []
        for t in range(2):
            for nb in range(2):
                acc = (AC0, AC1)[nb]
                c = vr(acc, 16) if (hd or t or nb == 0) else "0"
                ops.append(f"{MF} {vr(acc,16)}, {vr(WB+16*(hd&1)+4*(2*t+nb),4)}, {vr(NB[hd&1]+4*t,4)}, {c}")
        return ops
    kv_loads()
    a(f"s_cmp_eq_u32 {sIT}, 0\n s_cbranch_scc1 {L}_s2\n {L}_s2r:")
    main = a.lines; a.lines = a.stubs
    a(f"{L}_s2:\n s_waitcnt vmcnt(16)")
    stage(24)
    a(f"s_branch {L}_s2r")
    a.lines = main
    wrd(0)
    kvchk(0)
    for o in num_ops(0): a(o)
    a.stamp("a2_kv")
    kvchk(1)
    for o in num_ops(1): a(o)
    for o in div_ops(0): a(o)
    for hd in range(8):
        if hd + 1 < 8: wrd(hd + 1)
        a(f"s_waitcnt lgkmcnt({8 if hd + 1 < 8 else 0})")
        va = div_ops(hd + 1) if hd + 1 < 8 else []
        for j, o in enumerate(out_ops(hd)):
            a(o)
            if j & 1 and p1:
                a(p1.pop(0)); nd[0] += 1
            for _ in range(6):
                if va: a(va.pop(0))
        while va: a(va.pop(0))
        if hd + 2 < 8:
            kvchk(hd + 2)
            for o in num_ops(hd + 2): a(o)
        if hd == 2:
            a.counter_issue(196, 1); nd[0] += 1; ndc[0] = nd[0]
    assert not p1
    a.stamp("a2_mm")
    pair_reduce(a, AC0, AC1, 8, 9)
    a(f"s_waitcnt vmcnt({nd[0] - ndc[0]})")
    a.counter_check(196, 32)
    stats_publish(a, AC0, 64, sT[9])
    p2 = big_dma_ops(1, 8, 8, 0x8000)
    n2 = OPT.get("p2a", 8)
    for o in p2[:n2]: a(o)
    stats_loads(a, sT[8], 96)
    for r in range(16): a(f"v_mov_b32 v{RES+r}, v{AC0+r}")
    TW = 128
    a(f"""
    s_lshl_b32 {sT[0]}, {sW}, 11
    s_add_u32 {sT[0]}, {sT[0]}, 0x24000
    v_lshrrev_b32 v2, 1, v{vL31}
    v_and_b32 v2, 7, v2
    v_xor_b32 v2, v2, v{vHH}
    v_lshlrev_b32 v3, 6, v{vL31}
    v_add_u32 v3, {sT[0]}, v3
    """)
    for q in range(4): a(f"v_xor_b32 v4, {2*q}, v2\n v_lshl_add_u32 v{TW+q}, v4, 3, v3")
    a(f"""
    v_lshrrev_b32 v2, 2, v{vLANE}
    v_and_b32 v2, 3, v2
    v_lshl_add_u32 v2, v{vHH}, 3, v2
    v_lshrrev_b32 v3, 4, v{vLANE}
    v_and_b32 v3, 1, v3
    v_lshlrev_b32 v3, 2, v3
    v_and_b32 v4, 3, v{vLANE}
    v_add_u32 v3, v3, v4
    v_lshrrev_b32 v4, 1, v2
    v_xor_b32 v3, v3, v4
    v_lshlrev_b32 v2, 6, v2
    v_add_u32 v2, {sT[0]}, v2
    v_lshl_add_u32 v{TW+4}, v3, 3, v2
    v_xor_b32 v3, 2, v3
    v_lshl_add_u32 v{TW+5}, v3, 3, v2
    s_waitcnt vmcnt(0)
    """)
    a.check(range(96, 110), lambda: stats_loads(a, sT[8], 96), 0)
    a.stamp("a2_st")
    for o in stats_math_ops(96, 80, 82, 112): a(o)
    a(f"""
    v_add_f32 v84, {fbits(1e-5)}, v82
    v_rsq_f32 v84, v84
    v_mov_b32 v86, {fbits(1e-5)}
    v_mul_f32 v85, v82, v84
    v_fmac_f32 v86, v85, v84
    v_rsq_f32 v86, v86
    v_mul_f32 v84, v84, v86
    v_mul_f32 v86, -v80, v84
    """)
    for r in range(8): a(f"v_pk_fma_f32 {vr(32+2*r,2)}, {vr(AC0+2*r,2)}, v[84:85], v[86:87] op_sel_hi:[1,0,0]")
    for r in range(8): a(f"v_cvt_pk_bf16_f32 v{112+r}, v{32+2*r}, v{32+2*r+1}")
    for q in range(4): a(f"ds_write_b64 v{TW+q}, {vr(112+2*q,2)}")
    a(f"""
    ds_read_b64_tr_b16 v[120:121], v{TW+4}
    ds_read_b64_tr_b16 v[122:123], v{TW+5} offset:256
    ds_read_b64_tr_b16 v[124:125], v{TW+4} offset:1024
    ds_read_b64_tr_b16 v[126:127], v{TW+5} offset:1280
    s_waitcnt lgkmcnt(2)
    buffer_store_dwordx4 v[120:123], v{vL16}, {SWS}, {sT[12]} offen {SC}
    s_waitcnt lgkmcnt(0)
    buffer_store_dwordx4 v[124:127], v{vL16}, {SWS}, {sT[12]} offen offset:1024 {SC}
    s_barrier
    """)
    a.p2rest = p2[n2:]

ACC, WBF, WIN = 8, 72, 96
def ringoff(t): return ((t & 15) >> 3) * 0x8000 + (t & 7) * 2048
vTR, vPB = 6, 4
def gemm4(a, which, it, init):
    nks, nL, urows, w_is_a, aW = (32, 16, 4, True, aW1) if which == 1 else (28, 12, 8, False, aW2)
    NW, LA, R = OPT.get('nw', 8), 2, 4
    def rel(i, j): return 2 * i + j if which == 1 else i + 2 * j
    def areg(t, j): return WIN + 4 * ((2 * t + j) % 32)
    def act_load(t):
        for j in range(2):
            a(f"buffer_load_dwordx4 {vr(areg(t,j),4)}, v{vL16b if t&4 else vL16}, {SWS}, {sAT[4*j+(t>>3)]} offen offset:{(t&3)*1024} {SC}")
    def wreg(t, i, o=0, n=4):
        if t < nL: return vr(WBF + 8 * (t % 3) + 4 * i + o, n)
        return ar(aW + 8 * (t - nL) + 4 * i + o, n)
    def ldsoff(t): return ringoff(t)
    def rd(t):
        for i in range(2):
            for u in range(2):
                a(f"ds_read_b64_tr_b16 {wreg(t,i,2*u,2)}, v{vTR+i} offset:{ldsoff(t) + urows*u*128}")
    nrd = nks if it == 0 else nL
    sched = {}
    later = []
    def put(t, ops, tag):
        if t < nks - R: sched.setdefault(t, []).extend((o, tag) for o in ops)
        else: later.extend(ops)
    if it == 0:
        for k in range(16, nks): put(k - 15, big_dma_ops(which, k, 1, ringoff(k)), ("w", k))
        if which == 1:
            for p in range(12): put(OPT.get('w2t0', 24) + p, big_dma_ops(2, p, 1, ringoff(p)), ("x", 0))
        else:
            own = a1_wpk_own_ops()
            for p in range(8): put(OPT.get('wqt', 20) + p, own[2 * p:2 * p + 2], ("x", 0))
            later.extend(a1_wpk_hi_ops())
    elif which == 1:
        for p in range(12): put(OPT.get('w2t', 24) + p, big_dma_ops(2, p, 1, ringoff(p)), ("x", 0))
    q = []
    for t in range(NW):
        act_load(t); q += [("a", t)] * 2
    init()
    def cnt(item):
        idx = max(i for i, x in enumerate(q) if x == item)
        return min(len(q) - 1 - idx, 63)
    dma_seen = [False]
    lq = []
    for t in range(LA): lq.append(t)
    def check_grp(t, n):
        c = cnt(("a", t + n - 1))
        a(f"s_waitcnt vmcnt({c})")
        hi = max(x[1] for x in q if x[0] == "a") + 1
        regs = [areg(tt, j) + k for tt in range(t, t + n) for j in range(2) for k in range(4)]
        a.check(regs, lambda t=t, hi=hi: [act_load(tt) for tt in range(t, hi)], c if not dma_seen[0] else 0)
    def mfma(t, i, j):
        acc = ACC + 16 * rel(i, j)
        c_ = vr(acc, 16) if (t or rel(i, j) == 0) else "0"
        x = vr(areg(t, j), 4)
        return f"{MF} {vr(acc,16)}, {wreg(t,i)}, {x}, {c_}" if w_is_a else f"{MF} {vr(acc,16)}, {x}, {wreg(t,i)}, {c_}"
    def issue_rd(t):
        if t < nrd:
            if it == 0 and t >= 16:
                assert q.count(("w", t)) == 2
                a(f"s_waitcnt vmcnt({cnt(('w', t))})")
            rd(t); lq.append(t)
    def wait_rd(t):
        if t < nrd:
            n = len([x for x in lq if x > t])
            a(f"s_waitcnt lgkmcnt({4*n})")
    for t in range(nks - R):
        if t % 2 == 0:
            check_grp(t, 2)
            if t == 0: a.stamp("acq")
        issue_rd(t + LA)
        wait_rd(t)
        ex = list(sched.get(t, []))
        for (i, j) in ((0, 0), (1, 0), (0, 1), (1, 1)):
            a(mfma(t, i, j))
            if ex:
                o, tag = ex.pop(0)
                a(o); q.append(tag); dma_seen[0] = True
        assert not ex
        if t + NW < nks:
            act_load(t + NW); q += [("a", t + NW)] * 2
    assert all(k < nks - R for k in sched), sorted(sched)
    t0 = nks - R
    for t in range(t0 + LA, nks): issue_rd(t)
    check_grp(t0, R)
    if nrd == nks: a("s_waitcnt lgkmcnt(0)")
    wofs = {1: 0xA000, 2: 0xB000}
    def wr(r_):
        for k in range(4):
            if r_ == 3 and which == 1: a(f"ds_write_b128 v1, {vr(ACC+16*r_+4*k,4)} offset:{1024*k}")
            else: a(f"ds_write_b128 v0, {vr(ACC+16*r_+4*k,4)} offset:{wofs.get(r_, 0x9000)+1024*k}")
    order = sorted([(i, j) for i in range(2) for j in range(2)], key=lambda x: -rel(*x))
    addr_ops = [f"v_add_u32 v0, {sLB}, v{vL16}", f"v_xor_b32 v2, 0x4000, v0", f"v_xor_b32 v3, 0x10000, v0"]
    if which == 1:
        addr_ops += [f"s_lshl_b32 {sT[0]}, {sW}, 12", f"s_add_u32 {sT[0]}, {sT[0]}, 0x20000", f"v_add_u32 v1, {sT[0]}, v{vL16}", f"v_xor_b32 v5, 0x3000, v1"]
    else:
        addr_ops += [f"v_xor_b32 v5, 0x14000, v0"]
    for n_, (i, j) in enumerate(order):
        for t in range(t0, nks):
            a(mfma(t, i, j))
            for _ in range(2):
                if addr_ops: a(addr_ops.pop(0))
        if n_ >= 1: wr(rel(*order[n_ - 1]))
    a.stamp("mm")
    a("s_waitcnt lgkmcnt(0)\n s_barrier")
    for r_, va, of in ((1, 2, 0xA000), (2, 3, 0xB000), (3, 5, 0 if which == 1 else 0x9000)):
        for k in range(4): a(f"ds_read_b128 {vr(ACC+16*r_+4*k,4)}, v{va} offset:{of+1024*k}")
    return later

def red_finish(a):
    for r_ in range(1, 4):
        a(f"s_waitcnt lgkmcnt({4*(3-r_)})")
        for k in range(8): a(f"v_pk_add_f32 {vr(ACC+2*k,2)}, {vr(ACC+2*k,2)}, {vr(ACC+16*r_+2*k,2)}")

def act_tables(a, s_abs, slice_stride, s_keep, nks):
    a(f"""
    s_mul_i32 {sT[0]}, {s_keep}, {slice_stride}
    s_add_u32 {sAT[0]}, {s_abs}, {sT[0]}
    s_sub_u32 {sT[0]}, {slice_stride}, {sT[0]}
    s_add_u32 {sAT[4]}, {s_abs}, {sT[0]}
    """)
    for k in range(1, 4):
        a(f"s_add_u32 {sAT[k]}, {sAT[0]}, {k*0x2000}\n s_add_u32 {sAT[4+k]}, {sAT[4]}, {k*0x2000}")
    a(f"""
    v_min_u32 v{vPB}, {nks-1}, v{vL31}
    v_lshlrev_b32 v{vPB}, 10, v{vPB}
    v_mul_u32_u24 v2, {slice_stride}, v{vHH}
    v_add3_u32 v{vPB}, v{vPB}, v2, 60
    v_add_u32 v{vPB}, 960, v{vPB}
    """)

def first_rd(a, which):
    urows = 4 if which == 1 else 8
    for t in range(2):
        for i in range(2):
            for u in range(2):
                a(f"ds_read_b64_tr_b16 {vr(WBF+8*t+4*i+2*u,2)}, v{vTR+i} offset:{t*2048 + urows*u*128}")

def two_its(a, L, body):
    n0 = a.nstamp; names0 = list(getattr(a, "names", []))
    a(f"s_cmp_eq_u32 {sIT}, 0\n s_cbranch_scc0 {L}_i1")
    r0 = body(0)
    a(f"s_branch {L}_j\n {L}_i1:")
    a.nstamp = n0
    if STAMPS: a.names = names0
    r1 = body(1)
    a(f"{L}_j:")
    return r0, r1

def phase_b1(a):
    L = a.label("B1")
    for o in a.p2rest: a(o)
    a.counter_issue(4, 1)
    a(f"""
    v_lshlrev_b32 v3, 3, v{vHH}
    s_lshl_b32 {sT[0]}, {sFT}, 7
    s_lshl_b32 {sT[1]}, {sWH}, 6
    s_add_u32 {sT[0]}, {sT[0]}, {sT[1]}
    """)
    for q in range(4): a(f"buffer_load_dwordx2 {vr(24+2*q,2)}, v3, {SB1}, {sT[0]} offen offset:{16*q}")
    a(f"""
    s_lshl_b32 {sT[6]}, {sDT}, 18
    s_lshl_b32 {sT[3]}, {sW}, 15
    s_add_u32 {sT[6]}, {sT[6]}, {sT[3]}
    s_add_u32 {sT[6]}, {sT[6]}, {sITO}
    s_add_u32 {sT[6]}, {sT[6]}, {HF}
    """)
    act_tables(a, sT[6], 128 * 1024, sWL, 32)
    wtile_tr_addr(a, vTR, 8, sWH, sLB)
    a(f"""
    s_lshl_b32 {sT[5]}, {sDT}, 1
    s_add_u32 {sT[5]}, {sT[5]}, {sWL}
    s_mul_i32 {sT[7]}, {sT[5]}, {112*1024}
    s_lshl_b32 {sT[1]}, {sFT}, 12
    s_add_u32 {sT[7]}, {sT[7]}, {sT[1]}
    s_lshl_b32 {sT[1]}, {sWH}, 11
    s_add_u32 {sT[7]}, {sT[7]}, {sT[1]}
    s_add_u32 {sT[7]}, {sT[7]}, {sITO}
    s_add_u32 {sT[7]}, {sT[7]}, {UF}
    """)
    first_rd(a, 1)
    a.probe(vPB, sT[6], 5, 1)
    a.stamp("probe")
    def init():
        for q in range(8): a(f"v_lshlrev_b32 v{ACC+2*q}, 16, v{24+q}\n v_and_b32 v{ACC+2*q+1}, 0xffff0000, v{24+q}")
    later = gemm4(a, 1, 1, init)
    a.counter_check(4, 32)
    c0 = -2 * 0.7978845608028654 * LOG2E
    c1 = c0 * 0.044715
    a(f"v_mov_b32 v0, {fbits(c1)}\n v_mov_b32 v1, {fbits(c0)}")
    red_finish(a)
    U, T = ACC, 96
    for r in range(8): a(f"v_pk_mul_f32 {vr(T+2*r,2)}, {vr(U+2*r,2)}, {vr(U+2*r,2)}")
    for r in range(8): a(f"v_pk_fma_f32 {vr(T+2*r,2)}, {vr(T+2*r,2)}, v[0:1], v[0:1] op_sel:[0,0,1] op_sel_hi:[1,0,1]")
    for r in range(8): a(f"v_pk_mul_f32 {vr(T+2*r,2)}, {vr(T+2*r,2)}, {vr(U+2*r,2)}")
    for r in range(16): a(f"v_exp_f32 v{T+r}, v{T+r}")
    for r in range(8): a(f"v_pk_add_f32 {vr(T+2*r,2)}, {vr(T+2*r,2)}, 1.0 op_sel_hi:[1,0]")
    for r in range(16): a(f"v_rcp_f32 v{T+r}, v{T+r}")
    for r in range(8): a(f"v_pk_mul_f32 {vr(T+2*r,2)}, {vr(T+2*r,2)}, {vr(U+2*r,2)}")
    for r in range(8): a(f"v_cvt_pk_bf16_f32 v{112+r}, v{T+2*r}, v{T+2*r+1}")
    a(f"""
    buffer_store_dwordx4 v[112:115], v{vL16}, {SWS}, {sT[7]} offen {SC}
    buffer_store_dwordx4 v[116:119], v{vL16}, {SWS}, {sT[7]} offen offset:1024 {SC}
    """)
    for o in later: a(o)

def phase_b2(a):
    L = a.label("B2")
    a(f"""
    s_lshl_b32 {sT[7]}, {sST}, 1
    s_add_u32 {sT[7]}, {sT[7]}, {sWL}
    v_lshlrev_b32 v3, 1, v{vL31}
    s_lshl_b32 {sT[0]}, {sT[7]}, 6
    buffer_load_ushort v24, v3, {SB2}, {sT[0]} offen
    s_mul_i32 {sT[6]}, {sDT}, {224*1024}
    s_mul_i32 {sT[0]}, {sW}, {28*1024}
    s_add_u32 {sT[6]}, {sT[6]}, {sT[0]}
    s_add_u32 {sT[6]}, {sT[6]}, {sITO}
    s_add_u32 {sT[6]}, {sT[6]}, {UF}
    """)
    act_tables(a, sT[6], 112 * 1024, sWH, 28)
    wtile_tr_addr(a, vTR, 4, sWL, sLB)
    a1_wpk_setup(a)
    a(f"""
    s_lshl_b32 {sT[5]}, {sDT}, 1
    s_add_u32 {sT[5]}, {sT[5]}, {sWH}
    s_mul_i32 {sT[8]}, {sT[7]}, {28*1024}
    s_lshl_b32 {sT[1]}, {sT[5]}, 11
    s_add_u32 {sT[8]}, {sT[8]}, {sT[1]}
    s_add_u32 {sT[8]}, {sT[8]}, {XF}
    s_mul_i32 {sT[9]}, {sT[7]}, 3584
    s_lshl_b32 {sT[1]}, {sT[5]}, 8
    s_add_u32 {sT[9]}, {sT[9]}, {sT[1]}
    s_add_u32 {sT[9]}, {sT[9]}, {ST2}
    s_mul_i32 {sT[12]}, {sT[7]}, {32*896}
    s_lshl_b32 {sT[1]}, {sT[5]}, 6
    s_add_u32 {sT[12]}, {sT[12]}, {sT[1]}
    s_barrier
    s_cmp_eq_u32 {sIT}, 0
    s_cbranch_scc0 {L}_nx
    """)
    for o in big_dma_ops(2, 12, 4, ringoff(12)): a(o)
    a(f"{L}_nx:")
    a.counter_issue(68, 1)
    a.probe(vPB, sT[6], 5, 1)
    first_rd(a, 2)
    a.counter_check(68, 32)
    a.stamp("probe")
    def init():
        a("v_lshlrev_b32 v24, 16, v24")
        for r in range(16): a(f"v_add_f32 v{ACC+r}, v{RES+r}, v24")
    later = two_its(a, L, lambda it: gemm4(a, 2, it, init))
    a(f"v_mul_u32_u24 v0, 896, v{vL31}\n v_lshl_add_u32 v0, v{vHH}, 3, v0")
    red_finish(a)
    for r in range(8): a(f"v_cvt_pk_bf16_f32 v{112+r}, v{ACC+2*r}, v{ACC+2*r+1}")
    a(f"""
    s_cmp_eq_u32 {sIT}, 0
    s_cbranch_scc0 {L}_fin
    buffer_store_dwordx4 v[112:115], v{vL16}, {SWS}, {sT[8]} offen {SC}
    buffer_store_dwordx4 v[116:119], v{vL16}, {SWS}, {sT[8]} offen offset:1024 {SC}
    """)
    stats_publish(a, ACC, 72, sT[9])
    for o in later[0]: a(o)
    for r in range(16): a(f"v_mov_b32 v{RES+r}, v{ACC+r}")
    a(f"s_branch {L}_end\n {L}_fin:")
    for q in range(4): a(f"buffer_store_dwordx2 {vr(112+2*q,2)}, v0, {SOUT}, {sT[12]} offen offset:{16*q}")
    a(f"{L}_end:")

def build():
    a = K(); a.stubs = []
    kernel_begin(a, KNAME)
    prologue(a)
    if STAMPS: a("v_mov_b32 v255, 0")
    a("L_iter:")
    a.stamp("start")
    phase_a1(a)
    a(f"s_cmp_ge_u32 {sACT}, 8\n s_cbranch_scc1 L_helper")
    phase_a2(a)
    a.stamp("a2_end")
    a(f"s_cmp_ge_u32 {sACT}, 7\n s_cbranch_scc1 L_skipb1")
    phase_b1(a)
    a("s_branch L_b2\n L_skipb1:")
    for o in big_dma_ops(2, 0, 8, 0) + big_dma_ops(2, 8, 4, 0x8000): a(o)
    a.counter_wait(4, 1, 32, 2)
    a("L_b2:")
    a.stamp("b1_end")
    phase_b2(a)
    a.stamp("b2_end")
    a(f"""
    L_next:
    s_cmp_eq_u32 {sIT}, 1
    s_cbranch_scc1 L_fin
    s_mov_b32 {sIT}, 1
    s_mov_b32 {sITO}, {ITB}
    s_branch L_iter
    L_helper:
    """)
    kv_reduce(a)
    if not OPT.get('sub'): a.xstamp(53)
    a("s_waitcnt vmcnt(0)\n s_barrier")
    a(f"""
    s_cmp_eq_u32 {sIT}, 1
    s_cbranch_scc1 L_fin
    """)
    helper_work(a)
    a("s_branch L_next")
    a("L_fin:")
    a.stamp_dump()
    a("L_end:\n s_endpgm")
    a.lines += a.stubs
    a.lines.append('L_codeend:')
    if STAMPS: open("stamps.txt", "w").write("\n".join(a.names))
    for i in range(len(a.lines) - 1):
        if a.lines[i].strip().startswith(f"s_add_u32 {sT[2]},") and a.lines[i+1].strip().startswith("s_add_u32 m0,"):
            a.lines[i], a.lines[i+1] = a.lines[i+1], a.lines[i]
    lines, n = haz.fix(a.lines)
    if OPT.get('align', 1):
        lines, st_ = align.align(lines, OPT.get('minrun', 5)); print('align', st_)
    hdr = f"; @launch grid=(256,1,1) block=(256,1,1) lds=163840\n"
    return hdr + '.amdgcn_target "amdgcn-amd-amdhsa--gfx950"\n.text\n' + "\n".join(lines) + "\n" + '.section .rodata,"a"\n' + descriptor(KNAME, 512, accum=256)

if __name__ == "__main__":
    out = sys.argv[1]
    for o in sys.argv[2:]:
        if o == "stamps": STAMPS = True
        else:
            k_, v_ = o.split("="); OPT[k_] = int(v_)
    open(out, "w").write(build())
```

```python
import sys, struct
sys.path.insert(0, "work")
from gen import *
import haz, align

KNAME = NAME + "_kernel"
S, D, F = 2048, 448, 1792
ITB = 0x680000 + 0x8000
PQ, KVP, KVF, ST, HF, UF = 0x0, 0x200000, 0x300000, 0x308000, 0x340000, 0x500000
assert UF + 14 * 112 * 1024 == ITB
XF = 2 * ITB
ST2 = XF + 0x1C0000
FILL_END = ST2 + 0x38000
WQP = 0x1000000
assert FILL_END <= WQP
STAMP_OFF = 0x2000000
WS_SIZE = 0x10000000
LOG2E = 1.4426950408889634
def fbits(x): return "0x%08x" % struct.unpack("<I", struct.pack("<f", x))[0]

SX, SWQKV, SWO, SW1, SW2, SB1, SB2, SOUT, SWS, SDBG = [f"s[{i}:{i+3}]" for i in range(4, 44, 4)]
sW, sRB, sH, sDT, sST, sFT, sACT, sIT, sITO, sBUD = "s3", "s44", "s45", "s46", "s47", "s48", "s49", "s50", "s51", "s52"
sWH, sWL, sLB = "s53", "s54", "s55"
sT = [f"s{i}" for i in range(56, 72)]
sW1B, sW2B = 's72', 's73'
sAT = [f"s{i}" for i in range(88, 96)]
SC = "sc1"
sDT1, sLOC, sXSH = 's99', 's100', 's101'
STAMPS = False
OPT = {}

def vr(b, n=1): return f"v{b}" if n == 1 else f"v[{b}:{b+n-1}]"
def ar(b, n=1): return f"a{b}" if n == 1 else f"a[{b}:{b+n-1}]"
MF = "v_mfma_f32_32x32x16_bf16"

vL16, vL16b, vHH, vL31, vLANE, vL8, vDW1, vDW2, CSK, CSV, vDWO, vMAX, vCNT, vCNA = range(240, 254)
assert CSK % 2 == 0
RES = 224
vKRS = 254
aW1, aW2 = 0, 128

class K(Asm):
    nstamp = 0
    stubs = None
    def stamp(self, name=""):
        if not STAMPS: return
        self(f"{'s_memtime' if OPT.get('clk') else 's_memrealtime'} s[96:97]\n s_lshl_b32 s98, {sIT}, 5\n s_add_u32 s98, s98, {self.nstamp}\n s_waitcnt lgkmcnt(0)\n s_mov_b32 m0, s98\n v_writelane_b32 v255, s96, m0")
        self.names = getattr(self, "names", []) + [name]
        self.nstamp += 1
        assert self.nstamp <= 32
    def xstamp(self, idx):
        if not STAMPS: return
        self(f"{'s_memtime' if OPT.get('clk') else 's_memrealtime'} s[96:97]\n s_waitcnt lgkmcnt(0)\n v_writelane_b32 v255, s96, {idx}")
    def stamp_dump(self):
        if not STAMPS: return
        self(f"""
        s_lshl_b32 s98, s2, 2
        s_add_u32 s98, s98, {sW}
        s_lshl_b32 s98, s98, 8
        s_add_u32 s98, s98, {STAMP_OFF}
        v_lshlrev_b32 v2, 2, v{vLANE}
        buffer_store_dword v255, v2, {SWS}, s98 offen
        """)
        if "dbg" in OPT:
            sel = {0: list(range(0, 14)), 1: [0, 12, 14, 15, 16, 18, 19, 35, 37, 40, 43, 46, 50, 51]}[OPT["dbg"]]
            L = self.label("DS")
            self(f"s_lshl_b32 s98, s2, 2\n s_add_u32 s98, s98, {sW}\n s_cmp_eq_u32 s98, {OPT.get('dbgw', 1)}\n s_cbranch_scc0 {L}")
            self("v_readlane_b32 s97, v255, 0")
            for i, ln in enumerate(sel):
                self(f"v_readlane_b32 s96, v255, {ln}\n s_sub_u32 s96, s96, s97\n v_writelane_b32 v3, s96, {i}")
            self(f"s_mov_b64 exec, 0x3fff\n buffer_store_dword v3, v2, {SDBG}, 0 offen offset:8\n s_mov_b64 exec, -1\n {L}:")
    def srd(self, dst, ptr, size):
        b = int(dst[2:dst.index(":")])
        self(f"s_mov_b32 s{b}, s{ptr}\n s_mov_b32 s{b+1}, s{ptr+1}\n s_mov_b32 s{b+2}, {size}\n s_mov_b32 s{b+3}, 0x00020000")
    def halfsum(self, v, tmp):
        self(f"v_mov_b32 {tmp}, {v}\n v_permlane32_swap_b32 {v}, {tmp}\n v_add_f32 {v}, {v}, {tmp}")
    def check_ops(self, regs):
        regs = list(regs); ops = []
        if len(regs) % 2 == 1:
            ops.append(f"v_max3_u32 v{vMAX}, v{regs[0]}, v{regs[1]}, v{regs[2]}"); rest = regs[3:]
        else:
            ops.append(f"v_max_u32 v{vMAX}, v{regs[0]}, v{regs[1]}"); rest = regs[2:]
        for i in range(0, len(rest), 2):
            ops.append(f"v_max3_u32 v{vMAX}, v{vMAX}, v{rest[i]}, v{rest[i+1]}")
        ops.append(f"v_cmp_eq_u32 vcc, -1, v{vMAX}")
        return ops
    def check_branch(self, regs, reissue, wait_after):
        L = self.label("CK")
        self(f"s_cbranch_vccnz {L}_r\n {L}_k:")
        main = self.lines
        self.lines = self.stubs
        self(f"{L}_r:\n s_cmp_le_i32 {sBUD}, 0\n s_cbranch_scc1 {L}_k\n s_sub_u32 {sBUD}, {sBUD}, 1")
        reissue()
        self(f"s_waitcnt vmcnt({wait_after})")
        for o in self.check_ops(regs): self(o)
        self(f"s_cbranch_vccnz {L}_r\n s_branch {L}_k")
        self.lines = main
    def check(self, regs, reissue, wait_after):
        for o in self.check_ops(regs): self(o)
        self.check_branch(regs, reissue, wait_after)
    def probe_issue(self, voff, soff, vt, nreg=1):
        ld = {1: "buffer_load_dword", 4: "buffer_load_dwordx4"}[nreg]
        self(f"{ld} {vr(vt,nreg)}, v{voff}, {SWS}, {soff} offen {SC}")
    def probe(self, voff, soff, vt, nreg=1, issued=False, sleep=0):
        L = self.label("PB")
        if issued: self(f"s_branch {L}_c")
        if sleep: self(f"s_branch {L}_q")
        self(f"{L}_p:")
        if sleep: self(f"s_sleep {sleep}\n {L}_q:")
        self.probe_issue(voff, soff, vt, nreg)
        self(f"s_sub_u32 {sBUD}, {sBUD}, 1\n {L}_c:\n s_waitcnt vmcnt(0)")
        if nreg == 1: self(f"v_cmp_eq_u32 vcc, -1, v{vt}")
        else:
            for o in self.check_ops(range(vt, vt + nreg)): self(o)
        self(f"""
        s_cmp_gt_i32 {sBUD}, 0
        s_cselect_b64 vcc, vcc, 0
        s_cbranch_vccnz {L}_p
        """)
    def loc_issue(self, vd):
        self(f"""
        v_and_b32 v{vd+2}, 3, v{vLANE}
        v_lshlrev_b32 v{vd+2}, 6, v{vd+2}
        v_bfe_u32 v{vd+3}, v{vLANE}, 2, 1
        v_lshl_add_u32 v{vd+2}, v{vd+3}, 3, v{vd+2}
        buffer_load_dwordx2 {vr(vd,2)}, v{vd+2}, {SDBG}, 0 offen offset:16 sc1
        """)
    def loc_eval(self, vd):
        L = self.label("LE")
        self(f"v_cmp_gt_u32 vcc, 0x200000, v{vd+1}\n s_cbranch_vccnz {L}_r\n {L}_k:")
        main = self.lines; self.lines = self.stubs
        self(f"""
        {L}_r:
        s_cmp_le_i32 {sBUD}, 0
        s_cbranch_scc1 {L}_k
        s_sub_u32 {sBUD}, {sBUD}, 1
        s_sleep 8
        buffer_load_dwordx2 {vr(vd,2)}, v{vd+2}, {SDBG}, 0 offen offset:16 sc1
        s_waitcnt vmcnt(0)
        v_cmp_gt_u32 vcc, 0x200000, v{vd+1}
        s_cbranch_vccnz {L}_r
        s_branch {L}_k
        """)
        self.lines = main
        self(f"""
        s_and_b32 {sT[0]}, s2, 7
        v_readlane_b32 s76, v{vd}, {sT[0]}
        v_readlane_b32 s77, v{vd+1}, {sT[0]}
        s_and_b32 s77, s77, 0xffff
        s_lshr_b64 s[76:77], s[76:77], {sXSH}
        s_and_b32 s76, s76, 63
        s_cmp_eq_u32 s76, 32
        s_cselect_b32 {sLOC}, {1 if OPT.get("loc", 1) else 0}, 0
        """)
    def lstore(self, ops):
        L = self.label("LS")
        self(f"s_cmp_eq_u32 {sLOC}, 0\n s_cbranch_scc1 {L}_g")
        for o in ops: self(o)
        self(f"{L}_r:")
        main = self.lines; self.lines = self.stubs
        self(f"{L}_g:")
        for o in ops: self(o + " " + SC)
        self(f"s_branch {L}_r")
        self.lines = main
    def counter_issue(self, off, nsh):
        self(f"v_min_u32 v{vCNA}, {nsh-1}, v{vLANE}\n v_lshlrev_b32 v{vCNA}, 6, v{vCNA}")
        self(f"buffer_load_dword v{vCNT}, v{vCNA}, {SDBG}, 0 offen offset:{off} sc1")
    def counter_check(self, off, target):
        L = self.label("CC")
        self(f"v_cmp_gt_u32 vcc, {target}, v{vCNT}\n s_cbranch_vccnz {L}_r\n {L}_k:")
        main = self.lines
        self.lines = self.stubs
        self(f"""
        {L}_r:
        s_cmp_le_i32 {sBUD}, 0
        s_cbranch_scc1 {L}_k
        s_sub_u32 {sBUD}, {sBUD}, 1
        s_sleep 8
        buffer_load_dword v{vCNT}, v{vCNA}, {SDBG}, 0 offen offset:{off} sc1
        s_waitcnt vmcnt(0)
        v_cmp_gt_u32 vcc, {target}, v{vCNT}
        s_cbranch_vccnz {L}_r
        s_branch {L}_k
        """)
        self.lines = main
    def counter_wait(self, off, nsh, target, vt):
        L = self.label("CW")
        self(f"""
        v_lshlrev_b32 v{vt+1}, 6, v{vLANE}
        s_mov_b64 exec, {(1<<nsh)-1}
        {L}_p:
        buffer_load_dword v{vt}, v{vt+1}, {SDBG}, 0 offen offset:{off} sc1
        s_waitcnt vmcnt(0)
        v_cmp_gt_u32 vcc, {target}, v{vt}
        s_cbranch_vccz {L}_o
        s_cmp_le_i32 {sBUD}, 0
        s_cbranch_scc1 {L}_o
        s_sub_u32 {sBUD}, {sBUD}, 1
        s_sleep 2
        s_branch {L}_p
        {L}_o:
        s_mov_b64 exec, -1
        """)

def wtile_dma_voff(a, vdst, rowstride):
    a(f"""
    v_lshrrev_b32 v2, 3, v{vLANE}
    v_mul_u32_u24 v{vdst}, {rowstride}, v2
    v_lshrrev_b32 v2, 4, v{vLANE}
    v_and_b32 v2, 1, v2
    v_lshlrev_b32 v2, 2, v2
    v_and_b32 v3, 7, v{vLANE}
    v_xor_b32 v2, v2, v3
    v_lshl_add_u32 v{vdst}, v2, 4, v{vdst}
    """)

def wtile_tr_addr(a, vdst, hhrows, s_keep, s_base):
    a(f"""
    v_lshrrev_b32 v2, 2, v{vLANE}
    v_and_b32 v2, 3, v2
    v_mul_u32_u24 v3, {hhrows}, v{vHH}
    v_add_u32 v2, v2, v3
    v_bfe_u32 v3, v2, 1, 1
    v_xor_b32 v3, {s_keep}, v3
    v_lshlrev_b32 v2, 7, v2
    v_lshl_add_u32 v2, v3, 6, v2
    v_lshrrev_b32 v3, 4, v{vLANE}
    v_and_b32 v3, 1, v3
    v_lshl_add_u32 v2, v3, 5, v2
    v_and_b32 v3, 3, v{vLANE}
    v_lshl_add_u32 v{vdst}, v3, 3, v2
    v_add_u32 v{vdst}, {s_base}, v{vdst}
    v_xor_b32 v{vdst+1}, 64, v{vdst}
    """)

def prologue(a):
    a(f"""
    s_cmp_ge_u32 s2, 256
    s_cbranch_scc1 L_end
    {"s_lshr_b32 s3, s2, 5" if OPT.get("bad") else ""}
    {"s_and_b32 s2, s2, 31" if OPT.get("bad") else ""}
    {"s_lshl_b32 s2, s2, 3" if OPT.get("bad") else ""}
    {"s_or_b32 s2, s2, s3" if OPT.get("bad") else ""}
    s_load_dwordx16 s[72:87], s[0:1], 0
    s_load_dwordx4 s[88:91], s[0:1], 64
    s_load_dwordx2 s[92:93], s[0:1], 80
    v_lshrrev_b32 v2, 6, v0
    v_and_b32 v{vLANE}, 63, v0
    v_readfirstlane_b32 {sW}, v2
    v_lshrrev_b32 v{vHH}, 5, v{vLANE}
    v_and_b32 v{vL31}, 31, v{vLANE}
    v_lshlrev_b32 v{vL16}, 4, v{vLANE}
    v_lshlrev_b32 v{vL8}, 3, v{vLANE}
    v_add_u32 v{vL16b}, 0x1000, v{vL16}
    s_and_b32 {sT[0]}, s2, 7
    s_lshr_b32 {sT[1]}, s2, 3
    s_lshr_b32 {sT[2]}, {sT[0]}, 1
    s_and_b32 {sT[3]}, {sT[0]}, 1
    s_lshl_b32 {sRB}, {sT[0]}, 1
    s_lshr_b32 {sT[4]}, {sT[1]}, 4
    s_add_u32 {sRB}, {sRB}, {sT[4]}
    s_and_b32 {sH}, {sT[1]}, 15
    s_mul_i32 {sT[4]}, {sT[1]}, 43
    s_lshr_b32 {sT[4]}, {sT[4]}, 7          ; j/3
    s_mul_i32 {sT[7]}, {sT[4]}, 3
    s_sub_u32 {sT[7]}, {sT[1]}, {sT[7]}     ; j%3
    s_lshl_b32 {sT[5]}, {sT[3]}, 2          ; 4p
    s_add_u32 {sDT1}, {sT[7]}, {sT[5]}
    s_add_u32 {sT[6]}, {sT[5]}, {sT[1]}
    s_sub_u32 {sT[6]}, {sT[6]}, 24
    s_cmp_ge_u32 {sT[1]}, 24
    s_cselect_b32 {sT[4]}, {sT[6]}, {sT[4]}
    s_cselect_b32 {sDT1}, 3, {sDT1}
    s_cmp_ge_u32 {sT[1]}, 28
    s_cselect_b32 {sT[4]}, 8, {sT[4]}
    s_mul_i32 {sT[5]}, {sT[1]}, 37
    s_lshr_b32 {sT[5]}, {sT[5]}, 8
    s_mul_i32 {sT[6]}, {sT[5]}, 7
    s_sub_u32 {sDT}, {sT[1]}, {sT[6]}
    s_lshl_b32 {sST}, {sT[0]}, 2
    s_add_u32 {sST}, {sST}, {sT[5]}
    s_getreg_b32 {sXSH}, hwreg(HW_REG_XCC_ID)
    s_and_b32 {sXSH}, {sXSH}, 15
    s_min_u32 {sXSH}, {sXSH}, 9
    s_mul_i32 {sXSH}, {sXSH}, 6
    s_mov_b32 {sLOC}, 0
    s_mul_i32 {sFT}, {sT[2]}, 7
    s_add_u32 {sFT}, {sFT}, {sT[4]}
    s_mov_b32 {sACT}, {sT[4]}
    s_mov_b32 {sIT}, 0
    s_mov_b32 {sITO}, 0
    s_mov_b32 {sBUD}, 60000
    s_lshr_b32 {sWH}, {sW}, 1
    s_and_b32 {sWL}, {sW}, 1
    s_waitcnt lgkmcnt(0)
    """)
    a.srd(SX, 72, S * D * 2)
    a.srd(SWQKV, 74, D * 3 * D * 2)
    a.srd(SWS, 92, WS_SIZE)
    a.srd(SWO, 76, D * D * 2)
    a.srd(SW1, 80, S * F * 2)
    a.srd(SB1, 82, F * 2)
    a.srd(SW2, 84, F * S * 2)
    a.srd(SB2, 86, S * 2)
    a.srd(SOUT, 88, S * D * 2)
    a.srd(SDBG, 90, 256)

def late_setup(a):
    wtile_dma_voff(a, vDW1, 3584)
    wtile_dma_voff(a, vDW2, 4096)
    wtile_dma_voff(a, vDWO, 896)
    a(f"""
    s_mul_i32 {sW1B}, {sW}, {512*3584}
    s_min_u32 {sT[2]}, {sFT}, 27
    s_lshl_b32 {sT[2]}, {sT[2]}, 7
    s_add_u32 {sW1B}, {sW1B}, {sT[2]}
    s_mul_i32 {sW2B}, {sW}, {448*4096}
    s_min_u32 {sT[2]}, {sST}, 31
    s_lshl_b32 {sT[2]}, {sT[2]}, 7
    s_add_u32 {sW2B}, {sW2B}, {sT[2]}
    """)

XREG = 64
ACQ, ACK, ACV = 16, 32, 48
WFR = 176
TRA = 4
vM, vR, vC, vRS = 12, 13, 14, 15
XBASE = [0x8000, 0x18000, 0x20000, 0x10000]
def a1_lds(f):
    if f < 32: return 1024 * f
    if f < 64: return 0x10000 + 1024 * (f - 32)
    return 0x20000 + 1024 * (f - 64)
def a1_src(f):
    if f < 56: t, seg = f >> 1, 1 + (f & 1)
    else: t, seg = f - 56, 0
    return t * 16 * 2688 + seg * 896
CSL, RSL, KVL = 0x27000, 0x27400, 0x0


def a1_wraw_ops(f0, f1, vo, s_kv, s_q, s_w10):
    o = []
    for f in range(f0, f1, 4):
        sb = s_kv if f < 56 else s_q
        o.append(f"s_add_u32 {sT[2]}, {sb}, {a1_src(f)}\n s_add_u32 m0, {s_w10}, {a1_lds(f)}\n buffer_load_dwordx4 v{vo}, {SWQKV}, {sT[2]} offen lds")
    return o

def a1_wpk_setup(a):
    a(f"""
    s_mul_i32 {sT[13]}, {sH}, {84*1024}
    s_add_u32 {sT[13]}, {sT[13]}, {WQP}
    s_lshl_b32 {sT[15]}, {sW}, 10
    s_lshl_b32 {sT[14]}, {sW}, 14
    s_add_u32 {sT[14]}, {sT[14]}, {sT[13]}
    s_add_u32 {sT[13]}, {sT[13]}, {sT[15]}
    """)
def a1_wpk_hi_ops():
    return [f"s_add_u32 {sT[2]}, {sT[13]}, {f*1024}\n s_add_u32 m0, {sT[15]}, {a1_lds(f)}\n buffer_load_dwordx4 v{vL16}, {SWS}, {sT[2]} offen {SC} lds" for f in range(64, 84, 4)]
def a1_wpk_own_ops():
    return [f"s_add_u32 {sT[2]}, {sT[14]}, {i*1024}\n s_add_u32 m0, {sLB}, {i*1024}\n buffer_load_dwordx4 v{vL16}, {SWS}, {sT[2]} offen {SC} lds" for i in range(16)]

sWOG, sWOL = "s74", "s75"
def wo_setup(a):
    a(f"""
    s_mul_i32 {sWOG}, {sWH}, {224*896}
    s_mul_i32 {sT[2]}, {sWL}, {8*896}
    s_add_u32 {sWOG}, {sWOG}, {sT[2]}
    s_lshl_b32 {sT[2]}, {sDT}, 7
    s_add_u32 {sWOG}, {sWOG}, {sT[2]}
    s_lshl_b32 {sWOL}, {sWH}, 16
    s_lshl_b32 {sT[2]}, {sWL}, 10
    s_add_u32 {sWOL}, {sWOL}, {sT[2]}
    """)
def wo_ops():
    return [f"s_add_u32 {sT[2]}, {sWOG}, {j*16*896}\n s_add_u32 m0, {sWOL}, {0x8000 + j*2048}\n buffer_load_dwordx4 v{vDWO}, {SWO}, {sT[2]} offen lds" for j in range(15)]

def big_dma_ops(which, ks0, nks, ldsoff):
    stride, srd, vo, sb = (3584, SW1, vDW1, sW1B) if which == 1 else (4096, SW2, vDW2, sW2B)
    return [f"s_add_u32 {sT[2]}, {sb}, {(ks0*16 + i*8)*stride}\n s_add_u32 m0, {sLB}, {ldsoff + i*1024}\n buffer_load_dwordx4 v{vo}, {srd}, {sT[2]} offen lds" for i in range(2 * nks)]

def stats_loads(a, soff, T):
    for i in range(7):
        a(f"buffer_load_dwordx2 {vr(T+2*i,2)}, v{vL8}, {SWS}, {soff} offen offset:{i*512} {SC}")

def stats_math_ops(T, vm, vvar, U, pk=True):
    o = []
    if pk:
        for i in range(3): o.append(f"v_pk_add_f32 {vr(U+2*i,2)}, {vr(T+4*i,2)}, {vr(T+4*i+2,2)}")
        o.append(f"v_pk_add_f32 {vr(U,2)}, {vr(U,2)}, {vr(U+2,2)}")
        o.append(f"v_pk_add_f32 {vr(U+4,2)}, {vr(U+4,2)}, {vr(T+12,2)}")
        o.append(f"v_pk_add_f32 {vr(U,2)}, {vr(U,2)}, {vr(U+4,2)}")
    else:
        o.append(f"v_add_f32 v{U}, v{T}, v{T+2}"); o.append(f"v_add_f32 v{U+1}, v{T+1}, v{T+3}")
        for i in range(2, 7):
            o.append(f"v_add_f32 v{U}, v{U}, v{T+2*i}"); o.append(f"v_add_f32 v{U+1}, v{U+1}, v{T+2*i+1}")
    o += [f"v_mov_b32 v{vm}, v{U}", f"v_permlane32_swap_b32 v{vm}, v{U}", f"v_add_f32 v{vm}, v{vm}, v{U}"]
    o.append(f"v_mul_f32 v{U+2}, {fbits(1/14)}, v{vm}")
    o.append(f"v_mul_f32 v{vm}, {fbits(1/448)}, v{vm}")
    for i in range(7): o.append(f"v_sub_f32 v{T+2*i}, v{T+2*i}, v{U+2}")
    o += [f"v_mul_f32 v{U+3}, v{T}, v{T}", f"v_mul_f32 v{U+4}, v{T+2}, v{T+2}"]
    for i in range(2, 7): o.append(f"v_fmac_f32 v{U+3+(i&1)}, v{T+2*i}, v{T+2*i}")
    o.append(f"v_add_f32 v{U+3}, v{U+3}, v{U+4}")
    o.append(f"v_fmac_f32 v{U+1}, {fbits(1/32)}, v{U+3}")
    o += [f"v_mov_b32 v{vvar}, v{U+1}", f"v_permlane32_swap_b32 v{vvar}, v{U+1}", f"v_add_f32 v{vvar}, v{vvar}, v{U+1}"]
    o.append(f"v_mul_f32 v{vvar}, {fbits(1/448)}, v{vvar}")
    return o

def stats_publish(a, X, T, soff):
    for i in range(4): a(f"v_pk_add_f32 {vr(T+2*i,2)}, {vr(X+4*i,2)}, {vr(X+4*i+2,2)}")
    a(f"v_pk_add_f32 {vr(T,2)}, {vr(T,2)}, {vr(T+2,2)}")
    a(f"v_pk_add_f32 {vr(T+4,2)}, {vr(T+4,2)}, {vr(T+6,2)}")
    a(f"v_pk_add_f32 {vr(T,2)}, {vr(T,2)}, {vr(T+4,2)}")
    a(f"v_add_f32 v{T+16}, v{T}, v{T+1}")
    a.halfsum(f"v{T+16}", f"v{T+17}")
    a(f"v_mul_f32 v{T+18}, {fbits(-1/32)}, v{T+16}")
    for i in range(8): a(f"v_pk_add_f32 {vr(T+2*i,2)}, {vr(X+2*i,2)}, {vr(T+18,2)} op_sel_hi:[1,0]")
    a(f"v_pk_mul_f32 {vr(T+18,2)}, {vr(T,2)}, {vr(T,2)}")
    a(f"v_pk_mul_f32 {vr(T+20,2)}, {vr(T+2,2)}, {vr(T+2,2)}")
    for i in range(2, 8):
        d = T + 18 + 2 * (i & 1)
        a(f"v_pk_fma_f32 {vr(d,2)}, {vr(T+2*i,2)}, {vr(T+2*i,2)}, {vr(d,2)}")
    a(f"v_pk_add_f32 {vr(T+18,2)}, {vr(T+18,2)}, {vr(T+20,2)}")
    a(f"v_add_f32 v{T+17}, v{T+18}, v{T+19}")
    a.halfsum(f"v{T+17}", f"v{T+18}")
    a("s_mov_b32 exec_hi, 0")
    a.lstore([f"buffer_store_dwordx2 {vr(T+16,2)}, v{vL8}, {SWS}, {soff} offen"])
    a("s_mov_b64 exec, -1")

def a1_tr_setup(a, it):
    sh, delta = (9, 256) if it == 0 else (8, 512)
    a(f"""
    v_lshrrev_b32 v2, 2, v{vLANE}
    v_and_b32 v2, 3, v2
    v_lshrrev_b32 v3, 4, v{vLANE}
    v_and_b32 v3, 1, v3
    v_lshlrev_b32 v3, 2, v3
    v_and_b32 v10, 3, v{vLANE}
    v_add_u32 v3, v3, v10
    s_and_b32 {sT[0]}, {sH}, 1
    v_add_u32 v3, {sT[0]}, v3
    v_and_b32 v3, 7, v3
    v_lshlrev_b32 v3, 3, v3
    v_lshl_add_u32 v{TRA}, v2, 6, v3
    v_lshl_add_u32 v{TRA}, v{vHH}, {sh}, v{TRA}
    v_add_u32 v{TRA+1}, 0x10000, v{TRA}
    v_add_u32 v{TRA+2}, 0x20000, v{TRA}
    v_add_u32 v{TRA+3}, {delta}, v{TRA}
    v_add_u32 v{TRA+4}, {delta}, v{TRA+1}
    v_add_u32 v{TRA+5}, {delta}, v{TRA+2}
    s_lshl_b32 {sT[0]}, {sW}, 8
    s_add_u32 {sT[0]}, {sT[0]}, {RSL}
    v_lshlrev_b32 v11, 2, v{vLANE}
    v_add_u32 v11, {sT[0]}, v11
    v_lshlrev_b32 v{vRS}, 4, v{vHH}
    v_add_u32 v{vRS}, {sT[0]}, v{vRS}
    """)

def rowstats_ops():
    return [f"v_add_f32 v{vR}, {fbits(1e-5)}, v{vR}", f"v_rsq_f32 v{vR}, v{vR}", f"v_cmp_eq_u32 vcc, 0, v{vHH}",
            f"v_cndmask_b32 v3, v{vM}, v{vR}, vcc", f"ds_write_b32 v11, v3"]

def a1_rd(a, f, dst):
    ad = a1_lds(f); win, off = ad >> 16, ad & 0xffff
    a(f"ds_read_b64_tr_b16 {dst(0)}, v{TRA+win} offset:{off}")
    a(f"ds_read_b64_tr_b16 {dst(2)}, v{TRA+3+win} offset:{off}")

def a1_tail(a, it, tq0, pre_q=None, ex=None):
    ex = ex or []
    T1 = 208
    QLA = 5
    def qrd(t): a1_rd(a, 56 + t, lambda o, t=t: vr(WFR + 4 * (t & 7) + o, 2))
    a(f"""
    s_mov_b32 {sT[3]}, {fbits(1e-6)}
    s_mov_b32 {sT[4]}, {fbits(LOG2E)}
    v_mov_b32 v0, {fbits(1e-6)}
    v_lshlrev_b32 v11, 4, v{vHH}
    v_add_u32 v11, {CSL}, v11
    s_lshl_b32 {sT[5]}, {sRB}, 2
    s_add_u32 {sT[5]}, {sT[5]}, {sW}
    s_lshl_b32 {sT[5]}, {sT[5]}, 4
    s_add_u32 {sT[5]}, {sT[5]}, {sH}
    s_lshl_b32 {sT[5]}, {sT[5]}, 11
    s_add_u32 {sT[5]}, {sT[5]}, {sITO}
    """)
    if it == 1:
        for q in range(4): a(f"ds_read_b128 {vr(T1+4*q,4)}, v11 offset:{32*q}")
    for t in range(tq0, tq0 + QLA): qrd(t)
    for t in range(tq0, 28):
        if pre_q: pre_q(t)
        if it == 0 and OPT.get("sub") and t % 4 == 0: a.xstamp(52 + t // 4)
        if t + QLA < 28: qrd(t + QLA)
        a(f"s_waitcnt lgkmcnt({2*min(QLA, 27-t)})")
        a(f"{MF} {vr(ACQ,16)}, {vr(WFR+4*(t&7),4)}, {vr(XREG+4*t,4)}, {vr(ACQ,16) if t else '0'}")
    LA = 3
    def rd(t):
        for s_ in range(2):
            b = WFR + 8 * (t & 3) + 4 * s_
            a1_rd(a, 2 * t + s_, lambda o, b=b: vr(b + o, 2))
    if it == 0:
        a.loc_issue(228)
        a.xstamp(21)
        a("s_barrier")
        for k in range(3): a(f"ds_read_b128 {vr(T1+4*k,4)}, v1 offset:{512*k}")
        a(f"""
        s_waitcnt lgkmcnt(2)
        v_add_f32 v{T1}, v{T1}, v{T1+1}
        v_add_f32 v{T1+2}, v{T1+2}, v{T1+3}
        v_add_f32 v{T1}, v{T1}, v{T1+2}
        ds_write_b32 v10, v{T1}
        s_waitcnt lgkmcnt(1)
        v_add_f32 v{T1+4}, v{T1+4}, v{T1+5}
        v_add_f32 v{T1+6}, v{T1+6}, v{T1+7}
        v_add_f32 v{T1+8}, v{T1+8}, v{T1+9}
        v_add_f32 v{T1+10}, v{T1+10}, v{T1+11}
        v_add_f32 v{CSK}, v{T1+4}, v{T1+6}
        v_add_f32 v{CSV}, v{T1+8}, v{T1+10}
        s_waitcnt lgkmcnt(0)
        """)
        for q in range(4): a(f"ds_read_b128 {vr(T1+4*q,4)}, v11 offset:{32*q}")
    for t in range(16, 16 + LA): rd(t)
    va = []
    for r in range(16): va.append(f"v_fma_f32 v{ACQ+r}, -v{vM}, v{T1+r}, v{ACQ+r}")
    for r in range(16): va.append(f"v_fma_f32 v{ACQ+r}, v{ACQ+r}, v{vR}, v0")
    for r in range(16): va.append(f"v_mul_f32 v{T1+r}, {sT[4]}, v{ACQ+r}")
    for r in range(16):
        va.append(f"v_exp_f32_e64 v{T1+r}, v{T1+r} clamp")
        va.append(f"v_max_f32 v{ACQ+r}, {sT[3]}, v{ACQ+r}")
    for r in range(16): va.append(f"v_add_f32 v{ACQ+r}, v{ACQ+r}, v{T1+r}")
    for r in range(8): va.append(f"v_cvt_pk_bf16_f32 v{ACQ+r}, v{ACQ+2*r}, v{ACQ+2*r+1}")
    for t in range(16, 28):
        if t + LA < 28: rd(t + LA)
        a(f"s_waitcnt lgkmcnt({4*min(LA, 27-t)})")
        w = WFR + 8 * (t & 3)
        x = vr(XREG + 4 * t, 4)
        for acc, wo_ in ((ACK, 0), (ACV, 4)):
            a(f"{MF} {vr(acc,16)}, {x}, {vr(w+wo_,4)}, {vr(acc,16)}")
            for _ in range(5 if t >= 25 else 4):
                if va: a(va.pop(0))
        if ex: a(ex.pop(0))
    while va: a(va.pop(0))
    return ex

def w1_touch(r):
    return f"""s_lshl_b32 {sT[0]}, s2, 2
    s_add_u32 {sT[0]}, {sT[0]}, {sW}
    s_add_u32 {sT[0]}, {sT[0]}, {r*1024}
    s_mul_i32 {sT[1]}, {sT[0]}, 9363
    s_lshr_b32 {sT[1]}, {sT[1]}, 22
    s_mul_i32 {sT[2]}, {sT[1]}, 448
    s_sub_u32 {sT[0]}, {sT[0]}, {sT[2]}
    s_lshl_b32 {sT[0]}, {sT[0]}, 11
    s_lshl_b32 {sT[2]}, {sT[1]}, 1
    s_add_u32 {sT[15]}, {sT[2]}, 1
    s_sub_u32 {sT[2]}, {sT[2]}, 8
    s_cmp_lt_u32 {sT[1]}, 4
    s_cselect_b32 {sT[1]}, {sT[15]}, {sT[2]}
    s_mul_i32 {sT[1]}, {sT[1]}, {256*3584}
    s_add_u32 {sT[0]}, {sT[0]}, {sT[1]}
    buffer_load_dword v234, v{vKRS}, {SW1}, {sT[0]} offen"""

def code_warm(a, tag):
    L = a.label("CWM")
    a(f"""
    s_getpc_b64 s[76:77]
    {L}:
    s_sub_u32 s76, s76, {L}-{KNAME}
    s_subb_u32 s77, s77, 0
    s_lshr_b32 {sT[2]}, s2, 3
    s_lshl_b32 {sT[2]}, {sT[2]}, 2
    s_add_u32 {sT[2]}, {sT[2]}, {sW}
    s_mul_i32 {sT[2]}, {sT[2]}, 640
    v_min_u32 v2, 4, v{vLANE}
    v_lshlrev_b32 v2, 7, v2
    v_add_u32 v2, {sT[2]}, v2
    s_mov_b32 {sT[2]}, L_codeend-{KNAME}-4
    v_min_u32 v2, {sT[2]}, v2
    v_mov_b32 v3, s77
    v_add_co_u32 v2, vcc, s76, v2
    v_addc_co_u32 v3, vcc, 0, v3, vcc
    global_load_dword v{vMAX}, v[2:3], off
    """)

def a1_it0(a):
    L = a.label("A1f")
    XA, XV, DA = 224, 228, 230
    a(f"""
    v_lshrrev_b32 v2, 3, v{vLANE}
    v_mul_u32_u24 v2, 896, v2
    v_and_b32 v3, 7, v{vLANE}
    v_lshrrev_b32 v5, 4, v{vLANE}
    v_xor_b32 v3, v3, v5
    v_lshl_add_u32 v{XV}, v3, 4, v2
    v_xor_b32 v{XV+1}, 64, v{XV}
    s_lshl_b32 {sT[10]}, {sRB}, 2
    s_add_u32 {sT[10]}, {sT[10]}, {sW}
    s_mul_i32 {sT[10]}, {sT[10]}, {32*896}
    s_lshl_b32 {sLB}, {sWH}, 16
    s_lshl_b32 {sT[2]}, {sWL}, 14
    s_add_u32 {sLB}, {sLB}, {sT[2]}
    """)
    def xdma(j0, j1):
        return [f"s_add_u32 {sT[2]}, {sT[10]}, {aa*8*896 + j*128}\n s_add_u32 m0, {sLB}, {0x8000 + aa*4096 + (j-j0)*1024}\n buffer_load_dwordx4 v{XV + (aa&1)}, {SX}, {sT[2]} offen lds"
                for aa in range(4) for j in range(j0, j1)]
    for o in xdma(0, 4): a(o)
    a(f"""
    v_lshrrev_b32 v1, 2, v{vLANE}
    v_mul_u32_u24 v1, 2688, v1
    v_and_b32 v5, 3, v{vLANE}
    v_lshl_add_u32 v1, v5, 4, v1
    s_mul_i32 {sT[8]}, {sH}, 56
    s_and_b32 {sT[8]}, {sT[8]}, 0xfff0
    s_mul_i32 {sT[9]}, {sW}, {16*2688}
    s_add_u32 {sT[9]}, {sT[9]}, {sT[8]}
    s_mul_i32 {sT[2]}, {sWH}, {16*2688}
    s_add_u32 {sT[8]}, {sT[8]}, {sT[2]}
    s_mul_i32 {sT[2]}, {sWL}, 896
    s_add_u32 {sT[8]}, {sT[8]}, {sT[2]}
    s_lshl_b32 {sT[11]}, {sW}, 10
    """)
    a.xstamp(22)
    ncw = 0
    if OPT.get("cw", 1):
        code_warm(a, 0); ncw = 1
    for o in a1_wraw_ops(0, 32, 1, sT[8], sT[9], sT[11]): a(o)
    a.xstamp(23)
    a(f"""
    s_lshr_b32 {sT[12]}, 0xc1a3, {sH}
    s_and_b32 {sT[12]}, {sT[12]}, 1
    s_lshl_b32 {sT[0]}, 1, {sH}
    s_sub_u32 {sT[0]}, {sT[0]}, 1
    s_and_b32 {sT[0]}, {sT[0]}, 0xc1a3
    s_bcnt1_i32_b32 {sT[0]}, {sT[0]}
    s_lshl_b32 {sT[0]}, {sT[0]}, 4
    s_add_u32 {sT[0]}, {sT[0]}, {sRB}
    s_lshl_b32 {sT[0]}, {sT[0]}, 2
    s_add_u32 {sT[0]}, {sT[0]}, {sW}
    s_lshl_b32 {sT[14]}, {sT[0]}, 13
    s_cmp_ge_u32 {sT[14]}, {ST + 0x18000}
    s_cselect_b32 {sT[12]}, 0, {sT[12]}
    s_cmp_eq_u32 {sT[12]}, 0
    s_cselect_b32 {sT[14]}, 0x20000000, {sT[14]}
    v_mov_b32 v236, -1
    v_mov_b32 v237, -1
    v_mov_b32 v238, -1
    v_mov_b32 v239, -1
    """)
    fills = [f"buffer_store_dwordx4 v[236:239], v{vL16b if i&4 else vL16}, {SWS}, {sT[14]} offen offset:{(i&3)*1024} {SC}" for i in range(8)]
    late_setup(a)
    wo_setup(a)
    a1_tr_setup(a, 0)
    a(f"""
    v_lshrrev_b32 v2, 3, v{vL31}
    v_lshlrev_b32 v2, 12, v2
    v_and_b32 v3, 7, v{vL31}
    v_lshl_add_u32 v2, v3, 7, v2
    v_add_u32 v2, {sLB}, v2
    v_lshrrev_b32 v3, 1, v{vL31}
    v_and_b32 v3, 7, v3
    v_xor_b32 v3, v3, v{vHH}
    """)
    for q in range(4): a(f"v_xor_b32 v10, {2*q}, v3\n v_lshl_add_u32 v{XA+q}, v10, 4, v2")
    a(f"""
    v_mov_b32 v{DA}, 0
    v_mov_b32 v{DA+1}, 0
    v_mov_b32 v{DA+2}, 0
    v_mov_b32 v{DA+3}, 0
    v_mov_b32 v{CSK}, 0
    v_mov_b32 v{CSV}, 0
    v_mov_b32 v{vC}, 0x3f803f80
    v_lshlrev_b32 v235, 7, v{vLANE}
    v_min_u32 v{vKRS}, 0x780, v235
    s_lshr_b32 {sT[13]}, s2, 2
    s_lshl_b32 {sT[13]}, {sT[13]}, 13
    s_cmp_eq_u32 {sW}, 3
    s_cselect_b32 {sT[13]}, {sT[13]}, 0x1000000
    s_waitcnt vmcnt({8+ncw}) lgkmcnt(0)
    """)
    a.stamp("a1_xland")
    def xrd(t0, t1):
        for t in range(t0, t1):
            a(f"ds_read_b128 {vr(XREG+4*t,4)}, v{XA+(t&3)} offset:{0x8000 + ((t-t0)>>2)*1024}")
            if t - t0 == 11: a("s_waitcnt lgkmcnt(4)")
        a("s_waitcnt lgkmcnt(0)")
    def dots(i0, i1, vm, every):
        for i in range(i0, i1):
            if vm and (i - i0) % every == 0: a(vm.pop(0))
            a(f"v_dot2c_f32_bf16 v{DA+(i&1)}, v{XREG+i}, v{vC}")
            a(f"v_dot2c_f32_bf16 v{DA+2+(i&1)}, v{XREG+i}, v{XREG+i}")
        assert not vm
    xrd(0, 16)
    vm = fills + xdma(4, 7)
    wl = a1_wraw_ops(32, 84, 1, sT[8], sT[9], sT[11]) + [f"buffer_load_dword v234, v235, {SWO}, {sT[13]} offen"]
    a.xstamp(24)
    dots(0, 64, vm, 3)
    a.xstamp(25)
    a(f"""
    s_waitcnt vmcnt(12)
    s_barrier
    s_cmp_eq_u32 {sW}, 0
    s_cbranch_scc1 {L}_sg
    {L}_sgr:
    """)
    a.stubs += [l for l in f"""{L}_sg:
    s_lshl_b64 s[76:77], 1, {sXSH}
    s_and_b32 s77, s77, 0xffff
    s_or_b32 s77, s77, 0x10000
    s_and_b32 {sT[0]}, s2, 3
    s_lshl_b32 {sT[0]}, {sT[0]}, 6
    s_bfe_u32 {sT[1]}, s2, 0x10002
    s_lshl_b32 {sT[1]}, {sT[1]}, 3
    s_add_u32 {sT[0]}, {sT[0]}, {sT[1]}
    v_mov_b32 v2, s76
    v_mov_b32 v3, s77
    s_mov_b64 exec, 1
    buffer_atomic_add_x2 v[2:3], off, {SDBG}, {sT[0]} offset:16 sc1
    s_mov_b64 exec, -1
    s_branch {L}_sgr""".split("\n")]
    a.stamp("a1_main")
    LA = 3
    def rd(t):
        for s_ in range(2):
            b = WFR + 8 * (t & 3) + 4 * s_
            a1_rd(a, 2 * t + s_, lambda o, b=b: vr(b + o, 2))
    def cs(win, n):
        a(f"s_lshl_b32 {sT[0]}, {sW}, 11\n v_add_u32 v2, {sT[0]}, v{TRA+win}\n v_add_u32 v3, {sT[0]}, v{TRA+3+win}")
        regs = [16, 24, 208, 216]
        for i in range(n):
            for s_ in range(2):
                a(f"ds_read_b64_tr_b16 {vr(regs[i]+4*s_,2)}, v2 offset:{8192*i+1024*s_}")
                a(f"ds_read_b64_tr_b16 {vr(regs[i]+4*s_+2,2)}, v3 offset:{8192*i+1024*s_}")
        a("s_waitcnt lgkmcnt(0)")
        for i in range(n):
            for k in range(4):
                a(f"v_dot2c_f32_bf16 v{CSK}, v{regs[i]+k}, v{vC}")
                a(f"v_dot2c_f32_bf16 v{CSV}, v{regs[i]+4+k}, v{vC}")
    def loop(t0, t1):
        for t in range(t0, t0 + LA): rd(t)
        for t in range(t0, t1):
            if t + LA < t1: rd(t + LA)
            a(f"s_waitcnt lgkmcnt({4*min(LA, t1-1-t)})")
            w = WFR + 8 * (t & 3)
            x = vr(XREG + 4 * t, 4)
            c = lambda base: (vr(base, 16) if t else "0")
            a(f"{MF} {vr(ACK,16)}, {x}, {vr(w,4)}, {c(ACK)}")
            a(f"{MF} {vr(ACV,16)}, {x}, {vr(w+4,4)}, {c(ACV)}")
            if wl: a(wl.pop(0))
    loop(0, 16)
    assert not wl
    a.xstamp(26)
    a(w1_touch(0))
    cs(0, 4)
    a.xstamp(27)
    a("s_waitcnt vmcnt(15)")
    a.xstamp(28)
    xrd(16, 28)
    dots(64, 112, [], 1)
    a(f"v_add_f32 v{vM}, v{DA}, v{DA+1}\n v_add_f32 v{vR}, v{DA+2}, v{DA+3}")
    a.halfsum(f"v{vM}", f"v{DA}")
    a.halfsum(f"v{vR}", f"v{DA+1}")
    a(f"""
    v_mul_f32 v{vM}, {fbits(1/448)}, v{vM}
    v_mul_f32 v{vR}, {fbits(1/448)}, v{vR}
    v_fma_f32 v{vR}, -v{vM}, v{vM}, v{vR}
    v_max_f32 v{vR}, 0, v{vR}
    """)
    for o in rowstats_ops(): a(o)
    a.xstamp(29)
    a("s_waitcnt vmcnt(2)\n s_barrier")
    a.xstamp(30)
    cs(1, 3)
    a(f"""
    s_lshl_b32 {sT[0]}, {sW}, 10
    v_add_u32 v16, {sT[0]}, v{TRA+1}
    v_add_u32 v17, {sT[0]}, v{TRA+4}
    v_add_u32 v18, {sT[0]}, v{TRA+2}
    v_add_u32 v19, {sT[0]}, v{TRA+5}
    v_mov_b32 v20, 0
    """)
    for i in range(7):
        ad = a1_lds(56 + 4 * i); b = 16 if (ad >> 16) == 1 else 18
        a(f"ds_read_b64_tr_b16 {vr(WFR+4*i,2)}, v{b} offset:{ad & 0xffff}")
        a(f"ds_read_b64_tr_b16 {vr(WFR+4*i+2,2)}, v{b+1} offset:{ad & 0xffff}")
    a(f"""
    v_lshlrev_b32 v10, 2, v{vL31}
    v_add_u32 v10, {CSL}, v10
    s_waitcnt lgkmcnt(0)
    """)
    for j in range(28): a(f"v_dot2c_f32_bf16 v20, v{WFR+j}, v{vC}")
    a(f"""
    v_mov_b32 v21, v20
    v_mov_b32 v22, v{CSK}
    v_mov_b32 v23, v{CSV}
    v_permlane32_swap_b32 v20, v21
    v_permlane32_swap_b32 v{CSK}, v22
    v_permlane32_swap_b32 v{CSV}, v23
    v_add_f32 v20, v20, v21
    v_add_f32 v22, v{CSK}, v22
    v_add_f32 v23, v{CSV}, v23
    s_lshl_b32 {sT[0]}, {sW}, 2
    v_lshlrev_b32 v1, 4, v{vL31}
    v_add_u32 v1, 0x27800, v1
    v_add_u32 v21, {sT[0]}, v1
    ds_write_b32 v21, v20
    ds_write_b32 v21, v22 offset:512
    ds_write_b32 v21, v23 offset:1024
    """)
    a.xstamp(31)
    wq = (wo_ops() if OPT.get("wot", 1) else [""] * 15) + [w1_touch(1)] + [""] * 3 + [w1_touch(2)] + [""] * 3 + [w1_touch(3)]
    def pre_q(t):
        if t % 2 == 0 and wq: a(wq.pop(0))
    a1_tail(a, 0, 0, pre_q, wq)
    assert not wq
    a.xstamp(20)
    a(f"s_waitcnt vmcnt({4 if OPT.get('wot', 1) else 3})")
    a.loc_eval(228)

def a1_it1(a):
    LA = 2
    a1_tr_setup(a, 1)
    a(f"""
    s_lshl_b32 {sT[0]}, {sRB}, 2
    s_add_u32 {sT[0]}, {sT[0]}, {sW}
    s_mul_i32 {sAT[0]}, {sT[0]}, {28*1024}
    s_add_u32 {sAT[0]}, {sAT[0]}, {XF}
    s_add_u32 {sAT[1]}, {sAT[0]}, 0x2000
    s_add_u32 {sAT[2]}, {sAT[0]}, 0x4000
    s_add_u32 {sAT[3]}, {sAT[0]}, 0x6000
    s_mul_i32 {sT[8]}, {sT[0]}, 3584
    s_add_u32 {sT[8]}, {sT[8]}, {ST2}
    """)
    a.counter_issue(132, 1)
    def xload(t):
        a(f"buffer_load_dwordx4 {vr(XREG+4*t,4)}, v{vL16b if t&4 else vL16}, {SWS}, {sAT[t>>3]} offen offset:{(t&3)*1024} {SC}")
    def rd(t):
        for s_, f in enumerate((2 * t, 2 * t + 1, 56 + t)):
            b = WFR + 12 * (t % 3) + 4 * s_
            a1_rd(a, f, lambda o, b=b: vr(b + o, 2))
    stats_loads(a, sT[8], 32)
    a("s_waitcnt vmcnt(7)\n s_barrier")
    for t in range(LA): rd(t)
    a("s_waitcnt vmcnt(0)")
    a.check(range(32, 46), lambda: stats_loads(a, sT[8], 32), 0)
    NX = OPT.get("nx", 12)
    for t in range(NX): xload(t)
    a.nstamp -= 2
    a.stamp()
    for o in stats_math_ops(32, vM, vR, 16) + rowstats_ops(): a(o)
    a.counter_check(132, 32)
    a.stamp()
    if STAMPS: a.names = a.names[:-2]
    a("s_waitcnt lgkmcnt(0)")
    def xchk(t):
        if t % 4 == 0:
            hi = min(28, t + NX)
            n = hi - t - 4
            a(f"s_waitcnt vmcnt({n})")
            a.check(range(XREG + 4 * t, XREG + 4 * t + 16), lambda t=t, hi=hi: [xload(tt) for tt in range(t, hi)], n)
    assert NX >= 12
    for t in range(16):
        xchk(t)
        if t + LA < 16: rd(t + LA)
        a(f"s_waitcnt lgkmcnt({6*min(LA, 15-t)})")
        w = WFR + 12 * (t % 3)
        x = vr(XREG + 4 * t, 4)
        c = lambda base: (vr(base, 16) if t else "0")
        a(f"{MF} {vr(ACK,16)}, {x}, {vr(w,4)}, {c(ACK)}")
        if t + NX < 28: xload(t + NX)
        a(f"{MF} {vr(ACV,16)}, {x}, {vr(w+4,4)}, {c(ACV)}")
        a(f"{MF} {vr(ACQ,16)}, {vr(w+8,4)}, {x}, {c(ACQ)}")
    a.wo_rest = a1_tail(a, 1, 16, xchk, wo_ops()) if OPT.get("wot", 1) else (a1_tail(a, 1, 16, xchk, []) + wo_ops())

def phase_a1(a):
    L = a.label("A1")
    RR, MM, T0 = 176, 192, 208
    a(f"s_cmp_eq_u32 {sIT}, 0\n s_cbranch_scc0 {L}_it1")
    a1_it0(a)
    a(f"s_branch {L}_epi\n {L}_it1:")
    a1_it1(a)
    a(f"""
    {L}_epi:
    """)
    a.lstore([f"buffer_store_dwordx4 {vr(ACQ,4)}, v{vL16}, {SWS}, {sT[5]} offen", f"buffer_store_dwordx4 {vr(ACQ+4,4)}, v{vL16}, {SWS}, {sT[5]} offen offset:1024"])
    a("s_barrier")
    a.stamp("a1_epi")
    for q in range(4):
        a(f"ds_read_b128 {vr(MM+4*q,4)}, v{vRS} offset:{128+32*q}")
        a(f"ds_read_b128 {vr(RR+4*q,4)}, v{vRS} offset:{32*q}")
    a(f"""
    s_mov_b32 {sT[3]}, {fbits(1e-6)}
    v_mov_b32 v0, {fbits(1e-6)}
    v_mov_b32 v1, {fbits(LOG2E)}
    s_lshl_b32 {sT[0]}, {sW}, 12
    v_add_u32 v2, {sT[0]}, v{vL16}
    s_lshl_b32 {sT[5]}, {sW}, 10
    v_add_u32 v3, {sT[5]}, v{vL16}
    s_lshl_b32 {sT[6]}, {sH}, 4
    s_add_u32 {sT[6]}, {sT[6]}, {sRB}
    s_lshl_b32 {sT[6]}, {sT[6]}, 12
    s_add_u32 {sT[6]}, {sT[6]}, {sT[5]}
    s_add_u32 {sT[6]}, {sT[6]}, {sITO}
    s_add_u32 {sT[6]}, {sT[6]}, {KVP}
    s_waitcnt lgkmcnt(0)
    """)
    k0, v0 = ACK, ACV
    P = lambda b, r: vr(b + 2 * r, 2)
    CS = vr(CSK, 2)
    for r in range(8): a(f"v_pk_fma_f32 {P(k0,r)}, {P(MM,r)}, {CS}, {P(k0,r)} op_sel_hi:[1,0,1] neg_lo:[1,0,0] neg_hi:[1,0,0]")
    for r in range(8): a(f"v_pk_fma_f32 {P(k0,r)}, {P(k0,r)}, {P(RR,r)}, v[0:1] op_sel_hi:[1,1,0]")
    for r in range(8): a(f"v_pk_mul_f32 {P(T0,r)}, {P(k0,r)}, v[0:1] op_sel:[0,1] op_sel_hi:[1,1]")
    for r in range(8):
        a(f"v_exp_f32_e64 v{T0+2*r}, v{T0+2*r} clamp")
        a(f"v_max_f32 v{k0+2*r}, {sT[3]}, v{k0+2*r}")
        a(f"v_exp_f32_e64 v{T0+2*r+1}, v{T0+2*r+1} clamp")
        a(f"v_max_f32 v{k0+2*r+1}, {sT[3]}, v{k0+2*r+1}")
        a(f"v_pk_fma_f32 {P(v0,r)}, {P(MM,r)}, {CS}, {P(v0,r)} op_sel:[0,1,0] op_sel_hi:[1,1,1] neg_lo:[1,0,0] neg_hi:[1,0,0]")
    for r in range(8): a(f"v_pk_mul_f32 {P(v0,r)}, {P(v0,r)}, {P(RR,r)}")
    for r in range(8): a(f"v_pk_add_f32 {P(k0,r)}, {P(k0,r)}, {P(T0,r)}")
    for r in range(8): a(f"v_cvt_pk_bf16_f32 v{v0+r}, v{v0+2*r}, v{v0+2*r+1}")
    a("s_mov_b32 exec_lo, 0xf0000000\n s_mov_b32 exec_hi, 0xf0000000")
    for r in range(8): a(f"v_mov_b32 v{ACV+r}, 0x3f803f80")
    a("s_mov_b64 exec, -1")
    for r in range(8): a(f"v_cvt_pk_bf16_f32 v{k0+r}, v{k0+2*r}, v{k0+2*r+1}")
    KVA = 176
    a(f"{MF} {vr(KVA,16)}, {vr(ACK,4)}, {vr(ACV,4)}, 0")
    a(f"{MF} {vr(KVA,16)}, {vr(ACK+4,4)}, {vr(ACV+4,4)}, {vr(KVA,16)}")
    for q in range(4): a(f"ds_write_b128 v2, {vr(KVA+4*q,4)} offset:{KVL+1024*q}")
    a("s_waitcnt lgkmcnt(0)\n s_barrier")
    for w2 in range(4): a(f"ds_read_b128 {vr(192+4*w2,4)}, v3 offset:{KVL+4096*w2}")
    a(f"""
    s_waitcnt lgkmcnt(0)
    v_pk_add_f32 v[192:193], v[192:193], v[196:197]
    v_pk_add_f32 v[194:195], v[194:195], v[198:199]
    v_pk_add_f32 v[200:201], v[200:201], v[204:205]
    v_pk_add_f32 v[202:203], v[202:203], v[206:207]
    v_pk_add_f32 v[192:193], v[192:193], v[200:201]
    v_pk_add_f32 v[194:195], v[194:195], v[202:203]
    buffer_store_dwordx4 v[192:195], v{vL16}, {SWS}, {sT[6]} offen {SC}
    """)
    a.stamp("a1_kvp")

def helper_index(a):
    a(f"""
    s_and_b32 {sT[0]}, s2, 7
    s_lshl_b32 {sT[0]}, {sT[0]}, 2
    s_lshr_b32 {sT[1]}, s2, 3
    s_add_u32 {sT[0]}, {sT[0]}, {sT[1]}
    s_sub_u32 {sT[0]}, {sT[0]}, 28
    s_lshl_b32 {sT[0]}, {sT[0]}, 2
    s_add_u32 {sT[0]}, {sT[0]}, {sW}         ; hw 0..127
    """)

def kv_reduce(a):
    helper_index(a)
    a(f"""
    v_lshrrev_b32 v2, 4, v{vLANE}
    v_and_b32 v3, 15, v{vLANE}
    v_lshlrev_b32 v2, 12, v2
    v_lshl_add_u32 v2, v3, 4, v2
    s_lshr_b32 {sT[1]}, {sT[0]}, 3           ; h
    s_lshr_b32 {sT[3]}, {sT[0]}, 2
    s_and_b32 {sT[3]}, {sT[3]}, 1            ; t
    s_lshl_b32 {sT[6]}, {sT[1]}, 16
    s_lshl_b32 {sT[4]}, {sT[3]}, 11
    s_add_u32 {sT[6]}, {sT[6]}, {sT[4]}
    s_lshl_b32 {sT[4]}, {sW}, 8
    s_add_u32 {sT[6]}, {sT[6]}, {sT[4]}
    s_add_u32 {sT[6]}, {sT[6]}, {sITO}
    s_add_u32 {sT[6]}, {sT[6]}, {KVP}
    """)
    def rloads():
        for i in range(4):
            a(f"s_add_u32 {sT[2]}, {sT[6]}, {i*0x4000}")
            a(f"buffer_load_dwordx4 {vr(16+4*i,4)}, v2, {SWS}, {sT[2]} offen {SC}")
            a(f"buffer_load_dwordx4 {vr(32+4*i,4)}, v2, {SWS}, {sT[2]} offen offset:1024 {SC}")
    rloads()
    a(f"""
    s_lshl_b32 {sT[4]}, {sWL}, 4
    v_add_u32 v3, {sT[4]}, v3
    v_cmp_le_u32 vcc, 14, v3
    v_cndmask_b32 v4, 0, 1, vcc
    v_mul_u32_u24 v5, 14, v4
    v_sub_u32 v5, v3, v5
    v_cmp_le_u32 vcc, 28, v3
    v_and_b32 v6, 1, v3
    v_add_u32 v6, 14, v6
    v_cndmask_b32 v5, v5, v6, vcc
    v_bfe_u32 v6, v3, 1, 1
    v_cndmask_b32 v4, v4, v6, vcc
    v_and_b32 v6, 3, v5
    v_lshrrev_b32 v5, 2, v5
    v_lshl_add_u32 v6, v5, 3, v6
    v_lshl_add_u32 v6, v4, 2, v6
    v_lshlrev_b32 v6, 4, v6
    s_lshr_b32 {sT[7]}, {sT[0]}, 2
    s_lshl_b32 {sT[7]}, {sT[7]}, 10
    s_lshl_b32 {sT[4]}, {sWH}, 9
    s_add_u32 {sT[7]}, {sT[7]}, {sT[4]}
    s_add_u32 {sT[7]}, {sT[7]}, {sITO}
    s_add_u32 {sT[7]}, {sT[7]}, {KVF}
    s_and_b32 {sT[4]}, {sT[3]}, {sWH}
    s_cmp_eq_u32 {sT[4]}, 1
    s_cselect_b32 {sT[5]}, 0, -1
    s_waitcnt vmcnt(0)
    """)
    a.check(range(16, 48), rloads, 0)
    for b in (16, 32):
        a(f"""
        v_pk_add_f32 v[{b}:{b+1}], v[{b}:{b+1}], v[{b+4}:{b+5}]
        v_pk_add_f32 v[{b+2}:{b+3}], v[{b+2}:{b+3}], v[{b+6}:{b+7}]
        v_pk_add_f32 v[{b+8}:{b+9}], v[{b+8}:{b+9}], v[{b+12}:{b+13}]
        v_pk_add_f32 v[{b+10}:{b+11}], v[{b+10}:{b+11}], v[{b+14}:{b+15}]
        v_pk_add_f32 v[{b}:{b+1}], v[{b}:{b+1}], v[{b+8}:{b+9}]
        v_pk_add_f32 v[{b+2}:{b+3}], v[{b+2}:{b+3}], v[{b+10}:{b+11}]
        """)
    for b in (16, 32): a(f"v_permlane32_swap_b32 v{b}, v{b+2}\n v_permlane32_swap_b32 v{b+1}, v{b+3}")
    for b in (16, 32): a(f"v_pk_add_f32 v[{b}:{b+1}], v[{b}:{b+1}], v[{b+2}:{b+3}]")
    for b in (16, 32): a(f"v_permlane16_swap_b32 v{b}, v{b+1}")
    for b in (16, 32): a(f"v_add_f32 v{b}, v{b}, v{b+1}")
    for b in (16, 32): a(f"v_mov_b32 v{b+1}, v{b}")
    for b in (16, 32): a(f"v_permlane16_swap_b32 v{b}, v{b+1}")
    a(f"""
    v_cvt_pk_bf16_f32 v48, v16, v17
    v_cvt_pk_bf16_f32 v50, v32, v33
    v_and_b32 v50, {sT[5]}, v50
    v_mov_b32 v49, v48
    v_mov_b32 v51, v50
    v_permlane32_swap_b32 v48, v49
    v_permlane32_swap_b32 v50, v51
    s_mov_b64 exec, 0xffff
    buffer_store_dwordx4 v[48:51], v6, {SWS}, {sT[7]} offen {SC}
    s_mov_b64 exec, -1
    """)

RED = 0x20000
def red_addrs(a, base, partner_xor, v_own, v_par):
    a(f"""
    s_lshl_b32 {sT[0]}, {sW}, 12
    s_add_u32 {sT[0]}, {sT[0]}, {base}
    v_add_u32 v{v_own}, {sT[0]}, v{vL16}
    v_xor_b32 v{v_par}, {partner_xor*4096}, v{v_own}
    """)
def pair_reduce(a, acc0, acc1, v_own, v_par, after_barrier=None):
    for q in range(4): a(f"ds_write_b128 v{v_own}, {vr(acc1+4*q,4)} offset:{1024*q}")
    a("s_waitcnt lgkmcnt(0)\n s_barrier")
    for q in range(4): a(f"ds_read_b128 {vr(acc1+4*q,4)}, v{v_par} offset:{1024*q}")
    if after_barrier: after_barrier()
    for q in range(4):
        a(f"s_waitcnt lgkmcnt({3-q})")
        for r in range(2): a(f"v_pk_add_f32 {vr(acc0+4*q+2*r,2)}, {vr(acc0+4*q+2*r,2)}, {vr(acc1+4*q+2*r,2)}")

def helper_work(a):
    L = a.label("HW")
    a(f"""
    v_lshrrev_b32 v4, 2, v{vLANE}
    v_mul_u32_u24 v4, 2688, v4
    v_and_b32 v5, 3, v{vLANE}
    v_lshl_add_u32 v4, v5, 4, v4
    v_mov_b32 v8, -1
    v_mov_b32 v9, -1
    v_mov_b32 v10, -1
    v_mov_b32 v11, -1
    v_lshlrev_b32 v6, 7, v{vLANE}
    """)
    def warm(srd, lo, hi):
        if not OPT.get("warm", 1): return
        LL = a.label("HWW")
        a(f"""
        s_lshl_b32 {sT[1]}, {sT[0]}, 13
        s_add_u32 {sT[1]}, {sT[1]}, {lo}
        {LL}:
        buffer_load_dword v7, v6, {srd}, {sT[1]} offen
        s_add_u32 {sT[1]}, {sT[1]}, {128*8192}
        s_cmp_lt_u32 {sT[1]}, {hi}
        s_cbranch_scc1 {LL}
        """)
    def fill(lo, hi):
        LL = a.label("HWF")
        a(f"""
        s_lshl_b32 {sT[1]}, {sT[0]}, 10
        s_add_u32 {sT[1]}, {sT[1]}, {lo}
        {LL}:
        buffer_store_dwordx4 v[8:11], v{vL16}, {SWS}, {sT[1]} offen {SC}
        s_add_u32 {sT[1]}, {sT[1]}, {128*1024}
        s_cmp_lt_u32 {sT[1]}, {hi}
        s_cbranch_scc1 {LL}
        """)
    def signal(off):
        LL = a.label("HWS")
        a(f"""
        s_waitcnt vmcnt(0)
        s_barrier
        s_cmp_lg_u32 {sW}, 0
        s_cbranch_scc1 {LL}
        v_mov_b32 v2, 1
        v_mov_b32 v3, {off}
        s_mov_b64 exec, 1
        buffer_atomic_add v2, v3, {SDBG}, 0 offen sc1
        s_mov_b64 exec, -1
        {LL}:
        """)
    fill(ST, UF)
    signal(196)
    fill(UF, ITB)
    signal(4)
    warm(SW2, 0, F * S * 2)
    for i in range(11):
        a(f"""
        s_add_u32 {sT[1]}, {sT[0]}, {128*i}
        s_min_u32 {sT[1]}, {sT[1]}, 1343
        s_mul_i32 {sT[2]}, {sT[1]}, 3121
        s_lshr_b32 {sT[2]}, {sT[2]}, 18
        s_mul_i32 {sT[3]}, {sT[2]}, 84
        s_sub_u32 {sT[3]}, {sT[1]}, {sT[3]}
        s_mul_i32 {sT[2]}, {sT[2]}, 56
        s_and_b32 {sT[2]}, {sT[2]}, 0xfff0
        s_lshr_b32 {sT[4]}, {sT[3]}, 1
        s_and_b32 {sT[5]}, {sT[3]}, 1
        s_add_u32 {sT[5]}, {sT[5]}, 1
        s_sub_u32 {sT[6]}, {sT[3]}, 56
        s_cmp_lt_u32 {sT[3]}, 56
        s_cselect_b32 {sT[4]}, {sT[4]}, {sT[6]}
        s_cselect_b32 {sT[5]}, {sT[5]}, 0
        s_mul_i32 {sT[4]}, {sT[4]}, {16*2688}
        s_mul_i32 {sT[5]}, {sT[5]}, 896
        s_add_u32 {sT[2]}, {sT[2]}, {sT[4]}
        s_add_u32 {sT[2]}, {sT[2]}, {sT[5]}
        buffer_load_dwordx4 {vr(16+4*i,4)}, v4, {SWQKV}, {sT[2]} offen
        """)
    a("s_waitcnt vmcnt(0)")
    for i in range(11):
        a(f"""
        s_add_u32 {sT[1]}, {sT[0]}, {128*i}
        s_min_u32 {sT[1]}, {sT[1]}, 1343
        s_lshl_b32 {sT[2]}, {sT[1]}, 10
        s_add_u32 {sT[2]}, {sT[2]}, {WQP}
        buffer_store_dwordx4 {vr(16+4*i,4)}, v{vL16}, {SWS}, {sT[2]} offen {SC}
        """)
    fill(XF, FILL_END)
    signal(68)
    fill(ITB, XF)
    signal(132)
    a.counter_wait(68, 1, 32, 2)
    a("s_barrier")
    a1_wpk_setup(a)
    for o in a1_wpk_own_ops() + a1_wpk_hi_ops(): a(o)

def phase_a2(a):
    L = a.label("A2")
    PQR, KVR, WB = 64, 128, 192
    AC0, AC1 = 16, 32
    a(f"""
    s_lshl_b32 {sT[5]}, {sST}, 1
    s_add_u32 {sT[5]}, {sT[5]}, {sWL}
    s_lshl_b32 {sAT[0]}, {sT[5]}, 15
    s_lshl_b32 {sT[1]}, {sWH}, 14
    s_add_u32 {sAT[0]}, {sAT[0]}, {sT[1]}
    s_add_u32 {sAT[0]}, {sAT[0]}, {sITO}
    s_add_u32 {sAT[1]}, {sAT[0]}, 0x2000
    s_add_u32 {sAT[2]}, {sT[1]}, {sITO}
    s_add_u32 {sAT[2]}, {sAT[2]}, {KVF}
    s_add_u32 {sAT[3]}, {sAT[2]}, 0x2000
    """)
    def pq_loads():
        for i in range(16):
            a(f"buffer_load_dwordx4 {vr(PQR+4*i,4)}, v{vL16b if i&4 else vL16}, {SWS}, {sAT[i>>3]} offen offset:{(i&3)*1024} {SC}")
    def kv_loads(i0=0):
        for i in range(i0, 16):
            a(f"buffer_load_dwordx4 {vr(KVR+4*i,4)}, v{vL16b if i&4 else vL16}, {SWS}, {sAT[2+(i>>3)]} offen offset:{(i&3)*1024} {SC}")
    a(f"""
    s_cmp_eq_u32 {sIT}, 0
    s_cbranch_scc0 {L}_nm
    v_mul_u32_u24 v2, 896, v{vL31}
    v_lshl_add_u32 v2, v{vHH}, 3, v2
    s_mul_i32 {sT[0]}, {sT[5]}, {32*896}
    s_lshl_b32 {sT[1]}, {sDT}, 7
    s_add_u32 {sT[0]}, {sT[0]}, {sT[1]}
    s_lshl_b32 {sT[1]}, {sWH}, 6
    s_add_u32 {sT[0]}, {sT[0]}, {sT[1]}
    """)
    for q in range(4): a(f"buffer_load_dwordx2 {vr(48+2*q,2)}, v2, {SX}, {sT[0]} offen offset:{16*q}")
    wtile_tr_addr(a, 14, 8, sWH, sLB)
    def stage(ks0):
        for t in range(8):
            for i in range(2):
                for u in range(2):
                    a(f"ds_read_b64_tr_b16 {ar(aW1 + 8*(ks0-16+t) + 4*i + 2*u, 2)}, v{14+i} offset:{t*2048 + 4*u*128}")
        a("s_waitcnt lgkmcnt(0)")
    a(f"""
    {L}_nm:
    v_lshrrev_b32 v2, 1, v{vLANE}
    v_lshlrev_b32 v2, 9, v2
    v_and_b32 v3, 1, v{vLANE}
    v_mul_u32_u24 v3, 96, v3
    v_add_u32 v11, v2, v3
    """)
    def pqp():
        pq_loads()
    a(f"v_min_u32 v4, 15, v{vLANE}\n v_lshlrev_b32 v4, 10, v4\n v_add_u32 v4, 1020, v4")
    a.probe(4, sAT[0], 5, 1)
    if not OPT.get('sub'): a.xstamp(55)
    pqp()
    for o in a.wo_rest: a(o)
    a(f"s_cmp_eq_u32 {sIT}, 0\n s_cbranch_scc1 {L}_s1\n {L}_s1r:")
    main = a.lines; a.lines = a.stubs
    a(f"{L}_s1:\n s_barrier")
    for o in big_dma_ops(1, 16, 8, 0): a(o)
    a(f"s_branch {L}_s1r")
    a.lines = main
    if not OPT.get('sub'): a.xstamp(56)
    a(f"s_lshl_b32 {sT[0]}, {sWH}, 16\n s_add_u32 {sT[0]}, {sT[0]}, 0x8000")
    wtile_tr_addr(a, 6, 14, sWH, sT[0])
    red_addrs(a, RED, 2, 8, 9)
    for r in range(16): a(f"v_mov_b32 v{AC0+r}, v{RES+r}")
    a(f"""
    s_mul_i32 {sT[8]}, {sT[5]}, 3584
    s_add_u32 {sT[8]}, {sT[8]}, {sITO}
    s_add_u32 {sT[8]}, {sT[8]}, {ST}
    s_lshl_b32 {sT[1]}, {sDT}, 1
    s_add_u32 {sT[1]}, {sT[1]}, {sWH}
    s_lshl_b32 {sT[9]}, {sT[1]}, 8
    s_add_u32 {sT[9]}, {sT[9]}, {sT[8]}
    s_lshl_b32 {sT[12]}, {sT[1]}, 17
    s_lshl_b32 {sT[0]}, {sT[5]}, 11
    s_add_u32 {sT[12]}, {sT[12]}, {sT[0]}
    s_add_u32 {sT[12]}, {sT[12]}, {sITO}
    s_add_u32 {sT[12]}, {sT[12]}, {HF}
    """)
    if not OPT.get('sub'): a.xstamp(57)
    a(f"""
    s_waitcnt vmcnt(0)
    """)
    if not OPT.get('sub'): a.xstamp(58)
    a(f"""
    s_cmp_eq_u32 {sIT}, 0
    s_cbranch_scc0 {L}_nu
    """)
    for q in range(8): a(f"v_lshlrev_b32 v{AC0+2*q}, 16, v{48+q}\n v_and_b32 v{AC0+2*q+1}, 0xffff0000, v{48+q}")
    stage(16)
    for o in big_dma_ops(1, 24, 8, 0): a(o)
    a(f"{L}_nu:")
    a.check(range(PQR, PQR + 64), lambda: (a("s_sleep 8"), pqp()), 0)
    a.stamp("a2_pq")
    a(f"s_cmp_eq_u32 {sWL}, 0\n s_cbranch_scc0 {L}_npb")
    a.probe(11, sAT[2], 12, 1, sleep=OPT.get("kvsl", 6))
    a(f"{L}_npb:")
    if not OPT.get('sub'): a.xstamp(59)
    a("s_barrier")
    NB = [48, RES]
    def num_ops(hd):
        n = NB[hd & 1]
        return [f"{MF} {vr(n,16)}, {vr(KVR+8*hd,4)}, {vr(PQR+8*hd,4)}, 0",
                f"{MF} {vr(n,16)}, {vr(KVR+8*hd+4,4)}, {vr(PQR+8*hd+4,4)}, {vr(n,16)}"]
    p1 = big_dma_ops(1, 0, 8, 0)
    nd = [0]; ndc = [0]
    def kvchk(hd):
        a(f"s_waitcnt vmcnt({14-2*hd+nd[0]})")
        a.check(range(KVR + 8 * hd, KVR + 8 * hd + 8), lambda hd=hd: kv_loads(2 * hd), 0)
    def wrd(hd):
        for t in range(2):
            for nb in range(2):
                b = WB + 16 * (hd & 1) + 4 * (2 * t + nb)
                for u in range(2):
                    a(f"ds_read_b64_tr_b16 {vr(b+2*u,2)}, v{6+nb} offset:{(28*hd+8*t+4*u)*128}")
    def div_ops(hd):
        n = NB[hd & 1]
        ops = [f"v_add_f32 v10, {fbits(1e-6)}, v{n+15}", "v_rcp_f32 v10, v10"]
        for r in range(14): ops.append(f"v_mul_f32 v{n+r}, v{n+r}, v10")
        for r in range(7): ops.append(f"v_cvt_pk_bf16_f32 v{n+r}, v{n+2*r}, v{n+2*r+1}")
        ops.append(f"v_mov_b32 v{n+7}, 0")
        return ops
    def out_ops(hd):
        ops = []
        for t in range(2):
            for nb in range(2):
                acc = (AC0, AC1)[nb]
                c = vr(acc, 16) if (hd or t or nb == 0) else "0"
                ops.append(f"{MF} {vr(acc,16)}, {vr(WB+16*(hd&1)+4*(2*t+nb),4)}, {vr(NB[hd&1]+4*t,4)}, {c}")
        return ops
    kv_loads()
    a(f"s_cmp_eq_u32 {sIT}, 0\n s_cbranch_scc1 {L}_s2\n {L}_s2r:")
    main = a.lines; a.lines = a.stubs
    a(f"{L}_s2:\n s_waitcnt vmcnt(16)")
    stage(24)
    a(f"s_branch {L}_s2r")
    a.lines = main
    wrd(0)
    kvchk(0)
    for o in num_ops(0): a(o)
    a.stamp("a2_kv")
    kvchk(1)
    for o in num_ops(1): a(o)
    for o in div_ops(0): a(o)
    for hd in range(8):
        if hd + 1 < 8: wrd(hd + 1)
        a(f"s_waitcnt lgkmcnt({8 if hd + 1 < 8 else 0})")
        va = div_ops(hd + 1) if hd + 1 < 8 else []
        for j, o in enumerate(out_ops(hd)):
            a(o)
            if j & 1 and p1:
                a(p1.pop(0)); nd[0] += 1
            for _ in range(6):
                if va: a(va.pop(0))
        while va: a(va.pop(0))
        if hd + 2 < 8:
            kvchk(hd + 2)
            for o in num_ops(hd + 2): a(o)
        if hd == 2:
            a.counter_issue(196, 1); nd[0] += 1; ndc[0] = nd[0]
    assert not p1
    a.stamp("a2_mm")
    pair_reduce(a, AC0, AC1, 8, 9)
    a(f"s_waitcnt vmcnt({nd[0] - ndc[0]})")
    a.counter_check(196, 32)
    stats_publish(a, AC0, 64, sT[9])
    p2 = big_dma_ops(1, 8, 8, 0x8000)
    n2 = OPT.get("p2a", 8)
    for o in p2[:n2]: a(o)
    stats_loads(a, sT[8], 96)
    for r in range(16): a(f"v_mov_b32 v{RES+r}, v{AC0+r}")
    TW = 128
    a(f"""
    s_lshl_b32 {sT[0]}, {sW}, 11
    s_add_u32 {sT[0]}, {sT[0]}, 0x24000
    v_lshrrev_b32 v2, 1, v{vL31}
    v_and_b32 v2, 7, v2
    v_xor_b32 v2, v2, v{vHH}
    v_lshlrev_b32 v3, 6, v{vL31}
    v_add_u32 v3, {sT[0]}, v3
    """)
    for q in range(4): a(f"v_xor_b32 v4, {2*q}, v2\n v_lshl_add_u32 v{TW+q}, v4, 3, v3")
    a(f"""
    v_lshrrev_b32 v2, 2, v{vLANE}
    v_and_b32 v2, 3, v2
    v_lshl_add_u32 v2, v{vHH}, 3, v2
    v_lshrrev_b32 v3, 4, v{vLANE}
    v_and_b32 v3, 1, v3
    v_lshlrev_b32 v3, 2, v3
    v_and_b32 v4, 3, v{vLANE}
    v_add_u32 v3, v3, v4
    v_lshrrev_b32 v4, 1, v2
    v_xor_b32 v3, v3, v4
    v_lshlrev_b32 v2, 6, v2
    v_add_u32 v2, {sT[0]}, v2
    v_lshl_add_u32 v{TW+4}, v3, 3, v2
    v_xor_b32 v3, 2, v3
    v_lshl_add_u32 v{TW+5}, v3, 3, v2
    s_waitcnt vmcnt(0)
    """)
    a.check(range(96, 110), lambda: stats_loads(a, sT[8], 96), 0)
    a.stamp("a2_st")
    for o in stats_math_ops(96, 80, 82, 112): a(o)
    a(f"""
    v_add_f32 v84, {fbits(1e-5)}, v82
    v_rsq_f32 v84, v84
    v_mov_b32 v86, {fbits(1e-5)}
    v_mul_f32 v85, v82, v84
    v_fmac_f32 v86, v85, v84
    v_rsq_f32 v86, v86
    v_mul_f32 v84, v84, v86
    v_mul_f32 v86, -v80, v84
    """)
    for r in range(8): a(f"v_pk_fma_f32 {vr(32+2*r,2)}, {vr(AC0+2*r,2)}, v[84:85], v[86:87] op_sel_hi:[1,0,0]")
    for r in range(8): a(f"v_cvt_pk_bf16_f32 v{112+r}, v{32+2*r}, v{32+2*r+1}")
    for q in range(4): a(f"ds_write_b64 v{TW+q}, {vr(112+2*q,2)}")
    a(f"""
    ds_read_b64_tr_b16 v[120:121], v{TW+4}
    ds_read_b64_tr_b16 v[122:123], v{TW+5} offset:256
    ds_read_b64_tr_b16 v[124:125], v{TW+4} offset:1024
    ds_read_b64_tr_b16 v[126:127], v{TW+5} offset:1280
    s_waitcnt lgkmcnt(2)
    buffer_store_dwordx4 v[120:123], v{vL16}, {SWS}, {sT[12]} offen {SC}
    s_waitcnt lgkmcnt(0)
    buffer_store_dwordx4 v[124:127], v{vL16}, {SWS}, {sT[12]} offen offset:1024 {SC}
    s_barrier
    """)
    a.p2rest = p2[n2:]

ACC, WBF, WIN = 8, 72, 96
def ringoff(t): return ((t & 15) >> 3) * 0x8000 + (t & 7) * 2048
vTR, vPB = 6, 4
def gemm4(a, which, it, init):
    nks, nL, urows, w_is_a, aW = (32, 16, 4, True, aW1) if which == 1 else (28, 12, 8, False, aW2)
    NW, LA, R = OPT.get('nw', 8), 2, 4
    def rel(i, j): return 2 * i + j if which == 1 else i + 2 * j
    def areg(t, j): return WIN + 4 * ((2 * t + j) % 32)
    def act_load(t):
        for j in range(2):
            a(f"buffer_load_dwordx4 {vr(areg(t,j),4)}, v{vL16b if t&4 else vL16}, {SWS}, {sAT[4*j+(t>>3)]} offen offset:{(t&3)*1024} {SC}")
    def wreg(t, i, o=0, n=4):
        if t < nL: return vr(WBF + 8 * (t % 3) + 4 * i + o, n)
        return ar(aW + 8 * (t - nL) + 4 * i + o, n)
    def ldsoff(t): return ringoff(t)
    def rd(t):
        for i in range(2):
            for u in range(2):
                a(f"ds_read_b64_tr_b16 {wreg(t,i,2*u,2)}, v{vTR+i} offset:{ldsoff(t) + urows*u*128}")
    nrd = nks if it == 0 else nL
    sched = {}
    later = []
    def put(t, ops, tag):
        if t < nks - R: sched.setdefault(t, []).extend((o, tag) for o in ops)
        else: later.extend(ops)
    if it == 0:
        for k in range(16, nks): put(k - 15, big_dma_ops(which, k, 1, ringoff(k)), ("w", k))
        if which == 1:
            for p in range(12): put(OPT.get('w2t0', 24) + p, big_dma_ops(2, p, 1, ringoff(p)), ("x", 0))
        else:
            own = a1_wpk_own_ops()
            for p in range(8): put(OPT.get('wqt', 20) + p, own[2 * p:2 * p + 2], ("x", 0))
            later.extend(a1_wpk_hi_ops())
    elif which == 1:
        for p in range(12): put(OPT.get('w2t', 24) + p, big_dma_ops(2, p, 1, ringoff(p)), ("x", 0))
    q = []
    for t in range(NW):
        act_load(t); q += [("a", t)] * 2
    init()
    def cnt(item):
        idx = max(i for i, x in enumerate(q) if x == item)
        return min(len(q) - 1 - idx, 63)
    dma_seen = [False]
    lq = []
    for t in range(LA): lq.append(t)
    def check_grp(t, n):
        c = cnt(("a", t + n - 1))
        a(f"s_waitcnt vmcnt({c})")
        hi = max(x[1] for x in q if x[0] == "a") + 1
        regs = [areg(tt, j) + k for tt in range(t, t + n) for j in range(2) for k in range(4)]
        a.check(regs, lambda t=t, hi=hi: [act_load(tt) for tt in range(t, hi)], c if not dma_seen[0] else 0)
    def mfma(t, i, j):
        acc = ACC + 16 * rel(i, j)
        c_ = vr(acc, 16) if (t or rel(i, j) == 0) else "0"
        x = vr(areg(t, j), 4)
        return f"{MF} {vr(acc,16)}, {wreg(t,i)}, {x}, {c_}" if w_is_a else f"{MF} {vr(acc,16)}, {x}, {wreg(t,i)}, {c_}"
    def issue_rd(t):
        if t < nrd:
            if it == 0 and t >= 16:
                assert q.count(("w", t)) == 2
                a(f"s_waitcnt vmcnt({cnt(('w', t))})")
            rd(t); lq.append(t)
    def wait_rd(t):
        if t < nrd:
            n = len([x for x in lq if x > t])
            a(f"s_waitcnt lgkmcnt({4*n})")
    for t in range(nks - R):
        if t % 2 == 0:
            check_grp(t, 2)
            if t == 0: a.stamp("acq")
        issue_rd(t + LA)
        wait_rd(t)
        ex = list(sched.get(t, []))
        for (i, j) in ((0, 0), (1, 0), (0, 1), (1, 1)):
            a(mfma(t, i, j))
            if ex:
                o, tag = ex.pop(0)
                a(o); q.append(tag); dma_seen[0] = True
        assert not ex
        if t + NW < nks:
            act_load(t + NW); q += [("a", t + NW)] * 2
    assert all(k < nks - R for k in sched), sorted(sched)
    t0 = nks - R
    for t in range(t0 + LA, nks): issue_rd(t)
    check_grp(t0, R)
    if nrd == nks: a("s_waitcnt lgkmcnt(0)")
    wofs = {1: 0xA000, 2: 0xB000}
    def wr(r_):
        for k in range(4):
            if r_ == 3 and which == 1: a(f"ds_write_b128 v1, {vr(ACC+16*r_+4*k,4)} offset:{1024*k}")
            else: a(f"ds_write_b128 v0, {vr(ACC+16*r_+4*k,4)} offset:{wofs.get(r_, 0x9000)+1024*k}")
    order = sorted([(i, j) for i in range(2) for j in range(2)], key=lambda x: -rel(*x))
    addr_ops = [f"v_add_u32 v0, {sLB}, v{vL16}", f"v_xor_b32 v2, 0x4000, v0", f"v_xor_b32 v3, 0x10000, v0"]
    if which == 1:
        addr_ops += [f"s_lshl_b32 {sT[0]}, {sW}, 12", f"s_add_u32 {sT[0]}, {sT[0]}, 0x20000", f"v_add_u32 v1, {sT[0]}, v{vL16}", f"v_xor_b32 v5, 0x3000, v1"]
    else:
        addr_ops += [f"v_xor_b32 v5, 0x14000, v0"]
    for n_, (i, j) in enumerate(order):
        for t in range(t0, nks):
            a(mfma(t, i, j))
            for _ in range(2):
                if addr_ops: a(addr_ops.pop(0))
        if n_ >= 1: wr(rel(*order[n_ - 1]))
    a.stamp("mm")
    a("s_waitcnt lgkmcnt(0)\n s_barrier")
    for r_, va, of in ((1, 2, 0xA000), (2, 3, 0xB000), (3, 5, 0 if which == 1 else 0x9000)):
        for k in range(4): a(f"ds_read_b128 {vr(ACC+16*r_+4*k,4)}, v{va} offset:{of+1024*k}")
    return later

def red_finish(a):
    for r_ in range(1, 4):
        a(f"s_waitcnt lgkmcnt({4*(3-r_)})")
        for k in range(8): a(f"v_pk_add_f32 {vr(ACC+2*k,2)}, {vr(ACC+2*k,2)}, {vr(ACC+16*r_+2*k,2)}")

def act_tables(a, s_abs, slice_stride, s_keep, nks):
    a(f"""
    s_mul_i32 {sT[0]}, {s_keep}, {slice_stride}
    s_add_u32 {sAT[0]}, {s_abs}, {sT[0]}
    s_sub_u32 {sT[0]}, {slice_stride}, {sT[0]}
    s_add_u32 {sAT[4]}, {s_abs}, {sT[0]}
    """)
    for k in range(1, 4):
        a(f"s_add_u32 {sAT[k]}, {sAT[0]}, {k*0x2000}\n s_add_u32 {sAT[4+k]}, {sAT[4]}, {k*0x2000}")
    a(f"""
    v_min_u32 v{vPB}, {nks-1}, v{vL31}
    v_lshlrev_b32 v{vPB}, 10, v{vPB}
    v_mul_u32_u24 v2, {slice_stride}, v{vHH}
    v_add3_u32 v{vPB}, v{vPB}, v2, 60
    v_add_u32 v{vPB}, 960, v{vPB}
    """)

def first_rd(a, which):
    urows = 4 if which == 1 else 8
    for t in range(2):
        for i in range(2):
            for u in range(2):
                a(f"ds_read_b64_tr_b16 {vr(WBF+8*t+4*i+2*u,2)}, v{vTR+i} offset:{t*2048 + urows*u*128}")

def two_its(a, L, body):
    n0 = a.nstamp; names0 = list(getattr(a, "names", []))
    a(f"s_cmp_eq_u32 {sIT}, 0\n s_cbranch_scc0 {L}_i1")
    r0 = body(0)
    a(f"s_branch {L}_j\n {L}_i1:")
    a.nstamp = n0
    if STAMPS: a.names = names0
    r1 = body(1)
    a(f"{L}_j:")
    return r0, r1

def phase_b1(a):
    L = a.label("B1")
    for o in a.p2rest: a(o)
    a.counter_issue(4, 1)
    a(f"""
    v_lshlrev_b32 v3, 3, v{vHH}
    s_lshl_b32 {sT[0]}, {sFT}, 7
    s_lshl_b32 {sT[1]}, {sWH}, 6
    s_add_u32 {sT[0]}, {sT[0]}, {sT[1]}
    """)
    for q in range(4): a(f"buffer_load_dwordx2 {vr(24+2*q,2)}, v3, {SB1}, {sT[0]} offen offset:{16*q}")
    a(f"""
    s_lshl_b32 {sT[6]}, {sDT1}, 18
    s_lshl_b32 {sT[3]}, {sW}, 15
    s_add_u32 {sT[6]}, {sT[6]}, {sT[3]}
    s_add_u32 {sT[6]}, {sT[6]}, {sITO}
    s_add_u32 {sT[6]}, {sT[6]}, {HF}
    """)
    act_tables(a, sT[6], 128 * 1024, sWL, 32)
    wtile_tr_addr(a, vTR, 8, sWH, sLB)
    a(f"""
    s_lshl_b32 {sT[5]}, {sDT1}, 1
    s_add_u32 {sT[5]}, {sT[5]}, {sWL}
    s_mul_i32 {sT[7]}, {sT[5]}, {112*1024}
    s_lshl_b32 {sT[1]}, {sFT}, 12
    s_add_u32 {sT[7]}, {sT[7]}, {sT[1]}
    s_lshl_b32 {sT[1]}, {sWH}, 11
    s_add_u32 {sT[7]}, {sT[7]}, {sT[1]}
    s_add_u32 {sT[7]}, {sT[7]}, {sITO}
    s_add_u32 {sT[7]}, {sT[7]}, {UF}
    """)
    first_rd(a, 1)
    a.probe(vPB, sT[6], 5, 1)
    a.stamp("probe")
    def init():
        for q in range(8): a(f"v_lshlrev_b32 v{ACC+2*q}, 16, v{24+q}\n v_and_b32 v{ACC+2*q+1}, 0xffff0000, v{24+q}")
    later = gemm4(a, 1, 1, init)
    a.counter_check(4, 32)
    c0 = -2 * 0.7978845608028654 * LOG2E
    c1 = c0 * 0.044715
    a(f"v_mov_b32 v0, {fbits(c1)}\n v_mov_b32 v1, {fbits(c0)}")
    red_finish(a)
    U, T = ACC, 96
    for r in range(8): a(f"v_pk_mul_f32 {vr(T+2*r,2)}, {vr(U+2*r,2)}, {vr(U+2*r,2)}")
    for r in range(8): a(f"v_pk_fma_f32 {vr(T+2*r,2)}, {vr(T+2*r,2)}, v[0:1], v[0:1] op_sel:[0,0,1] op_sel_hi:[1,0,1]")
    for r in range(8): a(f"v_pk_mul_f32 {vr(T+2*r,2)}, {vr(T+2*r,2)}, {vr(U+2*r,2)}")
    for r in range(16): a(f"v_exp_f32 v{T+r}, v{T+r}")
    for r in range(8): a(f"v_pk_add_f32 {vr(T+2*r,2)}, {vr(T+2*r,2)}, 1.0 op_sel_hi:[1,0]")
    for r in range(16): a(f"v_rcp_f32 v{T+r}, v{T+r}")
    for r in range(8): a(f"v_pk_mul_f32 {vr(T+2*r,2)}, {vr(T+2*r,2)}, {vr(U+2*r,2)}")
    for r in range(8): a(f"v_cvt_pk_bf16_f32 v{112+r}, v{T+2*r}, v{T+2*r+1}")
    a(f"""
    buffer_store_dwordx4 v[112:115], v{vL16}, {SWS}, {sT[7]} offen {SC}
    buffer_store_dwordx4 v[116:119], v{vL16}, {SWS}, {sT[7]} offen offset:1024 {SC}
    """)
    for o in later: a(o)

def phase_b2(a):
    L = a.label("B2")
    a(f"""
    s_lshl_b32 {sT[7]}, {sST}, 1
    s_add_u32 {sT[7]}, {sT[7]}, {sWL}
    v_lshlrev_b32 v3, 1, v{vL31}
    s_lshl_b32 {sT[0]}, {sT[7]}, 6
    buffer_load_ushort v24, v3, {SB2}, {sT[0]} offen
    s_mul_i32 {sT[6]}, {sDT}, {224*1024}
    s_mul_i32 {sT[0]}, {sW}, {28*1024}
    s_add_u32 {sT[6]}, {sT[6]}, {sT[0]}
    s_add_u32 {sT[6]}, {sT[6]}, {sITO}
    s_add_u32 {sT[6]}, {sT[6]}, {UF}
    """)
    act_tables(a, sT[6], 112 * 1024, sWH, 28)
    wtile_tr_addr(a, vTR, 4, sWL, sLB)
    a1_wpk_setup(a)
    a(f"""
    s_lshl_b32 {sT[5]}, {sDT}, 1
    s_add_u32 {sT[5]}, {sT[5]}, {sWH}
    s_mul_i32 {sT[8]}, {sT[7]}, {28*1024}
    s_lshl_b32 {sT[1]}, {sT[5]}, 11
    s_add_u32 {sT[8]}, {sT[8]}, {sT[1]}
    s_add_u32 {sT[8]}, {sT[8]}, {XF}
    s_mul_i32 {sT[9]}, {sT[7]}, 3584
    s_lshl_b32 {sT[1]}, {sT[5]}, 8
    s_add_u32 {sT[9]}, {sT[9]}, {sT[1]}
    s_add_u32 {sT[9]}, {sT[9]}, {ST2}
    s_mul_i32 {sT[12]}, {sT[7]}, {32*896}
    s_lshl_b32 {sT[1]}, {sT[5]}, 6
    s_add_u32 {sT[12]}, {sT[12]}, {sT[1]}
    s_barrier
    s_cmp_eq_u32 {sIT}, 0
    s_cbranch_scc0 {L}_nx
    """)
    for o in big_dma_ops(2, 12, 4, ringoff(12)): a(o)
    a(f"{L}_nx:")
    a.counter_issue(68, 1)
    a.probe(vPB, sT[6], 5, 1)
    first_rd(a, 2)
    a.counter_check(68, 32)
    a.stamp("probe")
    def init():
        a("v_lshlrev_b32 v24, 16, v24")
        for r in range(16): a(f"v_add_f32 v{ACC+r}, v{RES+r}, v24")
    later = two_its(a, L, lambda it: gemm4(a, 2, it, init))
    a(f"v_mul_u32_u24 v0, 896, v{vL31}\n v_lshl_add_u32 v0, v{vHH}, 3, v0")
    red_finish(a)
    for r in range(8): a(f"v_cvt_pk_bf16_f32 v{112+r}, v{ACC+2*r}, v{ACC+2*r+1}")
    a(f"""
    s_cmp_eq_u32 {sIT}, 0
    s_cbranch_scc0 {L}_fin
    """)
    a.lstore([f"buffer_store_dwordx4 v[112:115], v{vL16}, {SWS}, {sT[8]} offen", f"buffer_store_dwordx4 v[116:119], v{vL16}, {SWS}, {sT[8]} offen offset:1024"])
    stats_publish(a, ACC, 72, sT[9])
    for o in later[0]: a(o)
    for r in range(16): a(f"v_mov_b32 v{RES+r}, v{ACC+r}")
    a(f"s_branch {L}_end\n {L}_fin:")
    for q in range(4): a(f"buffer_store_dwordx2 {vr(112+2*q,2)}, v0, {SOUT}, {sT[12]} offen offset:{16*q}")
    a(f"{L}_end:")

def build():
    a = K(); a.stubs = []
    kernel_begin(a, KNAME)
    prologue(a)
    if STAMPS: a("v_mov_b32 v255, 0")
    a("L_iter:")
    a.stamp("start")
    phase_a1(a)
    a(f"s_cmp_ge_u32 {sACT}, 8\n s_cbranch_scc1 L_helper")
    phase_a2(a)
    a.stamp("a2_end")
    a(f"s_cmp_ge_u32 {sACT}, 7\n s_cbranch_scc1 L_skipb1")
    phase_b1(a)
    a("s_branch L_b2\n L_skipb1:")
    for o in big_dma_ops(2, 0, 8, 0) + big_dma_ops(2, 8, 4, 0x8000): a(o)
    a.counter_wait(4, 1, 32, 2)
    a("L_b2:")
    a.stamp("b1_end")
    phase_b2(a)
    a.stamp("b2_end")
    a(f"""
    L_next:
    s_cmp_eq_u32 {sIT}, 1
    s_cbranch_scc1 L_fin
    s_mov_b32 {sIT}, 1
    s_mov_b32 {sITO}, {ITB}
    s_branch L_iter
    L_helper:
    """)
    kv_reduce(a)
    if not OPT.get('sub'): a.xstamp(53)
    a("s_waitcnt vmcnt(0)\n s_barrier")
    a(f"""
    s_cmp_eq_u32 {sIT}, 1
    s_cbranch_scc1 L_fin
    """)
    helper_work(a)
    a("s_branch L_next")
    a("L_fin:")
    a.stamp_dump()
    a("L_end:\n s_endpgm")
    a.lines += a.stubs
    a.lines.append('L_codeend:')
    if STAMPS: open("stamps.txt", "w").write("\n".join(a.names))
    for i in range(len(a.lines) - 1):
        if a.lines[i].strip().startswith(f"s_add_u32 {sT[2]},") and a.lines[i+1].strip().startswith("s_add_u32 m0,"):
            a.lines[i], a.lines[i+1] = a.lines[i+1], a.lines[i]
    lines, n = haz.fix(a.lines)
    if OPT.get('align', 1):
        lines, st_ = align.align(lines, OPT.get('minrun', 5)); print('align', st_)
    hdr = f"; @launch grid=(256,1,1) block=(256,1,1) lds=163840\n"
    return hdr + '.amdgcn_target "amdgcn-amd-amdhsa--gfx950"\n.text\n' + "\n".join(lines) + "\n" + '.section .rodata,"a"\n' + descriptor(KNAME, 512, accum=256)

if __name__ == "__main__":
    out = sys.argv[1]
    for o in sys.argv[2:]:
        if o == "stamps": STAMPS = True
        else:
            k_, v_ = o.split("="); OPT[k_] = int(v_)
    open(out, "w").write(build())
```

```python
import sys, struct
sys.path.insert(0, "work")
from gen import *
import haz, align

KNAME = NAME + "_kernel"
S, D, F = 2048, 448, 1792
ITB = 0x538000 + 0x188000
PQ, KVP, KVF, ST, HF, UF = 0x0, 0x200000, 0x300000, 0x340000, 0x378000, 0x538000
assert UF + 14 * 112 * 1024 == ITB
XF = 2 * ITB
ST2 = XF + 0x1C0000
FILL_END = ST2 + 0x38000
WQP = 0x1000000
assert FILL_END <= WQP
STAMP_OFF = 0x2000000
WS_SIZE = 0x10000000
LOG2E = 1.4426950408889634
def fbits(x): return "0x%08x" % struct.unpack("<I", struct.pack("<f", x))[0]

SX, SWQKV, SWO, SW1, SW2, SB1, SB2, SOUT, SWS, SDBG = [f"s[{i}:{i+3}]" for i in range(4, 44, 4)]
sW, sRB, sH, sDT, sST, sFT, sACT, sIT, sITO, sBUD = "s3", "s44", "s45", "s46", "s47", "s48", "s49", "s50", "s51", "s52"
sWH, sWL, sLB = "s53", "s54", "s55"
sT = [f"s{i}" for i in range(56, 72)]
sW1B, sW2B = 's72', 's73'
sAT = [f"s{i}" for i in range(88, 96)]
SC = "sc1"
sDT1, sLOC, sXSH = 's99', 's100', 's101'
STAMPS = False
OPT = {}

def vr(b, n=1): return f"v{b}" if n == 1 else f"v[{b}:{b+n-1}]"
def ar(b, n=1): return f"a{b}" if n == 1 else f"a[{b}:{b+n-1}]"
MF = "v_mfma_f32_32x32x16_bf16"

vL16, vL16b, vHH, vL31, vLANE, vL8, vDW1, vDW2, CSK, CSV, vDWO, vMAX, vCNT, vCNA = range(240, 254)
assert CSK % 2 == 0
RES = 224
vKRS = 254
aW1, aW2 = 0, 128

class K(Asm):
    nstamp = 0
    stubs = None
    def stamp(self, name=""):
        if not STAMPS: return
        self(f"{'s_memtime' if OPT.get('clk') else 's_memrealtime'} s[96:97]\n s_lshl_b32 s98, {sIT}, 5\n s_add_u32 s98, s98, {self.nstamp}\n s_waitcnt lgkmcnt(0)\n s_mov_b32 m0, s98\n v_writelane_b32 v255, s96, m0")
        self.names = getattr(self, "names", []) + [name]
        self.nstamp += 1
        assert self.nstamp <= 32
    def xstamp(self, idx):
        if not STAMPS: return
        self(f"{'s_memtime' if OPT.get('clk') else 's_memrealtime'} s[96:97]\n s_waitcnt lgkmcnt(0)\n v_writelane_b32 v255, s96, {idx}")
    def stamp_dump(self):
        if not STAMPS: return
        self(f"""
        s_lshl_b32 s98, s2, 2
        s_add_u32 s98, s98, {sW}
        s_lshl_b32 s98, s98, 8
        s_add_u32 s98, s98, {STAMP_OFF}
        v_lshlrev_b32 v2, 2, v{vLANE}
        buffer_store_dword v255, v2, {SWS}, s98 offen
        """)
        if "dbg" in OPT:
            sel = {0: list(range(0, 14)), 1: [0, 12, 14, 15, 16, 18, 19, 35, 37, 40, 43, 46, 50, 51]}[OPT["dbg"]]
            L = self.label("DS")
            self(f"s_lshl_b32 s98, s2, 2\n s_add_u32 s98, s98, {sW}\n s_cmp_eq_u32 s98, {OPT.get('dbgw', 1)}\n s_cbranch_scc0 {L}")
            self("v_readlane_b32 s97, v255, 0")
            for i, ln in enumerate(sel):
                self(f"v_readlane_b32 s96, v255, {ln}\n s_sub_u32 s96, s96, s97\n v_writelane_b32 v3, s96, {i}")
            self(f"s_mov_b64 exec, 0x3fff\n buffer_store_dword v3, v2, {SDBG}, 0 offen offset:8\n s_mov_b64 exec, -1\n {L}:")
    def srd(self, dst, ptr, size):
        b = int(dst[2:dst.index(":")])
        self(f"s_mov_b32 s{b}, s{ptr}\n s_mov_b32 s{b+1}, s{ptr+1}\n s_mov_b32 s{b+2}, {size}\n s_mov_b32 s{b+3}, 0x00020000")
    def halfsum(self, v, tmp):
        self(f"v_mov_b32 {tmp}, {v}\n v_permlane32_swap_b32 {v}, {tmp}\n v_add_f32 {v}, {v}, {tmp}")
    def check_ops(self, regs):
        regs = list(regs); ops = []
        if len(regs) == 1:
            return [f"v_cmp_eq_u32 vcc, -1, v{regs[0]}"]
        if len(regs) % 2 == 1:
            ops.append(f"v_max3_u32 v{vMAX}, v{regs[0]}, v{regs[1]}, v{regs[2]}"); rest = regs[3:]
        else:
            ops.append(f"v_max_u32 v{vMAX}, v{regs[0]}, v{regs[1]}"); rest = regs[2:]
        for i in range(0, len(rest), 2):
            ops.append(f"v_max3_u32 v{vMAX}, v{vMAX}, v{rest[i]}, v{rest[i+1]}")
        ops.append(f"v_cmp_eq_u32 vcc, -1, v{vMAX}")
        return ops
    def check_branch(self, regs, reissue, wait_after):
        L = self.label("CK")
        self(f"s_cbranch_vccnz {L}_r\n {L}_k:")
        main = self.lines
        self.lines = self.stubs
        self(f"{L}_r:\n s_cmp_le_i32 {sBUD}, 0\n s_cbranch_scc1 {L}_k\n s_sub_u32 {sBUD}, {sBUD}, 1")
        reissue()
        self(f"s_waitcnt vmcnt({wait_after})")
        for o in self.check_ops(regs): self(o)
        self(f"s_cbranch_vccnz {L}_r\n s_branch {L}_k")
        self.lines = main
    def check(self, regs, reissue, wait_after, gran=4):
        if OPT.get("c1", 1): regs = list(regs)[gran-1::gran]
        for o in self.check_ops(regs): self(o)
        self.check_branch(regs, reissue, wait_after)
    def probe_issue(self, voff, soff, vt, nreg=1):
        ld = {1: "buffer_load_dword", 4: "buffer_load_dwordx4"}[nreg]
        self(f"{ld} {vr(vt,nreg)}, v{voff}, {SWS}, {soff} offen {SC}")
    def probe(self, voff, soff, vt, nreg=1, issued=False, sleep=0, extra=None, nextra=0):
        L = self.label("PB")
        if issued: self(f"s_branch {L}_c")
        if sleep: self(f"s_branch {L}_q")
        self(f"{L}_p:")
        if sleep: self(f"s_sleep {sleep}\n {L}_q:")
        self.probe_issue(voff, soff, vt, nreg)
        if extra: extra()
        self(f"s_sub_u32 {sBUD}, {sBUD}, 1\n {L}_c:\n s_waitcnt vmcnt({nextra})")
        if nreg == 1: self(f"v_cmp_eq_u32 vcc, -1, v{vt}")
        else:
            for o in self.check_ops(range(vt, vt + nreg)): self(o)
        self(f"""
        s_cmp_gt_i32 {sBUD}, 0
        s_cselect_b64 vcc, vcc, 0
        s_cbranch_vccnz {L}_p
        """)
    def loc_issue(self, vd):
        self(f"""
        v_and_b32 v{vd+2}, 3, v{vLANE}
        v_lshlrev_b32 v{vd+2}, 6, v{vd+2}
        v_bfe_u32 v{vd+3}, v{vLANE}, 2, 1
        v_lshl_add_u32 v{vd+2}, v{vd+3}, 3, v{vd+2}
        buffer_load_dwordx2 {vr(vd,2)}, v{vd+2}, {SDBG}, 0 offen offset:16 sc1
        """)
    def loc_eval(self, vd):
        L = self.label("LE")
        self(f"v_cmp_gt_u32 vcc, 0x200000, v{vd+1}\n s_cbranch_vccnz {L}_r\n {L}_k:")
        main = self.lines; self.lines = self.stubs
        self(f"""
        {L}_r:
        s_cmp_le_i32 {sBUD}, 0
        s_cbranch_scc1 {L}_k
        s_sub_u32 {sBUD}, {sBUD}, 1
        s_sleep 8
        buffer_load_dwordx2 {vr(vd,2)}, v{vd+2}, {SDBG}, 0 offen offset:16 sc1
        s_waitcnt vmcnt(0)
        v_cmp_gt_u32 vcc, 0x200000, v{vd+1}
        s_cbranch_vccnz {L}_r
        s_branch {L}_k
        """)
        self.lines = main
        self(f"""
        s_and_b32 {sT[0]}, s2, 7
        v_readlane_b32 s76, v{vd}, {sT[0]}
        v_readlane_b32 s77, v{vd+1}, {sT[0]}
        s_and_b32 s77, s77, 0xffff
        s_lshr_b64 s[76:77], s[76:77], {sXSH}
        s_and_b32 s76, s76, 63
        s_cmp_eq_u32 s76, 32
        s_cselect_b32 {sLOC}, {1 if OPT.get("loc", 1) else 0}, 0
        """)
    def lstore(self, ops):
        L = self.label("LS")
        self(f"s_cmp_eq_u32 {sLOC}, 0\n s_cbranch_scc1 {L}_g")
        for o in ops: self(o)
        self(f"{L}_r:")
        main = self.lines; self.lines = self.stubs
        self(f"{L}_g:")
        for o in ops: self(o + " " + SC)
        self(f"s_branch {L}_r")
        self.lines = main
    def counter_issue(self, off, nsh):
        self(f"v_min_u32 v{vCNA}, {nsh-1}, v{vLANE}\n v_lshlrev_b32 v{vCNA}, 6, v{vCNA}")
        self(f"buffer_load_dword v{vCNT}, v{vCNA}, {SDBG}, 0 offen offset:{off} sc1")
    def counter_check(self, off, target):
        L = self.label("CC")
        self(f"v_cmp_gt_u32 vcc, {target}, v{vCNT}\n s_cbranch_vccnz {L}_r\n {L}_k:")
        main = self.lines
        self.lines = self.stubs
        self(f"""
        {L}_r:
        s_cmp_le_i32 {sBUD}, 0
        s_cbranch_scc1 {L}_k
        s_sub_u32 {sBUD}, {sBUD}, 1
        s_sleep 8
        buffer_load_dword v{vCNT}, v{vCNA}, {SDBG}, 0 offen offset:{off} sc1
        s_waitcnt vmcnt(0)
        v_cmp_gt_u32 vcc, {target}, v{vCNT}
        s_cbranch_vccnz {L}_r
        s_branch {L}_k
        """)
        self.lines = main
    def counter_wait(self, off, nsh, target, vt):
        L = self.label("CW")
        self(f"""
        v_lshlrev_b32 v{vt+1}, 6, v{vLANE}
        s_mov_b64 exec, {(1<<nsh)-1}
        {L}_p:
        buffer_load_dword v{vt}, v{vt+1}, {SDBG}, 0 offen offset:{off} sc1
        s_waitcnt vmcnt(0)
        v_cmp_gt_u32 vcc, {target}, v{vt}
        s_cbranch_vccz {L}_o
        s_cmp_le_i32 {sBUD}, 0
        s_cbranch_scc1 {L}_o
        s_sub_u32 {sBUD}, {sBUD}, 1
        s_sleep 2
        s_branch {L}_p
        {L}_o:
        s_mov_b64 exec, -1
        """)

def wtile_dma_voff(a, vdst, rowstride):
    a(f"""
    v_lshrrev_b32 v2, 3, v{vLANE}
    v_mul_u32_u24 v{vdst}, {rowstride}, v2
    v_lshrrev_b32 v2, 4, v{vLANE}
    v_and_b32 v2, 1, v2
    v_lshlrev_b32 v2, 2, v2
    v_and_b32 v3, 7, v{vLANE}
    v_xor_b32 v2, v2, v3
    v_lshl_add_u32 v{vdst}, v2, 4, v{vdst}
    """)

def wtile_tr_addr(a, vdst, hhrows, s_keep, s_base):
    a(f"""
    v_lshrrev_b32 v2, 2, v{vLANE}
    v_and_b32 v2, 3, v2
    v_mul_u32_u24 v3, {hhrows}, v{vHH}
    v_add_u32 v2, v2, v3
    v_bfe_u32 v3, v2, 1, 1
    v_xor_b32 v3, {s_keep}, v3
    v_lshlrev_b32 v2, 7, v2
    v_lshl_add_u32 v2, v3, 6, v2
    v_lshrrev_b32 v3, 4, v{vLANE}
    v_and_b32 v3, 1, v3
    v_lshl_add_u32 v2, v3, 5, v2
    v_and_b32 v3, 3, v{vLANE}
    v_lshl_add_u32 v{vdst}, v3, 3, v2
    v_add_u32 v{vdst}, {s_base}, v{vdst}
    v_xor_b32 v{vdst+1}, 64, v{vdst}
    """)

def prologue(a):
    a(f"""
    s_cmp_ge_u32 s2, 256
    s_cbranch_scc1 L_end
    {"s_lshr_b32 s3, s2, 5" if OPT.get("bad") else ""}
    {"s_and_b32 s2, s2, 31" if OPT.get("bad") else ""}
    {"s_lshl_b32 s2, s2, 3" if OPT.get("bad") else ""}
    {"s_or_b32 s2, s2, s3" if OPT.get("bad") else ""}
    s_load_dwordx16 s[72:87], s[0:1], 0
    s_load_dwordx4 s[88:91], s[0:1], 64
    s_load_dwordx2 s[92:93], s[0:1], 80
    v_lshrrev_b32 v2, 6, v0
    v_and_b32 v{vLANE}, 63, v0
    v_readfirstlane_b32 {sW}, v2
    v_lshrrev_b32 v{vHH}, 5, v{vLANE}
    v_and_b32 v{vL31}, 31, v{vLANE}
    v_lshlrev_b32 v{vL16}, 4, v{vLANE}
    v_lshlrev_b32 v{vL8}, 3, v{vLANE}
    v_add_u32 v{vL16b}, 0x1000, v{vL16}
    s_and_b32 {sT[0]}, s2, 7
    s_lshr_b32 {sT[1]}, s2, 3
    s_lshr_b32 {sT[2]}, {sT[0]}, 1
    s_and_b32 {sT[3]}, {sT[0]}, 1
    s_lshl_b32 {sRB}, {sT[0]}, 1
    s_lshr_b32 {sT[4]}, {sT[1]}, 4
    s_add_u32 {sRB}, {sRB}, {sT[4]}
    s_and_b32 {sH}, {sT[1]}, 15
    s_mul_i32 {sT[4]}, {sT[1]}, 43
    s_lshr_b32 {sT[4]}, {sT[4]}, 7          ; j/3
    s_mul_i32 {sT[7]}, {sT[4]}, 3
    s_sub_u32 {sT[7]}, {sT[1]}, {sT[7]}     ; j%3
    s_lshl_b32 {sT[5]}, {sT[3]}, 2          ; 4p
    s_add_u32 {sDT1}, {sT[7]}, {sT[5]}
    s_add_u32 {sT[6]}, {sT[5]}, {sT[1]}
    s_sub_u32 {sT[6]}, {sT[6]}, 24
    s_cmp_ge_u32 {sT[1]}, 24
    s_cselect_b32 {sT[4]}, {sT[6]}, {sT[4]}
    s_cselect_b32 {sDT1}, 3, {sDT1}
    s_cmp_ge_u32 {sT[1]}, 28
    s_cselect_b32 {sT[4]}, 8, {sT[4]}
    s_mul_i32 {sT[5]}, {sT[1]}, 37
    s_lshr_b32 {sT[5]}, {sT[5]}, 8
    s_mul_i32 {sT[6]}, {sT[5]}, 7
    s_sub_u32 {sDT}, {sT[1]}, {sT[6]}
    s_lshl_b32 {sST}, {sT[0]}, 2
    s_add_u32 {sST}, {sST}, {sT[5]}
    s_getreg_b32 {sXSH}, hwreg(HW_REG_XCC_ID)
    s_and_b32 {sXSH}, {sXSH}, 15
    s_min_u32 {sXSH}, {sXSH}, 9
    s_mul_i32 {sXSH}, {sXSH}, 6
    s_mov_b32 {sLOC}, 0
    s_mul_i32 {sFT}, {sT[2]}, 7
    s_add_u32 {sFT}, {sFT}, {sT[4]}
    s_mov_b32 {sACT}, {sT[4]}
    s_mov_b32 {sIT}, 0
    s_mov_b32 {sITO}, 0
    s_mov_b32 {sBUD}, 1500000
    s_lshr_b32 {sWH}, {sW}, 1
    s_and_b32 {sWL}, {sW}, 1
    s_waitcnt lgkmcnt(0)
    """)
    a.srd(SX, 72, S * D * 2)
    a.srd(SWQKV, 74, D * 3 * D * 2)
    a.srd(SWS, 92, WS_SIZE)
    a.srd(SWO, 76, D * D * 2)
    a.srd(SW1, 80, S * F * 2)
    a.srd(SB1, 82, F * 2)
    a.srd(SW2, 84, F * S * 2)
    a.srd(SB2, 86, S * 2)
    a.srd(SOUT, 88, S * D * 2)
    a.srd(SDBG, 90, 256)

def late_setup(a):
    wtile_dma_voff(a, vDW1, 3584)
    wtile_dma_voff(a, vDW2, 4096)
    wtile_dma_voff(a, vDWO, 896)
    a(f"""
    s_mul_i32 {sW1B}, {sW}, {512*3584}
    s_min_u32 {sT[2]}, {sFT}, 27
    s_lshl_b32 {sT[2]}, {sT[2]}, 7
    s_add_u32 {sW1B}, {sW1B}, {sT[2]}
    s_mul_i32 {sW2B}, {sW}, {448*4096}
    s_min_u32 {sT[2]}, {sST}, 31
    s_lshl_b32 {sT[2]}, {sT[2]}, 7
    s_add_u32 {sW2B}, {sW2B}, {sT[2]}
    """)

XREG = 64
ACQ, ACK, ACV = 16, 32, 48
WFR = 176
TRA = 4
vM, vR, vC, vRS = 12, 13, 14, 15
XBASE = [0x8000, 0x18000, 0x20000, 0x10000]
def a1_lds(f):
    if f < 32: return 1024 * f
    if f < 64: return 0x10000 + 1024 * (f - 32)
    return 0x20000 + 1024 * (f - 64)
def a1_src(f):
    if f < 56: t, seg = f >> 1, 1 + (f & 1)
    else: t, seg = f - 56, 0
    return t * 16 * 2688 + seg * 896
CSL, RSL, KVL = 0x27000, 0x27400, 0x0


def a1_wraw_ops(f0, f1, vo, s_kv, s_q, s_w10):
    o = []
    for f in range(f0, f1, 4):
        sb = s_kv if f < 56 else s_q
        o.append(f"s_add_u32 {sT[2]}, {sb}, {a1_src(f)}\n s_add_u32 m0, {s_w10}, {a1_lds(f)}\n buffer_load_dwordx4 v{vo}, {SWQKV}, {sT[2]} offen lds")
    return o

def a1_wpk_setup(a):
    a(f"""
    s_mul_i32 {sT[13]}, {sH}, {84*1024}
    s_add_u32 {sT[13]}, {sT[13]}, {WQP}
    s_lshl_b32 {sT[15]}, {sW}, 10
    s_lshl_b32 {sT[14]}, {sW}, 14
    s_add_u32 {sT[14]}, {sT[14]}, {sT[13]}
    s_add_u32 {sT[13]}, {sT[13]}, {sT[15]}
    """)
def a1_wpk_hi_ops():
    return [f"s_add_u32 {sT[2]}, {sT[13]}, {f*1024}\n s_add_u32 m0, {sT[15]}, {a1_lds(f)}\n buffer_load_dwordx4 v{vL16}, {SWS}, {sT[2]} offen {SC} lds" for f in range(64, 84, 4)]
def a1_wpk_own_ops():
    return [f"s_add_u32 {sT[2]}, {sT[14]}, {i*1024}\n s_add_u32 m0, {sLB}, {i*1024}\n buffer_load_dwordx4 v{vL16}, {SWS}, {sT[2]} offen {SC} lds" for i in range(16)]

sWOG, sWOL = "s74", "s75"
def wo_setup(a):
    a(f"""
    s_mul_i32 {sWOG}, {sWH}, {224*896}
    s_mul_i32 {sT[2]}, {sWL}, {8*896}
    s_add_u32 {sWOG}, {sWOG}, {sT[2]}
    s_lshl_b32 {sT[2]}, {sDT}, 7
    s_add_u32 {sWOG}, {sWOG}, {sT[2]}
    s_lshl_b32 {sWOL}, {sWH}, 16
    s_lshl_b32 {sT[2]}, {sWL}, 10
    s_add_u32 {sWOL}, {sWOL}, {sT[2]}
    """)
def wo_ops():
    return [f"s_add_u32 {sT[2]}, {sWOG}, {j*16*896}\n s_add_u32 m0, {sWOL}, {0x8000 + j*2048}\n buffer_load_dwordx4 v{vDWO}, {SWO}, {sT[2]} offen lds" for j in range(15)]

def big_dma_ops(which, ks0, nks, ldsoff, sl=None):
    stride, srd, vo, sb = (3584, SW1, vDW1, sW1B) if which == 1 else (4096, SW2, vDW2, sW2B)
    return [f"s_add_u32 {sT[2]}, {sb}, {(ks0*16 + i*8)*stride}\n s_add_u32 m0, {sl or sLB}, {ldsoff + i*1024}\n buffer_load_dwordx4 v{vo}, {srd}, {sT[2]} offen lds" for i in range(2 * nks)]

def stats_loads(a, soff, T):
    for i in range(7):
        a(f"buffer_load_dwordx2 {vr(T+2*i,2)}, v{vL8}, {SWS}, {soff} offen offset:{i*512} {SC}")

def stats_math_ops(T, vm, vvar, U, pk=True):
    o = []
    if pk:
        for i in range(3): o.append(f"v_pk_add_f32 {vr(U+2*i,2)}, {vr(T+4*i,2)}, {vr(T+4*i+2,2)}")
        o.append(f"v_pk_add_f32 {vr(U,2)}, {vr(U,2)}, {vr(U+2,2)}")
        o.append(f"v_pk_add_f32 {vr(U+4,2)}, {vr(U+4,2)}, {vr(T+12,2)}")
        o.append(f"v_pk_add_f32 {vr(U,2)}, {vr(U,2)}, {vr(U+4,2)}")
    else:
        o.append(f"v_add_f32 v{U}, v{T}, v{T+2}"); o.append(f"v_add_f32 v{U+1}, v{T+1}, v{T+3}")
        for i in range(2, 7):
            o.append(f"v_add_f32 v{U}, v{U}, v{T+2*i}"); o.append(f"v_add_f32 v{U+1}, v{U+1}, v{T+2*i+1}")
    o += [f"v_mov_b32 v{vm}, v{U}", f"v_permlane32_swap_b32 v{vm}, v{U}", f"v_add_f32 v{vm}, v{vm}, v{U}"]
    o.append(f"v_mul_f32 v{U+2}, {fbits(1/14)}, v{vm}")
    o.append(f"v_mul_f32 v{vm}, {fbits(1/448)}, v{vm}")
    for i in range(7): o.append(f"v_sub_f32 v{T+2*i}, v{T+2*i}, v{U+2}")
    o += [f"v_mul_f32 v{U+3}, v{T}, v{T}", f"v_mul_f32 v{U+4}, v{T+2}, v{T+2}"]
    for i in range(2, 7): o.append(f"v_fmac_f32 v{U+3+(i&1)}, v{T+2*i}, v{T+2*i}")
    o.append(f"v_add_f32 v{U+3}, v{U+3}, v{U+4}")
    o.append(f"v_fmac_f32 v{U+1}, {fbits(1/32)}, v{U+3}")
    o += [f"v_mov_b32 v{vvar}, v{U+1}", f"v_permlane32_swap_b32 v{vvar}, v{U+1}", f"v_add_f32 v{vvar}, v{vvar}, v{U+1}"]
    o.append(f"v_mul_f32 v{vvar}, {fbits(1/448)}, v{vvar}")
    return o

def stats_publish(a, X, T, soff):
    for i in range(4): a(f"v_pk_add_f32 {vr(T+2*i,2)}, {vr(X+4*i,2)}, {vr(X+4*i+2,2)}")
    a(f"v_pk_add_f32 {vr(T,2)}, {vr(T,2)}, {vr(T+2,2)}")
    a(f"v_pk_add_f32 {vr(T+4,2)}, {vr(T+4,2)}, {vr(T+6,2)}")
    a(f"v_pk_add_f32 {vr(T,2)}, {vr(T,2)}, {vr(T+4,2)}")
    a(f"v_add_f32 v{T+16}, v{T}, v{T+1}")
    a.halfsum(f"v{T+16}", f"v{T+17}")
    a(f"v_mul_f32 v{T+18}, {fbits(-1/32)}, v{T+16}")
    for i in range(8): a(f"v_pk_add_f32 {vr(T+2*i,2)}, {vr(X+2*i,2)}, {vr(T+18,2)} op_sel_hi:[1,0]")
    a(f"v_pk_mul_f32 {vr(T+18,2)}, {vr(T,2)}, {vr(T,2)}")
    a(f"v_pk_mul_f32 {vr(T+20,2)}, {vr(T+2,2)}, {vr(T+2,2)}")
    for i in range(2, 8):
        d = T + 18 + 2 * (i & 1)
        a(f"v_pk_fma_f32 {vr(d,2)}, {vr(T+2*i,2)}, {vr(T+2*i,2)}, {vr(d,2)}")
    a(f"v_pk_add_f32 {vr(T+18,2)}, {vr(T+18,2)}, {vr(T+20,2)}")
    a(f"v_add_f32 v{T+17}, v{T+18}, v{T+19}")
    a.halfsum(f"v{T+17}", f"v{T+18}")
    a("s_mov_b32 exec_hi, 0")
    a.lstore([f"buffer_store_dwordx2 {vr(T+16,2)}, v{vL8}, {SWS}, {soff} offen"])
    a("s_mov_b64 exec, -1")

def a1_tr_setup(a, it):
    sh, delta = (9, 256) if it == 0 else (8, 512)
    a(f"""
    v_lshrrev_b32 v2, 2, v{vLANE}
    v_and_b32 v2, 3, v2
    v_lshrrev_b32 v3, 4, v{vLANE}
    v_and_b32 v3, 1, v3
    v_lshlrev_b32 v3, 2, v3
    v_and_b32 v10, 3, v{vLANE}
    v_add_u32 v3, v3, v10
    s_and_b32 {sT[0]}, {sH}, 1
    v_add_u32 v3, {sT[0]}, v3
    v_and_b32 v3, 7, v3
    v_lshlrev_b32 v3, 3, v3
    v_lshl_add_u32 v{TRA}, v2, 6, v3
    v_lshl_add_u32 v{TRA}, v{vHH}, {sh}, v{TRA}
    v_add_u32 v{TRA+1}, 0x10000, v{TRA}
    v_add_u32 v{TRA+2}, 0x20000, v{TRA}
    v_add_u32 v{TRA+3}, {delta}, v{TRA}
    v_add_u32 v{TRA+4}, {delta}, v{TRA+1}
    v_add_u32 v{TRA+5}, {delta}, v{TRA+2}
    s_lshl_b32 {sT[0]}, {sW}, 8
    s_add_u32 {sT[0]}, {sT[0]}, {RSL}
    v_lshlrev_b32 v11, 2, v{vLANE}
    v_add_u32 v11, {sT[0]}, v11
    v_lshlrev_b32 v{vRS}, 4, v{vHH}
    v_add_u32 v{vRS}, {sT[0]}, v{vRS}
    """)

def rowstats_ops():
    return [f"v_add_f32 v{vR}, {fbits(1e-5)}, v{vR}", f"v_rsq_f32 v{vR}, v{vR}", f"v_cmp_eq_u32 vcc, 0, v{vHH}",
            f"v_cndmask_b32 v3, v{vM}, v{vR}, vcc", f"ds_write_b32 v11, v3"]

def a1_rd(a, f, dst):
    ad = a1_lds(f); win, off = ad >> 16, ad & 0xffff
    a(f"ds_read_b64_tr_b16 {dst(0)}, v{TRA+win} offset:{off}")
    a(f"ds_read_b64_tr_b16 {dst(2)}, v{TRA+3+win} offset:{off}")

def w1_touch(r):
    return f"""s_lshl_b32 {sT[0]}, s2, 2
    s_add_u32 {sT[0]}, {sT[0]}, {sW}
    s_add_u32 {sT[0]}, {sT[0]}, {r*1024}
    s_mul_i32 {sT[1]}, {sT[0]}, 9363
    s_lshr_b32 {sT[1]}, {sT[1]}, 22
    s_mul_i32 {sT[2]}, {sT[1]}, 448
    s_sub_u32 {sT[0]}, {sT[0]}, {sT[2]}
    s_lshl_b32 {sT[0]}, {sT[0]}, 11
    s_lshl_b32 {sT[2]}, {sT[1]}, 1
    s_add_u32 {sT[15]}, {sT[2]}, 1
    s_sub_u32 {sT[2]}, {sT[2]}, 8
    s_cmp_lt_u32 {sT[1]}, 4
    s_cselect_b32 {sT[1]}, {sT[15]}, {sT[2]}
    s_mul_i32 {sT[1]}, {sT[1]}, {256*3584}
    s_add_u32 {sT[0]}, {sT[0]}, {sT[1]}
    buffer_load_dword v234, v{vKRS}, {SW1}, {sT[0]} offen"""

def code_warm(a, tag):
    L = a.label("CWM")
    a(f"""
    s_getpc_b64 s[76:77]
    {L}:
    s_sub_u32 s76, s76, {L}-{KNAME}
    s_subb_u32 s77, s77, 0
    s_lshr_b32 {sT[2]}, s2, 3
    s_lshl_b32 {sT[2]}, {sT[2]}, 2
    s_add_u32 {sT[2]}, {sT[2]}, {sW}
    s_mul_i32 {sT[2]}, {sT[2]}, 640
    v_min_u32 v2, 4, v{vLANE}
    v_lshlrev_b32 v2, 7, v2
    v_add_u32 v2, {sT[2]}, v2
    s_mov_b32 {sT[2]}, L_codeend-{KNAME}-4
    v_min_u32 v2, {sT[2]}, v2
    v_mov_b32 v3, s77
    v_add_co_u32 v2, vcc, s76, v2
    v_addc_co_u32 v3, vcc, 0, v3, vcc
    global_load_dword v{vMAX}, v[2:3], off
    """)

def a1_it0(a):
    L = a.label("A1f")
    XA, XV, DA = 224, 228, 230
    a(f"""
    v_lshrrev_b32 v2, 3, v{vLANE}
    v_mul_u32_u24 v2, 896, v2
    v_and_b32 v3, 7, v{vLANE}
    v_lshrrev_b32 v5, 4, v{vLANE}
    v_xor_b32 v3, v3, v5
    v_lshl_add_u32 v{XV}, v3, 4, v2
    v_xor_b32 v{XV+1}, 64, v{XV}
    s_lshl_b32 {sT[10]}, {sRB}, 2
    s_add_u32 {sT[10]}, {sT[10]}, {sW}
    s_mul_i32 {sT[10]}, {sT[10]}, {32*896}
    s_lshl_b32 {sLB}, {sWH}, 16
    s_lshl_b32 {sT[2]}, {sWL}, 14
    s_add_u32 {sLB}, {sLB}, {sT[2]}
    """)
    def xdma(j0, j1):
        return [f"s_add_u32 {sT[2]}, {sT[10]}, {aa*8*896 + j*128}\n s_add_u32 m0, {sLB}, {0x8000 + aa*4096 + (j-j0)*1024}\n buffer_load_dwordx4 v{XV + (aa&1)}, {SX}, {sT[2]} offen lds"
                for aa in range(4) for j in range(j0, j1)]
    for o in xdma(0, 4): a(o)
    a(f"""
    v_lshrrev_b32 v1, 2, v{vLANE}
    v_mul_u32_u24 v1, 2688, v1
    v_and_b32 v5, 3, v{vLANE}
    v_lshl_add_u32 v1, v5, 4, v1
    s_mul_i32 {sT[8]}, {sH}, 56
    s_and_b32 {sT[8]}, {sT[8]}, 0xfff0
    s_mul_i32 {sT[9]}, {sW}, {16*2688}
    s_add_u32 {sT[9]}, {sT[9]}, {sT[8]}
    s_mul_i32 {sT[2]}, {sWH}, {16*2688}
    s_add_u32 {sT[8]}, {sT[8]}, {sT[2]}
    s_mul_i32 {sT[2]}, {sWL}, 896
    s_add_u32 {sT[8]}, {sT[8]}, {sT[2]}
    s_lshl_b32 {sT[11]}, {sW}, 10
    """)
    a.xstamp(22)
    ncw = 0
    if OPT.get("cw", 1):
        code_warm(a, 0); ncw = 1
    for o in a1_wraw_ops(0, 32, 1, sT[8], sT[9], sT[11]): a(o)
    a.xstamp(23)
    a(f"""
    s_lshr_b32 {sT[12]}, 0xc1a3, {sH}
    s_and_b32 {sT[12]}, {sT[12]}, 1
    s_lshl_b32 {sT[0]}, 1, {sH}
    s_sub_u32 {sT[0]}, {sT[0]}, 1
    s_and_b32 {sT[0]}, {sT[0]}, 0xc1a3
    s_bcnt1_i32_b32 {sT[0]}, {sT[0]}
    s_lshl_b32 {sT[0]}, {sT[0]}, 4
    s_add_u32 {sT[0]}, {sT[0]}, {sRB}
    s_lshl_b32 {sT[0]}, {sT[0]}, 2
    s_add_u32 {sT[0]}, {sT[0]}, {sW}
    s_lshl_b32 {sT[14]}, {sT[0]}, 13
    s_cmp_ge_u32 {sT[14]}, {ST}
    s_cselect_b32 {sT[12]}, 0, {sT[12]}
    s_cmp_eq_u32 {sT[12]}, 0
    s_cselect_b32 {sT[14]}, 0x20000000, {sT[14]}
    v_mov_b32 v236, -1
    v_mov_b32 v237, -1
    v_mov_b32 v238, -1
    v_mov_b32 v239, -1
    """)
    fills = [f"buffer_store_dwordx4 v[236:239], v{vL16b if i&4 else vL16}, {SWS}, {sT[14]} offen offset:{(i&3)*1024} {SC}" for i in range(8)]
    late_setup(a)
    wo_setup(a)
    a1_tr_setup(a, 0)
    a(f"""
    v_lshrrev_b32 v2, 3, v{vL31}
    v_lshlrev_b32 v2, 12, v2
    v_and_b32 v3, 7, v{vL31}
    v_lshl_add_u32 v2, v3, 7, v2
    v_add_u32 v2, {sLB}, v2
    v_lshrrev_b32 v3, 1, v{vL31}
    v_and_b32 v3, 7, v3
    v_xor_b32 v3, v3, v{vHH}
    """)
    for q in range(4): a(f"v_xor_b32 v10, {2*q}, v3\n v_lshl_add_u32 v{XA+q}, v10, 4, v2")
    a(f"""
    v_mov_b32 v{DA}, 0
    v_mov_b32 v{DA+1}, 0
    v_mov_b32 v{DA+2}, 0
    v_mov_b32 v{DA+3}, 0
    v_mov_b32 v{CSK}, 0
    v_mov_b32 v{CSV}, 0
    v_mov_b32 v{vC}, 0x3f803f80
    v_lshlrev_b32 v235, 7, v{vLANE}
    v_min_u32 v{vKRS}, 0x780, v235
    s_lshr_b32 {sT[13]}, s2, 2
    s_lshl_b32 {sT[13]}, {sT[13]}, 13
    s_cmp_eq_u32 {sW}, 3
    s_cselect_b32 {sT[13]}, {sT[13]}, 0x1000000
    s_waitcnt vmcnt({8+ncw}) lgkmcnt(0)
    """)
    a.stamp("a1_xland")
    def xrd(t0, t1):
        for t in range(t0, t1):
            a(f"ds_read_b128 {vr(XREG+4*t,4)}, v{XA+(t&3)} offset:{0x8000 + ((t-t0)>>2)*1024}")
            if t - t0 == 11: a("s_waitcnt lgkmcnt(4)")
        a("s_waitcnt lgkmcnt(0)")
    def dots(i0, i1, vm, every):
        for i in range(i0, i1):
            if vm and (i - i0) % every == 0: a(vm.pop(0))
            a(f"v_dot2c_f32_bf16 v{DA+(i&1)}, v{XREG+i}, v{vC}")
            a(f"v_dot2c_f32_bf16 v{DA+2+(i&1)}, v{XREG+i}, v{XREG+i}")
        assert not vm
    xrd(0, 16)
    vm = fills + xdma(4, 7)
    TP = OPT.get("tp", 1)
    tch = [w1_touch(0), w1_touch(1)]
    wl = (tch if TP == 0 else []) + a1_wraw_ops(32, 84, 1, sT[8], sT[9], sT[11]) + [f"buffer_load_dword v234, v235, {SWO}, {sT[13]} offen"] + (tch if TP == 1 else [])
    nwl = len(wl)
    a.xstamp(24)
    dots(0, 64, vm, 3)
    a.xstamp(25)
    a(f"""
    s_waitcnt vmcnt(12)
    s_barrier
    s_cmp_eq_u32 {sW}, 0
    s_cbranch_scc1 {L}_sg
    {L}_sgr:
    """)
    a.stubs += [l for l in f"""{L}_sg:
    s_lshl_b64 s[76:77], 1, {sXSH}
    s_and_b32 s77, s77, 0xffff
    s_or_b32 s77, s77, 0x10000
    s_and_b32 {sT[0]}, s2, 3
    s_lshl_b32 {sT[0]}, {sT[0]}, 6
    s_bfe_u32 {sT[1]}, s2, 0x10002
    s_lshl_b32 {sT[1]}, {sT[1]}, 3
    s_add_u32 {sT[0]}, {sT[0]}, {sT[1]}
    v_mov_b32 v2, s76
    v_mov_b32 v3, s77
    s_mov_b64 exec, 1
    buffer_atomic_add_x2 v[2:3], off, {SDBG}, {sT[0]} offset:16 sc1
    s_mov_b64 exec, -1
    s_branch {L}_sgr""".split("\n")]
    a.stamp("a1_main")
    LA = 3
    def rd(t):
        for s_ in range(2):
            b = WFR + 8 * (t & 3) + 4 * s_
            a1_rd(a, 2 * t + s_, lambda o, b=b: vr(b + o, 2))
    def cs(win, n):
        a(f"s_lshl_b32 {sT[0]}, {sW}, 11\n v_add_u32 v2, {sT[0]}, v{TRA+win}\n v_add_u32 v3, {sT[0]}, v{TRA+3+win}")
        regs = [16, 24, 208, 216]
        for i in range(n):
            for s_ in range(2):
                a(f"ds_read_b64_tr_b16 {vr(regs[i]+4*s_,2)}, v2 offset:{8192*i+1024*s_}")
                a(f"ds_read_b64_tr_b16 {vr(regs[i]+4*s_+2,2)}, v3 offset:{8192*i+1024*s_}")
        a("s_waitcnt lgkmcnt(0)")
        for i in range(n):
            for k in range(4):
                a(f"v_dot2c_f32_bf16 v{CSK}, v{regs[i]+k}, v{vC}")
                a(f"v_dot2c_f32_bf16 v{CSV}, v{regs[i]+4+k}, v{vC}")
    def loop(t0, t1):
        for t in range(t0, t0 + LA): rd(t)
        for t in range(t0, t1):
            if t + LA < t1: rd(t + LA)
            a(f"s_waitcnt lgkmcnt({4*min(LA, t1-1-t)})")
            w = WFR + 8 * (t & 3)
            x = vr(XREG + 4 * t, 4)
            c = lambda base: (vr(base, 16) if t else "0")
            a(f"{MF} {vr(ACK,16)}, {x}, {vr(w,4)}, {c(ACK)}")
            a(f"{MF} {vr(ACV,16)}, {x}, {vr(w+4,4)}, {c(ACV)}")
            if wl: a(wl.pop(0))
    loop(0, 16)
    assert not wl
    a.xstamp(26)
    cs(0, 4)
    a.xstamp(27)
    a(f"s_waitcnt vmcnt({nwl})")
    a.xstamp(28)
    xrd(16, 28)
    NRA = 4
    ra = big_dma_ops(1, 16, 8, 0x8000)
    dots(64, 112, ra[:NRA], 8)
    a(f"v_add_f32 v{vM}, v{DA}, v{DA+1}\n v_add_f32 v{vR}, v{DA+2}, v{DA+3}")
    a.halfsum(f"v{vM}", f"v{DA}")
    a.halfsum(f"v{vR}", f"v{DA+1}")
    a(f"""
    v_mul_f32 v{vM}, {fbits(1/448)}, v{vM}
    v_mul_f32 v{vR}, {fbits(1/448)}, v{vR}
    v_fma_f32 v{vR}, -v{vM}, v{vM}, v{vR}
    v_max_f32 v{vR}, 0, v{vR}
    """)
    for o in rowstats_ops(): a(o)
    a.xstamp(29)
    a(f"s_waitcnt vmcnt({8+NRA+(2 if TP == 1 else 0)})\n s_barrier")
    a.xstamp(30)
    cs(1, 3)
    a(f"""
    v_mov_b32 v22, v{CSK}
    v_mov_b32 v23, v{CSV}
    v_permlane32_swap_b32 v{CSK}, v22
    v_permlane32_swap_b32 v{CSV}, v23
    v_add_f32 v22, v{CSK}, v22
    v_add_f32 v23, v{CSV}, v23
    s_lshl_b32 {sT[0]}, {sW}, 2
    v_lshlrev_b32 v10, 4, v{vL31}
    v_add_u32 v10, 0x27800, v10
    v_add_u32 v11, {sT[0]}, v10
    ds_write_b32 v11, v22 offset:512
    ds_write_b32 v11, v23 offset:1024
    s_lshl_b32 {sT[13]}, {sW}, 13
    """)
    a.loc_issue(228)
    a.xstamp(31)
    wl += ra[NRA:NRA + 12]
    a.ra_rest = ra[NRA + 12:]
    loop(16, 28)
    assert not wl
    T23 = OPT.get("t23", 1)
    if T23 == 1:
        a(w1_touch(2)); a(w1_touch(3))
    a.xstamp(21)
    a("s_barrier")
    for k in range(1, 3): a(f"ds_read_b128 {vr(16+4*k,4)}, v10 offset:{512*k}")
    a(f"s_waitcnt vmcnt({14 if T23 == 1 else 12})")
    a.loc_eval(228)
    a(f"""
    s_waitcnt lgkmcnt(0)
    v_add_f32 v20, v20, v21
    v_add_f32 v22, v22, v23
    v_add_f32 v24, v24, v25
    v_add_f32 v26, v26, v27
    v_add_f32 v{CSK}, v20, v22
    v_add_f32 v{CSV}, v24, v26
    """)

def a1_it0_q(a, ret):
    QLA, QB = 4, 32
    def qrd(t): a1_rd(a, 56 + t, lambda o, t=t: vr(QB + 4 * (t & 7) + o, 2))
    a(f"""
    s_lshl_b32 {sT[0]}, {sW}, 10
    v_add_u32 v176, {sT[0]}, v{TRA+1}
    v_add_u32 v177, {sT[0]}, v{TRA+4}
    v_add_u32 v178, {sT[0]}, v{TRA+2}
    v_add_u32 v179, {sT[0]}, v{TRA+5}
    v_mov_b32 v180, 0
    """)
    for i in range(7):
        ad = a1_lds(56 + 4 * i); b = 176 if (ad >> 16) == 1 else 178
        a(f"ds_read_b64_tr_b16 {vr(196+4*i,2)}, v{b} offset:{ad & 0xffff}")
        a(f"ds_read_b64_tr_b16 {vr(196+4*i+2,2)}, v{b+1} offset:{ad & 0xffff}")
    a("s_waitcnt lgkmcnt(0)")
    for t in range(QLA): qrd(t)
    for j in range(28): a(f"v_dot2c_f32_bf16 v180, v{196+j}, v{vC}")
    a(f"""
    v_mov_b32 v181, v180
    v_permlane32_swap_b32 v180, v181
    v_add_f32 v180, v180, v181
    s_waitcnt lgkmcnt(0)
    ds_write_b32 v11, v180
    """)
    assert not a.ra_rest
    w2q = big_dma_ops(1, 24, 4, 0, sT[13])
    wtile_tr_addr(a, 182, 8, sWH, sLB)
    st = [f"ds_read_b64_tr_b16 {ar(aW1 + 8*t + 4*i + 2*u, 2)}, v{182+i} offset:{0x8000 + t*2048 + 4*u*128}" for t in range(8) for i in range(2) for u in range(2)]
    a("s_waitcnt vmcnt(3)")
    lq = [("q", t) for t in range(QLA) for _ in range(2)]
    for t in range(28):
        if t + QLA < 28:
            qrd(t + QLA); lq += [("q", t + QLA)] * 2
        idx = max(i for i, x in enumerate(lq) if x == ("q", t))
        a(f"s_waitcnt lgkmcnt({min(15, len(lq) - 1 - idx)})")
        a(f"{MF} {vr(ACQ,16)}, {vr(QB+4*(t&7),4)}, {vr(XREG+4*t,4)}, {vr(ACQ,16) if t else '0'}")
        for _ in range(2 if t < 8 or t >= 24 else 1):
            if st:
                a(st.pop(0)); lq.append(("s", 0))
        if t % 3 == 0 and w2q: a(w2q.pop(0))
    assert not w2q and not st
    a("s_waitcnt lgkmcnt(0)")
    a(f"""
    s_barrier
    ds_read_b128 v[176:179], v10
    v_lshlrev_b32 v180, 2, v{vL31}
    v_add_u32 v180, {CSL}, v180
    s_add_u32 s79, {sT[13]}, 0x20000
    s_cmp_eq_u32 {sW}, 3
    s_cselect_b32 s79, 0x16000, s79
    """)
    kvr_loads(a)
    a(f"""
    s_waitcnt lgkmcnt(0)
    v_add_f32 v176, v176, v177
    v_add_f32 v178, v178, v179
    v_add_f32 v176, v176, v178
    ds_write_b32 v180, v176
    s_branch {ret}
    """)

def a1_it1(a):
    LA = 2
    a1_tr_setup(a, 1)
    a(f"""
    s_lshl_b32 {sT[0]}, {sRB}, 2
    s_add_u32 {sT[0]}, {sT[0]}, {sW}
    s_mul_i32 {sAT[0]}, {sT[0]}, {28*1024}
    s_add_u32 {sAT[0]}, {sAT[0]}, {XF}
    s_add_u32 {sAT[1]}, {sAT[0]}, 0x2000
    s_add_u32 {sAT[2]}, {sAT[0]}, 0x4000
    s_add_u32 {sAT[3]}, {sAT[0]}, 0x6000
    s_mul_i32 {sT[8]}, {sT[0]}, 3584
    s_add_u32 {sT[8]}, {sT[8]}, {ST2}
    """)
    a.counter_issue(132, 1)
    def xload(t):
        a(f"buffer_load_dwordx4 {vr(XREG+4*t,4)}, v{vL16b if t&4 else vL16}, {SWS}, {sAT[t>>3]} offen offset:{(t&3)*1024} {SC}")
    def rd(t):
        for s_, f in enumerate((2 * t, 2 * t + 1, 56 + t)):
            b = WFR + 12 * (t % 3) + 4 * s_
            a1_rd(a, f, lambda o, b=b: vr(b + o, 2))
    NX = OPT.get("nx", 16)
    OX = OPT.get("ox", 8)
    def sx():
        stats_loads(a, sT[8], 32)
        for t in range(OX): xload(t)
    sx()
    a(f"s_waitcnt vmcnt({7+OX})\n s_barrier")
    for t in range(LA): rd(t)
    a(f"s_waitcnt vmcnt({OX})")
    a.check(range(32, 46), sx, OX, 2)
    for t in range(OX, NX): xload(t)
    a.nstamp -= 2
    a.stamp()
    for o in stats_math_ops(32, vM, vR, 16) + rowstats_ops(): a(o)
    a.counter_check(132, 32)
    a.stamp()
    if STAMPS: a.names = a.names[:-2]
    a("s_waitcnt lgkmcnt(0)")
    wq = wo_ops(); nd = [0]
    def xchk(t, now):
        hi = min(28, now + NX)
        n = hi - t - 4 + nd[0]
        a(f"s_waitcnt vmcnt({n})")
        a.check(range(XREG + 4 * t, XREG + 4 * t + 16), lambda t=t, hi=hi: [xload(tt) for tt in range(t, hi)], n if nd[0] == 0 else 0)
    xchk(0, 0)
    for t in range(28):
        if t + LA < 28: rd(t + LA)
        a(f"s_waitcnt lgkmcnt({6*min(LA, 27-t)})")
        w = WFR + 12 * (t % 3)
        x = vr(XREG + 4 * t, 4)
        c = lambda base: (vr(base, 16) if t else "0")
        a(f"{MF} {vr(ACK,16)}, {x}, {vr(w,4)}, {c(ACK)}")
        if t + NX < 28: xload(t + NX)
        elif wq:
            a(wq.pop(0)); nd[0] += 1
        a(f"{MF} {vr(ACV,16)}, {x}, {vr(w+4,4)}, {c(ACV)}")
        if t % 4 == 3 and t + 1 < 28: xchk(t + 1, t + 1)
        a(f"{MF} {vr(ACQ,16)}, {vr(w+8,4)}, {x}, {c(ACQ)}")
    a.wo_rest = wq
    a("s_barrier")

def phase_a1(a):
    L = a.label("A1")
    RR, MM, T0 = 176, 192, 208
    a(f"s_cmp_eq_u32 {sIT}, 0\n s_cbranch_scc0 {L}_it1")
    a1_it0(a)
    a(f"s_branch {L}_epi\n {L}_it1:")
    a1_it1(a)
    a(f"""
    {L}_epi:
    """)
    a.stamp("a1_epi")
    for q in range(4):
        a(f"ds_read_b128 {vr(MM+4*q,4)}, v{vRS} offset:{128+32*q}")
        a(f"ds_read_b128 {vr(RR+4*q,4)}, v{vRS} offset:{32*q}")
    a(f"""
    s_mov_b32 {sT[3]}, {fbits(1e-6)}
    v_mov_b32 v0, {fbits(1e-6)}
    v_mov_b32 v1, {fbits(LOG2E)}
    s_lshl_b32 {sT[0]}, {sW}, 12
    s_add_u32 {sT[0]}, {sT[0]}, 0x10000
    v_add_u32 v2, {sT[0]}, v{vL16}
    s_lshl_b32 {sT[5]}, {sW}, 10
    s_add_u32 {sT[0]}, {sT[5]}, 0x10000
    v_add_u32 v3, {sT[0]}, v{vL16}
    s_lshl_b32 {sT[6]}, {sH}, 4
    s_add_u32 {sT[6]}, {sT[6]}, {sRB}
    s_lshl_b32 {sT[6]}, {sT[6]}, 12
    s_add_u32 {sT[6]}, {sT[6]}, {sT[5]}
    s_add_u32 {sT[6]}, {sT[6]}, {sITO}
    s_add_u32 {sT[6]}, {sT[6]}, {KVP}
    s_waitcnt lgkmcnt(0)
    """)
    k0, v0 = ACK, ACV
    P = lambda b, r: vr(b + 2 * r, 2)
    CS = vr(CSK, 2)
    for r in range(8): a(f"v_pk_fma_f32 {P(k0,r)}, {P(MM,r)}, {CS}, {P(k0,r)} op_sel_hi:[1,0,1] neg_lo:[1,0,0] neg_hi:[1,0,0]")
    for r in range(8): a(f"v_pk_fma_f32 {P(k0,r)}, {P(k0,r)}, {P(RR,r)}, v[0:1] op_sel_hi:[1,1,0]")
    for r in range(8): a(f"v_pk_mul_f32 {P(T0,r)}, {P(k0,r)}, v[0:1] op_sel:[0,1] op_sel_hi:[1,1]")
    for r in range(8):
        a(f"v_exp_f32_e64 v{T0+2*r}, v{T0+2*r} clamp")
        a(f"v_max_f32 v{k0+2*r}, {sT[3]}, v{k0+2*r}")
        a(f"v_exp_f32_e64 v{T0+2*r+1}, v{T0+2*r+1} clamp")
        a(f"v_max_f32 v{k0+2*r+1}, {sT[3]}, v{k0+2*r+1}")
        a(f"v_pk_fma_f32 {P(v0,r)}, {P(MM,r)}, {CS}, {P(v0,r)} op_sel:[0,1,0] op_sel_hi:[1,1,1] neg_lo:[1,0,0] neg_hi:[1,0,0]")
    for r in range(8): a(f"v_pk_mul_f32 {P(v0,r)}, {P(v0,r)}, {P(RR,r)}")
    for r in range(8): a(f"v_pk_add_f32 {P(k0,r)}, {P(k0,r)}, {P(T0,r)}")
    for r in range(8): a(f"v_cvt_pk_bf16_f32 v{v0+r}, v{v0+2*r}, v{v0+2*r+1}")
    a("s_mov_b32 exec_lo, 0xf0000000\n s_mov_b32 exec_hi, 0xf0000000")
    for r in range(8): a(f"v_mov_b32 v{ACV+r}, 0x3f803f80")
    a("s_mov_b64 exec, -1")
    for r in range(8): a(f"v_cvt_pk_bf16_f32 v{k0+r}, v{k0+2*r}, v{k0+2*r+1}")
    KVA = 176
    a(f"{MF} {vr(KVA,16)}, {vr(ACK,4)}, {vr(ACV,4)}, 0")
    a(f"{MF} {vr(KVA,16)}, {vr(ACK+4,4)}, {vr(ACV+4,4)}, {vr(KVA,16)}")
    for q in range(4): a(f"ds_write_b128 v2, {vr(KVA+4*q,4)} offset:{KVL+1024*q}")
    a("s_waitcnt lgkmcnt(0)\n s_barrier")
    for w2 in range(4): a(f"ds_read_b128 {vr(192+4*w2,4)}, v3 offset:{KVL+4096*w2}")
    a(f"""
    s_waitcnt lgkmcnt(0)
    v_pk_add_f32 v[192:193], v[192:193], v[196:197]
    v_pk_add_f32 v[194:195], v[194:195], v[198:199]
    v_pk_add_f32 v[200:201], v[200:201], v[204:205]
    v_pk_add_f32 v[202:203], v[202:203], v[206:207]
    v_pk_add_f32 v[192:193], v[192:193], v[200:201]
    v_pk_add_f32 v[194:195], v[194:195], v[202:203]
    buffer_store_dwordx4 v[192:195], v{vL16}, {SWS}, {sT[6]} offen {SC}
    """)
    a.stamp("a1_kvp")
    kvr_setup(a)
    a(f"s_cmp_eq_u32 {sIT}, 0\n s_cbranch_scc1 {L}_cq\n {L}_cqr:")
    main = a.lines; a.lines = a.stubs
    a(f"{L}_cq:")
    a1_it0_q(a, f"{L}_cqr")
    a.lines = main
    T1 = 208
    a(f"v_lshlrev_b32 v2, 4, v{vHH}\n v_add_u32 v2, {CSL}, v2")
    for q in range(4): a(f"ds_read_b128 {vr(T1+4*q,4)}, v2 offset:{32*q}")
    a(f"""
    s_lshl_b32 {sT[5]}, {sRB}, 2
    s_add_u32 {sT[5]}, {sT[5]}, {sW}
    s_lshl_b32 {sT[5]}, {sT[5]}, 4
    s_add_u32 {sT[5]}, {sT[5]}, {sH}
    s_lshl_b32 {sT[5]}, {sT[5]}, 11
    s_add_u32 {sT[5]}, {sT[5]}, {sITO}
    s_waitcnt lgkmcnt(0)
    """)
    for r in range(8): a(f"v_pk_fma_f32 {P(ACQ,r)}, {P(T1,r)}, v[{vM}:{vR}], {P(ACQ,r)} op_sel_hi:[1,0,1] neg_lo:[1,0,0] neg_hi:[1,0,0]")
    for r in range(8): a(f"v_pk_fma_f32 {P(ACQ,r)}, {P(ACQ,r)}, v[{vM}:{vR}], v[0:1] op_sel:[0,1,0] op_sel_hi:[1,1,0]")
    for r in range(8): a(f"v_pk_mul_f32 {P(T1,r)}, {P(ACQ,r)}, v[0:1] op_sel:[0,1] op_sel_hi:[1,1]")
    for r in range(16):
        a(f"v_exp_f32_e64 v{T1+r}, v{T1+r} clamp")
        a(f"v_max_f32 v{ACQ+r}, {sT[3]}, v{ACQ+r}")
    for r in range(8): a(f"v_pk_add_f32 {P(ACQ,r)}, {P(ACQ,r)}, {P(T1,r)}")
    for r in range(8): a(f"v_cvt_pk_bf16_f32 v{T1+r}, v{ACQ+2*r}, v{ACQ+2*r+1}")
    a.lstore([f"buffer_store_dwordx4 {vr(T1,4)}, v{vL16}, {SWS}, {sT[5]} offen", f"buffer_store_dwordx4 {vr(T1+4,4)}, v{vL16}, {SWS}, {sT[5]} offen offset:1024"])
    a.stamp("a1_end")

def helper_index(a):
    a(f"""
    s_and_b32 {sT[0]}, s2, 7
    s_lshl_b32 {sT[0]}, {sT[0]}, 2
    s_lshr_b32 {sT[1]}, s2, 3
    s_add_u32 {sT[0]}, {sT[0]}, {sT[1]}
    s_sub_u32 {sT[0]}, {sT[0]}, 28
    s_lshl_b32 {sT[0]}, {sT[0]}, 2
    s_add_u32 {sT[0]}, {sT[0]}, {sW}         ; hw 0..127
    """)

KB, KAD, KSA = 128, 190, 191
def kvr_setup(a):
    t2, t3, t4, t5 = 184, 185, 186, 187
    a(f"""
    v_lshrrev_b32 v{t2}, 4, v{vLANE}
    v_and_b32 v{t3}, 15, v{vLANE}
    v_lshlrev_b32 v{t2}, 12, v{t2}
    v_lshl_add_u32 v{KAD}, v{t3}, 4, v{t2}
    s_lshr_b32 {sT[0]}, s2, 3
    s_lshr_b32 {sT[1]}, {sT[0]}, 1
    s_and_b32 {sT[8]}, {sT[0]}, 1
    s_lshl_b32 {sT[6]}, {sT[1]}, 16
    s_lshl_b32 {sT[4]}, {sT[8]}, 11
    s_add_u32 {sT[6]}, {sT[6]}, {sT[4]}
    s_lshl_b32 {sT[4]}, {sW}, 8
    s_add_u32 {sT[6]}, {sT[6]}, {sT[4]}
    s_add_u32 {sT[6]}, {sT[6]}, {sITO}
    s_add_u32 {sT[6]}, {sT[6]}, {KVP}
    s_lshl_b32 {sT[4]}, {sWL}, 4
    v_add_u32 v{t3}, {sT[4]}, v{t3}
    v_cmp_le_u32 vcc, 14, v{t3}
    v_cndmask_b32 v{t4}, 0, 1, vcc
    v_mul_u32_u24 v{t5}, 14, v{t4}
    v_sub_u32 v{t5}, v{t3}, v{t5}
    v_cmp_le_u32 vcc, 28, v{t3}
    v_and_b32 v{t2}, 1, v{t3}
    v_add_u32 v{t2}, 14, v{t2}
    v_cndmask_b32 v{t5}, v{t5}, v{t2}, vcc
    v_bfe_u32 v{t2}, v{t3}, 1, 1
    v_cndmask_b32 v{t4}, v{t4}, v{t2}, vcc
    v_and_b32 v{t2}, 3, v{t5}
    v_lshrrev_b32 v{t5}, 2, v{t5}
    v_lshl_add_u32 v{t2}, v{t5}, 3, v{t2}
    v_lshl_add_u32 v{t2}, v{t4}, 2, v{t2}
    v_lshlrev_b32 v{KSA}, 4, v{t2}
    s_lshl_b32 {sT[7]}, {sT[0]}, 10
    s_lshl_b32 {sT[4]}, {sWH}, 9
    s_add_u32 {sT[7]}, {sT[7]}, {sT[4]}
    s_and_b32 {sT[4]}, s2, 7
    s_lshl_b32 {sT[4]}, {sT[4]}, 15
    s_add_u32 {sT[7]}, {sT[7]}, {sT[4]}
    s_add_u32 {sT[7]}, {sT[7]}, {sITO}
    s_add_u32 {sT[7]}, {sT[7]}, {KVF}
    s_and_b32 {sT[4]}, {sT[8]}, {sWH}
    s_cmp_eq_u32 {sT[4]}, 1
    s_cselect_b32 {sT[10]}, 0, -1
    """)
def kvr_loads(a):
    B = KB
    for i in range(4):
        a(f"s_add_u32 {sT[2]}, {sT[6]}, {i*0x4000}")
        a(f"buffer_load_dwordx4 {vr(B+4*i,4)}, v{KAD}, {SWS}, {sT[2]} offen {SC}")
        a(f"buffer_load_dwordx4 {vr(B+16+4*i,4)}, v{KAD}, {SWS}, {sT[2]} offen offset:1024 {SC}")
def kvr_finish(a):
    B, SA = KB, KSA
    a.check(range(B, B + 32), lambda: (a(f"s_sleep {OPT.get('rsl', 5)}"), kvr_loads(a)), 0)
    bs = (B, B + 16)
    for b in bs:
        a(f"""
        v_pk_add_f32 v[{b}:{b+1}], v[{b}:{b+1}], v[{b+4}:{b+5}]
        v_pk_add_f32 v[{b+2}:{b+3}], v[{b+2}:{b+3}], v[{b+6}:{b+7}]
        v_pk_add_f32 v[{b+8}:{b+9}], v[{b+8}:{b+9}], v[{b+12}:{b+13}]
        v_pk_add_f32 v[{b+10}:{b+11}], v[{b+10}:{b+11}], v[{b+14}:{b+15}]
        v_pk_add_f32 v[{b}:{b+1}], v[{b}:{b+1}], v[{b+8}:{b+9}]
        v_pk_add_f32 v[{b+2}:{b+3}], v[{b+2}:{b+3}], v[{b+10}:{b+11}]
        """)
    for b in bs: a(f"v_permlane32_swap_b32 v{b}, v{b+2}\n v_permlane32_swap_b32 v{b+1}, v{b+3}")
    for b in bs: a(f"v_pk_add_f32 v[{b}:{b+1}], v[{b}:{b+1}], v[{b+2}:{b+3}]")
    for b in bs: a(f"v_permlane16_swap_b32 v{b}, v{b+1}")
    for b in bs: a(f"v_add_f32 v{b}, v{b}, v{b+1}")
    for b in bs: a(f"v_mov_b32 v{b+1}, v{b}")
    for b in bs: a(f"v_permlane16_swap_b32 v{b}, v{b+1}")
    O = B + 32
    a(f"""
    v_cvt_pk_bf16_f32 v{O}, v{B}, v{B+1}
    v_cvt_pk_bf16_f32 v{O+2}, v{B+16}, v{B+17}
    v_and_b32 v{O+2}, {sT[10]}, v{O+2}
    v_mov_b32 v{O+1}, v{O}
    v_mov_b32 v{O+3}, v{O+2}
    v_permlane32_swap_b32 v{O}, v{O+1}
    v_permlane32_swap_b32 v{O+2}, v{O+3}
    s_mov_b64 exec, 0xffff
    """)
    a.lstore([f"buffer_store_dwordx4 {vr(O,4)}, v{SA}, {SWS}, {sT[7]} offen"])
    a("s_mov_b64 exec, -1")

RED = 0x20000
def red_addrs(a, base, partner_xor, v_own, v_par):
    a(f"""
    s_lshl_b32 {sT[0]}, {sW}, 13
    s_add_u32 {sT[0]}, {sT[0]}, {base}
    v_add_u32 v{v_own}, {sT[0]}, v{vL16}
    v_xor_b32 v{v_par}, {partner_xor*8192}, v{v_own}
    """)
def pair_reduce(a, acc0, acc1, v_own, v_par, after_barrier=None):
    for q in range(4): a(f"ds_write_b128 v{v_own}, {vr(acc1+4*q,4)} offset:{1024*q}")
    a("s_waitcnt lgkmcnt(0)\n s_barrier")
    for q in range(4): a(f"ds_read_b128 {vr(acc1+4*q,4)}, v{v_par} offset:{1024*q}")
    if after_barrier: after_barrier()
    for q in range(4):
        a(f"s_waitcnt lgkmcnt({3-q})")
        for r in range(2): a(f"v_pk_add_f32 {vr(acc0+4*q+2*r,2)}, {vr(acc0+4*q+2*r,2)}, {vr(acc1+4*q+2*r,2)}")

def helper_work(a):
    L = a.label("HW")
    a(f"""
    v_lshrrev_b32 v4, 2, v{vLANE}
    v_mul_u32_u24 v4, 2688, v4
    v_and_b32 v5, 3, v{vLANE}
    v_lshl_add_u32 v4, v5, 4, v4
    v_mov_b32 v8, -1
    v_mov_b32 v9, -1
    v_mov_b32 v10, -1
    v_mov_b32 v11, -1
    v_lshlrev_b32 v6, 7, v{vLANE}
    """)
    def warm(srd, lo, hi):
        if not OPT.get("warm", 1): return
        LL = a.label("HWW")
        a(f"""
        s_lshl_b32 {sT[1]}, {sT[0]}, 13
        s_add_u32 {sT[1]}, {sT[1]}, {lo}
        {LL}:
        buffer_load_dword v7, v6, {srd}, {sT[1]} offen
        s_add_u32 {sT[1]}, {sT[1]}, {128*8192}
        s_cmp_lt_u32 {sT[1]}, {hi}
        s_cbranch_scc1 {LL}
        """)
    def fill(lo, hi):
        LL = a.label("HWF")
        a(f"""
        s_lshl_b32 {sT[1]}, {sT[0]}, 10
        s_add_u32 {sT[1]}, {sT[1]}, {lo}
        {LL}:
        buffer_store_dwordx4 v[8:11], v{vL16}, {SWS}, {sT[1]} offen {SC}
        s_add_u32 {sT[1]}, {sT[1]}, {128*1024}
        s_cmp_lt_u32 {sT[1]}, {hi}
        s_cbranch_scc1 {LL}
        """)
    def signal(off):
        LL = a.label("HWS")
        a(f"""
        s_waitcnt vmcnt(0)
        s_barrier
        s_cmp_lg_u32 {sW}, 0
        s_cbranch_scc1 {LL}
        v_mov_b32 v2, 1
        v_mov_b32 v3, {off}
        s_mov_b64 exec, 1
        buffer_atomic_add v2, v3, {SDBG}, 0 offen sc1
        s_mov_b64 exec, -1
        {LL}:
        """)
        a.xstamp({196: 54, 4: 55, 68: 56, 132: 57}[off])
    fill(ST, UF)
    signal(196)
    if OPT.get('t23', 1) == 2: warm(SW1, 0, F * S * 2)
    fill(UF, ITB)
    signal(4)
    if OPT.get('hw', 1) == 0: warm(SW2, 0, F * S * 2)
    for i in range(11):
        a(f"""
        s_add_u32 {sT[1]}, {sT[0]}, {128*i}
        s_min_u32 {sT[1]}, {sT[1]}, 1343
        s_mul_i32 {sT[2]}, {sT[1]}, 3121
        s_lshr_b32 {sT[2]}, {sT[2]}, 18
        s_mul_i32 {sT[3]}, {sT[2]}, 84
        s_sub_u32 {sT[3]}, {sT[1]}, {sT[3]}
        s_mul_i32 {sT[2]}, {sT[2]}, 56
        s_and_b32 {sT[2]}, {sT[2]}, 0xfff0
        s_lshr_b32 {sT[4]}, {sT[3]}, 1
        s_and_b32 {sT[5]}, {sT[3]}, 1
        s_add_u32 {sT[5]}, {sT[5]}, 1
        s_sub_u32 {sT[6]}, {sT[3]}, 56
        s_cmp_lt_u32 {sT[3]}, 56
        s_cselect_b32 {sT[4]}, {sT[4]}, {sT[6]}
        s_cselect_b32 {sT[5]}, {sT[5]}, 0
        s_mul_i32 {sT[4]}, {sT[4]}, {16*2688}
        s_mul_i32 {sT[5]}, {sT[5]}, 896
        s_add_u32 {sT[2]}, {sT[2]}, {sT[4]}
        s_add_u32 {sT[2]}, {sT[2]}, {sT[5]}
        buffer_load_dwordx4 {vr(16+4*i,4)}, v4, {SWQKV}, {sT[2]} offen
        """)
    a("s_waitcnt vmcnt(0)")
    for i in range(11):
        a(f"""
        s_add_u32 {sT[1]}, {sT[0]}, {128*i}
        s_min_u32 {sT[1]}, {sT[1]}, 1343
        s_lshl_b32 {sT[2]}, {sT[1]}, 10
        s_add_u32 {sT[2]}, {sT[2]}, {WQP}
        buffer_store_dwordx4 {vr(16+4*i,4)}, v{vL16}, {SWS}, {sT[2]} offen {SC}
        """)
    fill(XF, FILL_END)
    signal(68)
    if OPT.get('hw', 1) == 1: warm(SW2, 0, F * S * 2)
    fill(ITB, XF)
    signal(132)
    a.counter_wait(68, 1, 32, 2)
    a("s_barrier")
    a1_wpk_setup(a)
    for o in a1_wpk_own_ops() + a1_wpk_hi_ops(): a(o)

def phase_a2(a):
    L = a.label("A2")
    PQR, KVR, WB = 64, 128, 192
    AC0, AC1 = 16, 32
    a(f"""
    s_lshl_b32 {sT[5]}, {sST}, 1
    s_add_u32 {sT[5]}, {sT[5]}, {sWL}
    s_lshl_b32 {sAT[0]}, {sT[5]}, 15
    s_lshl_b32 {sT[1]}, {sWH}, 14
    s_add_u32 {sAT[0]}, {sAT[0]}, {sT[1]}
    s_add_u32 {sAT[0]}, {sAT[0]}, {sITO}
    s_add_u32 {sAT[1]}, {sAT[0]}, 0x2000
    s_add_u32 {sAT[2]}, {sT[1]}, {sITO}
    s_add_u32 {sAT[2]}, {sAT[2]}, {KVF}
    s_add_u32 {sAT[3]}, {sAT[2]}, 0x2000
    """)
    def pq_loads():
        for i in range(16):
            a(f"buffer_load_dwordx4 {vr(PQR+4*i,4)}, v{vL16b if i&4 else vL16}, {SWS}, {sAT[i>>3]} offen offset:{(i&3)*1024} {SC}")
    def kv_loads(i0=0):
        for i in range(i0, 16):
            a(f"buffer_load_dwordx4 {vr(KVR+4*i,4)}, v{vL16b if i&4 else vL16}, {SWS}, {sAT[2+(i>>3)]} offen offset:{(i&3)*1024} {SC}")
    a(f"""
    s_and_b32 {sT[0]}, s2, 7
    s_lshl_b32 {sT[0]}, {sT[0]}, 15
    s_add_u32 {sAT[2]}, {sAT[2]}, {sT[0]}
    s_add_u32 {sAT[3]}, {sAT[3]}, {sT[0]}
    v_min_u32 v4, 15, v{vLANE}
    v_lshlrev_b32 v4, 10, v4
    v_add_u32 v4, 1020, v4
    """)
    def stage(aw, n, va, off, urows):
        for t in range(n):
            for i in range(2):
                for u in range(2):
                    a(f"ds_read_b64_tr_b16 {ar(aw + 8*t + 4*i + 2*u, 2)}, v{va+i} offset:{off + t*2048 + urows*u*128}")
    def setup():
        a(f"s_lshl_b32 {sT[11]}, {sWH}, 16\n s_add_u32 {sT[11]}, {sT[11]}, 0x8000")
        wtile_tr_addr(a, 6, 14, sWH, sT[11])
        wtile_tr_addr(a, 14, 8, sWH, sLB)
        red_addrs(a, RED, 2, 8, 9)
        for r in range(16): a(f"v_mov_b32 v{AC0+r}, v{RES+r}")
        a(f"""
        s_mul_i32 {sT[8]}, {sT[5]}, 3584
        s_add_u32 {sT[8]}, {sT[8]}, {sITO}
        s_add_u32 {sT[8]}, {sT[8]}, {ST}
        s_lshl_b32 {sT[1]}, {sDT}, 1
        s_add_u32 {sT[1]}, {sT[1]}, {sWH}
        s_lshl_b32 {sT[9]}, {sT[1]}, 8
        s_add_u32 {sT[9]}, {sT[9]}, {sT[8]}
        s_lshl_b32 {sT[12]}, {sT[1]}, 17
        s_lshl_b32 {sT[0]}, {sT[5]}, 11
        s_add_u32 {sT[12]}, {sT[12]}, {sT[0]}
        s_add_u32 {sT[12]}, {sT[12]}, {sITO}
        s_add_u32 {sT[12]}, {sT[12]}, {HF}
        v_lshrrev_b32 v2, 1, v{vLANE}
        v_lshlrev_b32 v2, 9, v2
        v_and_b32 v3, 1, v{vLANE}
        v_mul_u32_u24 v3, 96, v3
        v_add_u32 v11, v2, v3
        """)
    a(f"s_cmp_eq_u32 {sIT}, 0\n s_cbranch_scc1 {L}_s0")
    pq_loads()
    kvr_loads(a)
    setup()
    a(f"s_waitcnt vmcnt(0)\n {L}_s0r:")
    main = a.lines; a.lines = a.stubs
    a(f"{L}_s0:")
    for o in wo_ops(): a(o)
    setup()
    a(f"s_waitcnt vmcnt(17)\n s_branch {L}_s0r")
    a.lines = main
    kvr_finish(a)
    a.stamp("a2_pq")
    for o in a.wo_rest: a(o)
    a(f"s_cmp_eq_u32 {sIT}, 0\n s_cbranch_scc1 {L}_s1\n {L}_s1r:")
    main = a.lines; a.lines = a.stubs
    a(f"{L}_s1:")
    pq_loads()
    a(f"""
    v_mul_u32_u24 v2, 896, v{vL31}
    v_lshl_add_u32 v2, v{vHH}, 3, v2
    s_mul_i32 {sT[0]}, {sT[5]}, {32*896}
    s_lshl_b32 {sT[1]}, {sDT}, 7
    s_add_u32 {sT[0]}, {sT[0]}, {sT[1]}
    s_lshl_b32 {sT[1]}, {sWH}, 6
    s_add_u32 {sT[0]}, {sT[0]}, {sT[1]}
    """)
    for q in range(4): a(f"buffer_load_dwordx2 {vr(48+2*q,2)}, v2, {SX}, {sT[0]} offen offset:{16*q}")
    for o in big_dma_ops(1, 28, 4, 0, "s79"): a(o)
    a(f"s_lshl_b32 {sT[11]}, {sW}, 13\n s_sub_u32 {sT[11]}, {sT[11]}, {sLB}\n v_add_u32 v12, {sT[11]}, v14\n v_add_u32 v13, {sT[11]}, v15")
    stage(aW1 + 64, 4, 12, 0, 4)
    a(f"s_waitcnt lgkmcnt(0)\n s_branch {L}_s1r")
    a.lines = main
    a("s_waitcnt vmcnt(0)")
    a.check(range(PQR, PQR + 64), lambda: (a("s_sleep 4"), pq_loads()), 0)
    if not OPT.get('sub'): a.xstamp(59)
    a("s_barrier")
    NB = [48, RES, PQR]
    def num_ops(hd):
        n = NB[hd % 3]
        return [f"{MF} {vr(n,16)}, {vr(KVR+8*hd,4)}, {vr(PQR+8*hd,4)}, 0",
                f"{MF} {vr(n,16)}, {vr(KVR+8*hd+4,4)}, {vr(PQR+8*hd+4,4)}, {vr(n,16)}"]
    p1 = big_dma_ops(1, 0, 8, 0)
    nd = [0]; ndc = [0]
    def kvchk(hd):
        a(f"s_waitcnt vmcnt({14-2*hd+nd[0]})")
        a.check(range(KVR + 8 * hd, KVR + 8 * hd + 8), lambda hd=hd: kv_loads(2 * hd), 0 if nd[0] else 14 - 2 * hd)
    def wrd_ops(hd):
        o = []
        for t in range(2):
            for nb in range(2):
                b = WB + 16 * (hd & 1) + 4 * (2 * t + nb)
                for u in range(2):
                    o.append(f"ds_read_b64_tr_b16 {vr(b+2*u,2)}, v{6+nb} offset:{(28*hd+8*t+4*u)*128}")
        return o
    def wrd(hd):
        for o in wrd_ops(hd): a(o)
    def div_ops(hd):
        n = NB[hd % 3]
        ops = [f"v_add_f32 v10, {fbits(1e-6)}, v{n+15}", "v_rcp_f32 v10, v10"]
        for r in range(14): ops.append(f"v_mul_f32 v{n+r}, v{n+r}, v10")
        for r in range(7): ops.append(f"v_cvt_pk_bf16_f32 v{n+r}, v{n+2*r}, v{n+2*r+1}")
        ops.append(f"v_mov_b32 v{n+7}, 0")
        return ops
    def out_ops(hd):
        ops = []
        for t in range(2):
            for nb in range(2):
                acc = (AC0, AC1)[nb]
                c = vr(acc, 16) if (hd or t or nb == 0) else "0"
                ops.append(f"{MF} {vr(acc,16)}, {vr(WB+16*(hd&1)+4*(2*t+nb),4)}, {vr(NB[hd%3]+4*t,4)}, {c}")
        return ops
    kv_loads()
    a(f"s_cmp_eq_u32 {sIT}, 0\n s_cbranch_scc1 {L}_s2\n {L}_s2r:")
    main = a.lines; a.lines = a.stubs
    a(f"{L}_s2:")
    a(f"s_sub_u32 {sT[11]}, s79, {sLB}\n v_add_u32 v12, {sT[11]}, v14\n v_add_u32 v13, {sT[11]}, v15")
    stage(aW1 + 96, 4, 12, 0, 4)
    a("s_waitcnt lgkmcnt(0)")
    for q in range(8): a(f"v_lshlrev_b32 v{AC0+2*q}, 16, v{48+q}\n v_and_b32 v{AC0+2*q+1}, 0xffff0000, v{48+q}")
    a(f"s_branch {L}_s2r")
    a.lines = main
    wrd(0)
    kvchk(0)
    for o in num_ops(0): a(o)
    a.stamp("a2_kv")
    kvchk(1)
    for o in num_ops(1): a(o)
    for o in div_ops(0): a(o)
    for hd in range(8):
        va = div_ops(hd + 1) if hd + 1 < 8 else []
        ds = wrd_ops(hd + 1) if hd + 1 < 8 else []
        mf = []
        if hd + 2 < 8:
            kvchk(hd + 2)
            mf += num_ops(hd + 2)
        nnum = len(mf)
        mf += out_ops(hd)
        per = -(-len(va) // len(mf))
        nds = 0
        for j, o in enumerate(mf):
            if j == nnum: a(f"s_waitcnt lgkmcnt({nds})")
            a(o)
            for _ in range(2):
                if ds:
                    a(ds.pop(0)); nds += 1
            if j >= 2 and p1:
                a(p1.pop(0)); nd[0] += 1
            for _ in range(per):
                if va: a(va.pop(0))
        assert not va and not ds
        if hd == 0:
            a.counter_issue(196, 1); nd[0] += 1; ndc[0] = nd[0]
    assert not p1
    a.stamp("a2_mm")
    pair_reduce(a, AC0, AC1, 8, 9)
    a(f"s_waitcnt vmcnt({nd[0] - ndc[0]})")
    a.counter_check(196, 32)
    stats_publish(a, AC0, 64, sT[9])
    p2 = big_dma_ops(1, 8, 8, 0x8000)
    n2 = 0
    for o in p2[:n2]: a(o)
    stats_loads(a, sT[8], 96)
    for r in range(16): a(f"v_mov_b32 v{RES+r}, v{AC0+r}")
    TW = 128
    a(f"""
    s_add_u32 {sT[0]}, {sLB}, 0x8000
    v_lshrrev_b32 v2, 1, v{vL31}
    v_and_b32 v2, 7, v2
    v_xor_b32 v2, v2, v{vHH}
    v_lshlrev_b32 v3, 6, v{vL31}
    v_add_u32 v3, {sT[0]}, v3
    """)
    for q in range(4): a(f"v_xor_b32 v4, {2*q}, v2\n v_lshl_add_u32 v{TW+q}, v4, 3, v3")
    a(f"""
    v_lshrrev_b32 v2, 2, v{vLANE}
    v_and_b32 v2, 3, v2
    v_lshl_add_u32 v2, v{vHH}, 3, v2
    v_lshrrev_b32 v3, 4, v{vLANE}
    v_and_b32 v3, 1, v3
    v_lshlrev_b32 v3, 2, v3
    v_and_b32 v4, 3, v{vLANE}
    v_add_u32 v3, v3, v4
    v_lshrrev_b32 v4, 1, v2
    v_xor_b32 v3, v3, v4
    v_lshlrev_b32 v2, 6, v2
    v_add_u32 v2, {sT[0]}, v2
    v_lshl_add_u32 v{TW+4}, v3, 3, v2
    v_xor_b32 v3, 2, v3
    v_lshl_add_u32 v{TW+5}, v3, 3, v2
    s_waitcnt vmcnt(0)
    """)
    a.check(range(96, 110), lambda: stats_loads(a, sT[8], 96), 0, 2)
    a.stamp("a2_st")
    for o in stats_math_ops(96, 80, 82, 112): a(o)
    a(f"""
    v_add_f32 v84, {fbits(1e-5)}, v82
    v_rsq_f32 v84, v84
    v_mov_b32 v86, {fbits(1e-5)}
    v_mul_f32 v85, v82, v84
    v_fmac_f32 v86, v85, v84
    v_rsq_f32 v86, v86
    v_mul_f32 v84, v84, v86
    v_mul_f32 v86, -v80, v84
    """)
    for r in range(8): a(f"v_pk_fma_f32 {vr(32+2*r,2)}, {vr(AC0+2*r,2)}, v[84:85], v[86:87] op_sel_hi:[1,0,0]")
    for r in range(8): a(f"v_cvt_pk_bf16_f32 v{112+r}, v{32+2*r}, v{32+2*r+1}")
    for q in range(4): a(f"ds_write_b64 v{TW+q}, {vr(112+2*q,2)}")
    a(f"""
    ds_read_b64_tr_b16 v[120:121], v{TW+4}
    ds_read_b64_tr_b16 v[122:123], v{TW+5} offset:256
    ds_read_b64_tr_b16 v[124:125], v{TW+4} offset:1024
    ds_read_b64_tr_b16 v[126:127], v{TW+5} offset:1280
    s_waitcnt lgkmcnt(2)
    buffer_store_dwordx4 v[120:123], v{vL16}, {SWS}, {sT[12]} offen {SC}
    s_waitcnt lgkmcnt(0)
    buffer_store_dwordx4 v[124:127], v{vL16}, {SWS}, {sT[12]} offen offset:1024 {SC}
    s_barrier
    """)
    a.p2rest = p2[n2:]

ACC, WBF, WIN = 8, 72, 96
def ringoff(t): return ((t & 15) >> 3) * 0x8000 + (t & 7) * 2048
vTR, vPB = 6, 4
def gemm4(a, which, it, init):
    nks, nL, urows, w_is_a, aW = (32, 16, 4, True, aW1) if which == 1 else (28, 12, 8, False, aW2)
    NW, LA, R = OPT.get('nw', 8), 2, 4
    def rel(i, j): return 2 * i + j if which == 1 else i + 2 * j
    def areg(t, j): return WIN + 4 * ((2 * t + j) % 32)
    def act_load(t):
        for j in range(2):
            a(f"buffer_load_dwordx4 {vr(areg(t,j),4)}, v{vL16b if t&4 else vL16}, {SWS}, {sAT[4*j+(t>>3)]} offen offset:{(t&3)*1024} {SC}")
    def wreg(t, i, o=0, n=4):
        if t < nL: return vr(WBF + 8 * (t % 3) + 4 * i + o, n)
        return ar(aW + 8 * (t - nL) + 4 * i + o, n)
    def ldsoff(t): return ringoff(t)
    def rd(t):
        for i in range(2):
            for u in range(2):
                a(f"ds_read_b64_tr_b16 {wreg(t,i,2*u,2)}, v{vTR+i} offset:{ldsoff(t) + urows*u*128}")
    nrd = nks if it == 0 else nL
    sched = {}
    later = []
    def put(t, ops, tag):
        if t < nks - R: sched.setdefault(t, []).extend((o, tag) for o in ops)
        else: later.extend(ops)
    if it == 0:
        for k in range(16, nks): put(k - 15, big_dma_ops(which, k, 1, ringoff(k)), ("w", k))
        if which == 1:
            for p in range(12): put(OPT.get('w2t0', 24) + p, big_dma_ops(2, p, 1, ringoff(p)), ("x", 0))
        else:
            own = a1_wpk_own_ops()
            for p in range(8): put(OPT.get('wqt', 20) + p, own[2 * p:2 * p + 2], ("x", 0))
            later.extend(a1_wpk_hi_ops())
    elif which == 1:
        for p in range(12): put(OPT.get('w2t', 24) + p, big_dma_ops(2, p, 1, ringoff(p)), ("x", 0))
    q = []
    NO = OPT.get("no", 4)
    for t in range(NW):
        if t >= NO: act_load(t)
        q += [("a", t)] * 2
    init()
    def cnt(item):
        idx = max(i for i, x in enumerate(q) if x == item)
        return min(len(q) - 1 - idx, 63)
    dma_seen = [False]
    lq = []
    for t in range(LA): lq.append(t)
    def check_grp(t, n):
        c = cnt(("a", t + n - 1))
        a(f"s_waitcnt vmcnt({c})")
        hi = max(x[1] for x in q if x[0] == "a") + 1
        regs = [areg(tt, j) + k for tt in range(t, t + n) for j in range(2) for k in range(4)]
        a.check(regs, lambda t=t, hi=hi: [act_load(tt) for tt in range(t, hi)], c if not dma_seen[0] else 0)
    def mfma(t, i, j):
        acc = ACC + 16 * rel(i, j)
        c_ = vr(acc, 16) if (t or rel(i, j) == 0) else "0"
        x = vr(areg(t, j), 4)
        return f"{MF} {vr(acc,16)}, {wreg(t,i)}, {x}, {c_}" if w_is_a else f"{MF} {vr(acc,16)}, {x}, {wreg(t,i)}, {c_}"
    def issue_rd(t):
        if t < nrd:
            if it == 0 and t >= 16:
                assert q.count(("w", t)) == 2
                a(f"s_waitcnt vmcnt({cnt(('w', t))})")
            rd(t); lq.append(t)
    def wait_rd(t):
        if t < nrd:
            n = len([x for x in lq if x > t])
            a(f"s_waitcnt lgkmcnt({4*n})")
    for t in range(nks - R):
        if t % 2 == 0:
            check_grp(t, 2)
            if t == 0: a.stamp("acq")
        issue_rd(t + LA)
        wait_rd(t)
        ex = list(sched.get(t, []))
        for (i, j) in ((0, 0), (1, 0), (0, 1), (1, 1)):
            a(mfma(t, i, j))
            if ex:
                o, tag = ex.pop(0)
                a(o); q.append(tag); dma_seen[0] = True
        assert not ex
        if t + NW < nks:
            act_load(t + NW); q += [("a", t + NW)] * 2
    assert all(k < nks - R for k in sched), sorted(sched)
    t0 = nks - R
    for t in range(t0 + LA, nks): issue_rd(t)
    check_grp(t0, R)
    if nrd == nks: a("s_waitcnt lgkmcnt(0)")
    wofs = {1: 0xA000, 2: 0xB000}
    def wr(r_):
        for k in range(4):
            if r_ == 3 and which == 1: a(f"ds_write_b128 v1, {vr(ACC+16*r_+4*k,4)} offset:{1024*k}")
            else: a(f"ds_write_b128 v0, {vr(ACC+16*r_+4*k,4)} offset:{wofs.get(r_, 0x9000)+1024*k}")
    order = sorted([(i, j) for i in range(2) for j in range(2)], key=lambda x: -rel(*x))
    addr_ops = [f"v_add_u32 v0, {sLB}, v{vL16}", f"v_xor_b32 v2, 0x4000, v0", f"v_xor_b32 v3, 0x10000, v0"]
    if which == 1:
        addr_ops += [f"s_lshl_b32 {sT[0]}, {sW}, 12", f"s_add_u32 {sT[0]}, {sT[0]}, 0x20000", f"v_add_u32 v1, {sT[0]}, v{vL16}", f"v_xor_b32 v5, 0x3000, v1"]
    else:
        addr_ops += [f"v_xor_b32 v5, 0x14000, v0"]
    for n_, (i, j) in enumerate(order):
        for t in range(t0, nks):
            a(mfma(t, i, j))
            for _ in range(2):
                if addr_ops: a(addr_ops.pop(0))
        if n_ >= 1: wr(rel(*order[n_ - 1]))
    a.stamp("mm")
    a("s_waitcnt lgkmcnt(0)\n s_barrier")
    for r_, va, of in ((1, 2, 0xA000), (2, 3, 0xB000), (3, 5, 0 if which == 1 else 0x9000)):
        for k in range(4): a(f"ds_read_b128 {vr(ACC+16*r_+4*k,4)}, v{va} offset:{of+1024*k}")
    return later

def red_finish(a):
    for r_ in range(1, 4):
        a(f"s_waitcnt lgkmcnt({4*(3-r_)})")
        for k in range(8): a(f"v_pk_add_f32 {vr(ACC+2*k,2)}, {vr(ACC+2*k,2)}, {vr(ACC+16*r_+2*k,2)}")

def act_tables(a, s_abs, slice_stride, s_keep, nks):
    a(f"""
    s_mul_i32 {sT[0]}, {s_keep}, {slice_stride}
    s_add_u32 {sAT[0]}, {s_abs}, {sT[0]}
    s_sub_u32 {sT[0]}, {slice_stride}, {sT[0]}
    s_add_u32 {sAT[4]}, {s_abs}, {sT[0]}
    """)
    for k in range(1, 4):
        a(f"s_add_u32 {sAT[k]}, {sAT[0]}, {k*0x2000}\n s_add_u32 {sAT[4+k]}, {sAT[4]}, {k*0x2000}")
    a(f"""
    v_min_u32 v{vPB}, {nks-1}, v{vL31}
    v_lshlrev_b32 v{vPB}, 10, v{vPB}
    v_mul_u32_u24 v2, {slice_stride}, v{vHH}
    v_add3_u32 v{vPB}, v{vPB}, v2, 60
    v_add_u32 v{vPB}, 960, v{vPB}
    """)

def opt_loads(a):
    for t in range(OPT.get("no", 4)):
        for j in range(2):
            a(f"buffer_load_dwordx4 {vr(WIN + 4*(2*t+j),4)}, v{vL16b if t&4 else vL16}, {SWS}, {sAT[4*j]} offen offset:{(t&3)*1024} {SC}")

def first_rd(a, which):
    urows = 4 if which == 1 else 8
    for t in range(2):
        for i in range(2):
            for u in range(2):
                a(f"ds_read_b64_tr_b16 {vr(WBF+8*t+4*i+2*u,2)}, v{vTR+i} offset:{t*2048 + urows*u*128}")

def two_its(a, L, body):
    n0 = a.nstamp; names0 = list(getattr(a, "names", []))
    a(f"s_cmp_eq_u32 {sIT}, 0\n s_cbranch_scc0 {L}_i1")
    r0 = body(0)
    a(f"s_branch {L}_j\n {L}_i1:")
    a.nstamp = n0
    if STAMPS: a.names = names0
    r1 = body(1)
    a(f"{L}_j:")
    return r0, r1

def phase_b1(a):
    L = a.label("B1")
    for o in a.p2rest: a(o)
    a.counter_issue(4, 1)
    a(f"""
    v_lshlrev_b32 v3, 3, v{vHH}
    s_lshl_b32 {sT[0]}, {sFT}, 7
    s_lshl_b32 {sT[1]}, {sWH}, 6
    s_add_u32 {sT[0]}, {sT[0]}, {sT[1]}
    """)
    for q in range(4): a(f"buffer_load_dwordx2 {vr(24+2*q,2)}, v3, {SB1}, {sT[0]} offen offset:{16*q}")
    a(f"""
    s_lshl_b32 {sT[6]}, {sDT1}, 18
    s_lshl_b32 {sT[3]}, {sW}, 15
    s_add_u32 {sT[6]}, {sT[6]}, {sT[3]}
    s_add_u32 {sT[6]}, {sT[6]}, {sITO}
    s_add_u32 {sT[6]}, {sT[6]}, {HF}
    """)
    act_tables(a, sT[6], 128 * 1024, sWL, 32)
    wtile_tr_addr(a, vTR, 8, sWH, sLB)
    a(f"""
    s_lshl_b32 {sT[5]}, {sDT1}, 1
    s_add_u32 {sT[5]}, {sT[5]}, {sWL}
    s_mul_i32 {sT[7]}, {sT[5]}, {112*1024}
    s_lshl_b32 {sT[1]}, {sFT}, 12
    s_add_u32 {sT[7]}, {sT[7]}, {sT[1]}
    s_lshl_b32 {sT[1]}, {sWH}, 11
    s_add_u32 {sT[7]}, {sT[7]}, {sT[1]}
    s_add_u32 {sT[7]}, {sT[7]}, {sITO}
    s_add_u32 {sT[7]}, {sT[7]}, {UF}
    """)
    first_rd(a, 1)
    a.probe(vPB, sT[6], 5, 1, extra=lambda: opt_loads(a), nextra=2*OPT.get("no", 4))
    a.stamp("probe")
    def init():
        for q in range(8): a(f"v_lshlrev_b32 v{ACC+2*q}, 16, v{24+q}\n v_and_b32 v{ACC+2*q+1}, 0xffff0000, v{24+q}")
    later = gemm4(a, 1, 1, init)
    nmid = OPT.get("w2mid", 0)
    for o in later[:nmid]: a(o)
    later = later[nmid:]
    a.counter_check(4, 32)
    c0 = -2 * 0.7978845608028654 * LOG2E
    c1 = c0 * 0.044715
    a(f"v_mov_b32 v0, {fbits(c1)}\n v_mov_b32 v1, {fbits(c0)}")
    red_finish(a)
    U, T = ACC, 96
    for r in range(8): a(f"v_pk_mul_f32 {vr(T+2*r,2)}, {vr(U+2*r,2)}, {vr(U+2*r,2)}")
    for r in range(8): a(f"v_pk_fma_f32 {vr(T+2*r,2)}, {vr(T+2*r,2)}, v[0:1], v[0:1] op_sel:[0,0,1] op_sel_hi:[1,0,1]")
    for r in range(8): a(f"v_pk_mul_f32 {vr(T+2*r,2)}, {vr(T+2*r,2)}, {vr(U+2*r,2)}")
    for r in range(16): a(f"v_exp_f32 v{T+r}, v{T+r}")
    for r in range(8): a(f"v_pk_add_f32 {vr(T+2*r,2)}, {vr(T+2*r,2)}, 1.0 op_sel_hi:[1,0]")
    for r in range(16): a(f"v_rcp_f32 v{T+r}, v{T+r}")
    for r in range(8): a(f"v_pk_mul_f32 {vr(T+2*r,2)}, {vr(T+2*r,2)}, {vr(U+2*r,2)}")
    for r in range(8): a(f"v_cvt_pk_bf16_f32 v{112+r}, v{T+2*r}, v{T+2*r+1}")
    a(f"""
    buffer_store_dwordx4 v[112:115], v{vL16}, {SWS}, {sT[7]} offen {SC}
    buffer_store_dwordx4 v[116:119], v{vL16}, {SWS}, {sT[7]} offen offset:1024 {SC}
    """)
    for o in later: a(o)

def phase_b2(a):
    L = a.label("B2")
    a(f"""
    s_lshl_b32 {sT[7]}, {sST}, 1
    s_add_u32 {sT[7]}, {sT[7]}, {sWL}
    v_lshlrev_b32 v3, 1, v{vL31}
    s_lshl_b32 {sT[0]}, {sT[7]}, 6
    buffer_load_ushort v24, v3, {SB2}, {sT[0]} offen
    s_mul_i32 {sT[6]}, {sDT}, {224*1024}
    s_mul_i32 {sT[0]}, {sW}, {28*1024}
    s_add_u32 {sT[6]}, {sT[6]}, {sT[0]}
    s_add_u32 {sT[6]}, {sT[6]}, {sITO}
    s_add_u32 {sT[6]}, {sT[6]}, {UF}
    """)
    act_tables(a, sT[6], 112 * 1024, sWH, 28)
    wtile_tr_addr(a, vTR, 4, sWL, sLB)
    a1_wpk_setup(a)
    a(f"""
    s_lshl_b32 {sT[5]}, {sDT}, 1
    s_add_u32 {sT[5]}, {sT[5]}, {sWH}
    s_mul_i32 {sT[8]}, {sT[7]}, {28*1024}
    s_lshl_b32 {sT[1]}, {sT[5]}, 11
    s_add_u32 {sT[8]}, {sT[8]}, {sT[1]}
    s_add_u32 {sT[8]}, {sT[8]}, {XF}
    s_mul_i32 {sT[9]}, {sT[7]}, 3584
    s_lshl_b32 {sT[1]}, {sT[5]}, 8
    s_add_u32 {sT[9]}, {sT[9]}, {sT[1]}
    s_add_u32 {sT[9]}, {sT[9]}, {ST2}
    s_mul_i32 {sT[12]}, {sT[7]}, {32*896}
    s_lshl_b32 {sT[1]}, {sT[5]}, 6
    s_add_u32 {sT[12]}, {sT[12]}, {sT[1]}
    s_barrier
    s_cmp_eq_u32 {sIT}, 0
    s_cbranch_scc0 {L}_nx
    """)
    for o in big_dma_ops(2, 12, 4, ringoff(12)): a(o)
    a(f"{L}_nx:")
    a.counter_issue(68, 1)
    a.probe(vPB, sT[6], 5, 1, extra=lambda: opt_loads(a), nextra=2*OPT.get("no", 4))
    first_rd(a, 2)
    a.counter_check(68, 32)
    a.stamp("probe")
    def init():
        a("v_lshlrev_b32 v24, 16, v24")
        for r in range(16): a(f"v_add_f32 v{ACC+r}, v{RES+r}, v24")
    later = two_its(a, L, lambda it: gemm4(a, 2, it, init))
    a(f"v_mul_u32_u24 v0, 896, v{vL31}\n v_lshl_add_u32 v0, v{vHH}, 3, v0")
    red_finish(a)
    for r in range(8): a(f"v_cvt_pk_bf16_f32 v{112+r}, v{ACC+2*r}, v{ACC+2*r+1}")
    a(f"""
    s_cmp_eq_u32 {sIT}, 0
    s_cbranch_scc0 {L}_fin
    """)
    a.lstore([f"buffer_store_dwordx4 v[112:115], v{vL16}, {SWS}, {sT[8]} offen", f"buffer_store_dwordx4 v[116:119], v{vL16}, {SWS}, {sT[8]} offen offset:1024"])
    stats_publish(a, ACC, 72, sT[9])
    for o in later[0]: a(o)
    for r in range(16): a(f"v_mov_b32 v{RES+r}, v{ACC+r}")
    a(f"s_branch {L}_end\n {L}_fin:")
    for q in range(4): a(f"buffer_store_dwordx2 {vr(112+2*q,2)}, v0, {SOUT}, {sT[12]} offen offset:{16*q}")
    a(f"{L}_end:")

def build():
    a = K(); a.stubs = []
    kernel_begin(a, KNAME)
    prologue(a)
    if STAMPS: a("v_mov_b32 v255, 0")
    a("L_iter:")
    a.stamp("start")
    phase_a1(a)
    a(f"s_cmp_ge_u32 {sACT}, 8\n s_cbranch_scc1 L_helper")
    phase_a2(a)
    a.stamp("a2_end")
    a(f"s_cmp_ge_u32 {sACT}, 7\n s_cbranch_scc1 L_skipb1")
    phase_b1(a)
    a("s_branch L_b2\n L_skipb1:")
    for o in big_dma_ops(2, 0, 8, 0) + big_dma_ops(2, 8, 4, 0x8000): a(o)
    a.counter_wait(4, 1, 32, 2)
    a("L_b2:")
    a.stamp("b1_end")
    phase_b2(a)
    a.stamp("b2_end")
    a(f"""
    L_next:
    s_cmp_eq_u32 {sIT}, 1
    s_cbranch_scc1 L_fin
    s_mov_b32 {sIT}, 1
    s_mov_b32 {sITO}, {ITB}
    s_branch L_iter
    L_helper:
    """)
    a(f"s_cmp_eq_u32 {sIT}, 0\n s_cbranch_scc1 L_hnl")
    kvr_loads(a)
    a("L_hnl:\n s_waitcnt vmcnt(0)")
    kvr_finish(a)
    helper_index(a)
    if not OPT.get('sub'): a.xstamp(53)
    a("s_waitcnt vmcnt(0)\n s_barrier")
    a(f"""
    s_cmp_eq_u32 {sIT}, 1
    s_cbranch_scc1 L_fin
    """)
    helper_work(a)
    a("s_branch L_next")
    a("L_fin:")
    a.stamp_dump()
    a("L_end:\n s_endpgm")
    a.lines += a.stubs
    a.lines.append('L_codeend:')
    if STAMPS: open("stamps.txt", "w").write("\n".join(a.names))
    for i in range(len(a.lines) - 1):
        if a.lines[i].strip().startswith(f"s_add_u32 {sT[2]},") and a.lines[i+1].strip().startswith("s_add_u32 m0,"):
            a.lines[i], a.lines[i+1] = a.lines[i+1], a.lines[i]
    lines, n = haz.fix(a.lines)
    if OPT.get('align', 1):
        lines, st_ = align.align(lines, OPT.get('minrun', 5)); print('align', st_)
    hdr = f"; @launch grid=(256,1,1) block=(256,1,1) lds=163840\n"
    return hdr + '.amdgcn_target "amdgcn-amd-amdhsa--gfx950"\n.text\n' + "\n".join(lines) + "\n" + '.section .rodata,"a"\n' + descriptor(KNAME, 512, accum=256)

if __name__ == "__main__":
    out = sys.argv[1]
    for o in sys.argv[2:]:
        if o == "stamps": STAMPS = True
        else:
            k_, v_ = o.split("="); OPT[k_] = int(v_)
    open(out, "w").write(build())
```

```python
import sys, struct
sys.path.insert(0, "work")
from gen import *
import haz, align

KNAME = NAME + "_kernel"
S, D, F = 2048, 448, 1792
ITB = 0x538000 + 0x188000
PQ, KVP, KVF, ST, HF, UF = 0x0, 0x200000, 0x300000, 0x340000, 0x378000, 0x538000
assert UF + 14 * 112 * 1024 == ITB
XF = 2 * ITB
ST2 = XF + 0x1C0000
FILL_END = ST2 + 0x38000
WQP = 0x1000000
assert FILL_END <= WQP
STAMP_OFF = 0x2000000
WS_SIZE = 0x10000000
LOG2E = 1.4426950408889634
def fbits(x): return "0x%08x" % struct.unpack("<I", struct.pack("<f", x))[0]

SX, SWQKV, SWO, SW1, SW2, SB1, SB2, SOUT, SWS, SDBG = [f"s[{i}:{i+3}]" for i in range(4, 44, 4)]
sW, sRB, sH, sDT, sST, sFT, sACT, sIT, sITO, sBUD = "s3", "s44", "s45", "s46", "s47", "s48", "s49", "s50", "s51", "s52"
sWH, sWL, sLB = "s53", "s54", "s55"
sT = [f"s{i}" for i in range(56, 72)]
sW1B, sW2B = 's72', 's73'
sAT = [f"s{i}" for i in range(88, 96)]
SC = "sc1"
sDT1, sLOC, sXSH = 's99', 's100', 's101'
STAMPS = False
OPT = {}

def vr(b, n=1): return f"v{b}" if n == 1 else f"v[{b}:{b+n-1}]"
def ar(b, n=1): return f"a{b}" if n == 1 else f"a[{b}:{b+n-1}]"
MF = "v_mfma_f32_32x32x16_bf16"

vL16, vL16b, vHH, vL31, vLANE, vL8, vDW1, vDW2, CSK, CSV, vDWO, vMAX, vCNT, vCNA = range(240, 254)
assert CSK % 2 == 0
RES = 224
vKRS = 254
aW1, aW2 = 0, 128

class K(Asm):
    nstamp = 0
    stubs = None
    def stamp(self, name=""):
        if "echo" in OPT:
            if self.nstamp == OPT["echo"] % 32:
                self(f"s_memrealtime s[84:85]\n s_waitcnt lgkmcnt(0)\n s_cmp_eq_u32 {sIT}, {OPT['echo'] // 32}\n s_cselect_b32 s82, s84, s82")
            self.nstamp += 1
            return
        if not STAMPS: return
        self(f"{'s_memtime' if OPT.get('clk') else 's_memrealtime'} s[96:97]\n s_lshl_b32 s98, {sIT}, 5\n s_add_u32 s98, s98, {self.nstamp}\n s_waitcnt lgkmcnt(0)\n s_mov_b32 m0, s98\n v_writelane_b32 v255, s96, m0")
        self.names = getattr(self, "names", []) + [name]
        self.nstamp += 1
        assert self.nstamp <= 32
    def xstamp(self, idx):
        if not STAMPS: return
        self(f"{'s_memtime' if OPT.get('clk') else 's_memrealtime'} s[96:97]\n s_waitcnt lgkmcnt(0)\n v_writelane_b32 v255, s96, {idx}")
    def stamp_dump(self):
        if not STAMPS: return
        self(f"""
        s_lshl_b32 s98, s2, 2
        s_add_u32 s98, s98, {sW}
        s_lshl_b32 s98, s98, 8
        s_add_u32 s98, s98, {STAMP_OFF}
        v_lshlrev_b32 v2, 2, v{vLANE}
        buffer_store_dword v255, v2, {SWS}, s98 offen
        """)
        if "dbg" in OPT:
            sel = {0: list(range(0, 14)), 1: [0, 12, 14, 15, 16, 18, 19, 35, 37, 40, 43, 46, 50, 51]}[OPT["dbg"]]
            L = self.label("DS")
            self(f"s_lshl_b32 s98, s2, 2\n s_add_u32 s98, s98, {sW}\n s_cmp_eq_u32 s98, {OPT.get('dbgw', 1)}\n s_cbranch_scc0 {L}")
            self("v_readlane_b32 s97, v255, 0")
            for i, ln in enumerate(sel):
                self(f"v_readlane_b32 s96, v255, {ln}\n s_sub_u32 s96, s96, s97\n v_writelane_b32 v3, s96, {i}")
            self(f"s_mov_b64 exec, 0x3fff\n buffer_store_dword v3, v2, {SDBG}, 0 offen offset:8\n s_mov_b64 exec, -1\n {L}:")
    def srd(self, dst, ptr, size):
        b = int(dst[2:dst.index(":")])
        self(f"s_mov_b32 s{b}, s{ptr}\n s_mov_b32 s{b+1}, s{ptr+1}\n s_mov_b32 s{b+2}, {size}\n s_mov_b32 s{b+3}, 0x00020000")
    def halfsum(self, v, tmp):
        self(f"v_mov_b32 {tmp}, {v}\n v_permlane32_swap_b32 {v}, {tmp}\n v_add_f32 {v}, {v}, {tmp}")
    def check_ops(self, regs):
        regs = list(regs); ops = []
        if len(regs) == 1:
            return [f"v_cmp_eq_u32 vcc, -1, v{regs[0]}"]
        if len(regs) % 2 == 1:
            ops.append(f"v_max3_u32 v{vMAX}, v{regs[0]}, v{regs[1]}, v{regs[2]}"); rest = regs[3:]
        else:
            ops.append(f"v_max_u32 v{vMAX}, v{regs[0]}, v{regs[1]}"); rest = regs[2:]
        for i in range(0, len(rest), 2):
            ops.append(f"v_max3_u32 v{vMAX}, v{vMAX}, v{rest[i]}, v{rest[i+1]}")
        ops.append(f"v_cmp_eq_u32 vcc, -1, v{vMAX}")
        return ops
    def check_branch(self, regs, reissue, wait_after):
        L = self.label("CK")
        self(f"s_cbranch_vccnz {L}_r\n {L}_k:")
        main = self.lines
        self.lines = self.stubs
        self(f"{L}_r:\n s_cmp_le_i32 {sBUD}, 0\n s_cbranch_scc1 {L}_k\n s_sub_u32 {sBUD}, {sBUD}, 1")
        reissue()
        self(f"s_waitcnt vmcnt({wait_after})")
        for o in self.check_ops(regs): self(o)
        self(f"s_cbranch_vccnz {L}_r\n s_branch {L}_k")
        self.lines = main
    def check(self, regs, reissue, wait_after, gran=4):
        if OPT.get("c1", 1): regs = list(regs)[gran-1::gran]
        for o in self.check_ops(regs): self(o)
        self.check_branch(regs, reissue, wait_after)
    def probe_issue(self, voff, soff, vt, nreg=1):
        ld = {1: "buffer_load_dword", 4: "buffer_load_dwordx4"}[nreg]
        self(f"{ld} {vr(vt,nreg)}, v{voff}, {SWS}, {soff} offen {SC}")
    def probe(self, voff, soff, vt, nreg=1, issued=False, sleep=0, extra=None, nextra=0):
        L = self.label("PB")
        if issued: self(f"s_branch {L}_c")
        if sleep: self(f"s_branch {L}_q")
        self(f"{L}_p:")
        if sleep: self(f"s_sleep {sleep}\n {L}_q:")
        self.probe_issue(voff, soff, vt, nreg)
        if extra: extra()
        self(f"s_sub_u32 {sBUD}, {sBUD}, 1\n {L}_c:\n s_waitcnt vmcnt({nextra})")
        if nreg == 1: self(f"v_cmp_eq_u32 vcc, -1, v{vt}")
        else:
            for o in self.check_ops(range(vt, vt + nreg)): self(o)
        self(f"""
        s_cmp_gt_i32 {sBUD}, 0
        s_cselect_b64 vcc, vcc, 0
        s_cbranch_vccnz {L}_p
        """)
    def loc_issue(self, vd):
        self(f"""
        v_and_b32 v{vd+2}, 3, v{vLANE}
        v_lshlrev_b32 v{vd+2}, 6, v{vd+2}
        v_bfe_u32 v{vd+3}, v{vLANE}, 2, 1
        v_lshl_add_u32 v{vd+2}, v{vd+3}, 3, v{vd+2}
        buffer_load_dwordx2 {vr(vd,2)}, v{vd+2}, {SDBG}, 0 offen offset:16 sc1
        """)
    def loc_eval(self, vd):
        L = self.label("LE")
        self(f"v_cmp_gt_u32 vcc, 0x200000, v{vd+1}\n s_cbranch_vccnz {L}_r\n {L}_k:")
        main = self.lines; self.lines = self.stubs
        self(f"""
        {L}_r:
        s_cmp_le_i32 {sBUD}, 0
        s_cbranch_scc1 {L}_k
        s_sub_u32 {sBUD}, {sBUD}, 1
        s_sleep 8
        buffer_load_dwordx2 {vr(vd,2)}, v{vd+2}, {SDBG}, 0 offen offset:16 sc1
        s_waitcnt vmcnt(0)
        v_cmp_gt_u32 vcc, 0x200000, v{vd+1}
        s_cbranch_vccnz {L}_r
        s_branch {L}_k
        """)
        self.lines = main
        self(f"""
        s_and_b32 {sT[0]}, s2, 7
        v_readlane_b32 s76, v{vd}, {sT[0]}
        v_readlane_b32 s77, v{vd+1}, {sT[0]}
        s_and_b32 s77, s77, 0xffff
        s_lshr_b64 s[76:77], s[76:77], {sXSH}
        s_and_b32 s76, s76, 63
        s_cmp_eq_u32 s76, 32
        s_cselect_b32 {sLOC}, {1 if OPT.get("loc", 1) else 0}, 0
        """)
    def lstore(self, ops):
        L = self.label("LS")
        self(f"s_cmp_eq_u32 {sLOC}, 0\n s_cbranch_scc1 {L}_g")
        for o in ops: self(o)
        self(f"{L}_r:")
        main = self.lines; self.lines = self.stubs
        self(f"{L}_g:")
        for o in ops: self(o + " " + SC)
        self(f"s_branch {L}_r")
        self.lines = main
    def counter_issue(self, off, nsh):
        self(f"v_min_u32 v{vCNA}, {nsh-1}, v{vLANE}\n v_lshlrev_b32 v{vCNA}, 6, v{vCNA}")
        self(f"buffer_load_dword v{vCNT}, v{vCNA}, {SDBG}, 0 offen offset:{off} sc1")
    def counter_check(self, off, target):
        L = self.label("CC")
        self(f"v_cmp_gt_u32 vcc, {target}, v{vCNT}\n s_cbranch_vccnz {L}_r\n {L}_k:")
        main = self.lines
        self.lines = self.stubs
        self(f"""
        {L}_r:
        s_cmp_le_i32 {sBUD}, 0
        s_cbranch_scc1 {L}_k
        s_sub_u32 {sBUD}, {sBUD}, 1
        s_sleep 8
        buffer_load_dword v{vCNT}, v{vCNA}, {SDBG}, 0 offen offset:{off} sc1
        s_waitcnt vmcnt(0)
        v_cmp_gt_u32 vcc, {target}, v{vCNT}
        s_cbranch_vccnz {L}_r
        s_branch {L}_k
        """)
        self.lines = main
    def counter_wait(self, off, nsh, target, vt):
        L = self.label("CW")
        self(f"""
        v_lshlrev_b32 v{vt+1}, 6, v{vLANE}
        s_mov_b64 exec, {(1<<nsh)-1}
        {L}_p:
        buffer_load_dword v{vt}, v{vt+1}, {SDBG}, 0 offen offset:{off} sc1
        s_waitcnt vmcnt(0)
        v_cmp_gt_u32 vcc, {target}, v{vt}
        s_cbranch_vccz {L}_o
        s_cmp_le_i32 {sBUD}, 0
        s_cbranch_scc1 {L}_o
        s_sub_u32 {sBUD}, {sBUD}, 1
        s_sleep 2
        s_branch {L}_p
        {L}_o:
        s_mov_b64 exec, -1
        """)

def wtile_dma_voff(a, vdst, rowstride):
    a(f"""
    v_lshrrev_b32 v2, 3, v{vLANE}
    v_mul_u32_u24 v{vdst}, {rowstride}, v2
    v_lshrrev_b32 v2, 4, v{vLANE}
    v_and_b32 v2, 1, v2
    v_lshlrev_b32 v2, 2, v2
    v_and_b32 v3, 7, v{vLANE}
    v_xor_b32 v2, v2, v3
    v_lshl_add_u32 v{vdst}, v2, 4, v{vdst}
    """)

def wtile_tr_addr(a, vdst, hhrows, s_keep, s_base):
    a(f"""
    v_lshrrev_b32 v2, 2, v{vLANE}
    v_and_b32 v2, 3, v2
    v_mul_u32_u24 v3, {hhrows}, v{vHH}
    v_add_u32 v2, v2, v3
    v_bfe_u32 v3, v2, 1, 1
    v_xor_b32 v3, {s_keep}, v3
    v_lshlrev_b32 v2, 7, v2
    v_lshl_add_u32 v2, v3, 6, v2
    v_lshrrev_b32 v3, 4, v{vLANE}
    v_and_b32 v3, 1, v3
    v_lshl_add_u32 v2, v3, 5, v2
    v_and_b32 v3, 3, v{vLANE}
    v_lshl_add_u32 v{vdst}, v3, 3, v2
    v_add_u32 v{vdst}, {s_base}, v{vdst}
    v_xor_b32 v{vdst+1}, 64, v{vdst}
    """)

def prologue(a):
    a(f"""
    s_cmp_ge_u32 s2, 256
    s_cbranch_scc1 L_end
    {"s_lshr_b32 s3, s2, 5" if OPT.get("bad") else ""}
    {"s_and_b32 s2, s2, 31" if OPT.get("bad") else ""}
    {"s_lshl_b32 s2, s2, 3" if OPT.get("bad") else ""}
    {"s_or_b32 s2, s2, s3" if OPT.get("bad") else ""}
    s_load_dwordx16 s[72:87], s[0:1], 0
    s_load_dwordx4 s[88:91], s[0:1], 64
    s_load_dwordx2 s[92:93], s[0:1], 80
    v_lshrrev_b32 v2, 6, v0
    v_and_b32 v{vLANE}, 63, v0
    v_readfirstlane_b32 {sW}, v2
    v_lshrrev_b32 v{vHH}, 5, v{vLANE}
    v_and_b32 v{vL31}, 31, v{vLANE}
    v_lshlrev_b32 v{vL16}, 4, v{vLANE}
    v_lshlrev_b32 v{vL8}, 3, v{vLANE}
    v_add_u32 v{vL16b}, 0x1000, v{vL16}
    s_and_b32 {sT[0]}, s2, 7
    s_lshr_b32 {sT[1]}, s2, 3
    s_lshr_b32 {sT[2]}, {sT[0]}, 1
    s_and_b32 {sT[3]}, {sT[0]}, 1
    s_lshl_b32 {sRB}, {sT[0]}, 1
    s_lshr_b32 {sT[4]}, {sT[1]}, 4
    s_add_u32 {sRB}, {sRB}, {sT[4]}
    s_and_b32 {sH}, {sT[1]}, 15
    s_mul_i32 {sT[4]}, {sT[1]}, 43
    s_lshr_b32 {sT[4]}, {sT[4]}, 7          ; j/3
    s_mul_i32 {sT[7]}, {sT[4]}, 3
    s_sub_u32 {sT[7]}, {sT[1]}, {sT[7]}     ; j%3
    s_lshl_b32 {sT[5]}, {sT[3]}, 2          ; 4p
    s_add_u32 {sDT1}, {sT[7]}, {sT[5]}
    s_add_u32 {sT[6]}, {sT[5]}, {sT[1]}
    s_sub_u32 {sT[6]}, {sT[6]}, 24
    s_cmp_ge_u32 {sT[1]}, 24
    s_cselect_b32 {sT[4]}, {sT[6]}, {sT[4]}
    s_cselect_b32 {sDT1}, 3, {sDT1}
    s_cmp_ge_u32 {sT[1]}, 28
    s_cselect_b32 {sT[4]}, 8, {sT[4]}
    s_mul_i32 {sT[5]}, {sT[1]}, 37
    s_lshr_b32 {sT[5]}, {sT[5]}, 8
    s_mul_i32 {sT[6]}, {sT[5]}, 7
    s_sub_u32 {sDT}, {sT[1]}, {sT[6]}
    s_lshl_b32 {sST}, {sT[0]}, 2
    s_add_u32 {sST}, {sST}, {sT[5]}
    s_getreg_b32 {sXSH}, hwreg(HW_REG_XCC_ID)
    s_and_b32 {sXSH}, {sXSH}, 15
    s_min_u32 {sXSH}, {sXSH}, 9
    s_mul_i32 {sXSH}, {sXSH}, 6
    s_mov_b32 {sLOC}, 0
    s_mul_i32 {sFT}, {sT[2]}, 7
    s_add_u32 {sFT}, {sFT}, {sT[4]}
    s_mov_b32 {sACT}, {sT[4]}
    s_mov_b32 {sIT}, 0
    s_mov_b32 {sITO}, 0
    s_mov_b32 {sBUD}, 1500000
    s_lshr_b32 {sWH}, {sW}, 1
    s_and_b32 {sWL}, {sW}, 1
    s_waitcnt lgkmcnt(0)
    """)
    a.srd(SX, 72, S * D * 2)
    a.srd(SWQKV, 74, D * 3 * D * 2)
    a.srd(SWS, 92, WS_SIZE)
    a.srd(SWO, 76, D * D * 2)
    a.srd(SW1, 80, S * F * 2)
    a.srd(SB1, 82, F * 2)
    a.srd(SW2, 84, F * S * 2)
    a.srd(SB2, 86, S * 2)
    a.srd(SOUT, 88, S * D * 2)
    a.srd(SDBG, 90, 256)

def late_setup(a):
    wtile_dma_voff(a, vDW1, 3584)
    wtile_dma_voff(a, vDW2, 4096)
    wtile_dma_voff(a, vDWO, 896)
    a(f"""
    s_mul_i32 {sW1B}, {sW}, {512*3584}
    s_min_u32 {sT[2]}, {sFT}, 27
    s_lshl_b32 {sT[2]}, {sT[2]}, 7
    s_add_u32 {sW1B}, {sW1B}, {sT[2]}
    s_mul_i32 {sW2B}, {sW}, {448*4096}
    s_min_u32 {sT[2]}, {sST}, 31
    s_lshl_b32 {sT[2]}, {sT[2]}, 7
    s_add_u32 {sW2B}, {sW2B}, {sT[2]}
    """)

XREG = 64
ACQ, ACK, ACV = 16, 32, 48
WFR = 176
TRA = 4
vM, vR, vC, vRS = 12, 13, 14, 15
XBASE = [0x8000, 0x18000, 0x20000, 0x10000]
def a1_lds(f):
    if f < 32: return 1024 * f
    if f < 64: return 0x10000 + 1024 * (f - 32)
    return 0x20000 + 1024 * (f - 64)
def a1_src(f):
    if f < 56: t, seg = f >> 1, 1 + (f & 1)
    else: t, seg = f - 56, 0
    return t * 16 * 2688 + seg * 896
CSL, RSL, KVL = 0x27000, 0x27400, 0x0


def a1_wraw_ops(f0, f1, vo, s_kv, s_q, s_w10):
    o = []
    for f in range(f0, f1, 4):
        sb = s_kv if f < 56 else s_q
        o.append(f"s_add_u32 {sT[2]}, {sb}, {a1_src(f)}\n s_add_u32 m0, {s_w10}, {a1_lds(f)}\n buffer_load_dwordx4 v{vo}, {SWQKV}, {sT[2]} offen lds")
    return o

def a1_wpk_setup(a):
    a(f"""
    s_mul_i32 {sT[13]}, {sH}, {84*1024}
    s_add_u32 {sT[13]}, {sT[13]}, {WQP}
    s_lshl_b32 {sT[15]}, {sW}, 10
    s_lshl_b32 {sT[14]}, {sW}, 14
    s_add_u32 {sT[14]}, {sT[14]}, {sT[13]}
    s_add_u32 {sT[13]}, {sT[13]}, {sT[15]}
    """)
def a1_wpk_hi_ops():
    return [f"s_add_u32 {sT[2]}, {sT[13]}, {f*1024}\n s_add_u32 m0, {sT[15]}, {a1_lds(f)}\n buffer_load_dwordx4 v{vL16}, {SWS}, {sT[2]} offen {SC} lds" for f in range(64, 84, 4)]
def a1_wpk_own_ops():
    return [f"s_add_u32 {sT[2]}, {sT[14]}, {i*1024}\n s_add_u32 m0, {sLB}, {i*1024}\n buffer_load_dwordx4 v{vL16}, {SWS}, {sT[2]} offen {SC} lds" for i in range(16)]

sWOG, sWOL = "s74", "s75"
def wo_setup(a):
    a(f"""
    s_mul_i32 {sWOG}, {sWH}, {224*896}
    s_mul_i32 {sT[2]}, {sWL}, {8*896}
    s_add_u32 {sWOG}, {sWOG}, {sT[2]}
    s_lshl_b32 {sT[2]}, {sDT}, 7
    s_add_u32 {sWOG}, {sWOG}, {sT[2]}
    s_lshl_b32 {sWOL}, {sWH}, 16
    s_lshl_b32 {sT[2]}, {sWL}, 10
    s_add_u32 {sWOL}, {sWOL}, {sT[2]}
    """)
def wo_ops():
    return [f"s_add_u32 {sT[2]}, {sWOG}, {j*16*896}\n s_add_u32 m0, {sWOL}, {0x8000 + j*2048}\n buffer_load_dwordx4 v{vDWO}, {SWO}, {sT[2]} offen lds" for j in range(15)]

def big_dma_ops(which, ks0, nks, ldsoff, sl=None):
    stride, srd, vo, sb = (3584, SW1, vDW1, sW1B) if which == 1 else (4096, SW2, vDW2, sW2B)
    return [f"s_add_u32 {sT[2]}, {sb}, {(ks0*16 + i*8)*stride}\n s_add_u32 m0, {sl or sLB}, {ldsoff + i*1024}\n buffer_load_dwordx4 v{vo}, {srd}, {sT[2]} offen lds" for i in range(2 * nks)]

def stats_loads(a, soff, T):
    for i in range(7):
        a(f"buffer_load_dwordx2 {vr(T+2*i,2)}, v{vL8}, {SWS}, {soff} offen offset:{i*512} {SC}")

def stats_math_ops(T, vm, vvar, U, pk=True):
    o = []
    if pk:
        for i in range(3): o.append(f"v_pk_add_f32 {vr(U+2*i,2)}, {vr(T+4*i,2)}, {vr(T+4*i+2,2)}")
        o.append(f"v_pk_add_f32 {vr(U,2)}, {vr(U,2)}, {vr(U+2,2)}")
        o.append(f"v_pk_add_f32 {vr(U+4,2)}, {vr(U+4,2)}, {vr(T+12,2)}")
        o.append(f"v_pk_add_f32 {vr(U,2)}, {vr(U,2)}, {vr(U+4,2)}")
    else:
        o.append(f"v_add_f32 v{U}, v{T}, v{T+2}"); o.append(f"v_add_f32 v{U+1}, v{T+1}, v{T+3}")
        for i in range(2, 7):
            o.append(f"v_add_f32 v{U}, v{U}, v{T+2*i}"); o.append(f"v_add_f32 v{U+1}, v{U+1}, v{T+2*i+1}")
    o += [f"v_mov_b32 v{vm}, v{U}", f"v_permlane32_swap_b32 v{vm}, v{U}", f"v_add_f32 v{vm}, v{vm}, v{U}"]
    o.append(f"v_mul_f32 v{U+2}, {fbits(1/14)}, v{vm}")
    o.append(f"v_mul_f32 v{vm}, {fbits(1/448)}, v{vm}")
    for i in range(7): o.append(f"v_sub_f32 v{T+2*i}, v{T+2*i}, v{U+2}")
    o += [f"v_mul_f32 v{U+3}, v{T}, v{T}", f"v_mul_f32 v{U+4}, v{T+2}, v{T+2}"]
    for i in range(2, 7): o.append(f"v_fmac_f32 v{U+3+(i&1)}, v{T+2*i}, v{T+2*i}")
    o.append(f"v_add_f32 v{U+3}, v{U+3}, v{U+4}")
    o.append(f"v_fmac_f32 v{U+1}, {fbits(1/32)}, v{U+3}")
    o += [f"v_mov_b32 v{vvar}, v{U+1}", f"v_permlane32_swap_b32 v{vvar}, v{U+1}", f"v_add_f32 v{vvar}, v{vvar}, v{U+1}"]
    o.append(f"v_mul_f32 v{vvar}, {fbits(1/448)}, v{vvar}")
    return o

def stats_publish(a, X, T, soff):
    for i in range(4): a(f"v_pk_add_f32 {vr(T+2*i,2)}, {vr(X+4*i,2)}, {vr(X+4*i+2,2)}")
    a(f"v_pk_add_f32 {vr(T,2)}, {vr(T,2)}, {vr(T+2,2)}")
    a(f"v_pk_add_f32 {vr(T+4,2)}, {vr(T+4,2)}, {vr(T+6,2)}")
    a(f"v_pk_add_f32 {vr(T,2)}, {vr(T,2)}, {vr(T+4,2)}")
    a(f"v_add_f32 v{T+16}, v{T}, v{T+1}")
    a.halfsum(f"v{T+16}", f"v{T+17}")
    a(f"v_mul_f32 v{T+18}, {fbits(-1/32)}, v{T+16}")
    for i in range(8): a(f"v_pk_add_f32 {vr(T+2*i,2)}, {vr(X+2*i,2)}, {vr(T+18,2)} op_sel_hi:[1,0]")
    a(f"v_pk_mul_f32 {vr(T+18,2)}, {vr(T,2)}, {vr(T,2)}")
    a(f"v_pk_mul_f32 {vr(T+20,2)}, {vr(T+2,2)}, {vr(T+2,2)}")
    for i in range(2, 8):
        d = T + 18 + 2 * (i & 1)
        a(f"v_pk_fma_f32 {vr(d,2)}, {vr(T+2*i,2)}, {vr(T+2*i,2)}, {vr(d,2)}")
    a(f"v_pk_add_f32 {vr(T+18,2)}, {vr(T+18,2)}, {vr(T+20,2)}")
    a(f"v_add_f32 v{T+17}, v{T+18}, v{T+19}")
    a.halfsum(f"v{T+17}", f"v{T+18}")
    a("s_mov_b32 exec_hi, 0")
    a.lstore([f"buffer_store_dwordx2 {vr(T+16,2)}, v{vL8}, {SWS}, {soff} offen"])
    a("s_mov_b64 exec, -1")

def a1_tr_setup(a, it):
    sh, delta = (9, 256) if it == 0 else (8, 512)
    a(f"""
    v_lshrrev_b32 v2, 2, v{vLANE}
    v_and_b32 v2, 3, v2
    v_lshrrev_b32 v3, 4, v{vLANE}
    v_and_b32 v3, 1, v3
    v_lshlrev_b32 v3, 2, v3
    v_and_b32 v10, 3, v{vLANE}
    v_add_u32 v3, v3, v10
    s_and_b32 {sT[0]}, {sH}, 1
    v_add_u32 v3, {sT[0]}, v3
    v_and_b32 v3, 7, v3
    v_lshlrev_b32 v3, 3, v3
    v_lshl_add_u32 v{TRA}, v2, 6, v3
    v_lshl_add_u32 v{TRA}, v{vHH}, {sh}, v{TRA}
    v_add_u32 v{TRA+1}, 0x10000, v{TRA}
    v_add_u32 v{TRA+2}, 0x20000, v{TRA}
    v_add_u32 v{TRA+3}, {delta}, v{TRA}
    v_add_u32 v{TRA+4}, {delta}, v{TRA+1}
    v_add_u32 v{TRA+5}, {delta}, v{TRA+2}
    s_lshl_b32 {sT[0]}, {sW}, 8
    s_add_u32 {sT[0]}, {sT[0]}, {RSL}
    v_lshlrev_b32 v11, 2, v{vLANE}
    v_add_u32 v11, {sT[0]}, v11
    v_lshlrev_b32 v{vRS}, 4, v{vHH}
    v_add_u32 v{vRS}, {sT[0]}, v{vRS}
    """)

def rowstats_ops():
    return [f"v_add_f32 v{vR}, {fbits(1e-5)}, v{vR}", f"v_rsq_f32 v{vR}, v{vR}", f"v_cmp_eq_u32 vcc, 0, v{vHH}",
            f"v_cndmask_b32 v3, v{vM}, v{vR}, vcc", f"ds_write_b32 v11, v3"]

def a1_rd(a, f, dst):
    ad = a1_lds(f); win, off = ad >> 16, ad & 0xffff
    a(f"ds_read_b64_tr_b16 {dst(0)}, v{TRA+win} offset:{off}")
    a(f"ds_read_b64_tr_b16 {dst(2)}, v{TRA+3+win} offset:{off}")

def w1_touch(r):
    return f"""s_lshl_b32 {sT[0]}, s2, 2
    s_add_u32 {sT[0]}, {sT[0]}, {sW}
    s_add_u32 {sT[0]}, {sT[0]}, {r*1024}
    s_mul_i32 {sT[1]}, {sT[0]}, 9363
    s_lshr_b32 {sT[1]}, {sT[1]}, 22
    s_mul_i32 {sT[2]}, {sT[1]}, 448
    s_sub_u32 {sT[0]}, {sT[0]}, {sT[2]}
    s_lshl_b32 {sT[0]}, {sT[0]}, 11
    s_lshl_b32 {sT[2]}, {sT[1]}, 1
    s_add_u32 {sT[15]}, {sT[2]}, 1
    s_sub_u32 {sT[2]}, {sT[2]}, 8
    s_cmp_lt_u32 {sT[1]}, 4
    s_cselect_b32 {sT[1]}, {sT[15]}, {sT[2]}
    s_mul_i32 {sT[1]}, {sT[1]}, {256*3584}
    s_add_u32 {sT[0]}, {sT[0]}, {sT[1]}
    buffer_load_dword v234, v{vKRS}, {SW1}, {sT[0]} offen"""

def code_warm(a, tag):
    L = a.label("CWM")
    a(f"""
    s_getpc_b64 s[76:77]
    {L}:
    s_sub_u32 s76, s76, {L}-{KNAME}
    s_subb_u32 s77, s77, 0
    s_lshr_b32 {sT[2]}, s2, 3
    s_lshl_b32 {sT[2]}, {sT[2]}, 2
    s_add_u32 {sT[2]}, {sT[2]}, {sW}
    s_mul_i32 {sT[2]}, {sT[2]}, 640
    v_min_u32 v2, 4, v{vLANE}
    v_lshlrev_b32 v2, 7, v2
    v_add_u32 v2, {sT[2]}, v2
    s_mov_b32 {sT[2]}, L_codeend-{KNAME}-4
    v_min_u32 v2, {sT[2]}, v2
    v_mov_b32 v3, s77
    v_add_co_u32 v2, vcc, s76, v2
    v_addc_co_u32 v3, vcc, 0, v3, vcc
    global_load_dword v{vMAX}, v[2:3], off
    """)

def a1_it0(a):
    L = a.label("A1f")
    XA, XV, DA = 224, 228, 230
    a(f"""
    v_lshrrev_b32 v2, 3, v{vLANE}
    v_mul_u32_u24 v2, 896, v2
    v_and_b32 v3, 7, v{vLANE}
    v_lshrrev_b32 v5, 4, v{vLANE}
    v_xor_b32 v3, v3, v5
    v_lshl_add_u32 v{XV}, v3, 4, v2
    v_xor_b32 v{XV+1}, 64, v{XV}
    s_lshl_b32 {sT[10]}, {sRB}, 2
    s_add_u32 {sT[10]}, {sT[10]}, {sW}
    s_mul_i32 {sT[10]}, {sT[10]}, {32*896}
    s_lshl_b32 {sLB}, {sWH}, 16
    s_lshl_b32 {sT[2]}, {sWL}, 14
    s_add_u32 {sLB}, {sLB}, {sT[2]}
    """)
    def xdma(j0, j1):
        return [f"s_add_u32 {sT[2]}, {sT[10]}, {aa*8*896 + j*128}\n s_add_u32 m0, {sLB}, {0x8000 + aa*4096 + (j-j0)*1024}\n buffer_load_dwordx4 v{XV + (aa&1)}, {SX}, {sT[2]} offen lds"
                for aa in range(4) for j in range(j0, j1)]
    for o in xdma(0, 4): a(o)
    a(f"""
    v_lshrrev_b32 v1, 2, v{vLANE}
    v_mul_u32_u24 v1, 2688, v1
    v_and_b32 v5, 3, v{vLANE}
    v_lshl_add_u32 v1, v5, 4, v1
    s_mul_i32 {sT[8]}, {sH}, 56
    s_and_b32 {sT[8]}, {sT[8]}, 0xfff0
    s_mul_i32 {sT[9]}, {sW}, {16*2688}
    s_add_u32 {sT[9]}, {sT[9]}, {sT[8]}
    s_mul_i32 {sT[2]}, {sWH}, {16*2688}
    s_add_u32 {sT[8]}, {sT[8]}, {sT[2]}
    s_mul_i32 {sT[2]}, {sWL}, 896
    s_add_u32 {sT[8]}, {sT[8]}, {sT[2]}
    s_lshl_b32 {sT[11]}, {sW}, 10
    """)
    a.xstamp(22)
    ncw = 0
    if OPT.get("cw", 1):
        code_warm(a, 0); ncw = 1
    for o in a1_wraw_ops(0, 32, 1, sT[8], sT[9], sT[11]): a(o)
    a.xstamp(23)
    a(f"""
    s_lshr_b32 {sT[12]}, 0xc1a3, {sH}
    s_and_b32 {sT[12]}, {sT[12]}, 1
    s_lshl_b32 {sT[0]}, 1, {sH}
    s_sub_u32 {sT[0]}, {sT[0]}, 1
    s_and_b32 {sT[0]}, {sT[0]}, 0xc1a3
    s_bcnt1_i32_b32 {sT[0]}, {sT[0]}
    s_lshl_b32 {sT[0]}, {sT[0]}, 4
    s_add_u32 {sT[0]}, {sT[0]}, {sRB}
    s_lshl_b32 {sT[0]}, {sT[0]}, 2
    s_add_u32 {sT[0]}, {sT[0]}, {sW}
    s_lshl_b32 {sT[14]}, {sT[0]}, 13
    s_cmp_ge_u32 {sT[14]}, {ST}
    s_cselect_b32 {sT[12]}, 0, {sT[12]}
    s_cmp_eq_u32 {sT[12]}, 0
    s_cselect_b32 {sT[14]}, 0x20000000, {sT[14]}
    v_mov_b32 v236, -1
    v_mov_b32 v237, -1
    v_mov_b32 v238, -1
    v_mov_b32 v239, -1
    """)
    fills = [f"buffer_store_dwordx4 v[236:239], v{vL16b if i&4 else vL16}, {SWS}, {sT[14]} offen offset:{(i&3)*1024} {SC}" for i in range(8)]
    late_setup(a)
    wo_setup(a)
    a1_tr_setup(a, 0)
    a(f"""
    v_lshrrev_b32 v2, 3, v{vL31}
    v_lshlrev_b32 v2, 12, v2
    v_and_b32 v3, 7, v{vL31}
    v_lshl_add_u32 v2, v3, 7, v2
    v_add_u32 v2, {sLB}, v2
    v_lshrrev_b32 v3, 1, v{vL31}
    v_and_b32 v3, 7, v3
    v_xor_b32 v3, v3, v{vHH}
    """)
    for q in range(4): a(f"v_xor_b32 v10, {2*q}, v3\n v_lshl_add_u32 v{XA+q}, v10, 4, v2")
    a(f"""
    v_mov_b32 v{DA}, 0
    v_mov_b32 v{DA+1}, 0
    v_mov_b32 v{DA+2}, 0
    v_mov_b32 v{DA+3}, 0
    v_mov_b32 v{CSK}, 0
    v_mov_b32 v{CSV}, 0
    v_mov_b32 v{vC}, 0x3f803f80
    v_lshlrev_b32 v235, 7, v{vLANE}
    v_min_u32 v{vKRS}, 0x780, v235
    s_lshr_b32 {sT[13]}, s2, 2
    s_lshl_b32 {sT[13]}, {sT[13]}, 13
    s_cmp_eq_u32 {sW}, 3
    s_cselect_b32 {sT[13]}, {sT[13]}, 0x1000000
    s_waitcnt vmcnt({8+ncw}) lgkmcnt(0)
    """)
    a.stamp("a1_xland")
    def xrd(t0, t1):
        for t in range(t0, t1):
            a(f"ds_read_b128 {vr(XREG+4*t,4)}, v{XA+(t&3)} offset:{0x8000 + ((t-t0)>>2)*1024}")
            if t - t0 == 11: a("s_waitcnt lgkmcnt(4)")
        a("s_waitcnt lgkmcnt(0)")
    def dots(i0, i1, vm, every):
        for i in range(i0, i1):
            if vm and (i - i0) % every == 0: a(vm.pop(0))
            a(f"v_dot2c_f32_bf16 v{DA+(i&1)}, v{XREG+i}, v{vC}")
            a(f"v_dot2c_f32_bf16 v{DA+2+(i&1)}, v{XREG+i}, v{XREG+i}")
        assert not vm
    xrd(0, 16)
    vm = fills + xdma(4, 7)
    TP = OPT.get("tp", 1)
    tch = [w1_touch(0), w1_touch(1)]
    wl = (tch if TP == 0 else []) + a1_wraw_ops(32, 84, 1, sT[8], sT[9], sT[11]) + [f"buffer_load_dword v234, v235, {SWO}, {sT[13]} offen"] + (tch if TP == 1 else [])
    nwl = len(wl)
    a.xstamp(24)
    dots(0, 64, vm, 3)
    a.xstamp(25)
    a(f"""
    s_waitcnt vmcnt(12)
    s_barrier
    s_cmp_eq_u32 {sW}, 0
    s_cbranch_scc1 {L}_sg
    {L}_sgr:
    """)
    a.stubs += [l for l in f"""{L}_sg:
    s_lshl_b64 s[76:77], 1, {sXSH}
    s_and_b32 s77, s77, 0xffff
    s_or_b32 s77, s77, 0x10000
    s_and_b32 {sT[0]}, s2, 3
    s_lshl_b32 {sT[0]}, {sT[0]}, 6
    s_bfe_u32 {sT[1]}, s2, 0x10002
    s_lshl_b32 {sT[1]}, {sT[1]}, 3
    s_add_u32 {sT[0]}, {sT[0]}, {sT[1]}
    v_mov_b32 v2, s76
    v_mov_b32 v3, s77
    s_mov_b64 exec, 1
    buffer_atomic_add_x2 v[2:3], off, {SDBG}, {sT[0]} offset:16 sc1
    s_mov_b64 exec, -1
    s_branch {L}_sgr""".split("\n")]
    a.stamp("a1_main")
    LA = 3
    def rd(t):
        for s_ in range(2):
            b = WFR + 8 * (t & 3) + 4 * s_
            a1_rd(a, 2 * t + s_, lambda o, b=b: vr(b + o, 2))
    def cs(win, n):
        a(f"s_lshl_b32 {sT[0]}, {sW}, 11\n v_add_u32 v2, {sT[0]}, v{TRA+win}\n v_add_u32 v3, {sT[0]}, v{TRA+3+win}")
        regs = [16, 24, 208, 216]
        for i in range(n):
            for s_ in range(2):
                a(f"ds_read_b64_tr_b16 {vr(regs[i]+4*s_,2)}, v2 offset:{8192*i+1024*s_}")
                a(f"ds_read_b64_tr_b16 {vr(regs[i]+4*s_+2,2)}, v3 offset:{8192*i+1024*s_}")
        a("s_waitcnt lgkmcnt(0)")
        for i in range(n):
            for k in range(4):
                a(f"v_dot2c_f32_bf16 v{CSK}, v{regs[i]+k}, v{vC}")
                a(f"v_dot2c_f32_bf16 v{CSV}, v{regs[i]+4+k}, v{vC}")
    def loop(t0, t1):
        for t in range(t0, t0 + LA): rd(t)
        for t in range(t0, t1):
            if t + LA < t1: rd(t + LA)
            a(f"s_waitcnt lgkmcnt({4*min(LA, t1-1-t)})")
            w = WFR + 8 * (t & 3)
            x = vr(XREG + 4 * t, 4)
            c = lambda base: (vr(base, 16) if t else "0")
            a(f"{MF} {vr(ACK,16)}, {x}, {vr(w,4)}, {c(ACK)}")
            a(f"{MF} {vr(ACV,16)}, {x}, {vr(w+4,4)}, {c(ACV)}")
            if wl: a(wl.pop(0))
    loop(0, 16)
    assert not wl
    a.xstamp(26)
    NPT = 0
    if OPT.get("pt", 0):
        sh = OPT.get("pt")
        a(f"v_lshlrev_b32 v236, {sh}, v{vLANE}")
        if sh >= 19: a(f"v_min_u32 v236, 0x1180000, v236")
        for srd in (SB1, SB2, SOUT, SWS, SW2):
            a(f"buffer_load_dword v234, v236, {srd}, 0 offen"); NPT += 1
        nwl += NPT
    cs(0, 4)
    a.xstamp(27)
    a(f"s_waitcnt vmcnt({nwl})")
    a.xstamp(28)
    xrd(16, 28)
    NRA = 4
    ra = big_dma_ops(1, 16, 8, 0x8000)
    dots(64, 112, ra[:NRA], 8)
    a(f"v_add_f32 v{vM}, v{DA}, v{DA+1}\n v_add_f32 v{vR}, v{DA+2}, v{DA+3}")
    a.halfsum(f"v{vM}", f"v{DA}")
    a.halfsum(f"v{vR}", f"v{DA+1}")
    a(f"""
    v_mul_f32 v{vM}, {fbits(1/448)}, v{vM}
    v_mul_f32 v{vR}, {fbits(1/448)}, v{vR}
    v_fma_f32 v{vR}, -v{vM}, v{vM}, v{vR}
    v_max_f32 v{vR}, 0, v{vR}
    """)
    for o in rowstats_ops(): a(o)
    a.xstamp(29)
    a(f"s_waitcnt vmcnt({8+NRA+NPT+(2 if TP == 1 else 0)})\n s_barrier")
    a.xstamp(30)
    cs(1, 3)
    a(f"""
    v_mov_b32 v22, v{CSK}
    v_mov_b32 v23, v{CSV}
    v_permlane32_swap_b32 v{CSK}, v22
    v_permlane32_swap_b32 v{CSV}, v23
    v_add_f32 v22, v{CSK}, v22
    v_add_f32 v23, v{CSV}, v23
    s_lshl_b32 {sT[0]}, {sW}, 2
    v_lshlrev_b32 v10, 4, v{vL31}
    v_add_u32 v10, 0x27800, v10
    v_add_u32 v11, {sT[0]}, v10
    ds_write_b32 v11, v22 offset:512
    ds_write_b32 v11, v23 offset:1024
    s_lshl_b32 {sT[13]}, {sW}, 13
    """)
    a.loc_issue(228)
    a.xstamp(31)
    wl += ra[NRA:NRA + 12]
    a.ra_rest = ra[NRA + 12:]
    loop(16, 28)
    assert not wl
    T23 = OPT.get("t23", 1)
    if T23 == 1:
        a(w1_touch(2)); a(w1_touch(3))
    a.xstamp(21)
    a("s_barrier")
    for k in range(1, 3): a(f"ds_read_b128 {vr(16+4*k,4)}, v10 offset:{512*k}")
    a(f"s_waitcnt vmcnt({14 if T23 == 1 else 12})")
    a.loc_eval(228)
    a(f"""
    s_waitcnt lgkmcnt(0)
    v_add_f32 v20, v20, v21
    v_add_f32 v22, v22, v23
    v_add_f32 v24, v24, v25
    v_add_f32 v26, v26, v27
    v_add_f32 v{CSK}, v20, v22
    v_add_f32 v{CSV}, v24, v26
    """)

def a1_it0_q(a, ret):
    QLA, QB = 4, 32
    def qrd(t): a1_rd(a, 56 + t, lambda o, t=t: vr(QB + 4 * (t & 7) + o, 2))
    a(f"""
    s_lshl_b32 {sT[0]}, {sW}, 10
    v_add_u32 v176, {sT[0]}, v{TRA+1}
    v_add_u32 v177, {sT[0]}, v{TRA+4}
    v_add_u32 v178, {sT[0]}, v{TRA+2}
    v_add_u32 v179, {sT[0]}, v{TRA+5}
    v_mov_b32 v180, 0
    """)
    for i in range(7):
        ad = a1_lds(56 + 4 * i); b = 176 if (ad >> 16) == 1 else 178
        a(f"ds_read_b64_tr_b16 {vr(196+4*i,2)}, v{b} offset:{ad & 0xffff}")
        a(f"ds_read_b64_tr_b16 {vr(196+4*i+2,2)}, v{b+1} offset:{ad & 0xffff}")
    a("s_waitcnt lgkmcnt(0)")
    for t in range(QLA): qrd(t)
    for j in range(28): a(f"v_dot2c_f32_bf16 v180, v{196+j}, v{vC}")
    a(f"""
    v_mov_b32 v181, v180
    v_permlane32_swap_b32 v180, v181
    v_add_f32 v180, v180, v181
    s_waitcnt lgkmcnt(0)
    ds_write_b32 v11, v180
    """)
    assert not a.ra_rest
    w2q = big_dma_ops(1, 24, 4, 0, sT[13])
    wtile_tr_addr(a, 182, 8, sWH, sLB)
    st = [f"ds_read_b64_tr_b16 {ar(aW1 + 8*t + 4*i + 2*u, 2)}, v{182+i} offset:{0x8000 + t*2048 + 4*u*128}" for t in range(8) for i in range(2) for u in range(2)]
    a("s_waitcnt vmcnt(3)")
    lq = [("q", t) for t in range(QLA) for _ in range(2)]
    for t in range(28):
        if t + QLA < 28:
            qrd(t + QLA); lq += [("q", t + QLA)] * 2
        idx = max(i for i, x in enumerate(lq) if x == ("q", t))
        a(f"s_waitcnt lgkmcnt({min(15, len(lq) - 1 - idx)})")
        a(f"{MF} {vr(ACQ,16)}, {vr(QB+4*(t&7),4)}, {vr(XREG+4*t,4)}, {vr(ACQ,16) if t else '0'}")
        for _ in range(2 if t < 8 or t >= 24 else 1):
            if st:
                a(st.pop(0)); lq.append(("s", 0))
        if t % 3 == 0 and w2q: a(w2q.pop(0))
    assert not w2q and not st
    a("s_waitcnt lgkmcnt(0)")
    a(f"""
    s_barrier
    ds_read_b128 v[176:179], v10
    v_lshlrev_b32 v180, 2, v{vL31}
    v_add_u32 v180, {CSL}, v180
    s_add_u32 s79, {sT[13]}, 0x20000
    s_cmp_eq_u32 {sW}, 3
    s_cselect_b32 s79, 0x16000, s79
    """)
    kvr_loads(a)
    a(f"""
    s_waitcnt lgkmcnt(0)
    v_add_f32 v176, v176, v177
    v_add_f32 v178, v178, v179
    v_add_f32 v176, v176, v178
    ds_write_b32 v180, v176
    s_branch {ret}
    """)

def a1_it1(a):
    LA = 2
    a1_tr_setup(a, 1)
    a(f"""
    s_lshl_b32 {sT[0]}, {sRB}, 2
    s_add_u32 {sT[0]}, {sT[0]}, {sW}
    s_mul_i32 {sAT[0]}, {sT[0]}, {28*1024}
    s_add_u32 {sAT[0]}, {sAT[0]}, {XF}
    s_add_u32 {sAT[1]}, {sAT[0]}, 0x2000
    s_add_u32 {sAT[2]}, {sAT[0]}, 0x4000
    s_add_u32 {sAT[3]}, {sAT[0]}, 0x6000
    s_mul_i32 {sT[8]}, {sT[0]}, 3584
    s_add_u32 {sT[8]}, {sT[8]}, {ST2}
    """)
    a.counter_issue(132, 1)
    def xload(t):
        a(f"buffer_load_dwordx4 {vr(XREG+4*t,4)}, v{vL16b if t&4 else vL16}, {SWS}, {sAT[t>>3]} offen offset:{(t&3)*1024} {SC}")
    def rd(t):
        for s_, f in enumerate((2 * t, 2 * t + 1, 56 + t)):
            b = WFR + 12 * (t % 3) + 4 * s_
            a1_rd(a, f, lambda o, b=b: vr(b + o, 2))
    NX = OPT.get("nx", 16)
    OX = OPT.get("ox", 8)
    def sx():
        stats_loads(a, sT[8], 32)
        for t in range(OX): xload(t)
    sx()
    a(f"s_waitcnt vmcnt({7+OX})\n s_barrier")
    for t in range(LA): rd(t)
    a(f"s_waitcnt vmcnt({OX})")
    a.check(range(32, 46), sx, OX, 2)
    for t in range(OX, NX): xload(t)
    a.nstamp -= 2
    a.stamp()
    for o in stats_math_ops(32, vM, vR, 16) + rowstats_ops(): a(o)
    a.counter_check(132, 32)
    a.stamp()
    if STAMPS: a.names = a.names[:-2]
    a("s_waitcnt lgkmcnt(0)")
    wq = wo_ops(); nd = [0]
    def xchk(t, now):
        hi = min(28, now + NX)
        n = hi - t - 4 + nd[0]
        a(f"s_waitcnt vmcnt({n})")
        a.check(range(XREG + 4 * t, XREG + 4 * t + 16), lambda t=t, hi=hi: [xload(tt) for tt in range(t, hi)], n if nd[0] == 0 else 0)
    xchk(0, 0)
    for t in range(28):
        if t + LA < 28: rd(t + LA)
        a(f"s_waitcnt lgkmcnt({6*min(LA, 27-t)})")
        w = WFR + 12 * (t % 3)
        x = vr(XREG + 4 * t, 4)
        c = lambda base: (vr(base, 16) if t else "0")
        a(f"{MF} {vr(ACK,16)}, {x}, {vr(w,4)}, {c(ACK)}")
        if t + NX < 28: xload(t + NX)
        elif wq:
            a(wq.pop(0)); nd[0] += 1
        a(f"{MF} {vr(ACV,16)}, {x}, {vr(w+4,4)}, {c(ACV)}")
        if t % 4 == 3 and t + 1 < 28: xchk(t + 1, t + 1)
        a(f"{MF} {vr(ACQ,16)}, {vr(w+8,4)}, {x}, {c(ACQ)}")
    a.wo_rest = wq
    a("s_barrier")

def phase_a1(a):
    L = a.label("A1")
    RR, MM, T0 = 176, 192, 208
    a(f"s_cmp_eq_u32 {sIT}, 0\n s_cbranch_scc0 {L}_it1")
    a1_it0(a)
    a(f"s_branch {L}_epi\n {L}_it1:")
    a1_it1(a)
    a(f"""
    {L}_epi:
    """)
    a.stamp("a1_epi")
    for q in range(4):
        a(f"ds_read_b128 {vr(MM+4*q,4)}, v{vRS} offset:{128+32*q}")
        a(f"ds_read_b128 {vr(RR+4*q,4)}, v{vRS} offset:{32*q}")
    a(f"""
    s_mov_b32 {sT[3]}, {fbits(1e-6)}
    v_mov_b32 v0, {fbits(1e-6)}
    v_mov_b32 v1, {fbits(LOG2E)}
    s_lshl_b32 {sT[0]}, {sW}, 12
    s_add_u32 {sT[0]}, {sT[0]}, 0x10000
    v_add_u32 v2, {sT[0]}, v{vL16}
    s_lshl_b32 {sT[5]}, {sW}, 10
    s_add_u32 {sT[0]}, {sT[5]}, 0x10000
    v_add_u32 v3, {sT[0]}, v{vL16}
    s_lshl_b32 {sT[6]}, {sH}, 4
    s_add_u32 {sT[6]}, {sT[6]}, {sRB}
    s_lshl_b32 {sT[6]}, {sT[6]}, 12
    s_add_u32 {sT[6]}, {sT[6]}, {sT[5]}
    s_add_u32 {sT[6]}, {sT[6]}, {sITO}
    s_add_u32 {sT[6]}, {sT[6]}, {KVP}
    s_waitcnt lgkmcnt(0)
    """)
    k0, v0 = ACK, ACV
    P = lambda b, r: vr(b + 2 * r, 2)
    CS = vr(CSK, 2)
    for r in range(8): a(f"v_pk_fma_f32 {P(k0,r)}, {P(MM,r)}, {CS}, {P(k0,r)} op_sel_hi:[1,0,1] neg_lo:[1,0,0] neg_hi:[1,0,0]")
    for r in range(8): a(f"v_pk_fma_f32 {P(k0,r)}, {P(k0,r)}, {P(RR,r)}, v[0:1] op_sel_hi:[1,1,0]")
    for r in range(8): a(f"v_pk_mul_f32 {P(T0,r)}, {P(k0,r)}, v[0:1] op_sel:[0,1] op_sel_hi:[1,1]")
    for r in range(8):
        a(f"v_exp_f32_e64 v{T0+2*r}, v{T0+2*r} clamp")
        a(f"v_max_f32 v{k0+2*r}, {sT[3]}, v{k0+2*r}")
        a(f"v_exp_f32_e64 v{T0+2*r+1}, v{T0+2*r+1} clamp")
        a(f"v_max_f32 v{k0+2*r+1}, {sT[3]}, v{k0+2*r+1}")
        a(f"v_pk_fma_f32 {P(v0,r)}, {P(MM,r)}, {CS}, {P(v0,r)} op_sel:[0,1,0] op_sel_hi:[1,1,1] neg_lo:[1,0,0] neg_hi:[1,0,0]")
    for r in range(8): a(f"v_pk_mul_f32 {P(v0,r)}, {P(v0,r)}, {P(RR,r)}")
    for r in range(8): a(f"v_pk_add_f32 {P(k0,r)}, {P(k0,r)}, {P(T0,r)}")
    for r in range(8): a(f"v_cvt_pk_bf16_f32 v{v0+r}, v{v0+2*r}, v{v0+2*r+1}")
    a("s_mov_b32 exec_lo, 0xf0000000\n s_mov_b32 exec_hi, 0xf0000000")
    for r in range(8): a(f"v_mov_b32 v{ACV+r}, 0x3f803f80")
    a("s_mov_b64 exec, -1")
    for r in range(8): a(f"v_cvt_pk_bf16_f32 v{k0+r}, v{k0+2*r}, v{k0+2*r+1}")
    KVA = 176
    a(f"{MF} {vr(KVA,16)}, {vr(ACK,4)}, {vr(ACV,4)}, 0")
    a(f"{MF} {vr(KVA,16)}, {vr(ACK+4,4)}, {vr(ACV+4,4)}, {vr(KVA,16)}")
    for q in range(4): a(f"ds_write_b128 v2, {vr(KVA+4*q,4)} offset:{KVL+1024*q}")
    a("s_waitcnt lgkmcnt(0)\n s_barrier")
    for w2 in range(4): a(f"ds_read_b128 {vr(192+4*w2,4)}, v3 offset:{KVL+4096*w2}")
    a(f"""
    s_waitcnt lgkmcnt(0)
    v_pk_add_f32 v[192:193], v[192:193], v[196:197]
    v_pk_add_f32 v[194:195], v[194:195], v[198:199]
    v_pk_add_f32 v[200:201], v[200:201], v[204:205]
    v_pk_add_f32 v[202:203], v[202:203], v[206:207]
    v_pk_add_f32 v[192:193], v[192:193], v[200:201]
    v_pk_add_f32 v[194:195], v[194:195], v[202:203]
    buffer_store_dwordx4 v[192:195], v{vL16}, {SWS}, {sT[6]} offen {SC}
    """)
    a.stamp("a1_kvp")
    kvr_setup(a)
    a(f"s_cmp_eq_u32 {sIT}, 0\n s_cbranch_scc1 {L}_cq\n {L}_cqr:")
    main = a.lines; a.lines = a.stubs
    a(f"{L}_cq:")
    a1_it0_q(a, f"{L}_cqr")
    a.lines = main
    T1 = 208
    a(f"v_lshlrev_b32 v2, 4, v{vHH}\n v_add_u32 v2, {CSL}, v2")
    for q in range(4): a(f"ds_read_b128 {vr(T1+4*q,4)}, v2 offset:{32*q}")
    a(f"""
    s_lshl_b32 {sT[5]}, {sRB}, 2
    s_add_u32 {sT[5]}, {sT[5]}, {sW}
    s_lshl_b32 {sT[5]}, {sT[5]}, 4
    s_add_u32 {sT[5]}, {sT[5]}, {sH}
    s_lshl_b32 {sT[5]}, {sT[5]}, 11
    s_add_u32 {sT[5]}, {sT[5]}, {sITO}
    s_waitcnt lgkmcnt(0)
    """)
    for r in range(8): a(f"v_pk_fma_f32 {P(ACQ,r)}, {P(T1,r)}, v[{vM}:{vR}], {P(ACQ,r)} op_sel_hi:[1,0,1] neg_lo:[1,0,0] neg_hi:[1,0,0]")
    for r in range(8): a(f"v_pk_fma_f32 {P(ACQ,r)}, {P(ACQ,r)}, v[{vM}:{vR}], v[0:1] op_sel:[0,1,0] op_sel_hi:[1,1,0]")
    for r in range(8): a(f"v_pk_mul_f32 {P(T1,r)}, {P(ACQ,r)}, v[0:1] op_sel:[0,1] op_sel_hi:[1,1]")
    for r in range(16):
        a(f"v_exp_f32_e64 v{T1+r}, v{T1+r} clamp")
        a(f"v_max_f32 v{ACQ+r}, {sT[3]}, v{ACQ+r}")
    for r in range(8): a(f"v_pk_add_f32 {P(ACQ,r)}, {P(ACQ,r)}, {P(T1,r)}")
    for r in range(8): a(f"v_cvt_pk_bf16_f32 v{T1+r}, v{ACQ+2*r}, v{ACQ+2*r+1}")
    a.lstore([f"buffer_store_dwordx4 {vr(T1,4)}, v{vL16}, {SWS}, {sT[5]} offen", f"buffer_store_dwordx4 {vr(T1+4,4)}, v{vL16}, {SWS}, {sT[5]} offen offset:1024"])
    a.stamp("a1_end")

def helper_index(a):
    a(f"""
    s_and_b32 {sT[0]}, s2, 7
    s_lshl_b32 {sT[0]}, {sT[0]}, 2
    s_lshr_b32 {sT[1]}, s2, 3
    s_add_u32 {sT[0]}, {sT[0]}, {sT[1]}
    s_sub_u32 {sT[0]}, {sT[0]}, 28
    s_lshl_b32 {sT[0]}, {sT[0]}, 2
    s_add_u32 {sT[0]}, {sT[0]}, {sW}         ; hw 0..127
    """)

KB, KAD, KSA = 128, 190, 191
def kvr_setup(a):
    t2, t3, t4, t5 = 184, 185, 186, 187
    a(f"""
    v_lshrrev_b32 v{t2}, 4, v{vLANE}
    v_and_b32 v{t3}, 15, v{vLANE}
    v_lshlrev_b32 v{t2}, 12, v{t2}
    v_lshl_add_u32 v{KAD}, v{t3}, 4, v{t2}
    s_lshr_b32 {sT[0]}, s2, 3
    s_lshr_b32 {sT[1]}, {sT[0]}, 1
    s_and_b32 {sT[8]}, {sT[0]}, 1
    s_lshl_b32 {sT[6]}, {sT[1]}, 16
    s_lshl_b32 {sT[4]}, {sT[8]}, 11
    s_add_u32 {sT[6]}, {sT[6]}, {sT[4]}
    s_lshl_b32 {sT[4]}, {sW}, 8
    s_add_u32 {sT[6]}, {sT[6]}, {sT[4]}
    s_add_u32 {sT[6]}, {sT[6]}, {sITO}
    s_add_u32 {sT[6]}, {sT[6]}, {KVP}
    s_lshl_b32 {sT[4]}, {sWL}, 4
    v_add_u32 v{t3}, {sT[4]}, v{t3}
    v_cmp_le_u32 vcc, 14, v{t3}
    v_cndmask_b32 v{t4}, 0, 1, vcc
    v_mul_u32_u24 v{t5}, 14, v{t4}
    v_sub_u32 v{t5}, v{t3}, v{t5}
    v_cmp_le_u32 vcc, 28, v{t3}
    v_and_b32 v{t2}, 1, v{t3}
    v_add_u32 v{t2}, 14, v{t2}
    v_cndmask_b32 v{t5}, v{t5}, v{t2}, vcc
    v_bfe_u32 v{t2}, v{t3}, 1, 1
    v_cndmask_b32 v{t4}, v{t4}, v{t2}, vcc
    v_and_b32 v{t2}, 3, v{t5}
    v_lshrrev_b32 v{t5}, 2, v{t5}
    v_lshl_add_u32 v{t2}, v{t5}, 3, v{t2}
    v_lshl_add_u32 v{t2}, v{t4}, 2, v{t2}
    v_lshlrev_b32 v{KSA}, 4, v{t2}
    s_lshl_b32 {sT[7]}, {sT[0]}, 10
    s_lshl_b32 {sT[4]}, {sWH}, 9
    s_add_u32 {sT[7]}, {sT[7]}, {sT[4]}
    s_and_b32 {sT[4]}, s2, 7
    s_lshl_b32 {sT[4]}, {sT[4]}, 15
    s_add_u32 {sT[7]}, {sT[7]}, {sT[4]}
    s_add_u32 {sT[7]}, {sT[7]}, {sITO}
    s_add_u32 {sT[7]}, {sT[7]}, {KVF}
    s_and_b32 {sT[4]}, {sT[8]}, {sWH}
    s_cmp_eq_u32 {sT[4]}, 1
    s_cselect_b32 {sT[10]}, 0, -1
    """)
def kvr_loads(a):
    B = KB
    for i in range(4):
        a(f"s_add_u32 {sT[2]}, {sT[6]}, {i*0x4000}")
        a(f"buffer_load_dwordx4 {vr(B+4*i,4)}, v{KAD}, {SWS}, {sT[2]} offen {SC}")
        a(f"buffer_load_dwordx4 {vr(B+16+4*i,4)}, v{KAD}, {SWS}, {sT[2]} offen offset:1024 {SC}")
def kvr_finish(a):
    B, SA = KB, KSA
    a.check(range(B, B + 32), lambda: (a(f"s_sleep {OPT.get('rsl', 5)}"), kvr_loads(a)), 0)
    bs = (B, B + 16)
    for b in bs:
        a(f"""
        v_pk_add_f32 v[{b}:{b+1}], v[{b}:{b+1}], v[{b+4}:{b+5}]
        v_pk_add_f32 v[{b+2}:{b+3}], v[{b+2}:{b+3}], v[{b+6}:{b+7}]
        v_pk_add_f32 v[{b+8}:{b+9}], v[{b+8}:{b+9}], v[{b+12}:{b+13}]
        v_pk_add_f32 v[{b+10}:{b+11}], v[{b+10}:{b+11}], v[{b+14}:{b+15}]
        v_pk_add_f32 v[{b}:{b+1}], v[{b}:{b+1}], v[{b+8}:{b+9}]
        v_pk_add_f32 v[{b+2}:{b+3}], v[{b+2}:{b+3}], v[{b+10}:{b+11}]
        """)
    for b in bs: a(f"v_permlane32_swap_b32 v{b}, v{b+2}\n v_permlane32_swap_b32 v{b+1}, v{b+3}")
    for b in bs: a(f"v_pk_add_f32 v[{b}:{b+1}], v[{b}:{b+1}], v[{b+2}:{b+3}]")
    for b in bs: a(f"v_permlane16_swap_b32 v{b}, v{b+1}")
    for b in bs: a(f"v_add_f32 v{b}, v{b}, v{b+1}")
    for b in bs: a(f"v_mov_b32 v{b+1}, v{b}")
    for b in bs: a(f"v_permlane16_swap_b32 v{b}, v{b+1}")
    O = B + 32
    a(f"""
    v_cvt_pk_bf16_f32 v{O}, v{B}, v{B+1}
    v_cvt_pk_bf16_f32 v{O+2}, v{B+16}, v{B+17}
    v_and_b32 v{O+2}, {sT[10]}, v{O+2}
    v_mov_b32 v{O+1}, v{O}
    v_mov_b32 v{O+3}, v{O+2}
    v_permlane32_swap_b32 v{O}, v{O+1}
    v_permlane32_swap_b32 v{O+2}, v{O+3}
    s_mov_b64 exec, 0xffff
    """)
    a.lstore([f"buffer_store_dwordx4 {vr(O,4)}, v{SA}, {SWS}, {sT[7]} offen"])
    a("s_mov_b64 exec, -1")

RED = 0x20000
def red_addrs(a, base, partner_xor, v_own, v_par):
    a(f"""
    s_lshl_b32 {sT[0]}, {sW}, 13
    s_add_u32 {sT[0]}, {sT[0]}, {base}
    v_add_u32 v{v_own}, {sT[0]}, v{vL16}
    v_xor_b32 v{v_par}, {partner_xor*8192}, v{v_own}
    """)
def pair_reduce(a, acc0, acc1, v_own, v_par, after_barrier=None):
    for q in range(4): a(f"ds_write_b128 v{v_own}, {vr(acc1+4*q,4)} offset:{1024*q}")
    a("s_waitcnt lgkmcnt(0)\n s_barrier")
    for q in range(4): a(f"ds_read_b128 {vr(acc1+4*q,4)}, v{v_par} offset:{1024*q}")
    if after_barrier: after_barrier()
    for q in range(4):
        a(f"s_waitcnt lgkmcnt({3-q})")
        for r in range(2): a(f"v_pk_add_f32 {vr(acc0+4*q+2*r,2)}, {vr(acc0+4*q+2*r,2)}, {vr(acc1+4*q+2*r,2)}")

def helper_work(a):
    L = a.label("HW")
    a(f"""
    v_lshrrev_b32 v4, 2, v{vLANE}
    v_mul_u32_u24 v4, 2688, v4
    v_and_b32 v5, 3, v{vLANE}
    v_lshl_add_u32 v4, v5, 4, v4
    v_mov_b32 v8, -1
    v_mov_b32 v9, -1
    v_mov_b32 v10, -1
    v_mov_b32 v11, -1
    v_lshlrev_b32 v6, 7, v{vLANE}
    """)
    def warm(srd, lo, hi):
        if not OPT.get("warm", 1): return
        LL = a.label("HWW")
        a(f"""
        s_lshl_b32 {sT[1]}, {sT[0]}, 13
        s_add_u32 {sT[1]}, {sT[1]}, {lo}
        {LL}:
        buffer_load_dword v7, v6, {srd}, {sT[1]} offen
        s_add_u32 {sT[1]}, {sT[1]}, {128*8192}
        s_cmp_lt_u32 {sT[1]}, {hi}
        s_cbranch_scc1 {LL}
        """)
    def fill(lo, hi):
        LL = a.label("HWF")
        a(f"""
        s_lshl_b32 {sT[1]}, {sT[0]}, 10
        s_add_u32 {sT[1]}, {sT[1]}, {lo}
        {LL}:
        buffer_store_dwordx4 v[8:11], v{vL16}, {SWS}, {sT[1]} offen {SC}
        s_add_u32 {sT[1]}, {sT[1]}, {128*1024}
        s_cmp_lt_u32 {sT[1]}, {hi}
        s_cbranch_scc1 {LL}
        """)
    def signal(off):
        LL = a.label("HWS")
        a(f"""
        s_waitcnt vmcnt(0)
        s_barrier
        s_cmp_lg_u32 {sW}, 0
        s_cbranch_scc1 {LL}
        v_mov_b32 v2, 1
        v_mov_b32 v3, {off}
        s_mov_b64 exec, 1
        buffer_atomic_add v2, v3, {SDBG}, 0 offen sc1
        s_mov_b64 exec, -1
        {LL}:
        """)
        a.xstamp({196: 54, 4: 55, 68: 56, 132: 57}[off])
    fill(ST, UF)
    signal(196)
    if OPT.get('t23', 1) == 2: warm(SW1, 0, F * S * 2)
    fill(UF, ITB)
    signal(4)
    if OPT.get('hw', 1) == 0: warm(SW2, 0, F * S * 2)
    for i in range(11):
        a(f"""
        s_add_u32 {sT[1]}, {sT[0]}, {128*i}
        s_min_u32 {sT[1]}, {sT[1]}, 1343
        s_mul_i32 {sT[2]}, {sT[1]}, 3121
        s_lshr_b32 {sT[2]}, {sT[2]}, 18
        s_mul_i32 {sT[3]}, {sT[2]}, 84
        s_sub_u32 {sT[3]}, {sT[1]}, {sT[3]}
        s_mul_i32 {sT[2]}, {sT[2]}, 56
        s_and_b32 {sT[2]}, {sT[2]}, 0xfff0
        s_lshr_b32 {sT[4]}, {sT[3]}, 1
        s_and_b32 {sT[5]}, {sT[3]}, 1
        s_add_u32 {sT[5]}, {sT[5]}, 1
        s_sub_u32 {sT[6]}, {sT[3]}, 56
        s_cmp_lt_u32 {sT[3]}, 56
        s_cselect_b32 {sT[4]}, {sT[4]}, {sT[6]}
        s_cselect_b32 {sT[5]}, {sT[5]}, 0
        s_mul_i32 {sT[4]}, {sT[4]}, {16*2688}
        s_mul_i32 {sT[5]}, {sT[5]}, 896
        s_add_u32 {sT[2]}, {sT[2]}, {sT[4]}
        s_add_u32 {sT[2]}, {sT[2]}, {sT[5]}
        buffer_load_dwordx4 {vr(16+4*i,4)}, v4, {SWQKV}, {sT[2]} offen
        """)
    a("s_waitcnt vmcnt(0)")
    for i in range(11):
        a(f"""
        s_add_u32 {sT[1]}, {sT[0]}, {128*i}
        s_min_u32 {sT[1]}, {sT[1]}, 1343
        s_lshl_b32 {sT[2]}, {sT[1]}, 10
        s_add_u32 {sT[2]}, {sT[2]}, {WQP}
        buffer_store_dwordx4 {vr(16+4*i,4)}, v{vL16}, {SWS}, {sT[2]} offen {SC}
        """)
    fill(XF, FILL_END)
    signal(68)
    if OPT.get('hw', 1) == 1: warm(SW2, 0, F * S * 2)
    fill(ITB, XF)
    signal(132)
    a.counter_wait(68, 1, 32, 2)
    a("s_barrier")
    a1_wpk_setup(a)
    for o in a1_wpk_own_ops() + a1_wpk_hi_ops(): a(o)

def phase_a2(a):
    L = a.label("A2")
    PQR, KVR, WB = 64, 128, 192
    AC0, AC1 = 16, 32
    a(f"""
    s_lshl_b32 {sT[5]}, {sST}, 1
    s_add_u32 {sT[5]}, {sT[5]}, {sWL}
    s_lshl_b32 {sAT[0]}, {sT[5]}, 15
    s_lshl_b32 {sT[1]}, {sWH}, 14
    s_add_u32 {sAT[0]}, {sAT[0]}, {sT[1]}
    s_add_u32 {sAT[0]}, {sAT[0]}, {sITO}
    s_add_u32 {sAT[1]}, {sAT[0]}, 0x2000
    s_add_u32 {sAT[2]}, {sT[1]}, {sITO}
    s_add_u32 {sAT[2]}, {sAT[2]}, {KVF}
    s_add_u32 {sAT[3]}, {sAT[2]}, 0x2000
    """)
    def pq_loads():
        for i in range(16):
            a(f"buffer_load_dwordx4 {vr(PQR+4*i,4)}, v{vL16b if i&4 else vL16}, {SWS}, {sAT[i>>3]} offen offset:{(i&3)*1024} {SC}")
    def kv_loads(i0=0):
        for i in range(i0, 16):
            a(f"buffer_load_dwordx4 {vr(KVR+4*i,4)}, v{vL16b if i&4 else vL16}, {SWS}, {sAT[2+(i>>3)]} offen offset:{(i&3)*1024} {SC}")
    a(f"""
    s_and_b32 {sT[0]}, s2, 7
    s_lshl_b32 {sT[0]}, {sT[0]}, 15
    s_add_u32 {sAT[2]}, {sAT[2]}, {sT[0]}
    s_add_u32 {sAT[3]}, {sAT[3]}, {sT[0]}
    v_min_u32 v4, 15, v{vLANE}
    v_lshlrev_b32 v4, 10, v4
    v_add_u32 v4, 1020, v4
    """)
    def stage(aw, n, va, off, urows):
        for t in range(n):
            for i in range(2):
                for u in range(2):
                    a(f"ds_read_b64_tr_b16 {ar(aw + 8*t + 4*i + 2*u, 2)}, v{va+i} offset:{off + t*2048 + urows*u*128}")
    def setup():
        a(f"s_lshl_b32 {sT[11]}, {sWH}, 16\n s_add_u32 {sT[11]}, {sT[11]}, 0x8000")
        wtile_tr_addr(a, 6, 14, sWH, sT[11])
        wtile_tr_addr(a, 14, 8, sWH, sLB)
        red_addrs(a, RED, 2, 8, 9)
        for r in range(16): a(f"v_mov_b32 v{AC0+r}, v{RES+r}")
        a(f"""
        s_mul_i32 {sT[8]}, {sT[5]}, 3584
        s_add_u32 {sT[8]}, {sT[8]}, {sITO}
        s_add_u32 {sT[8]}, {sT[8]}, {ST}
        s_lshl_b32 {sT[1]}, {sDT}, 1
        s_add_u32 {sT[1]}, {sT[1]}, {sWH}
        s_lshl_b32 {sT[9]}, {sT[1]}, 8
        s_add_u32 {sT[9]}, {sT[9]}, {sT[8]}
        s_lshl_b32 {sT[12]}, {sT[1]}, 17
        s_lshl_b32 {sT[0]}, {sT[5]}, 11
        s_add_u32 {sT[12]}, {sT[12]}, {sT[0]}
        s_add_u32 {sT[12]}, {sT[12]}, {sITO}
        s_add_u32 {sT[12]}, {sT[12]}, {HF}
        v_lshrrev_b32 v2, 1, v{vLANE}
        v_lshlrev_b32 v2, 9, v2
        v_and_b32 v3, 1, v{vLANE}
        v_mul_u32_u24 v3, 96, v3
        v_add_u32 v11, v2, v3
        """)
    a(f"s_cmp_eq_u32 {sIT}, 0\n s_cbranch_scc1 {L}_s0")
    pq_loads()
    kvr_loads(a)
    setup()
    a(f"s_waitcnt vmcnt(0)\n {L}_s0r:")
    main = a.lines; a.lines = a.stubs
    a(f"{L}_s0:")
    for o in wo_ops(): a(o)
    setup()
    a(f"s_waitcnt vmcnt(17)\n s_branch {L}_s0r")
    a.lines = main
    kvr_finish(a)
    a.stamp("a2_pq")
    for o in a.wo_rest: a(o)
    a(f"s_cmp_eq_u32 {sIT}, 0\n s_cbranch_scc1 {L}_s1\n {L}_s1r:")
    main = a.lines; a.lines = a.stubs
    a(f"{L}_s1:")
    pq_loads()
    a(f"""
    v_mul_u32_u24 v2, 896, v{vL31}
    v_lshl_add_u32 v2, v{vHH}, 3, v2
    s_mul_i32 {sT[0]}, {sT[5]}, {32*896}
    s_lshl_b32 {sT[1]}, {sDT}, 7
    s_add_u32 {sT[0]}, {sT[0]}, {sT[1]}
    s_lshl_b32 {sT[1]}, {sWH}, 6
    s_add_u32 {sT[0]}, {sT[0]}, {sT[1]}
    """)
    for q in range(4): a(f"buffer_load_dwordx2 {vr(48+2*q,2)}, v2, {SX}, {sT[0]} offen offset:{16*q}")
    for o in big_dma_ops(1, 28, 4, 0, "s79"): a(o)
    a(f"s_lshl_b32 {sT[11]}, {sW}, 13\n s_sub_u32 {sT[11]}, {sT[11]}, {sLB}\n v_add_u32 v12, {sT[11]}, v14\n v_add_u32 v13, {sT[11]}, v15")
    stage(aW1 + 64, 4, 12, 0, 4)
    a(f"s_waitcnt lgkmcnt(0)\n s_branch {L}_s1r")
    a.lines = main
    a("s_waitcnt vmcnt(0)")
    a.check(range(PQR, PQR + 64), lambda: (a("s_sleep 4"), pq_loads()), 0)
    if not OPT.get('sub'): a.xstamp(59)
    a("s_barrier")
    NB = [48, RES, PQR]
    def num_ops(hd):
        n = NB[hd % 3]
        return [f"{MF} {vr(n,16)}, {vr(KVR+8*hd,4)}, {vr(PQR+8*hd,4)}, 0",
                f"{MF} {vr(n,16)}, {vr(KVR+8*hd+4,4)}, {vr(PQR+8*hd+4,4)}, {vr(n,16)}"]
    p1 = big_dma_ops(1, 0, 8, 0)
    nd = [0]; ndc = [0]
    def kvchk(hd):
        a(f"s_waitcnt vmcnt({14-2*hd+nd[0]})")
        a.check(range(KVR + 8 * hd, KVR + 8 * hd + 8), lambda hd=hd: kv_loads(2 * hd), 0 if nd[0] else 14 - 2 * hd)
    def wrd_ops(hd):
        o = []
        for t in range(2):
            for nb in range(2):
                b = WB + 16 * (hd & 1) + 4 * (2 * t + nb)
                for u in range(2):
                    o.append(f"ds_read_b64_tr_b16 {vr(b+2*u,2)}, v{6+nb} offset:{(28*hd+8*t+4*u)*128}")
        return o
    def wrd(hd):
        for o in wrd_ops(hd): a(o)
    def div_ops(hd):
        n = NB[hd % 3]
        ops = [f"v_add_f32 v10, {fbits(1e-6)}, v{n+15}", "v_rcp_f32 v10, v10"]
        for r in range(14): ops.append(f"v_mul_f32 v{n+r}, v{n+r}, v10")
        for r in range(7): ops.append(f"v_cvt_pk_bf16_f32 v{n+r}, v{n+2*r}, v{n+2*r+1}")
        ops.append(f"v_mov_b32 v{n+7}, 0")
        return ops
    def out_ops(hd):
        ops = []
        for t in range(2):
            for nb in range(2):
                acc = (AC0, AC1)[nb]
                c = vr(acc, 16) if (hd or t or nb == 0) else "0"
                ops.append(f"{MF} {vr(acc,16)}, {vr(WB+16*(hd&1)+4*(2*t+nb),4)}, {vr(NB[hd%3]+4*t,4)}, {c}")
        return ops
    kv_loads()
    a(f"s_cmp_eq_u32 {sIT}, 0\n s_cbranch_scc1 {L}_s2\n {L}_s2r:")
    main = a.lines; a.lines = a.stubs
    a(f"{L}_s2:")
    a(f"s_sub_u32 {sT[11]}, s79, {sLB}\n v_add_u32 v12, {sT[11]}, v14\n v_add_u32 v13, {sT[11]}, v15")
    stage(aW1 + 96, 4, 12, 0, 4)
    a("s_waitcnt lgkmcnt(0)")
    for q in range(8): a(f"v_lshlrev_b32 v{AC0+2*q}, 16, v{48+q}\n v_and_b32 v{AC0+2*q+1}, 0xffff0000, v{48+q}")
    a(f"s_branch {L}_s2r")
    a.lines = main
    wrd(0)
    kvchk(0)
    for o in num_ops(0): a(o)
    a.stamp("a2_kv")
    kvchk(1)
    for o in num_ops(1): a(o)
    for o in div_ops(0): a(o)
    for hd in range(8):
        va = div_ops(hd + 1) if hd + 1 < 8 else []
        ds = wrd_ops(hd + 1) if hd + 1 < 8 else []
        mf = []
        if hd + 2 < 8:
            kvchk(hd + 2)
            mf += num_ops(hd + 2)
        nnum = len(mf)
        mf += out_ops(hd)
        per = -(-len(va) // len(mf))
        nds = 0
        for j, o in enumerate(mf):
            if j == nnum: a(f"s_waitcnt lgkmcnt({nds})")
            a(o)
            for _ in range(2):
                if ds:
                    a(ds.pop(0)); nds += 1
            if j >= 2 and p1:
                a(p1.pop(0)); nd[0] += 1
            for _ in range(per):
                if va: a(va.pop(0))
        assert not va and not ds
        if hd == 0:
            a.counter_issue(196, 1); nd[0] += 1; ndc[0] = nd[0]
    assert not p1
    a.stamp("a2_mm")
    pair_reduce(a, AC0, AC1, 8, 9)
    a(f"s_waitcnt vmcnt({nd[0] - ndc[0]})")
    a.counter_check(196, 32)
    stats_publish(a, AC0, 64, sT[9])
    p2 = big_dma_ops(1, 8, 8, 0x8000)
    n2 = 0
    for o in p2[:n2]: a(o)
    stats_loads(a, sT[8], 96)
    for r in range(16): a(f"v_mov_b32 v{RES+r}, v{AC0+r}")
    TW = 128
    a(f"""
    s_add_u32 {sT[0]}, {sLB}, 0x8000
    v_lshrrev_b32 v2, 1, v{vL31}
    v_and_b32 v2, 7, v2
    v_xor_b32 v2, v2, v{vHH}
    v_lshlrev_b32 v3, 6, v{vL31}
    v_add_u32 v3, {sT[0]}, v3
    """)
    for q in range(4): a(f"v_xor_b32 v4, {2*q}, v2\n v_lshl_add_u32 v{TW+q}, v4, 3, v3")
    a(f"""
    v_lshrrev_b32 v2, 2, v{vLANE}
    v_and_b32 v2, 3, v2
    v_lshl_add_u32 v2, v{vHH}, 3, v2
    v_lshrrev_b32 v3, 4, v{vLANE}
    v_and_b32 v3, 1, v3
    v_lshlrev_b32 v3, 2, v3
    v_and_b32 v4, 3, v{vLANE}
    v_add_u32 v3, v3, v4
    v_lshrrev_b32 v4, 1, v2
    v_xor_b32 v3, v3, v4
    v_lshlrev_b32 v2, 6, v2
    v_add_u32 v2, {sT[0]}, v2
    v_lshl_add_u32 v{TW+4}, v3, 3, v2
    v_xor_b32 v3, 2, v3
    v_lshl_add_u32 v{TW+5}, v3, 3, v2
    s_waitcnt vmcnt(0)
    """)
    a.check(range(96, 110), lambda: stats_loads(a, sT[8], 96), 0, 2)
    a.stamp("a2_st")
    for o in stats_math_ops(96, 80, 82, 112): a(o)
    a(f"""
    v_add_f32 v84, {fbits(1e-5)}, v82
    v_rsq_f32 v84, v84
    v_mov_b32 v86, {fbits(1e-5)}
    v_mul_f32 v85, v82, v84
    v_fmac_f32 v86, v85, v84
    v_rsq_f32 v86, v86
    v_mul_f32 v84, v84, v86
    v_mul_f32 v86, -v80, v84
    """)
    for r in range(8): a(f"v_pk_fma_f32 {vr(32+2*r,2)}, {vr(AC0+2*r,2)}, v[84:85], v[86:87] op_sel_hi:[1,0,0]")
    for r in range(8): a(f"v_cvt_pk_bf16_f32 v{112+r}, v{32+2*r}, v{32+2*r+1}")
    for q in range(4): a(f"ds_write_b64 v{TW+q}, {vr(112+2*q,2)}")
    a(f"""
    ds_read_b64_tr_b16 v[120:121], v{TW+4}
    ds_read_b64_tr_b16 v[122:123], v{TW+5} offset:256
    ds_read_b64_tr_b16 v[124:125], v{TW+4} offset:1024
    ds_read_b64_tr_b16 v[126:127], v{TW+5} offset:1280
    s_waitcnt lgkmcnt(2)
    buffer_store_dwordx4 v[120:123], v{vL16}, {SWS}, {sT[12]} offen {SC}
    s_waitcnt lgkmcnt(0)
    buffer_store_dwordx4 v[124:127], v{vL16}, {SWS}, {sT[12]} offen offset:1024 {SC}
    s_barrier
    """)
    a.p2rest = p2[n2:]

ACC, WBF, WIN = 8, 72, 96
def ringoff(t): return ((t & 15) >> 3) * 0x8000 + (t & 7) * 2048
vTR, vPB = 6, 4
def gemm4(a, which, it, init):
    nks, nL, urows, w_is_a, aW = (32, 16, 4, True, aW1) if which == 1 else (28, 12, 8, False, aW2)
    NW, LA, R = OPT.get('nw', 8), 2, 4
    def rel(i, j): return 2 * i + j if which == 1 else i + 2 * j
    def areg(t, j): return WIN + 4 * ((2 * t + j) % 32)
    def act_load(t):
        for j in range(2):
            a(f"buffer_load_dwordx4 {vr(areg(t,j),4)}, v{vL16b if t&4 else vL16}, {SWS}, {sAT[4*j+(t>>3)]} offen offset:{(t&3)*1024} {SC}")
    def wreg(t, i, o=0, n=4):
        if t < nL: return vr(WBF + 8 * (t % 3) + 4 * i + o, n)
        return ar(aW + 8 * (t - nL) + 4 * i + o, n)
    def ldsoff(t): return ringoff(t)
    def rd(t):
        for i in range(2):
            for u in range(2):
                a(f"ds_read_b64_tr_b16 {wreg(t,i,2*u,2)}, v{vTR+i} offset:{ldsoff(t) + urows*u*128}")
    nrd = nks if it == 0 else nL
    sched = {}
    later = []
    def put(t, ops, tag):
        if t < nks - R: sched.setdefault(t, []).extend((o, tag) for o in ops)
        else: later.extend(ops)
    if it == 0:
        for k in range(16, nks): put(k - 15, big_dma_ops(which, k, 1, ringoff(k)), ("w", k))
        if which == 1:
            for p in range(12): put(OPT.get('w2t0', 24) + p, big_dma_ops(2, p, 1, ringoff(p)), ("x", 0))
        else:
            own = a1_wpk_own_ops()
            for p in range(8): put(OPT.get('wqt', 20) + p, own[2 * p:2 * p + 2], ("x", 0))
            later.extend(a1_wpk_hi_ops())
    elif which == 1:
        for p in range(12): put(OPT.get('w2t', 24) + p, big_dma_ops(2, p, 1, ringoff(p)), ("x", 0))
    q = []
    NO = OPT.get("no", 4)
    for t in range(NW):
        if t >= NO: act_load(t)
        q += [("a", t)] * 2
    init()
    def cnt(item):
        idx = max(i for i, x in enumerate(q) if x == item)
        return min(len(q) - 1 - idx, 63)
    dma_seen = [False]
    lq = []
    for t in range(LA): lq.append(t)
    def check_grp(t, n):
        c = cnt(("a", t + n - 1))
        a(f"s_waitcnt vmcnt({c})")
        hi = max(x[1] for x in q if x[0] == "a") + 1
        regs = [areg(tt, j) + k for tt in range(t, t + n) for j in range(2) for k in range(4)]
        a.check(regs, lambda t=t, hi=hi: [act_load(tt) for tt in range(t, hi)], c if not dma_seen[0] else 0)
    def mfma(t, i, j):
        acc = ACC + 16 * rel(i, j)
        c_ = vr(acc, 16) if (t or rel(i, j) == 0) else "0"
        x = vr(areg(t, j), 4)
        return f"{MF} {vr(acc,16)}, {wreg(t,i)}, {x}, {c_}" if w_is_a else f"{MF} {vr(acc,16)}, {x}, {wreg(t,i)}, {c_}"
    def issue_rd(t):
        if t < nrd:
            if it == 0 and t >= 16:
                assert q.count(("w", t)) == 2
                a(f"s_waitcnt vmcnt({cnt(('w', t))})")
            rd(t); lq.append(t)
    def wait_rd(t):
        if t < nrd:
            n = len([x for x in lq if x > t])
            a(f"s_waitcnt lgkmcnt({4*n})")
    for t in range(nks - R):
        if t % 2 == 0:
            check_grp(t, 2)
            if t == 0: a.stamp("acq")
        issue_rd(t + LA)
        wait_rd(t)
        ex = list(sched.get(t, []))
        for (i, j) in ((0, 0), (1, 0), (0, 1), (1, 1)):
            a(mfma(t, i, j))
            if ex:
                o, tag = ex.pop(0)
                a(o); q.append(tag); dma_seen[0] = True
        assert not ex
        if t + NW < nks:
            act_load(t + NW); q += [("a", t + NW)] * 2
    assert all(k < nks - R for k in sched), sorted(sched)
    t0 = nks - R
    for t in range(t0 + LA, nks): issue_rd(t)
    check_grp(t0, R)
    if nrd == nks: a("s_waitcnt lgkmcnt(0)")
    wofs = {1: 0xA000, 2: 0xB000}
    def wr(r_):
        for k in range(4):
            if r_ == 3 and which == 1: a(f"ds_write_b128 v1, {vr(ACC+16*r_+4*k,4)} offset:{1024*k}")
            else: a(f"ds_write_b128 v0, {vr(ACC+16*r_+4*k,4)} offset:{wofs.get(r_, 0x9000)+1024*k}")
    order = sorted([(i, j) for i in range(2) for j in range(2)], key=lambda x: -rel(*x))
    addr_ops = [f"v_add_u32 v0, {sLB}, v{vL16}", f"v_xor_b32 v2, 0x4000, v0", f"v_xor_b32 v3, 0x10000, v0"]
    if which == 1:
        addr_ops += [f"s_lshl_b32 {sT[0]}, {sW}, 12", f"s_add_u32 {sT[0]}, {sT[0]}, 0x20000", f"v_add_u32 v1, {sT[0]}, v{vL16}", f"v_xor_b32 v5, 0x3000, v1"]
    else:
        addr_ops += [f"v_xor_b32 v5, 0x14000, v0"]
    for n_, (i, j) in enumerate(order):
        for t in range(t0, nks):
            a(mfma(t, i, j))
            for _ in range(2):
                if addr_ops: a(addr_ops.pop(0))
        if n_ >= 1: wr(rel(*order[n_ - 1]))
    a.stamp("mm")
    a("s_waitcnt lgkmcnt(0)\n s_barrier")
    for r_, va, of in ((1, 2, 0xA000), (2, 3, 0xB000), (3, 5, 0 if which == 1 else 0x9000)):
        for k in range(4): a(f"ds_read_b128 {vr(ACC+16*r_+4*k,4)}, v{va} offset:{of+1024*k}")
    return later

def red_finish(a):
    for r_ in range(1, 4):
        a(f"s_waitcnt lgkmcnt({4*(3-r_)})")
        for k in range(8): a(f"v_pk_add_f32 {vr(ACC+2*k,2)}, {vr(ACC+2*k,2)}, {vr(ACC+16*r_+2*k,2)}")

def act_tables(a, s_abs, slice_stride, s_keep, nks):
    a(f"""
    s_mul_i32 {sT[0]}, {s_keep}, {slice_stride}
    s_add_u32 {sAT[0]}, {s_abs}, {sT[0]}
    s_sub_u32 {sT[0]}, {slice_stride}, {sT[0]}
    s_add_u32 {sAT[4]}, {s_abs}, {sT[0]}
    """)
    for k in range(1, 4):
        a(f"s_add_u32 {sAT[k]}, {sAT[0]}, {k*0x2000}\n s_add_u32 {sAT[4+k]}, {sAT[4]}, {k*0x2000}")
    a(f"""
    v_min_u32 v{vPB}, {nks-1}, v{vL31}
    v_lshlrev_b32 v{vPB}, 10, v{vPB}
    v_mul_u32_u24 v2, {slice_stride}, v{vHH}
    v_add3_u32 v{vPB}, v{vPB}, v2, 60
    v_add_u32 v{vPB}, 960, v{vPB}
    """)

def opt_loads(a):
    for t in range(OPT.get("no", 4)):
        for j in range(2):
            a(f"buffer_load_dwordx4 {vr(WIN + 4*(2*t+j),4)}, v{vL16b if t&4 else vL16}, {SWS}, {sAT[4*j]} offen offset:{(t&3)*1024} {SC}")

def first_rd(a, which):
    urows = 4 if which == 1 else 8
    for t in range(2):
        for i in range(2):
            for u in range(2):
                a(f"ds_read_b64_tr_b16 {vr(WBF+8*t+4*i+2*u,2)}, v{vTR+i} offset:{t*2048 + urows*u*128}")

def two_its(a, L, body):
    n0 = a.nstamp; names0 = list(getattr(a, "names", []))
    a(f"s_cmp_eq_u32 {sIT}, 0\n s_cbranch_scc0 {L}_i1")
    r0 = body(0)
    a(f"s_branch {L}_j\n {L}_i1:")
    a.nstamp = n0
    if STAMPS: a.names = names0
    r1 = body(1)
    a(f"{L}_j:")
    return r0, r1

def phase_b1(a):
    L = a.label("B1")
    for o in a.p2rest: a(o)
    a.counter_issue(4, 1)
    a(f"""
    v_lshlrev_b32 v3, 3, v{vHH}
    s_lshl_b32 {sT[0]}, {sFT}, 7
    s_lshl_b32 {sT[1]}, {sWH}, 6
    s_add_u32 {sT[0]}, {sT[0]}, {sT[1]}
    """)
    for q in range(4): a(f"buffer_load_dwordx2 {vr(24+2*q,2)}, v3, {SB1}, {sT[0]} offen offset:{16*q}")
    a(f"""
    s_lshl_b32 {sT[6]}, {sDT1}, 18
    s_lshl_b32 {sT[3]}, {sW}, 15
    s_add_u32 {sT[6]}, {sT[6]}, {sT[3]}
    s_add_u32 {sT[6]}, {sT[6]}, {sITO}
    s_add_u32 {sT[6]}, {sT[6]}, {HF}
    """)
    act_tables(a, sT[6], 128 * 1024, sWL, 32)
    wtile_tr_addr(a, vTR, 8, sWH, sLB)
    a(f"""
    s_lshl_b32 {sT[5]}, {sDT1}, 1
    s_add_u32 {sT[5]}, {sT[5]}, {sWL}
    s_mul_i32 {sT[7]}, {sT[5]}, {112*1024}
    s_lshl_b32 {sT[1]}, {sFT}, 12
    s_add_u32 {sT[7]}, {sT[7]}, {sT[1]}
    s_lshl_b32 {sT[1]}, {sWH}, 11
    s_add_u32 {sT[7]}, {sT[7]}, {sT[1]}
    s_add_u32 {sT[7]}, {sT[7]}, {sITO}
    s_add_u32 {sT[7]}, {sT[7]}, {UF}
    """)
    first_rd(a, 1)
    a.probe(vPB, sT[6], 5, 1, extra=lambda: opt_loads(a), nextra=2*OPT.get("no", 4))
    a.stamp("probe")
    def init():
        for q in range(8): a(f"v_lshlrev_b32 v{ACC+2*q}, 16, v{24+q}\n v_and_b32 v{ACC+2*q+1}, 0xffff0000, v{24+q}")
    later = gemm4(a, 1, 1, init)
    nmid = OPT.get("w2mid", 0)
    for o in later[:nmid]: a(o)
    later = later[nmid:]
    a.counter_check(4, 32)
    c0 = -2 * 0.7978845608028654 * LOG2E
    c1 = c0 * 0.044715
    a(f"v_mov_b32 v0, {fbits(c1)}\n v_mov_b32 v1, {fbits(c0)}")
    red_finish(a)
    U, T = ACC, 96
    for r in range(8): a(f"v_pk_mul_f32 {vr(T+2*r,2)}, {vr(U+2*r,2)}, {vr(U+2*r,2)}")
    for r in range(8): a(f"v_pk_fma_f32 {vr(T+2*r,2)}, {vr(T+2*r,2)}, v[0:1], v[0:1] op_sel:[0,0,1] op_sel_hi:[1,0,1]")
    for r in range(8): a(f"v_pk_mul_f32 {vr(T+2*r,2)}, {vr(T+2*r,2)}, {vr(U+2*r,2)}")
    for r in range(16): a(f"v_exp_f32 v{T+r}, v{T+r}")
    for r in range(8): a(f"v_pk_add_f32 {vr(T+2*r,2)}, {vr(T+2*r,2)}, 1.0 op_sel_hi:[1,0]")
    for r in range(16): a(f"v_rcp_f32 v{T+r}, v{T+r}")
    for r in range(8): a(f"v_pk_mul_f32 {vr(T+2*r,2)}, {vr(T+2*r,2)}, {vr(U+2*r,2)}")
    for r in range(8): a(f"v_cvt_pk_bf16_f32 v{112+r}, v{T+2*r}, v{T+2*r+1}")
    a(f"""
    buffer_store_dwordx4 v[112:115], v{vL16}, {SWS}, {sT[7]} offen {SC}
    buffer_store_dwordx4 v[116:119], v{vL16}, {SWS}, {sT[7]} offen offset:1024 {SC}
    """)
    for o in later: a(o)

def phase_b2(a):
    L = a.label("B2")
    a(f"""
    s_lshl_b32 {sT[7]}, {sST}, 1
    s_add_u32 {sT[7]}, {sT[7]}, {sWL}
    v_lshlrev_b32 v3, 1, v{vL31}
    s_lshl_b32 {sT[0]}, {sT[7]}, 6
    buffer_load_ushort v24, v3, {SB2}, {sT[0]} offen
    s_mul_i32 {sT[6]}, {sDT}, {224*1024}
    s_mul_i32 {sT[0]}, {sW}, {28*1024}
    s_add_u32 {sT[6]}, {sT[6]}, {sT[0]}
    s_add_u32 {sT[6]}, {sT[6]}, {sITO}
    s_add_u32 {sT[6]}, {sT[6]}, {UF}
    """)
    act_tables(a, sT[6], 112 * 1024, sWH, 28)
    wtile_tr_addr(a, vTR, 4, sWL, sLB)
    a1_wpk_setup(a)
    a(f"""
    s_lshl_b32 {sT[5]}, {sDT}, 1
    s_add_u32 {sT[5]}, {sT[5]}, {sWH}
    s_mul_i32 {sT[8]}, {sT[7]}, {28*1024}
    s_lshl_b32 {sT[1]}, {sT[5]}, 11
    s_add_u32 {sT[8]}, {sT[8]}, {sT[1]}
    s_add_u32 {sT[8]}, {sT[8]}, {XF}
    s_mul_i32 {sT[9]}, {sT[7]}, 3584
    s_lshl_b32 {sT[1]}, {sT[5]}, 8
    s_add_u32 {sT[9]}, {sT[9]}, {sT[1]}
    s_add_u32 {sT[9]}, {sT[9]}, {ST2}
    s_mul_i32 {sT[12]}, {sT[7]}, {32*896}
    s_lshl_b32 {sT[1]}, {sT[5]}, 6
    s_add_u32 {sT[12]}, {sT[12]}, {sT[1]}
    s_barrier
    s_cmp_eq_u32 {sIT}, 0
    s_cbranch_scc0 {L}_nx
    """)
    for o in big_dma_ops(2, 12, 4, ringoff(12)): a(o)
    a(f"{L}_nx:")
    a.counter_issue(68, 1)
    a.probe(vPB, sT[6], 5, 1, extra=lambda: opt_loads(a), nextra=2*OPT.get("no", 4))
    first_rd(a, 2)
    a.counter_check(68, 32)
    a.stamp("probe")
    def init():
        a("v_lshlrev_b32 v24, 16, v24")
        for r in range(16): a(f"v_add_f32 v{ACC+r}, v{RES+r}, v24")
    later = two_its(a, L, lambda it: gemm4(a, 2, it, init))
    a(f"v_mul_u32_u24 v0, 896, v{vL31}\n v_lshl_add_u32 v0, v{vHH}, 3, v0")
    red_finish(a)
    for r in range(8): a(f"v_cvt_pk_bf16_f32 v{112+r}, v{ACC+2*r}, v{ACC+2*r+1}")
    a(f"""
    s_cmp_eq_u32 {sIT}, 0
    s_cbranch_scc0 {L}_fin
    """)
    a.lstore([f"buffer_store_dwordx4 v[112:115], v{vL16}, {SWS}, {sT[8]} offen", f"buffer_store_dwordx4 v[116:119], v{vL16}, {SWS}, {sT[8]} offen offset:1024"])
    stats_publish(a, ACC, 72, sT[9])
    for o in later[0]: a(o)
    for r in range(16): a(f"v_mov_b32 v{RES+r}, v{ACC+r}")
    a(f"s_branch {L}_end\n {L}_fin:")
    for q in range(4): a(f"buffer_store_dwordx2 {vr(112+2*q,2)}, v0, {SOUT}, {sT[12]} offen offset:{16*q}")
    a(f"{L}_end:")

def build():
    a = K(); a.stubs = []
    kernel_begin(a, KNAME)
    prologue(a)
    if STAMPS: a("v_mov_b32 v255, 0")
    if "echo" in OPT: a("s_memrealtime s[80:81]\n s_waitcnt lgkmcnt(0)\n s_mov_b32 s82, s80")
    a("L_iter:")
    a.stamp("start")
    phase_a1(a)
    a(f"s_cmp_ge_u32 {sACT}, 8\n s_cbranch_scc1 L_helper")
    phase_a2(a)
    a.stamp("a2_end")
    a(f"s_cmp_ge_u32 {sACT}, 7\n s_cbranch_scc1 L_skipb1")
    phase_b1(a)
    a("s_branch L_b2\n L_skipb1:")
    for o in big_dma_ops(2, 0, 8, 0) + big_dma_ops(2, 8, 4, 0x8000): a(o)
    a.counter_wait(4, 1, 32, 2)
    a("L_b2:")
    a.stamp("b1_end")
    phase_b2(a)
    a.stamp("b2_end")
    a(f"""
    L_next:
    s_cmp_eq_u32 {sIT}, 1
    s_cbranch_scc1 L_fin
    s_mov_b32 {sIT}, 1
    s_mov_b32 {sITO}, {ITB}
    s_branch L_iter
    L_helper:
    """)
    a(f"s_cmp_eq_u32 {sIT}, 0\n s_cbranch_scc1 L_hnl")
    kvr_loads(a)
    a("L_hnl:\n s_waitcnt vmcnt(0)")
    kvr_finish(a)
    helper_index(a)
    if not OPT.get('sub'): a.xstamp(53)
    a("s_waitcnt vmcnt(0)\n s_barrier")
    a(f"""
    s_cmp_eq_u32 {sIT}, 1
    s_cbranch_scc1 L_fin
    """)
    helper_work(a)
    a("s_branch L_next")
    a("L_fin:")
    a.stamp_dump()
    if "echo" in OPT:
        a("""
        s_memrealtime s[84:85]
        s_sub_u32 s82, s82, s80
        s_waitcnt lgkmcnt(0)
        s_mov_b32 s83, s84
        L_echo:
        s_memrealtime s[84:85]
        s_waitcnt lgkmcnt(0)
        s_sub_u32 s86, s84, s83
        s_cmp_lt_u32 s86, s82
        s_cbranch_scc1 L_echo
        """)
    a("L_end:\n s_endpgm")
    a.lines += a.stubs
    a.lines.append('L_codeend:')
    if STAMPS: open("stamps.txt", "w").write("\n".join(a.names))
    for i in range(len(a.lines) - 1):
        if a.lines[i].strip().startswith(f"s_add_u32 {sT[2]},") and a.lines[i+1].strip().startswith("s_add_u32 m0,"):
            a.lines[i], a.lines[i+1] = a.lines[i+1], a.lines[i]
    lines, n = haz.fix(a.lines)
    if OPT.get('align', 1):
        lines, st_ = align.align(lines, OPT.get('minrun', 5)); print('align', st_)
    hdr = f"; @launch grid=(256,1,1) block=(256,1,1) lds=163840\n"
    return hdr + '.amdgcn_target "amdgcn-amd-amdhsa--gfx950"\n.text\n' + "\n".join(lines) + "\n" + '.section .rodata,"a"\n' + descriptor(KNAME, 512, accum=256)

if __name__ == "__main__":
    out = sys.argv[1]
    for o in sys.argv[2:]:
        if o == "stamps": STAMPS = True
        else:
            k_, v_ = o.split("="); OPT[k_] = int(v_)
    open(out, "w").write(build())
```

```python
import sys, struct
sys.path.insert(0, "work")
from gen import *
import haz, align

KNAME = NAME + "_kernel"
S, D, F = 2048, 448, 1792
ITB = 0x538000 + 0x188000
PQ, KVP, KVF, ST, HF, UF = 0x0, 0x200000, 0x300000, 0x340000, 0x378000, 0x538000
assert UF + 14 * 112 * 1024 == ITB
XF = 2 * ITB
ST2 = XF + 0x1C0000
FILL_END = ST2 + 0x38000
WQP = 0x1000000
assert FILL_END <= WQP
STAMP_OFF = 0x2000000
WS_SIZE = 0x10000000
LOG2E = 1.4426950408889634
def fbits(x): return "0x%08x" % struct.unpack("<I", struct.pack("<f", x))[0]

SX, SWQKV, SWO, SW1, SW2, SB1, SB2, SOUT, SWS, SDBG = [f"s[{i}:{i+3}]" for i in range(4, 44, 4)]
sW, sRB, sH, sDT, sST, sFT, sACT, sIT, sITO, sBUD = "s3", "s44", "s45", "s46", "s47", "s48", "s49", "s50", "s51", "s52"
sWH, sWL, sLB = "s53", "s54", "s55"
sT = [f"s{i}" for i in range(56, 72)]
sW1B, sW2B = 's72', 's73'
sAT = [f"s{i}" for i in range(88, 96)]
SC = "sc1"
sDT1, sLOC, sXSH = 's99', 's100', 's101'
STAMPS = False
OPT = {}

def vr(b, n=1): return f"v{b}" if n == 1 else f"v[{b}:{b+n-1}]"
def ar(b, n=1): return f"a{b}" if n == 1 else f"a[{b}:{b+n-1}]"
MF = "v_mfma_f32_32x32x16_bf16"

vL16, vL16b, vHH, vL31, vLANE, vL8, vDW1, vDW2, CSK, CSV, vDWO, vMAX, vCNT, vCNA = range(240, 254)
assert CSK % 2 == 0
RES = 224
vKRS = 254
aW1, aW2 = 0, 128

class K(Asm):
    nstamp = 0
    stubs = None
    def stamp(self, name=""):
        if "echo" in OPT:
            if self.nstamp == OPT["echo"] % 32:
                self(f"s_memrealtime s[84:85]\n s_waitcnt lgkmcnt(0)\n s_cmp_eq_u32 {sIT}, {OPT['echo'] // 32}\n s_cselect_b32 s82, s84, s82")
            self.nstamp += 1
            return
        if not STAMPS: return
        if OPT.get("bud"):
            self(f"s_lshl_b32 s98, {sIT}, 5\n s_add_u32 s98, s98, {self.nstamp}\n s_mov_b32 m0, s98\n v_writelane_b32 v255, {sBUD}, m0")
            self.names = getattr(self, "names", []) + [name]; self.nstamp += 1
            return
        self(f"{'s_memtime' if OPT.get('clk') else 's_memrealtime'} s[96:97]\n s_lshl_b32 s98, {sIT}, 5\n s_add_u32 s98, s98, {self.nstamp}\n s_waitcnt lgkmcnt(0)\n s_mov_b32 m0, s98\n v_writelane_b32 v255, s96, m0")
        self.names = getattr(self, "names", []) + [name]
        self.nstamp += 1
        assert self.nstamp <= 32
    def xstamp(self, idx):
        if not STAMPS: return
        self(f"{'s_memtime' if OPT.get('clk') else 's_memrealtime'} s[96:97]\n s_waitcnt lgkmcnt(0)\n v_writelane_b32 v255, s96, {idx}")
    def stamp_dump(self):
        if not STAMPS: return
        self(f"""
        s_lshl_b32 s98, s2, 2
        s_add_u32 s98, s98, {sW}
        s_lshl_b32 s98, s98, 8
        s_add_u32 s98, s98, {STAMP_OFF}
        v_lshlrev_b32 v2, 2, v{vLANE}
        buffer_store_dword v255, v2, {SWS}, s98 offen
        """)
        if "dbg" in OPT:
            sel = {0: list(range(0, 14)), 1: [0, 12, 14, 15, 16, 18, 19, 35, 37, 40, 43, 46, 50, 51]}[OPT["dbg"]]
            L = self.label("DS")
            self(f"s_lshl_b32 s98, s2, 2\n s_add_u32 s98, s98, {sW}\n s_cmp_eq_u32 s98, {OPT.get('dbgw', 1)}\n s_cbranch_scc0 {L}")
            self("v_readlane_b32 s97, v255, 0")
            for i, ln in enumerate(sel):
                self(f"v_readlane_b32 s96, v255, {ln}\n s_sub_u32 s96, s96, s97\n v_writelane_b32 v3, s96, {i}")
            self(f"s_mov_b64 exec, 0x3fff\n buffer_store_dword v3, v2, {SDBG}, 0 offen offset:8\n s_mov_b64 exec, -1\n {L}:")
    def srd(self, dst, ptr, size):
        b = int(dst[2:dst.index(":")])
        self(f"s_mov_b32 s{b}, s{ptr}\n s_mov_b32 s{b+1}, s{ptr+1}\n s_mov_b32 s{b+2}, {size}\n s_mov_b32 s{b+3}, 0x00020000")
    def halfsum(self, v, tmp):
        self(f"v_mov_b32 {tmp}, {v}\n v_permlane32_swap_b32 {v}, {tmp}\n v_add_f32 {v}, {v}, {tmp}")
    def check_ops(self, regs):
        regs = list(regs); ops = []
        if len(regs) == 1:
            return [f"v_cmp_eq_u32 vcc, -1, v{regs[0]}"]
        if len(regs) % 2 == 1:
            ops.append(f"v_max3_u32 v{vMAX}, v{regs[0]}, v{regs[1]}, v{regs[2]}"); rest = regs[3:]
        else:
            ops.append(f"v_max_u32 v{vMAX}, v{regs[0]}, v{regs[1]}"); rest = regs[2:]
        for i in range(0, len(rest), 2):
            ops.append(f"v_max3_u32 v{vMAX}, v{vMAX}, v{rest[i]}, v{rest[i+1]}")
        ops.append(f"v_cmp_eq_u32 vcc, -1, v{vMAX}")
        return ops
    def check_branch(self, regs, reissue, wait_after):
        L = self.label("CK")
        self(f"s_cbranch_vccnz {L}_r\n {L}_k:")
        main = self.lines
        self.lines = self.stubs
        self(f"{L}_r:\n s_cmp_le_i32 {sBUD}, 0\n s_cbranch_scc1 {L}_k\n s_sub_u32 {sBUD}, {sBUD}, 1")
        reissue()
        self(f"s_waitcnt vmcnt({wait_after})")
        for o in self.check_ops(regs): self(o)
        self(f"s_cbranch_vccnz {L}_r\n s_branch {L}_k")
        self.lines = main
    def check(self, regs, reissue, wait_after, gran=4):
        if OPT.get("c1", 1): regs = list(regs)[gran-1::gran]
        for o in self.check_ops(regs): self(o)
        self.check_branch(regs, reissue, wait_after)
    def probe_issue(self, voff, soff, vt, nreg=1):
        ld = {1: "buffer_load_dword", 4: "buffer_load_dwordx4"}[nreg]
        self(f"{ld} {vr(vt,nreg)}, v{voff}, {SWS}, {soff} offen {SC}")
    def probe(self, voff, soff, vt, nreg=1, issued=False, sleep=0, extra=None, nextra=0):
        L = self.label("PB")
        if issued: self(f"s_branch {L}_c")
        if sleep: self(f"s_branch {L}_q")
        self(f"{L}_p:")
        if sleep: self(f"s_sleep {sleep}\n {L}_q:")
        self.probe_issue(voff, soff, vt, nreg)
        if extra: extra()
        self(f"s_sub_u32 {sBUD}, {sBUD}, 1\n {L}_c:\n s_waitcnt vmcnt({nextra})")
        if nreg == 1: self(f"v_cmp_eq_u32 vcc, -1, v{vt}")
        else:
            for o in self.check_ops(range(vt, vt + nreg)): self(o)
        self(f"""
        s_cmp_gt_i32 {sBUD}, 0
        s_cselect_b64 vcc, vcc, 0
        s_cbranch_vccnz {L}_p
        """)
    def loc_issue(self, vd):
        self(f"""
        v_and_b32 v{vd+2}, 3, v{vLANE}
        v_lshlrev_b32 v{vd+2}, 6, v{vd+2}
        v_bfe_u32 v{vd+3}, v{vLANE}, 2, 1
        v_lshl_add_u32 v{vd+2}, v{vd+3}, 3, v{vd+2}
        buffer_load_dwordx2 {vr(vd,2)}, v{vd+2}, {SDBG}, 0 offen offset:16 sc1
        """)
    def loc_eval(self, vd):
        L = self.label("LE")
        self(f"v_cmp_gt_u32 vcc, 0x200000, v{vd+1}\n s_cbranch_vccnz {L}_r\n {L}_k:")
        main = self.lines; self.lines = self.stubs
        self(f"""
        {L}_r:
        s_cmp_le_i32 {sBUD}, 0
        s_cbranch_scc1 {L}_k
        s_sub_u32 {sBUD}, {sBUD}, 1
        s_sleep 8
        buffer_load_dwordx2 {vr(vd,2)}, v{vd+2}, {SDBG}, 0 offen offset:16 sc1
        s_waitcnt vmcnt(0)
        v_cmp_gt_u32 vcc, 0x200000, v{vd+1}
        s_cbranch_vccnz {L}_r
        s_branch {L}_k
        """)
        self.lines = main
        self(f"""
        s_and_b32 {sT[0]}, s2, 7
        v_readlane_b32 s76, v{vd}, {sT[0]}
        v_readlane_b32 s77, v{vd+1}, {sT[0]}
        s_and_b32 s77, s77, 0xffff
        s_lshr_b64 s[76:77], s[76:77], {sXSH}
        s_and_b32 s76, s76, 63
        s_cmp_eq_u32 s76, 32
        s_cselect_b32 {sLOC}, {1 if OPT.get("loc", 1) else 0}, 0
        """)
    def lstore(self, ops):
        L = self.label("LS")
        self(f"s_cmp_eq_u32 {sLOC}, 0\n s_cbranch_scc1 {L}_g")
        for o in ops: self(o)
        self(f"{L}_r:")
        main = self.lines; self.lines = self.stubs
        self(f"{L}_g:")
        for o in ops: self(o + " " + SC)
        self(f"s_branch {L}_r")
        self.lines = main
    def counter_issue(self, off, nsh):
        self(f"v_min_u32 v{vCNA}, {nsh-1}, v{vLANE}\n v_lshlrev_b32 v{vCNA}, 6, v{vCNA}")
        self(f"buffer_load_dword v{vCNT}, v{vCNA}, {SDBG}, 0 offen offset:{off} sc1")
    def counter_check(self, off, target):
        L = self.label("CC")
        self(f"v_cmp_gt_u32 vcc, {target}, v{vCNT}\n s_cbranch_vccnz {L}_r\n {L}_k:")
        main = self.lines
        self.lines = self.stubs
        self(f"""
        {L}_r:
        s_cmp_le_i32 {sBUD}, 0
        s_cbranch_scc1 {L}_k
        s_sub_u32 {sBUD}, {sBUD}, 1
        s_sleep 8
        buffer_load_dword v{vCNT}, v{vCNA}, {SDBG}, 0 offen offset:{off} sc1
        s_waitcnt vmcnt(0)
        v_cmp_gt_u32 vcc, {target}, v{vCNT}
        s_cbranch_vccnz {L}_r
        s_branch {L}_k
        """)
        self.lines = main
    def counter_wait(self, off, nsh, target, vt):
        L = self.label("CW")
        self(f"""
        v_lshlrev_b32 v{vt+1}, 6, v{vLANE}
        s_mov_b64 exec, {(1<<nsh)-1}
        {L}_p:
        buffer_load_dword v{vt}, v{vt+1}, {SDBG}, 0 offen offset:{off} sc1
        s_waitcnt vmcnt(0)
        v_cmp_gt_u32 vcc, {target}, v{vt}
        s_cbranch_vccz {L}_o
        s_cmp_le_i32 {sBUD}, 0
        s_cbranch_scc1 {L}_o
        s_sub_u32 {sBUD}, {sBUD}, 1
        s_sleep 2
        s_branch {L}_p
        {L}_o:
        s_mov_b64 exec, -1
        """)

def wtile_dma_voff(a, vdst, rowstride):
    a(f"""
    v_lshrrev_b32 v2, 3, v{vLANE}
    v_mul_u32_u24 v{vdst}, {rowstride}, v2
    v_lshrrev_b32 v2, 4, v{vLANE}
    v_and_b32 v2, 1, v2
    v_lshlrev_b32 v2, 2, v2
    v_and_b32 v3, 7, v{vLANE}
    v_xor_b32 v2, v2, v3
    v_lshl_add_u32 v{vdst}, v2, 4, v{vdst}
    """)

def wtile_tr_addr(a, vdst, hhrows, s_keep, s_base):
    a(f"""
    v_lshrrev_b32 v2, 2, v{vLANE}
    v_and_b32 v2, 3, v2
    v_mul_u32_u24 v3, {hhrows}, v{vHH}
    v_add_u32 v2, v2, v3
    v_bfe_u32 v3, v2, 1, 1
    v_xor_b32 v3, {s_keep}, v3
    v_lshlrev_b32 v2, 7, v2
    v_lshl_add_u32 v2, v3, 6, v2
    v_lshrrev_b32 v3, 4, v{vLANE}
    v_and_b32 v3, 1, v3
    v_lshl_add_u32 v2, v3, 5, v2
    v_and_b32 v3, 3, v{vLANE}
    v_lshl_add_u32 v{vdst}, v3, 3, v2
    v_add_u32 v{vdst}, {s_base}, v{vdst}
    v_xor_b32 v{vdst+1}, 64, v{vdst}
    """)

def prologue(a):
    a(f"""
    s_cmp_ge_u32 s2, 256
    s_cbranch_scc1 L_end
    {"s_lshr_b32 s3, s2, 5" if OPT.get("bad") else ""}
    {"s_and_b32 s2, s2, 31" if OPT.get("bad") else ""}
    {"s_lshl_b32 s2, s2, 3" if OPT.get("bad") else ""}
    {"s_or_b32 s2, s2, s3" if OPT.get("bad") else ""}
    s_load_dwordx16 s[72:87], s[0:1], 0
    s_load_dwordx4 s[88:91], s[0:1], 64
    s_load_dwordx2 s[92:93], s[0:1], 80
    v_lshrrev_b32 v2, 6, v0
    v_and_b32 v{vLANE}, 63, v0
    v_readfirstlane_b32 {sW}, v2
    v_lshrrev_b32 v{vHH}, 5, v{vLANE}
    v_and_b32 v{vL31}, 31, v{vLANE}
    v_lshlrev_b32 v{vL16}, 4, v{vLANE}
    v_lshlrev_b32 v{vL8}, 3, v{vLANE}
    v_add_u32 v{vL16b}, 0x1000, v{vL16}
    s_and_b32 {sT[0]}, s2, 7
    s_lshr_b32 {sT[1]}, s2, 3
    s_lshr_b32 {sT[2]}, {sT[0]}, 1
    s_and_b32 {sT[3]}, {sT[0]}, 1
    s_lshl_b32 {sRB}, {sT[0]}, 1
    s_lshr_b32 {sT[4]}, {sT[1]}, 4
    s_add_u32 {sRB}, {sRB}, {sT[4]}
    s_and_b32 {sH}, {sT[1]}, 15
    s_mul_i32 {sT[4]}, {sT[1]}, 43
    s_lshr_b32 {sT[4]}, {sT[4]}, 7          ; j/3
    s_mul_i32 {sT[7]}, {sT[4]}, 3
    s_sub_u32 {sT[7]}, {sT[1]}, {sT[7]}     ; j%3
    s_lshl_b32 {sT[5]}, {sT[3]}, 2          ; 4p
    s_add_u32 {sDT1}, {sT[7]}, {sT[5]}
    s_add_u32 {sT[6]}, {sT[5]}, {sT[1]}
    s_sub_u32 {sT[6]}, {sT[6]}, 24
    s_cmp_ge_u32 {sT[1]}, 24
    s_cselect_b32 {sT[4]}, {sT[6]}, {sT[4]}
    s_cselect_b32 {sDT1}, 3, {sDT1}
    s_cmp_ge_u32 {sT[1]}, 28
    s_cselect_b32 {sT[4]}, 8, {sT[4]}
    s_mul_i32 {sT[5]}, {sT[1]}, 37
    s_lshr_b32 {sT[5]}, {sT[5]}, 8
    s_mul_i32 {sT[6]}, {sT[5]}, 7
    s_sub_u32 {sDT}, {sT[1]}, {sT[6]}
    s_lshl_b32 {sST}, {sT[0]}, 2
    s_add_u32 {sST}, {sST}, {sT[5]}
    s_getreg_b32 {sXSH}, hwreg(HW_REG_XCC_ID)
    s_and_b32 {sXSH}, {sXSH}, 15
    s_min_u32 {sXSH}, {sXSH}, 9
    s_mul_i32 {sXSH}, {sXSH}, 6
    s_mov_b32 {sLOC}, 0
    s_mul_i32 {sFT}, {sT[2]}, 7
    s_add_u32 {sFT}, {sFT}, {sT[4]}
    s_mov_b32 {sACT}, {sT[4]}
    s_mov_b32 {sIT}, 0
    s_mov_b32 {sITO}, 0
    s_mov_b32 {sBUD}, 1500000
    s_lshr_b32 {sWH}, {sW}, 1
    s_and_b32 {sWL}, {sW}, 1
    s_waitcnt lgkmcnt(0)
    """)
    a.srd(SX, 72, S * D * 2)
    a.srd(SWQKV, 74, D * 3 * D * 2)
    a.srd(SWS, 92, WS_SIZE)
    a.srd(SWO, 76, D * D * 2)
    a.srd(SW1, 80, S * F * 2)
    a.srd(SB1, 82, F * 2)
    a.srd(SW2, 84, F * S * 2)
    a.srd(SB2, 86, S * 2)
    a.srd(SOUT, 88, S * D * 2)
    a.srd(SDBG, 90, 256)

def late_setup(a):
    wtile_dma_voff(a, vDW1, 3584)
    wtile_dma_voff(a, vDW2, 4096)
    wtile_dma_voff(a, vDWO, 896)
    a(f"""
    s_mul_i32 {sW1B}, {sW}, {512*3584}
    s_min_u32 {sT[2]}, {sFT}, 27
    s_lshl_b32 {sT[2]}, {sT[2]}, 7
    s_add_u32 {sW1B}, {sW1B}, {sT[2]}
    s_mul_i32 {sW2B}, {sW}, {448*4096}
    s_min_u32 {sT[2]}, {sST}, 31
    s_lshl_b32 {sT[2]}, {sT[2]}, 7
    s_add_u32 {sW2B}, {sW2B}, {sT[2]}
    """)

XREG = 64
ACQ, ACK, ACV = 16, 32, 48
WFR = 176
TRA = 4
vM, vR, vC, vRS = 12, 13, 14, 15
XBASE = [0x8000, 0x18000, 0x20000, 0x10000]
def a1_lds(f):
    if f < 32: return 1024 * f
    if f < 64: return 0x10000 + 1024 * (f - 32)
    return 0x20000 + 1024 * (f - 64)
def a1_src(f):
    if f < 56: t, seg = f >> 1, 1 + (f & 1)
    else: t, seg = f - 56, 0
    return t * 16 * 2688 + seg * 896
CSL, RSL, KVL = 0x27000, 0x27400, 0x0


def a1_wraw_ops(f0, f1, vo, s_kv, s_q, s_w10):
    o = []
    for f in range(f0, f1, 4):
        sb = s_kv if f < 56 else s_q
        o.append(f"s_add_u32 {sT[2]}, {sb}, {a1_src(f)}\n s_add_u32 m0, {s_w10}, {a1_lds(f)}\n buffer_load_dwordx4 v{vo}, {SWQKV}, {sT[2]} offen lds")
    return o

def a1_wpk_setup(a):
    a(f"""
    s_mul_i32 {sT[13]}, {sH}, {84*1024}
    s_add_u32 {sT[13]}, {sT[13]}, {WQP}
    s_lshl_b32 {sT[15]}, {sW}, 10
    s_lshl_b32 {sT[14]}, {sW}, 14
    s_add_u32 {sT[14]}, {sT[14]}, {sT[13]}
    s_add_u32 {sT[13]}, {sT[13]}, {sT[15]}
    """)
def a1_wpk_hi_ops():
    return [f"s_add_u32 {sT[2]}, {sT[13]}, {f*1024}\n s_add_u32 m0, {sT[15]}, {a1_lds(f)}\n buffer_load_dwordx4 v{vL16}, {SWS}, {sT[2]} offen {SC} lds" for f in range(64, 84, 4)]
def a1_wpk_own_ops():
    return [f"s_add_u32 {sT[2]}, {sT[14]}, {i*1024}\n s_add_u32 m0, {sLB}, {i*1024}\n buffer_load_dwordx4 v{vL16}, {SWS}, {sT[2]} offen {SC} lds" for i in range(16)]

sWOG, sWOL = "s74", "s75"
def wo_setup(a):
    a(f"""
    s_mul_i32 {sWOG}, {sWH}, {224*896}
    s_mul_i32 {sT[2]}, {sWL}, {8*896}
    s_add_u32 {sWOG}, {sWOG}, {sT[2]}
    s_lshl_b32 {sT[2]}, {sDT}, 7
    s_add_u32 {sWOG}, {sWOG}, {sT[2]}
    s_lshl_b32 {sWOL}, {sWH}, 16
    s_lshl_b32 {sT[2]}, {sWL}, 10
    s_add_u32 {sWOL}, {sWOL}, {sT[2]}
    """)
def wo_ops():
    return [f"s_add_u32 {sT[2]}, {sWOG}, {j*16*896}\n s_add_u32 m0, {sWOL}, {0x8000 + j*2048}\n buffer_load_dwordx4 v{vDWO}, {SWO}, {sT[2]} offen lds" for j in range(15)]

def big_dma_ops(which, ks0, nks, ldsoff, sl=None):
    stride, srd, vo, sb = (3584, SW1, vDW1, sW1B) if which == 1 else (4096, SW2, vDW2, sW2B)
    return [f"s_add_u32 {sT[2]}, {sb}, {(ks0*16 + i*8)*stride}\n s_add_u32 m0, {sl or sLB}, {ldsoff + i*1024}\n buffer_load_dwordx4 v{vo}, {srd}, {sT[2]} offen lds" for i in range(2 * nks)]

def stats_loads(a, soff, T):
    for i in range(7):
        a(f"buffer_load_dwordx2 {vr(T+2*i,2)}, v{vL8}, {SWS}, {soff} offen offset:{i*512} {SC}")

def stats_math_ops(T, vm, vvar, U, pk=True):
    o = []
    if pk:
        for i in range(3): o.append(f"v_pk_add_f32 {vr(U+2*i,2)}, {vr(T+4*i,2)}, {vr(T+4*i+2,2)}")
        o.append(f"v_pk_add_f32 {vr(U,2)}, {vr(U,2)}, {vr(U+2,2)}")
        o.append(f"v_pk_add_f32 {vr(U+4,2)}, {vr(U+4,2)}, {vr(T+12,2)}")
        o.append(f"v_pk_add_f32 {vr(U,2)}, {vr(U,2)}, {vr(U+4,2)}")
    else:
        o.append(f"v_add_f32 v{U}, v{T}, v{T+2}"); o.append(f"v_add_f32 v{U+1}, v{T+1}, v{T+3}")
        for i in range(2, 7):
            o.append(f"v_add_f32 v{U}, v{U}, v{T+2*i}"); o.append(f"v_add_f32 v{U+1}, v{U+1}, v{T+2*i+1}")
    o += [f"v_mov_b32 v{vm}, v{U}", f"v_permlane32_swap_b32 v{vm}, v{U}", f"v_add_f32 v{vm}, v{vm}, v{U}"]
    o.append(f"v_mul_f32 v{U+2}, {fbits(1/14)}, v{vm}")
    o.append(f"v_mul_f32 v{vm}, {fbits(1/448)}, v{vm}")
    for i in range(7): o.append(f"v_sub_f32 v{T+2*i}, v{T+2*i}, v{U+2}")
    o += [f"v_mul_f32 v{U+3}, v{T}, v{T}", f"v_mul_f32 v{U+4}, v{T+2}, v{T+2}"]
    for i in range(2, 7): o.append(f"v_fmac_f32 v{U+3+(i&1)}, v{T+2*i}, v{T+2*i}")
    o.append(f"v_add_f32 v{U+3}, v{U+3}, v{U+4}")
    o.append(f"v_fmac_f32 v{U+1}, {fbits(1/32)}, v{U+3}")
    o += [f"v_mov_b32 v{vvar}, v{U+1}", f"v_permlane32_swap_b32 v{vvar}, v{U+1}", f"v_add_f32 v{vvar}, v{vvar}, v{U+1}"]
    o.append(f"v_mul_f32 v{vvar}, {fbits(1/448)}, v{vvar}")
    return o

def stats_publish(a, X, T, soff):
    for i in range(4): a(f"v_pk_add_f32 {vr(T+2*i,2)}, {vr(X+4*i,2)}, {vr(X+4*i+2,2)}")
    a(f"v_pk_add_f32 {vr(T,2)}, {vr(T,2)}, {vr(T+2,2)}")
    a(f"v_pk_add_f32 {vr(T+4,2)}, {vr(T+4,2)}, {vr(T+6,2)}")
    a(f"v_pk_add_f32 {vr(T,2)}, {vr(T,2)}, {vr(T+4,2)}")
    a(f"v_add_f32 v{T+16}, v{T}, v{T+1}")
    a.halfsum(f"v{T+16}", f"v{T+17}")
    a(f"v_mul_f32 v{T+18}, {fbits(-1/32)}, v{T+16}")
    for i in range(8): a(f"v_pk_add_f32 {vr(T+2*i,2)}, {vr(X+2*i,2)}, {vr(T+18,2)} op_sel_hi:[1,0]")
    a(f"v_pk_mul_f32 {vr(T+18,2)}, {vr(T,2)}, {vr(T,2)}")
    a(f"v_pk_mul_f32 {vr(T+20,2)}, {vr(T+2,2)}, {vr(T+2,2)}")
    for i in range(2, 8):
        d = T + 18 + 2 * (i & 1)
        a(f"v_pk_fma_f32 {vr(d,2)}, {vr(T+2*i,2)}, {vr(T+2*i,2)}, {vr(d,2)}")
    a(f"v_pk_add_f32 {vr(T+18,2)}, {vr(T+18,2)}, {vr(T+20,2)}")
    a(f"v_add_f32 v{T+17}, v{T+18}, v{T+19}")
    a.halfsum(f"v{T+17}", f"v{T+18}")
    a("s_mov_b32 exec_hi, 0")
    a.lstore([f"buffer_store_dwordx2 {vr(T+16,2)}, v{vL8}, {SWS}, {soff} offen"])
    a("s_mov_b64 exec, -1")

def a1_tr_setup(a, it):
    sh, delta = (9, 256) if it == 0 else (8, 512)
    a(f"""
    v_lshrrev_b32 v2, 2, v{vLANE}
    v_and_b32 v2, 3, v2
    v_lshrrev_b32 v3, 4, v{vLANE}
    v_and_b32 v3, 1, v3
    v_lshlrev_b32 v3, 2, v3
    v_and_b32 v10, 3, v{vLANE}
    v_add_u32 v3, v3, v10
    s_and_b32 {sT[0]}, {sH}, 1
    v_add_u32 v3, {sT[0]}, v3
    v_and_b32 v3, 7, v3
    v_lshlrev_b32 v3, 3, v3
    v_lshl_add_u32 v{TRA}, v2, 6, v3
    v_lshl_add_u32 v{TRA}, v{vHH}, {sh}, v{TRA}
    v_add_u32 v{TRA+1}, 0x10000, v{TRA}
    v_add_u32 v{TRA+2}, 0x20000, v{TRA}
    v_add_u32 v{TRA+3}, {delta}, v{TRA}
    v_add_u32 v{TRA+4}, {delta}, v{TRA+1}
    v_add_u32 v{TRA+5}, {delta}, v{TRA+2}
    s_lshl_b32 {sT[0]}, {sW}, 8
    s_add_u32 {sT[0]}, {sT[0]}, {RSL}
    v_lshlrev_b32 v11, 2, v{vLANE}
    v_add_u32 v11, {sT[0]}, v11
    v_lshlrev_b32 v{vRS}, 4, v{vHH}
    v_add_u32 v{vRS}, {sT[0]}, v{vRS}
    """)

def rowstats_ops():
    return [f"v_add_f32 v{vR}, {fbits(1e-5)}, v{vR}", f"v_rsq_f32 v{vR}, v{vR}", f"v_cmp_eq_u32 vcc, 0, v{vHH}",
            f"v_cndmask_b32 v3, v{vM}, v{vR}, vcc", f"ds_write_b32 v11, v3"]

def a1_rd(a, f, dst):
    ad = a1_lds(f); win, off = ad >> 16, ad & 0xffff
    a(f"ds_read_b64_tr_b16 {dst(0)}, v{TRA+win} offset:{off}")
    a(f"ds_read_b64_tr_b16 {dst(2)}, v{TRA+3+win} offset:{off}")

def w1_touch(r):
    return f"""s_lshl_b32 {sT[0]}, s2, 2
    s_add_u32 {sT[0]}, {sT[0]}, {sW}
    s_add_u32 {sT[0]}, {sT[0]}, {r*1024}
    s_mul_i32 {sT[1]}, {sT[0]}, 9363
    s_lshr_b32 {sT[1]}, {sT[1]}, 22
    s_mul_i32 {sT[2]}, {sT[1]}, 448
    s_sub_u32 {sT[0]}, {sT[0]}, {sT[2]}
    s_lshl_b32 {sT[0]}, {sT[0]}, 11
    s_lshl_b32 {sT[2]}, {sT[1]}, 1
    s_add_u32 {sT[15]}, {sT[2]}, 1
    s_sub_u32 {sT[2]}, {sT[2]}, 8
    s_cmp_lt_u32 {sT[1]}, 4
    s_cselect_b32 {sT[1]}, {sT[15]}, {sT[2]}
    s_mul_i32 {sT[1]}, {sT[1]}, {256*3584}
    s_add_u32 {sT[0]}, {sT[0]}, {sT[1]}
    buffer_load_dword v234, v{vKRS}, {SW1}, {sT[0]} offen"""

def code_warm(a, tag):
    L = a.label("CWM")
    a(f"""
    s_getpc_b64 s[76:77]
    {L}:
    s_sub_u32 s76, s76, {L}-{KNAME}
    s_subb_u32 s77, s77, 0
    s_lshr_b32 {sT[2]}, s2, 3
    s_lshl_b32 {sT[2]}, {sT[2]}, 2
    s_add_u32 {sT[2]}, {sT[2]}, {sW}
    s_mul_i32 {sT[2]}, {sT[2]}, 640
    v_min_u32 v2, 4, v{vLANE}
    v_lshlrev_b32 v2, 7, v2
    v_add_u32 v2, {sT[2]}, v2
    s_mov_b32 {sT[2]}, L_codeend-{KNAME}-4
    v_min_u32 v2, {sT[2]}, v2
    v_mov_b32 v3, s77
    v_add_co_u32 v2, vcc, s76, v2
    v_addc_co_u32 v3, vcc, 0, v3, vcc
    global_load_dword v{vMAX}, v[2:3], off
    """)

def a1_it0(a):
    L = a.label("A1f")
    XA, XV, DA = 224, 228, 230
    a(f"""
    v_lshrrev_b32 v2, 3, v{vLANE}
    v_mul_u32_u24 v2, 896, v2
    v_and_b32 v3, 7, v{vLANE}
    v_lshrrev_b32 v5, 4, v{vLANE}
    v_xor_b32 v3, v3, v5
    v_lshl_add_u32 v{XV}, v3, 4, v2
    v_xor_b32 v{XV+1}, 64, v{XV}
    s_lshl_b32 {sT[10]}, {sRB}, 2
    s_add_u32 {sT[10]}, {sT[10]}, {sW}
    s_mul_i32 {sT[10]}, {sT[10]}, {32*896}
    s_lshl_b32 {sLB}, {sWH}, 16
    s_lshl_b32 {sT[2]}, {sWL}, 14
    s_add_u32 {sLB}, {sLB}, {sT[2]}
    """)
    def xdma(j0, j1):
        return [f"s_add_u32 {sT[2]}, {sT[10]}, {aa*8*896 + j*128}\n s_add_u32 m0, {sLB}, {0x8000 + aa*4096 + (j-j0)*1024}\n buffer_load_dwordx4 v{XV + (aa&1)}, {SX}, {sT[2]} offen lds"
                for aa in range(4) for j in range(j0, j1)]
    for o in xdma(0, 4): a(o)
    a(f"""
    v_lshrrev_b32 v1, 2, v{vLANE}
    v_mul_u32_u24 v1, 2688, v1
    v_and_b32 v5, 3, v{vLANE}
    v_lshl_add_u32 v1, v5, 4, v1
    s_mul_i32 {sT[8]}, {sH}, 56
    s_and_b32 {sT[8]}, {sT[8]}, 0xfff0
    s_mul_i32 {sT[9]}, {sW}, {16*2688}
    s_add_u32 {sT[9]}, {sT[9]}, {sT[8]}
    s_mul_i32 {sT[2]}, {sWH}, {16*2688}
    s_add_u32 {sT[8]}, {sT[8]}, {sT[2]}
    s_mul_i32 {sT[2]}, {sWL}, 896
    s_add_u32 {sT[8]}, {sT[8]}, {sT[2]}
    s_lshl_b32 {sT[11]}, {sW}, 10
    """)
    a.xstamp(22)
    ncw = 0
    if OPT.get("cw", 1):
        code_warm(a, 0); ncw = 1
    for o in a1_wraw_ops(0, 32, 1, sT[8], sT[9], sT[11]): a(o)
    a.xstamp(23)
    a(f"""
    s_lshr_b32 {sT[12]}, 0xc1a3, {sH}
    s_and_b32 {sT[12]}, {sT[12]}, 1
    s_lshl_b32 {sT[0]}, 1, {sH}
    s_sub_u32 {sT[0]}, {sT[0]}, 1
    s_and_b32 {sT[0]}, {sT[0]}, 0xc1a3
    s_bcnt1_i32_b32 {sT[0]}, {sT[0]}
    s_lshl_b32 {sT[0]}, {sT[0]}, 4
    s_add_u32 {sT[0]}, {sT[0]}, {sRB}
    s_lshl_b32 {sT[0]}, {sT[0]}, 2
    s_add_u32 {sT[0]}, {sT[0]}, {sW}
    s_lshl_b32 {sT[14]}, {sT[0]}, 13
    s_cmp_ge_u32 {sT[14]}, {ST}
    s_cselect_b32 {sT[12]}, 0, {sT[12]}
    s_cmp_eq_u32 {sT[12]}, 0
    s_cselect_b32 {sT[14]}, 0x20000000, {sT[14]}
    v_mov_b32 v236, -1
    v_mov_b32 v237, -1
    v_mov_b32 v238, -1
    v_mov_b32 v239, -1
    """)
    fills = [f"buffer_store_dwordx4 v[236:239], v{vL16b if i&4 else vL16}, {SWS}, {sT[14]} offen offset:{(i&3)*1024} {SC}" for i in range(8)]
    late_setup(a)
    wo_setup(a)
    a1_tr_setup(a, 0)
    a(f"""
    v_lshrrev_b32 v2, 3, v{vL31}
    v_lshlrev_b32 v2, 12, v2
    v_and_b32 v3, 7, v{vL31}
    v_lshl_add_u32 v2, v3, 7, v2
    v_add_u32 v2, {sLB}, v2
    v_lshrrev_b32 v3, 1, v{vL31}
    v_and_b32 v3, 7, v3
    v_xor_b32 v3, v3, v{vHH}
    """)
    for q in range(4): a(f"v_xor_b32 v10, {2*q}, v3\n v_lshl_add_u32 v{XA+q}, v10, 4, v2")
    a(f"""
    v_mov_b32 v{DA}, 0
    v_mov_b32 v{DA+1}, 0
    v_mov_b32 v{DA+2}, 0
    v_mov_b32 v{DA+3}, 0
    v_mov_b32 v{CSK}, 0
    v_mov_b32 v{CSV}, 0
    v_mov_b32 v{vC}, 0x3f803f80
    v_lshlrev_b32 v235, 7, v{vLANE}
    v_min_u32 v{vKRS}, 0x780, v235
    s_lshr_b32 {sT[13]}, s2, 2
    s_lshl_b32 {sT[13]}, {sT[13]}, 13
    s_cmp_eq_u32 {sW}, 3
    s_cselect_b32 {sT[13]}, {sT[13]}, 0x1000000
    s_waitcnt vmcnt({8+ncw}) lgkmcnt(0)
    """)
    a.stamp("a1_xland")
    def xrd(t0, t1):
        for t in range(t0, t1):
            a(f"ds_read_b128 {vr(XREG+4*t,4)}, v{XA+(t&3)} offset:{0x8000 + ((t-t0)>>2)*1024}")
            if t - t0 == 11: a("s_waitcnt lgkmcnt(4)")
        a("s_waitcnt lgkmcnt(0)")
    def dots(i0, i1, vm, every):
        for i in range(i0, i1):
            if vm and (i - i0) % every == 0: a(vm.pop(0))
            a(f"v_dot2c_f32_bf16 v{DA+(i&1)}, v{XREG+i}, v{vC}")
            a(f"v_dot2c_f32_bf16 v{DA+2+(i&1)}, v{XREG+i}, v{XREG+i}")
        assert not vm
    xrd(0, 16)
    vm = fills + xdma(4, 7)
    TP = OPT.get("tp", 1)
    tch = [w1_touch(0), w1_touch(1)]
    wl = (tch if TP == 0 else []) + a1_wraw_ops(32, 84, 1, sT[8], sT[9], sT[11]) + [f"buffer_load_dword v234, v235, {SWO}, {sT[13]} offen"] + (tch if TP == 1 else [])
    nwl = len(wl)
    a.xstamp(24)
    dots(0, 64, vm, 3)
    a.xstamp(25)
    a(f"""
    s_waitcnt vmcnt(12)
    s_barrier
    s_cmp_eq_u32 {sW}, 0
    s_cbranch_scc1 {L}_sg
    {L}_sgr:
    """)
    a.stubs += [l for l in f"""{L}_sg:
    s_lshl_b64 s[76:77], 1, {sXSH}
    s_and_b32 s77, s77, 0xffff
    s_or_b32 s77, s77, 0x10000
    s_and_b32 {sT[0]}, s2, 3
    s_lshl_b32 {sT[0]}, {sT[0]}, 6
    s_bfe_u32 {sT[1]}, s2, 0x10002
    s_lshl_b32 {sT[1]}, {sT[1]}, 3
    s_add_u32 {sT[0]}, {sT[0]}, {sT[1]}
    v_mov_b32 v2, s76
    v_mov_b32 v3, s77
    s_mov_b64 exec, 1
    buffer_atomic_add_x2 v[2:3], off, {SDBG}, {sT[0]} offset:16 sc1
    s_mov_b64 exec, -1
    s_branch {L}_sgr""".split("\n")]
    a.stamp("a1_main")
    LA = 3
    def rd(t):
        for s_ in range(2):
            b = WFR + 8 * (t & 3) + 4 * s_
            a1_rd(a, 2 * t + s_, lambda o, b=b: vr(b + o, 2))
    def cs(win, n):
        a(f"s_lshl_b32 {sT[0]}, {sW}, 11\n v_add_u32 v2, {sT[0]}, v{TRA+win}\n v_add_u32 v3, {sT[0]}, v{TRA+3+win}")
        regs = [16, 24, 208, 216]
        for i in range(n):
            for s_ in range(2):
                a(f"ds_read_b64_tr_b16 {vr(regs[i]+4*s_,2)}, v2 offset:{8192*i+1024*s_}")
                a(f"ds_read_b64_tr_b16 {vr(regs[i]+4*s_+2,2)}, v3 offset:{8192*i+1024*s_}")
        a("s_waitcnt lgkmcnt(0)")
        for i in range(n):
            for k in range(4):
                a(f"v_dot2c_f32_bf16 v{CSK}, v{regs[i]+k}, v{vC}")
                a(f"v_dot2c_f32_bf16 v{CSV}, v{regs[i]+4+k}, v{vC}")
    def loop(t0, t1):
        for t in range(t0, t0 + LA): rd(t)
        for t in range(t0, t1):
            if t + LA < t1: rd(t + LA)
            a(f"s_waitcnt lgkmcnt({4*min(LA, t1-1-t)})")
            w = WFR + 8 * (t & 3)
            x = vr(XREG + 4 * t, 4)
            c = lambda base: (vr(base, 16) if t else "0")
            a(f"{MF} {vr(ACK,16)}, {x}, {vr(w,4)}, {c(ACK)}")
            a(f"{MF} {vr(ACV,16)}, {x}, {vr(w+4,4)}, {c(ACV)}")
            if wl: a(wl.pop(0))
    loop(0, 16)
    assert not wl
    a.xstamp(26)
    NPT = 0
    if OPT.get("pt", 0):
        sh = OPT.get("pt")
        a(f"v_lshlrev_b32 v236, {sh}, v{vLANE}")
        if sh >= 19: a(f"v_min_u32 v236, 0x1180000, v236")
        for srd in (SB1, SB2, SOUT, SWS, SW2):
            a(f"buffer_load_dword v234, v236, {srd}, 0 offen"); NPT += 1
        nwl += NPT
    cs(0, 4)
    a.xstamp(27)
    a(f"s_waitcnt vmcnt({nwl})")
    a.xstamp(28)
    xrd(16, 28)
    NRA = 4
    ra = big_dma_ops(1, 16, 8, 0x8000)
    dots(64, 112, ra[:NRA], 8)
    a(f"v_add_f32 v{vM}, v{DA}, v{DA+1}\n v_add_f32 v{vR}, v{DA+2}, v{DA+3}")
    a.halfsum(f"v{vM}", f"v{DA}")
    a.halfsum(f"v{vR}", f"v{DA+1}")
    a(f"""
    v_mul_f32 v{vM}, {fbits(1/448)}, v{vM}
    v_mul_f32 v{vR}, {fbits(1/448)}, v{vR}
    v_fma_f32 v{vR}, -v{vM}, v{vM}, v{vR}
    v_max_f32 v{vR}, 0, v{vR}
    """)
    for o in rowstats_ops(): a(o)
    a.xstamp(29)
    a(f"s_waitcnt vmcnt({8+NRA+NPT+(2 if TP == 1 else 0)})\n s_barrier")
    a.xstamp(30)
    cs(1, 3)
    a(f"""
    v_mov_b32 v22, v{CSK}
    v_mov_b32 v23, v{CSV}
    v_permlane32_swap_b32 v{CSK}, v22
    v_permlane32_swap_b32 v{CSV}, v23
    v_add_f32 v22, v{CSK}, v22
    v_add_f32 v23, v{CSV}, v23
    s_lshl_b32 {sT[0]}, {sW}, 2
    v_lshlrev_b32 v10, 4, v{vL31}
    v_add_u32 v10, 0x27800, v10
    v_add_u32 v11, {sT[0]}, v10
    ds_write_b32 v11, v22 offset:512
    ds_write_b32 v11, v23 offset:1024
    s_lshl_b32 {sT[13]}, {sW}, 13
    """)
    a.loc_issue(228)
    a.xstamp(31)
    wl += ra[NRA:NRA + 12]
    a.ra_rest = ra[NRA + 12:]
    loop(16, 28)
    assert not wl
    T23 = OPT.get("t23", 1)
    if T23 == 1:
        a(w1_touch(2)); a(w1_touch(3))
    a.xstamp(21)
    a("s_barrier")
    for k in range(1, 3): a(f"ds_read_b128 {vr(16+4*k,4)}, v10 offset:{512*k}")
    a(f"s_waitcnt vmcnt({14 if T23 == 1 else 12})")
    a.loc_eval(228)
    a(f"""
    s_waitcnt lgkmcnt(0)
    v_add_f32 v20, v20, v21
    v_add_f32 v22, v22, v23
    v_add_f32 v24, v24, v25
    v_add_f32 v26, v26, v27
    v_add_f32 v{CSK}, v20, v22
    v_add_f32 v{CSV}, v24, v26
    """)

def a1_it0_q(a, ret):
    QLA, QB = 4, 32
    def qrd(t): a1_rd(a, 56 + t, lambda o, t=t: vr(QB + 4 * (t & 7) + o, 2))
    a(f"""
    s_lshl_b32 {sT[0]}, {sW}, 10
    v_add_u32 v176, {sT[0]}, v{TRA+1}
    v_add_u32 v177, {sT[0]}, v{TRA+4}
    v_add_u32 v178, {sT[0]}, v{TRA+2}
    v_add_u32 v179, {sT[0]}, v{TRA+5}
    v_mov_b32 v180, 0
    """)
    for i in range(7):
        ad = a1_lds(56 + 4 * i); b = 176 if (ad >> 16) == 1 else 178
        a(f"ds_read_b64_tr_b16 {vr(196+4*i,2)}, v{b} offset:{ad & 0xffff}")
        a(f"ds_read_b64_tr_b16 {vr(196+4*i+2,2)}, v{b+1} offset:{ad & 0xffff}")
    a("s_waitcnt lgkmcnt(0)")
    for t in range(QLA): qrd(t)
    for j in range(28): a(f"v_dot2c_f32_bf16 v180, v{196+j}, v{vC}")
    a(f"""
    v_mov_b32 v181, v180
    v_permlane32_swap_b32 v180, v181
    v_add_f32 v180, v180, v181
    s_waitcnt lgkmcnt(0)
    ds_write_b32 v11, v180
    """)
    assert not a.ra_rest
    w2q = big_dma_ops(1, 24, 4, 0, sT[13])
    b1_tr_addr(a, 182, sLB)
    st = [f"ds_read_b64_tr_b16 {ar(aW1 + 8*t + 4*i + 2*u, 2)}, v{182+i} offset:{0x8000 + t*2048 + 4*u*128}" for t in range(8) for i in range(2) for u in range(2)]
    a("s_waitcnt vmcnt(3)")
    lq = [("q", t) for t in range(QLA) for _ in range(2)]
    for t in range(28):
        if t + QLA < 28:
            qrd(t + QLA); lq += [("q", t + QLA)] * 2
        idx = max(i for i, x in enumerate(lq) if x == ("q", t))
        a(f"s_waitcnt lgkmcnt({min(15, len(lq) - 1 - idx)})")
        a(f"{MF} {vr(ACQ,16)}, {vr(QB+4*(t&7),4)}, {vr(XREG+4*t,4)}, {vr(ACQ,16) if t else '0'}")
        for _ in range(2 if t < 8 or t >= 24 else 1):
            if st:
                a(st.pop(0)); lq.append(("s", 0))
        if t % 3 == 0 and w2q: a(w2q.pop(0))
    assert not w2q and not st
    a("s_waitcnt lgkmcnt(0)")
    a(f"""
    s_barrier
    ds_read_b128 v[176:179], v10
    v_lshlrev_b32 v180, 2, v{vL31}
    v_add_u32 v180, {CSL}, v180
    s_add_u32 s79, {sT[13]}, 0x20000
    s_cmp_eq_u32 {sW}, 3
    s_cselect_b32 s79, 0x16000, s79
    """)
    kvr_loads(a)
    a(f"""
    s_waitcnt lgkmcnt(0)
    v_add_f32 v176, v176, v177
    v_add_f32 v178, v178, v179
    v_add_f32 v176, v176, v178
    ds_write_b32 v180, v176
    s_branch {ret}
    """)

def a1_it1(a):
    LA = 2
    a1_tr_setup(a, 1)
    a(f"""
    s_lshl_b32 {sT[0]}, {sRB}, 2
    s_add_u32 {sT[0]}, {sT[0]}, {sW}
    s_mul_i32 {sAT[0]}, {sT[0]}, {28*1024}
    s_add_u32 {sAT[0]}, {sAT[0]}, {XF}
    s_add_u32 {sAT[1]}, {sAT[0]}, 0x2000
    s_add_u32 {sAT[2]}, {sAT[0]}, 0x4000
    s_add_u32 {sAT[3]}, {sAT[0]}, 0x6000
    s_mul_i32 {sT[8]}, {sT[0]}, 3584
    s_add_u32 {sT[8]}, {sT[8]}, {ST2}
    """)
    a.counter_issue(132, 1)
    def xload(t):
        a(f"buffer_load_dwordx4 {vr(XREG+4*t,4)}, v{vL16b if t&4 else vL16}, {SWS}, {sAT[t>>3]} offen offset:{(t&3)*1024} {SC}")
    def rd(t):
        for s_, f in enumerate((2 * t, 2 * t + 1, 56 + t)):
            b = WFR + 12 * (t % 3) + 4 * s_
            a1_rd(a, f, lambda o, b=b: vr(b + o, 2))
    NX = OPT.get("nx", 16)
    OX = OPT.get("ox", 8)
    def sx():
        stats_loads(a, sT[8], 32)
        for t in range(OX): xload(t)
    sx()
    a(f"s_waitcnt vmcnt({7+OX})\n s_barrier")
    for t in range(LA): rd(t)
    a(f"s_waitcnt vmcnt({OX})")
    a.check(range(32, 46), sx, OX, 2)
    for t in range(OX, NX): xload(t)
    a.nstamp -= 2
    a.stamp()
    for o in stats_math_ops(32, vM, vR, 16) + rowstats_ops(): a(o)
    a.counter_check(132, 32)
    a.stamp()
    if STAMPS: a.names = a.names[:-2]
    a("s_waitcnt lgkmcnt(0)")
    wq = wo_ops(); nd = [0]
    def xchk(t, now):
        hi = min(28, now + NX)
        n = hi - t - 4 + nd[0]
        a(f"s_waitcnt vmcnt({n})")
        a.check(range(XREG + 4 * t, XREG + 4 * t + 16), lambda t=t, hi=hi: [xload(tt) for tt in range(t, hi)], n if nd[0] == 0 else 0)
    xchk(0, 0)
    for t in range(28):
        if t + LA < 28: rd(t + LA)
        a(f"s_waitcnt lgkmcnt({6*min(LA, 27-t)})")
        w = WFR + 12 * (t % 3)
        x = vr(XREG + 4 * t, 4)
        c = lambda base: (vr(base, 16) if t else "0")
        a(f"{MF} {vr(ACK,16)}, {x}, {vr(w,4)}, {c(ACK)}")
        if t + NX < 28: xload(t + NX)
        elif wq:
            a(wq.pop(0)); nd[0] += 1
        a(f"{MF} {vr(ACV,16)}, {x}, {vr(w+4,4)}, {c(ACV)}")
        if t % 4 == 3 and t + 1 < 28: xchk(t + 1, t + 1)
        a(f"{MF} {vr(ACQ,16)}, {vr(w+8,4)}, {x}, {c(ACQ)}")
    a.wo_rest = wq
    a("s_barrier")

def phase_a1(a):
    L = a.label("A1")
    RR, MM, T0 = 176, 192, 208
    a(f"s_cmp_eq_u32 {sIT}, 0\n s_cbranch_scc0 {L}_it1")
    a1_it0(a)
    a(f"s_branch {L}_epi\n {L}_it1:")
    a1_it1(a)
    a(f"""
    {L}_epi:
    """)
    a.stamp("a1_epi")
    for q in range(4):
        a(f"ds_read_b128 {vr(MM+4*q,4)}, v{vRS} offset:{128+32*q}")
        a(f"ds_read_b128 {vr(RR+4*q,4)}, v{vRS} offset:{32*q}")
    a(f"""
    s_mov_b32 {sT[3]}, {fbits(1e-6)}
    v_mov_b32 v0, {fbits(1e-6)}
    v_mov_b32 v1, {fbits(LOG2E)}
    s_lshl_b32 {sT[0]}, {sW}, 12
    s_add_u32 {sT[0]}, {sT[0]}, 0x10000
    v_add_u32 v2, {sT[0]}, v{vL16}
    s_lshl_b32 {sT[5]}, {sW}, 10
    s_add_u32 {sT[0]}, {sT[5]}, 0x10000
    v_add_u32 v3, {sT[0]}, v{vL16}
    s_lshl_b32 {sT[6]}, {sH}, 4
    s_add_u32 {sT[6]}, {sT[6]}, {sRB}
    s_lshl_b32 {sT[6]}, {sT[6]}, 12
    s_add_u32 {sT[6]}, {sT[6]}, {sT[5]}
    s_add_u32 {sT[6]}, {sT[6]}, {sITO}
    s_add_u32 {sT[6]}, {sT[6]}, {KVP}
    s_waitcnt lgkmcnt(0)
    """)
    k0, v0 = ACK, ACV
    P = lambda b, r: vr(b + 2 * r, 2)
    CS = vr(CSK, 2)
    for r in range(8): a(f"v_pk_fma_f32 {P(k0,r)}, {P(MM,r)}, {CS}, {P(k0,r)} op_sel_hi:[1,0,1] neg_lo:[1,0,0] neg_hi:[1,0,0]")
    for r in range(8): a(f"v_pk_fma_f32 {P(k0,r)}, {P(k0,r)}, {P(RR,r)}, v[0:1] op_sel_hi:[1,1,0]")
    for r in range(8): a(f"v_pk_mul_f32 {P(T0,r)}, {P(k0,r)}, v[0:1] op_sel:[0,1] op_sel_hi:[1,1]")
    for r in range(8):
        a(f"v_exp_f32_e64 v{T0+2*r}, v{T0+2*r} clamp")
        a(f"v_max_f32 v{k0+2*r}, {sT[3]}, v{k0+2*r}")
        a(f"v_exp_f32_e64 v{T0+2*r+1}, v{T0+2*r+1} clamp")
        a(f"v_max_f32 v{k0+2*r+1}, {sT[3]}, v{k0+2*r+1}")
        a(f"v_pk_fma_f32 {P(v0,r)}, {P(MM,r)}, {CS}, {P(v0,r)} op_sel:[0,1,0] op_sel_hi:[1,1,1] neg_lo:[1,0,0] neg_hi:[1,0,0]")
    for r in range(8): a(f"v_pk_mul_f32 {P(v0,r)}, {P(v0,r)}, {P(RR,r)}")
    for r in range(8): a(f"v_pk_add_f32 {P(k0,r)}, {P(k0,r)}, {P(T0,r)}")
    for r in range(8): a(f"v_cvt_pk_bf16_f32 v{v0+r}, v{v0+2*r}, v{v0+2*r+1}")
    a("s_mov_b32 exec_lo, 0xf0000000\n s_mov_b32 exec_hi, 0xf0000000")
    for r in range(8): a(f"v_mov_b32 v{ACV+r}, 0x3f803f80")
    a("s_mov_b64 exec, -1")
    for r in range(8): a(f"v_cvt_pk_bf16_f32 v{k0+r}, v{k0+2*r}, v{k0+2*r+1}")
    KVA = 176
    a(f"{MF} {vr(KVA,16)}, {vr(ACK,4)}, {vr(ACV,4)}, 0")
    a(f"{MF} {vr(KVA,16)}, {vr(ACK+4,4)}, {vr(ACV+4,4)}, {vr(KVA,16)}")
    for q in range(4): a(f"ds_write_b128 v2, {vr(KVA+4*q,4)} offset:{KVL+1024*q}")
    a("s_waitcnt lgkmcnt(0)\n s_barrier")
    for w2 in range(4): a(f"ds_read_b128 {vr(192+4*w2,4)}, v3 offset:{KVL+4096*w2}")
    a(f"""
    s_waitcnt lgkmcnt(0)
    v_pk_add_f32 v[192:193], v[192:193], v[196:197]
    v_pk_add_f32 v[194:195], v[194:195], v[198:199]
    v_pk_add_f32 v[200:201], v[200:201], v[204:205]
    v_pk_add_f32 v[202:203], v[202:203], v[206:207]
    v_pk_add_f32 v[192:193], v[192:193], v[200:201]
    v_pk_add_f32 v[194:195], v[194:195], v[202:203]
    buffer_store_dwordx4 v[192:195], v{vL16}, {SWS}, {sT[6]} offen {SC}
    """)
    a.stamp("a1_kvp")
    kvr_setup(a)
    a(f"s_cmp_eq_u32 {sIT}, 0\n s_cbranch_scc1 {L}_cq\n {L}_cqr:")
    main = a.lines; a.lines = a.stubs
    a(f"{L}_cq:")
    a1_it0_q(a, f"{L}_cqr")
    a.lines = main
    T1 = 208
    a(f"v_lshlrev_b32 v2, 4, v{vHH}\n v_add_u32 v2, {CSL}, v2")
    for q in range(4): a(f"ds_read_b128 {vr(T1+4*q,4)}, v2 offset:{32*q}")
    a(f"""
    s_lshl_b32 {sT[5]}, {sRB}, 2
    s_add_u32 {sT[5]}, {sT[5]}, {sW}
    s_lshl_b32 {sT[5]}, {sT[5]}, 4
    s_add_u32 {sT[5]}, {sT[5]}, {sH}
    s_lshl_b32 {sT[5]}, {sT[5]}, 11
    s_add_u32 {sT[5]}, {sT[5]}, {sITO}
    s_waitcnt lgkmcnt(0)
    """)
    for r in range(8): a(f"v_pk_fma_f32 {P(ACQ,r)}, {P(T1,r)}, v[{vM}:{vR}], {P(ACQ,r)} op_sel_hi:[1,0,1] neg_lo:[1,0,0] neg_hi:[1,0,0]")
    for r in range(8): a(f"v_pk_fma_f32 {P(ACQ,r)}, {P(ACQ,r)}, v[{vM}:{vR}], v[0:1] op_sel:[0,1,0] op_sel_hi:[1,1,0]")
    for r in range(8): a(f"v_pk_mul_f32 {P(T1,r)}, {P(ACQ,r)}, v[0:1] op_sel:[0,1] op_sel_hi:[1,1]")
    for r in range(16):
        a(f"v_exp_f32_e64 v{T1+r}, v{T1+r} clamp")
        a(f"v_max_f32 v{ACQ+r}, {sT[3]}, v{ACQ+r}")
    for r in range(8): a(f"v_pk_add_f32 {P(ACQ,r)}, {P(ACQ,r)}, {P(T1,r)}")
    for r in range(8): a(f"v_cvt_pk_bf16_f32 v{T1+r}, v{ACQ+2*r}, v{ACQ+2*r+1}")
    a.lstore([f"buffer_store_dwordx4 {vr(T1,4)}, v{vL16}, {SWS}, {sT[5]} offen", f"buffer_store_dwordx4 {vr(T1+4,4)}, v{vL16}, {SWS}, {sT[5]} offen offset:1024"])
    a.stamp("a1_end")

def helper_index(a):
    a(f"""
    s_and_b32 {sT[0]}, s2, 7
    s_lshl_b32 {sT[0]}, {sT[0]}, 2
    s_lshr_b32 {sT[1]}, s2, 3
    s_add_u32 {sT[0]}, {sT[0]}, {sT[1]}
    s_sub_u32 {sT[0]}, {sT[0]}, 28
    s_lshl_b32 {sT[0]}, {sT[0]}, 2
    s_add_u32 {sT[0]}, {sT[0]}, {sW}         ; hw 0..127
    """)

KB, KAD, KSA = 128, 190, 191
def kvr_setup(a):
    t2, t3, t4, t5 = 184, 185, 186, 187
    a(f"""
    v_lshrrev_b32 v{t2}, 4, v{vLANE}
    v_and_b32 v{t3}, 15, v{vLANE}
    v_lshlrev_b32 v{t2}, 12, v{t2}
    v_lshl_add_u32 v{KAD}, v{t3}, 4, v{t2}
    s_lshr_b32 {sT[0]}, s2, 3
    s_lshr_b32 {sT[1]}, {sT[0]}, 1
    s_and_b32 {sT[8]}, {sT[0]}, 1
    s_lshl_b32 {sT[6]}, {sT[1]}, 16
    s_lshl_b32 {sT[4]}, {sT[8]}, 11
    s_add_u32 {sT[6]}, {sT[6]}, {sT[4]}
    s_lshl_b32 {sT[4]}, {sW}, 8
    s_add_u32 {sT[6]}, {sT[6]}, {sT[4]}
    s_add_u32 {sT[6]}, {sT[6]}, {sITO}
    s_add_u32 {sT[6]}, {sT[6]}, {KVP}
    s_lshl_b32 {sT[4]}, {sWL}, 4
    v_add_u32 v{t3}, {sT[4]}, v{t3}
    v_cmp_le_u32 vcc, 14, v{t3}
    v_cndmask_b32 v{t4}, 0, 1, vcc
    v_mul_u32_u24 v{t5}, 14, v{t4}
    v_sub_u32 v{t5}, v{t3}, v{t5}
    v_cmp_le_u32 vcc, 28, v{t3}
    v_and_b32 v{t2}, 1, v{t3}
    v_add_u32 v{t2}, 14, v{t2}
    v_cndmask_b32 v{t5}, v{t5}, v{t2}, vcc
    v_bfe_u32 v{t2}, v{t3}, 1, 1
    v_cndmask_b32 v{t4}, v{t4}, v{t2}, vcc
    v_and_b32 v{t2}, 3, v{t5}
    v_lshrrev_b32 v{t5}, 2, v{t5}
    v_lshl_add_u32 v{t2}, v{t5}, 3, v{t2}
    v_lshl_add_u32 v{t2}, v{t4}, 2, v{t2}
    v_lshlrev_b32 v{KSA}, 4, v{t2}
    s_lshl_b32 {sT[7]}, {sT[0]}, 10
    s_lshl_b32 {sT[4]}, {sWH}, 9
    s_add_u32 {sT[7]}, {sT[7]}, {sT[4]}
    s_and_b32 {sT[4]}, s2, 7
    s_lshl_b32 {sT[4]}, {sT[4]}, 15
    s_add_u32 {sT[7]}, {sT[7]}, {sT[4]}
    s_add_u32 {sT[7]}, {sT[7]}, {sITO}
    s_add_u32 {sT[7]}, {sT[7]}, {KVF}
    s_and_b32 {sT[4]}, {sT[8]}, {sWH}
    s_cmp_eq_u32 {sT[4]}, 1
    s_cselect_b32 {sT[10]}, 0, -1
    """)
def kvr_loads(a):
    B = KB
    for i in range(4):
        a(f"s_add_u32 {sT[2]}, {sT[6]}, {i*0x4000}")
        a(f"buffer_load_dwordx4 {vr(B+4*i,4)}, v{KAD}, {SWS}, {sT[2]} offen {SC}")
        a(f"buffer_load_dwordx4 {vr(B+16+4*i,4)}, v{KAD}, {SWS}, {sT[2]} offen offset:1024 {SC}")
def kvr_finish(a):
    B, SA = KB, KSA
    a.check(range(B, B + 32), lambda: (a(f"s_sleep {OPT.get('rsl', 5)}"), kvr_loads(a)), 0)
    bs = (B, B + 16)
    for b in bs:
        a(f"""
        v_pk_add_f32 v[{b}:{b+1}], v[{b}:{b+1}], v[{b+4}:{b+5}]
        v_pk_add_f32 v[{b+2}:{b+3}], v[{b+2}:{b+3}], v[{b+6}:{b+7}]
        v_pk_add_f32 v[{b+8}:{b+9}], v[{b+8}:{b+9}], v[{b+12}:{b+13}]
        v_pk_add_f32 v[{b+10}:{b+11}], v[{b+10}:{b+11}], v[{b+14}:{b+15}]
        v_pk_add_f32 v[{b}:{b+1}], v[{b}:{b+1}], v[{b+8}:{b+9}]
        v_pk_add_f32 v[{b+2}:{b+3}], v[{b+2}:{b+3}], v[{b+10}:{b+11}]
        """)
    for b in bs: a(f"v_permlane32_swap_b32 v{b}, v{b+2}\n v_permlane32_swap_b32 v{b+1}, v{b+3}")
    for b in bs: a(f"v_pk_add_f32 v[{b}:{b+1}], v[{b}:{b+1}], v[{b+2}:{b+3}]")
    for b in bs: a(f"v_permlane16_swap_b32 v{b}, v{b+1}")
    for b in bs: a(f"v_add_f32 v{b}, v{b}, v{b+1}")
    for b in bs: a(f"v_mov_b32 v{b+1}, v{b}")
    for b in bs: a(f"v_permlane16_swap_b32 v{b}, v{b+1}")
    O = B + 32
    a(f"""
    v_cvt_pk_bf16_f32 v{O}, v{B}, v{B+1}
    v_cvt_pk_bf16_f32 v{O+2}, v{B+16}, v{B+17}
    v_and_b32 v{O+2}, {sT[10]}, v{O+2}
    v_mov_b32 v{O+1}, v{O}
    v_mov_b32 v{O+3}, v{O+2}
    v_permlane32_swap_b32 v{O}, v{O+1}
    v_permlane32_swap_b32 v{O+2}, v{O+3}
    s_mov_b64 exec, 0xffff
    """)
    a.lstore([f"buffer_store_dwordx4 {vr(O,4)}, v{SA}, {SWS}, {sT[7]} offen"])
    a("s_mov_b64 exec, -1")

RED = 0x20000
def red_addrs(a, base, partner_xor, v_own, v_par):
    a(f"""
    s_lshl_b32 {sT[0]}, {sW}, 13
    s_add_u32 {sT[0]}, {sT[0]}, {base}
    v_add_u32 v{v_own}, {sT[0]}, v{vL16}
    v_xor_b32 v{v_par}, {partner_xor*8192}, v{v_own}
    """)
def pair_reduce(a, acc0, acc1, v_own, v_par, after_barrier=None):
    for q in range(4): a(f"ds_write_b128 v{v_own}, {vr(acc1+4*q,4)} offset:{1024*q}")
    a("s_waitcnt lgkmcnt(0)\n s_barrier")
    for q in range(4): a(f"ds_read_b128 {vr(acc1+4*q,4)}, v{v_par} offset:{1024*q}")
    if after_barrier: after_barrier()
    for q in range(4):
        a(f"s_waitcnt lgkmcnt({3-q})")
        for r in range(2): a(f"v_pk_add_f32 {vr(acc0+4*q+2*r,2)}, {vr(acc0+4*q+2*r,2)}, {vr(acc1+4*q+2*r,2)}")

def l2_warm(a, what):
    a(f"""
    s_lshr_b32 {sT[8]}, s2, 3
    s_sub_u32 {sT[8]}, {sT[8]}, 28
    s_and_b32 {sT[9]}, s2, 7
    v_mul_u32_u24 v12, 37, v{vLANE}
    v_lshrrev_b32 v12, 8, v12                ; lane/7
    v_mul_u32_u24 v13, 7, v12
    v_sub_u32 v13, v{vLANE}, v13
    v_min_u32 v12, 7, v12
    v_mul_u32_u24 v12, 3584, v12
    v_lshl_add_u32 v12, v13, 7, v12
    v_lshrrev_b32 v13, 2, v{vLANE}
    v_lshlrev_b32 v13, 12, v13
    v_and_b32 v14, 3, v{vLANE}
    v_lshl_add_u32 v13, v14, 7, v13
    """)
    for which, row0, nrows in what:
        q = nrows // 4
        if which == 1:
            a(f"""
            s_mul_i32 {sT[10]}, {sT[8]}, {512*3584}
            s_mul_i32 {sT[11]}, {sW}, {q*3584}
            s_add_u32 {sT[10]}, {sT[10]}, {sT[11]}
            s_lshr_b32 {sT[11]}, {sT[9]}, 1
            s_mul_i32 {sT[11]}, {sT[11]}, 896
            s_add_u32 {sT[10]}, {sT[10]}, {sT[11]}
            """)
            for i in range(q // 8):
                a(f"s_add_u32 {sT[11]}, {sT[10]}, {(row0 + 8*i)*3584}\n buffer_load_dword v15, v12, {SW1}, {sT[11]} offen")
        else:
            a(f"""
            s_mul_i32 {sT[10]}, {sT[8]}, {448*4096}
            s_mul_i32 {sT[11]}, {sW}, {q*4096}
            s_add_u32 {sT[10]}, {sT[10]}, {sT[11]}
            s_lshl_b32 {sT[11]}, {sT[9]}, 9
            s_add_u32 {sT[10]}, {sT[10]}, {sT[11]}
            """)
            for i in range(q // 16):
                a(f"s_add_u32 {sT[11]}, {sT[10]}, {(row0 + 16*i)*4096}\n buffer_load_dword v15, v13, {SW2}, {sT[11]} offen")

def helper_work(a):
    L = a.label("HW")
    a(f"""
    v_lshrrev_b32 v4, 2, v{vLANE}
    v_mul_u32_u24 v4, 2688, v4
    v_and_b32 v5, 3, v{vLANE}
    v_lshl_add_u32 v4, v5, 4, v4
    v_mov_b32 v8, -1
    v_mov_b32 v9, -1
    v_mov_b32 v10, -1
    v_mov_b32 v11, -1
    v_lshlrev_b32 v6, 7, v{vLANE}
    """)
    def warm(srd, lo, hi):
        if not OPT.get("warm", 1): return
        LL = a.label("HWW")
        a(f"""
        s_lshl_b32 {sT[1]}, {sT[0]}, 13
        s_add_u32 {sT[1]}, {sT[1]}, {lo}
        {LL}:
        buffer_load_dword v7, v6, {srd}, {sT[1]} offen
        s_add_u32 {sT[1]}, {sT[1]}, {128*8192}
        s_cmp_lt_u32 {sT[1]}, {hi}
        s_cbranch_scc1 {LL}
        """)
    def fill(lo, hi):
        LL = a.label("HWF")
        a(f"""
        s_lshl_b32 {sT[1]}, {sT[0]}, 10
        s_add_u32 {sT[1]}, {sT[1]}, {lo}
        {LL}:
        buffer_store_dwordx4 v[8:11], v{vL16}, {SWS}, {sT[1]} offen {SC}
        s_add_u32 {sT[1]}, {sT[1]}, {128*1024}
        s_cmp_lt_u32 {sT[1]}, {hi}
        s_cbranch_scc1 {LL}
        """)
    def signal(off):
        LL = a.label("HWS")
        a(f"""
        s_waitcnt vmcnt(0)
        s_barrier
        s_cmp_lg_u32 {sW}, 0
        s_cbranch_scc1 {LL}
        v_mov_b32 v2, 1
        v_mov_b32 v3, {off}
        s_mov_b64 exec, 1
        buffer_atomic_add v2, v3, {SDBG}, 0 offen sc1
        s_mov_b64 exec, -1
        {LL}:
        """)
        a.xstamp({196: 54, 4: 55, 68: 56, 132: 57}[off])
    fill(ST, UF)
    signal(196)
    if OPT.get('t23', 1) == 2: warm(SW1, 0, F * S * 2)
    if OPT.get('lw0', 0): l2_warm(a, [(1, 128, 128)])
    fill(UF, ITB)
    signal(4)
    if OPT.get('hw', 1) == 0: warm(SW2, 0, F * S * 2)
    for i in range(11):
        a(f"""
        s_add_u32 {sT[1]}, {sT[0]}, {128*i}
        s_min_u32 {sT[1]}, {sT[1]}, 1343
        s_mul_i32 {sT[2]}, {sT[1]}, 3121
        s_lshr_b32 {sT[2]}, {sT[2]}, 18
        s_mul_i32 {sT[3]}, {sT[2]}, 84
        s_sub_u32 {sT[3]}, {sT[1]}, {sT[3]}
        s_mul_i32 {sT[2]}, {sT[2]}, 56
        s_and_b32 {sT[2]}, {sT[2]}, 0xfff0
        s_lshr_b32 {sT[4]}, {sT[3]}, 1
        s_and_b32 {sT[5]}, {sT[3]}, 1
        s_add_u32 {sT[5]}, {sT[5]}, 1
        s_sub_u32 {sT[6]}, {sT[3]}, 56
        s_cmp_lt_u32 {sT[3]}, 56
        s_cselect_b32 {sT[4]}, {sT[4]}, {sT[6]}
        s_cselect_b32 {sT[5]}, {sT[5]}, 0
        s_mul_i32 {sT[4]}, {sT[4]}, {16*2688}
        s_mul_i32 {sT[5]}, {sT[5]}, 896
        s_add_u32 {sT[2]}, {sT[2]}, {sT[4]}
        s_add_u32 {sT[2]}, {sT[2]}, {sT[5]}
        buffer_load_dwordx4 {vr(16+4*i,4)}, v4, {SWQKV}, {sT[2]} offen
        """)
    a("s_waitcnt vmcnt(0)")
    for i in range(11):
        a(f"""
        s_add_u32 {sT[1]}, {sT[0]}, {128*i}
        s_min_u32 {sT[1]}, {sT[1]}, 1343
        s_lshl_b32 {sT[2]}, {sT[1]}, 10
        s_add_u32 {sT[2]}, {sT[2]}, {WQP}
        buffer_store_dwordx4 {vr(16+4*i,4)}, v{vL16}, {SWS}, {sT[2]} offen {SC}
        """)
    fill(XF, FILL_END)
    signal(68)
    if OPT.get('hw', 1) == 1: warm(SW2, 0, F * S * 2)
    if OPT.get('hw', 1) == 3: l2_warm(a, [(2, 0, 448)])
    fill(ITB, XF)
    signal(132)
    a.counter_wait(68, 1, 32, 2)
    a("s_barrier")
    a1_wpk_setup(a)
    for o in a1_wpk_own_ops() + a1_wpk_hi_ops(): a(o)

def phase_a2(a):
    L = a.label("A2")
    PQR, KVR, WB = 64, 128, 192
    AC0, AC1 = 16, 32
    a(f"""
    s_lshl_b32 {sT[5]}, {sST}, 1
    s_add_u32 {sT[5]}, {sT[5]}, {sWL}
    s_lshl_b32 {sAT[0]}, {sT[5]}, 15
    s_lshl_b32 {sT[1]}, {sWH}, 14
    s_add_u32 {sAT[0]}, {sAT[0]}, {sT[1]}
    s_add_u32 {sAT[0]}, {sAT[0]}, {sITO}
    s_add_u32 {sAT[1]}, {sAT[0]}, 0x2000
    s_add_u32 {sAT[2]}, {sT[1]}, {sITO}
    s_add_u32 {sAT[2]}, {sAT[2]}, {KVF}
    s_add_u32 {sAT[3]}, {sAT[2]}, 0x2000
    """)
    def pq_loads(i0=0, i1=16):
        for i in range(i0, i1):
            a(f"buffer_load_dwordx4 {vr(PQR+4*i,4)}, v{vL16b if i&4 else vL16}, {SWS}, {sAT[i>>3]} offen offset:{(i&3)*1024} {SC}")
    def kv_loads(i0=0):
        for i in range(i0, 16):
            a(f"buffer_load_dwordx4 {vr(KVR+4*i,4)}, v{vL16b if i&4 else vL16}, {SWS}, {sAT[2+(i>>3)]} offen offset:{(i&3)*1024} {SC}")
    a(f"""
    s_and_b32 {sT[0]}, s2, 7
    s_lshl_b32 {sT[0]}, {sT[0]}, 15
    s_add_u32 {sAT[2]}, {sAT[2]}, {sT[0]}
    s_add_u32 {sAT[3]}, {sAT[3]}, {sT[0]}
    v_min_u32 v4, 15, v{vLANE}
    v_lshlrev_b32 v4, 10, v4
    v_add_u32 v4, 1020, v4
    """)
    def stage(aw, n, va, off, urows):
        for t in range(n):
            for i in range(2):
                for u in range(2):
                    a(f"ds_read_b64_tr_b16 {ar(aw + 8*t + 4*i + 2*u, 2)}, v{va+i} offset:{off + t*2048 + urows*u*128}")
    def setup():
        a(f"s_lshl_b32 {sT[11]}, {sWH}, 16\n s_add_u32 {sT[11]}, {sT[11]}, 0x8000")
        wtile_tr_addr(a, 6, 14, sWH, sT[11])
        b1_tr_addr(a, 14, sLB)
        red_addrs(a, RED, 2, 8, 9)
        for r in range(16): a(f"v_mov_b32 v{AC0+r}, v{RES+r}")
        a(f"""
        s_mul_i32 {sT[8]}, {sT[5]}, 3584
        s_add_u32 {sT[8]}, {sT[8]}, {sITO}
        s_add_u32 {sT[8]}, {sT[8]}, {ST}
        s_lshl_b32 {sT[1]}, {sDT}, 1
        s_add_u32 {sT[1]}, {sT[1]}, {sWH}
        s_lshl_b32 {sT[9]}, {sT[1]}, 8
        s_add_u32 {sT[9]}, {sT[9]}, {sT[8]}
        s_lshl_b32 {sT[12]}, {sT[1]}, 17
        s_lshl_b32 {sT[0]}, {sT[5]}, 11
        s_add_u32 {sT[12]}, {sT[12]}, {sT[0]}
        s_add_u32 {sT[12]}, {sT[12]}, {sITO}
        s_add_u32 {sT[12]}, {sT[12]}, {HF}
        v_lshrrev_b32 v2, 1, v{vLANE}
        v_lshlrev_b32 v2, 9, v2
        v_and_b32 v3, 1, v{vLANE}
        v_mul_u32_u24 v3, 96, v3
        v_add_u32 v11, v2, v3
        """)
    a(f"s_cmp_eq_u32 {sIT}, 0\n s_cbranch_scc1 {L}_s0")
    PS = OPT.get("ps", 16)
    if OPT.get("sfirst", 0): setup()
    pq_loads(0, PS)
    kvr_loads(a)
    pq_loads(PS, 16)
    if not OPT.get("sfirst", 0): setup()
    a(f"s_waitcnt vmcnt({16-PS})\n {L}_s0r:")
    main = a.lines; a.lines = a.stubs
    a(f"{L}_s0:")
    for o in wo_ops(): a(o)
    setup()
    a(f"s_waitcnt vmcnt(17)\n s_branch {L}_s0r")
    a.lines = main
    kvr_finish(a)
    a.stamp("a2_pq")
    for o in a.wo_rest: a(o)
    a(f"s_cmp_eq_u32 {sIT}, 0\n s_cbranch_scc1 {L}_s1\n {L}_s1r:")
    main = a.lines; a.lines = a.stubs
    a(f"{L}_s1:")
    pq_loads()
    a(f"""
    v_mul_u32_u24 v2, 896, v{vL31}
    v_lshl_add_u32 v2, v{vHH}, 3, v2
    s_mul_i32 {sT[0]}, {sT[5]}, {32*896}
    s_lshl_b32 {sT[1]}, {sDT}, 7
    s_add_u32 {sT[0]}, {sT[0]}, {sT[1]}
    s_lshl_b32 {sT[1]}, {sWH}, 6
    s_add_u32 {sT[0]}, {sT[0]}, {sT[1]}
    """)
    for q in range(4): a(f"buffer_load_dwordx2 {vr(48+2*q,2)}, v2, {SX}, {sT[0]} offen offset:{16*q}")
    for o in big_dma_ops(1, 28, 4, 0, "s79"): a(o)
    a(f"s_lshl_b32 {sT[11]}, {sW}, 13\n s_sub_u32 {sT[11]}, {sT[11]}, {sLB}\n v_add_u32 v12, {sT[11]}, v14\n v_add_u32 v13, {sT[11]}, v15")
    stage(aW1 + 64, 4, 12, 0, 4)
    a(f"s_waitcnt lgkmcnt(0)\n s_branch {L}_s1r")
    a.lines = main
    a("s_waitcnt vmcnt(0)")
    a.check(range(PQR, PQR + 64), lambda: (a("s_sleep 4"), pq_loads()), 0)
    if not OPT.get('sub'): a.xstamp(59)
    a("s_barrier")
    NB = [48, RES, PQR]
    def num_ops(hd):
        n = NB[hd % 3]
        return [f"{MF} {vr(n,16)}, {vr(KVR+8*hd,4)}, {vr(PQR+8*hd,4)}, 0",
                f"{MF} {vr(n,16)}, {vr(KVR+8*hd+4,4)}, {vr(PQR+8*hd+4,4)}, {vr(n,16)}"]
    p1 = big_dma_ops(1, 0, 8, 0)
    nd = [0]; ndc = [0]
    def kvchk(hd):
        a(f"s_waitcnt vmcnt({14-2*hd+nd[0]})")
        a.check(range(KVR + 8 * hd, KVR + 8 * hd + 8), lambda hd=hd: kv_loads(2 * hd), 0 if nd[0] else 14 - 2 * hd)
    def wrd_ops(hd):
        o = []
        for t in range(2):
            for nb in range(2):
                b = WB + 16 * (hd & 1) + 4 * (2 * t + nb)
                for u in range(2):
                    o.append(f"ds_read_b64_tr_b16 {vr(b+2*u,2)}, v{6+nb} offset:{(28*hd+8*t+4*u)*128}")
        return o
    def wrd(hd):
        for o in wrd_ops(hd): a(o)
    def div_ops(hd):
        n = NB[hd % 3]
        ops = [f"v_add_f32 v10, {fbits(1e-6)}, v{n+15}", "v_rcp_f32 v10, v10"]
        for r in range(14): ops.append(f"v_mul_f32 v{n+r}, v{n+r}, v10")
        for r in range(7): ops.append(f"v_cvt_pk_bf16_f32 v{n+r}, v{n+2*r}, v{n+2*r+1}")
        ops.append(f"v_mov_b32 v{n+7}, 0")
        return ops
    def out_ops(hd):
        ops = []
        for t in range(2):
            for nb in range(2):
                acc = (AC0, AC1)[nb]
                c = vr(acc, 16) if (hd or t or nb == 0) else "0"
                ops.append(f"{MF} {vr(acc,16)}, {vr(WB+16*(hd&1)+4*(2*t+nb),4)}, {vr(NB[hd%3]+4*t,4)}, {c}")
        return ops
    kv_loads()
    a(f"s_cmp_eq_u32 {sIT}, 0\n s_cbranch_scc1 {L}_s2\n {L}_s2r:")
    main = a.lines; a.lines = a.stubs
    a(f"{L}_s2:")
    a(f"s_sub_u32 {sT[11]}, s79, {sLB}\n v_add_u32 v12, {sT[11]}, v14\n v_add_u32 v13, {sT[11]}, v15")
    stage(aW1 + 96, 4, 12, 0, 4)
    a("s_waitcnt lgkmcnt(0)")
    for q in range(8): a(f"v_lshlrev_b32 v{AC0+2*q}, 16, v{48+q}\n v_and_b32 v{AC0+2*q+1}, 0xffff0000, v{48+q}")
    a(f"s_branch {L}_s2r")
    a.lines = main
    wrd(0)
    kvchk(0)
    for o in num_ops(0): a(o)
    a.stamp("a2_kv")
    kvchk(1)
    for o in num_ops(1): a(o)
    for o in div_ops(0): a(o)
    for hd in range(8):
        va = div_ops(hd + 1) if hd + 1 < 8 else []
        ds = wrd_ops(hd + 1) if hd + 1 < 8 else []
        mf = []
        if hd + 2 < 8:
            kvchk(hd + 2)
            mf += num_ops(hd + 2)
        nnum = len(mf)
        mf += out_ops(hd)
        per = -(-len(va) // len(mf))
        nds = 0
        for j, o in enumerate(mf):
            if j == nnum: a(f"s_waitcnt lgkmcnt({nds})")
            a(o)
            for _ in range(2):
                if ds:
                    a(ds.pop(0)); nds += 1
            if j >= 2 and p1:
                a(p1.pop(0)); nd[0] += 1
            for _ in range(per):
                if va: a(va.pop(0))
        assert not va and not ds
        if hd == 0:
            a.counter_issue(196, 1); nd[0] += 1; ndc[0] = nd[0]
    assert not p1
    a.stamp("a2_mm")
    pair_reduce(a, AC0, AC1, 8, 9)
    a(f"s_waitcnt vmcnt({nd[0] - ndc[0]})")
    a.counter_check(196, 32)
    stats_publish(a, AC0, 64, sT[9])
    p2 = big_dma_ops(1, 8, 8, 0x8000)
    n2 = 0
    for o in p2[:n2]: a(o)
    stats_loads(a, sT[8], 96)
    for r in range(16): a(f"v_mov_b32 v{RES+r}, v{AC0+r}")
    TW = 128
    a(f"""
    s_add_u32 {sT[0]}, {sLB}, 0x8000
    v_lshrrev_b32 v2, 1, v{vL31}
    v_and_b32 v2, 7, v2
    v_xor_b32 v2, v2, v{vHH}
    v_lshlrev_b32 v3, 6, v{vL31}
    v_add_u32 v3, {sT[0]}, v3
    """)
    for q in range(4): a(f"v_xor_b32 v4, {2*q}, v2\n v_lshl_add_u32 v{TW+q}, v4, 3, v3")
    a(f"""
    v_lshrrev_b32 v2, 2, v{vLANE}
    v_and_b32 v2, 3, v2
    v_lshl_add_u32 v2, v{vHH}, 3, v2
    v_lshrrev_b32 v3, 4, v{vLANE}
    v_and_b32 v3, 1, v3
    v_lshlrev_b32 v3, 2, v3
    v_and_b32 v4, 3, v{vLANE}
    v_add_u32 v3, v3, v4
    v_lshrrev_b32 v4, 1, v2
    v_xor_b32 v3, v3, v4
    v_lshlrev_b32 v2, 6, v2
    v_add_u32 v2, {sT[0]}, v2
    v_lshl_add_u32 v{TW+4}, v3, 3, v2
    v_xor_b32 v3, 2, v3
    v_lshl_add_u32 v{TW+5}, v3, 3, v2
    s_waitcnt vmcnt(0)
    """)
    a.check(range(96, 110), lambda: stats_loads(a, sT[8], 96), 0, 2)
    a.stamp("a2_st")
    for o in stats_math_ops(96, 80, 82, 112): a(o)
    a(f"""
    v_add_f32 v84, {fbits(1e-5)}, v82
    v_rsq_f32 v84, v84
    v_mov_b32 v86, {fbits(1e-5)}
    v_mul_f32 v85, v82, v84
    v_fmac_f32 v86, v85, v84
    v_rsq_f32 v86, v86
    v_mul_f32 v84, v84, v86
    v_mul_f32 v86, -v80, v84
    """)
    for r in range(8): a(f"v_pk_fma_f32 {vr(32+2*r,2)}, {vr(AC0+2*r,2)}, v[84:85], v[86:87] op_sel_hi:[1,0,0]")
    for r in range(8): a(f"v_cvt_pk_bf16_f32 v{112+r}, v{32+2*r}, v{32+2*r+1}")
    for q in range(4): a(f"ds_write_b64 v{TW+q}, {vr(112+2*q,2)}")
    a(f"""
    ds_read_b64_tr_b16 v[120:121], v{TW+4}
    ds_read_b64_tr_b16 v[122:123], v{TW+5} offset:256
    ds_read_b64_tr_b16 v[124:125], v{TW+4} offset:1024
    ds_read_b64_tr_b16 v[126:127], v{TW+5} offset:1280
    s_waitcnt lgkmcnt(2)
    buffer_store_dwordx4 v[120:123], v{vL16}, {SWS}, {sT[12]} offen {SC}
    s_waitcnt lgkmcnt(0)
    buffer_store_dwordx4 v[124:127], v{vL16}, {SWS}, {sT[12]} offen offset:1024 {SC}
    s_barrier
    """)
    a.p2rest = p2[n2:]

ACC, WBF, WIN = 8, 72, 104
NWF = 28
def ringoff(t): return ((t & 15) >> 3) * 0x8000 + (t & 7) * 2048
vTR, vPB = 6, 4
sA1 = [f"s{i}" for i in range(80, 88)]
sW2X = "s78"

def b1_tr_addr(a, vd, sbase):
    wtile_tr_addr(a, vd, 8, sWH, sbase)
    a(f"s_lshl_b32 {sT[2]}, {sWL}, 5\n v_xor_b32 v{vd}, {sT[2]}, v{vd}\n v_xor_b32 v{vd+1}, {sT[2]}, v{vd+1}")

class Stream:
    def __init__(self, a):
        self.a = a; self.q = []; self.issued = 0; self.dirty = False; self.lq = []
        self.LOOK = OPT.get("look", 12)
    def info(self, s):
        if s < 64: return 1, s >> 5, s & 31
        s -= 64
        return 2, s // 28, s % 28
    def areg(self, s): return WIN + 4 * (s % NWF)
    def ld(self, s):
        g, p, t = self.info(s)
        tab = (sA1 if g == 1 else sAT)[4 * p + (t >> 3)]
        return f"buffer_load_dwordx4 {vr(self.areg(s),4)}, v{vL16b if t&4 else vL16}, {SWS}, {tab} offen offset:{(t&3)*1024} {SC}"
    def issue_upto(self, n):
        while self.issued < min(n, 120):
            self.a(self.ld(self.issued)); self.q.append(("a", self.issued)); self.issued += 1
    def other(self, op, tag=("x", 0)):
        self.a(op); self.q.append(tag); self.dirty = True
    def cnt(self, item):
        idx = max(i for i, x in enumerate(self.q) if x == item)
        return min(len(self.q) - 1 - idx, 63)
    def check(self, s, n=4):
        a = self.a
        c = self.cnt(("a", s + n - 1))
        a(f"s_waitcnt vmcnt({c})")
        hi = self.issued
        regs = [self.areg(x) + k for x in range(s, s + n) for k in range(4)]
        a.check(regs, lambda: (a("s_sleep 1"), [a(self.ld(x)) for x in range(s, hi)]), 0 if self.dirty else c)

def wsrc(g, t, s, i, it, p, o=0, n=4):
    if g == 1:
        if t < 16: return vr(WBF + 8 * (s & 3) + 4 * i + o, n)
        return ar(aW1 + 8 * (t - 16) + 4 * i + o, n)
    if t >= 16: return vr(WBF + 8 * (s & 3) + 4 * i + o, n)
    return ar(aW2 + 8 * t + 4 * i + o, n)
def needs_rd(g, t, it, p):
    if g == 1: return t < 16
    return t >= 16 or (it == 0 and p == 0)

def run_steps(a, st, s0, s1, it, sched, tr, hooks={}):
    LA = 3
    def rd(s):
        if s >= s1 and not (s < 64 and s1 < 64) and not (s0 >= 64 and s < 120 and s1 < 120): return
        g, p, t = st.info(s)
        if not needs_rd(g, t, it, p): return
        if ("w", s) in st.q: a(f"s_waitcnt vmcnt({st.cnt(('w', s))})")
        urows = 4 if g == 1 else 8
        for i in range(2):
            for u in range(2):
                a(f"ds_read_b64_tr_b16 {wsrc(g,t,s,i,it,p,2*u,2)}, v{tr+i} offset:{ringoff(t) + urows*u*128}")
        st.lq.append(s)
    for s in range(s0, s1):
        g, p, t = st.info(s)
        if s in hooks: hooks[s]()
        if (s - (0 if g == 1 else 64)) % 4 == 0: st.check(s)
        if s == s0:
            for x in range(s0, s0 + LA):
                if x not in st.lq: rd(x)
        rd(s + LA)
        if needs_rd(g, t, it, p):
            n = len([x for x in st.lq if x > s])
            a(f"s_waitcnt lgkmcnt({4*n})")
        ex = list(sched.get(s, []))
        for i in range(2):
            if g == 1:
                acc = ACC + 32 * p + 16 * i
                c_ = vr(acc, 16) if (t or i == 0) else "0"
                a(f"{MF} {vr(acc,16)}, {wsrc(g,t,s,i,it,p)}, {vr(st.areg(s),4)}, {c_}")
            else:
                r_ = i + 2 * (1 - p)
                acc = B2ACC[r_]
                c_ = vr(acc, 16) if (t or r_ == 0) else "0"
                a(f"{MF} {vr(acc,16)}, {vr(st.areg(s),4)}, {wsrc(g,t,s,i,it,p)}, {c_}")
            if ex:
                o, tag = ex.pop(0); st.other(o, tag)
            tgt = s + 1 + OPT.get("look2", 12)
            if s < 92: tgt = min(tgt, max(92, s + 1 + OPT.get("lk2", 12)))
            st.issue_upto(min(tgt, st.issued + 1))
        assert not ex
B2ACC = {2: 8, 3: 24, 0: 40, 1: 56}

def b1_epilogue(a, st, p, s_store):
    A = ACC + 32 * p
    a("s_waitcnt lgkmcnt(0)")
    for r_ in (3, 2, 1):
        for k in range(2): a(f"ds_write_b128 v0, {vr(A+8*r_+4*k,4)} offset:{(r_-1)*2048+1024*k}")
    base = 32 * (p + 1)
    E1, E2 = OPT.get("e1", 16), OPT.get("e2", 20)
    st.issue_upto(base + E1)
    a("s_waitcnt lgkmcnt(0)\n s_barrier")
    for r_ in (1, 2, 3):
        for k in range(2): a(f"ds_read_b128 {vr(A+8*r_+4*k,4)}, v{r_} offset:{(r_-1)*2048+1024*k}")
    st.issue_upto(base + E2)
    if p == 0: a.counter_check(4, 32)
    for r_ in (1, 2, 3):
        a(f"s_waitcnt lgkmcnt({2*(3-r_)})")
        for k in range(4): a(f"v_pk_add_f32 {vr(A+2*k,2)}, {vr(A+2*k,2)}, {vr(A+8*r_+2*k,2)}")
    U, T = A, A + 8
    for r in range(4): a(f"v_pk_mul_f32 {vr(T+2*r,2)}, {vr(U+2*r,2)}, {vr(U+2*r,2)}")
    for r in range(4): a(f"v_pk_fma_f32 {vr(T+2*r,2)}, {vr(T+2*r,2)}, v[216:217], v[216:217] op_sel:[0,0,1] op_sel_hi:[1,0,1]")
    for r in range(4): a(f"v_pk_mul_f32 {vr(T+2*r,2)}, {vr(T+2*r,2)}, {vr(U+2*r,2)}")
    for r in range(8): a(f"v_exp_f32 v{T+r}, v{T+r}")
    for r in range(4): a(f"v_pk_add_f32 {vr(T+2*r,2)}, {vr(T+2*r,2)}, 1.0 op_sel_hi:[1,0]")
    for r in range(8): a(f"v_rcp_f32 v{T+r}, v{T+r}")
    for r in range(4): a(f"v_pk_mul_f32 {vr(T+2*r,2)}, {vr(T+2*r,2)}, {vr(U+2*r,2)}")
    for r in range(4): a(f"v_cvt_pk_bf16_f32 v{220+r}, v{T+2*r}, v{T+2*r+1}")
    st.other(f"buffer_store_dwordx4 v[220:223], v{vL16}, {SWS}, {s_store} offen {SC}")

def w2x_ops(p):
    return [o.replace(sW2B, sW2X) for o in big_dma_ops(2, p, 1, ringoff(p))]

def b2_setup(a):
    a(f"""
    s_lshl_b32 {sT[7]}, {sST}, 1
    s_add_u32 {sT[7]}, {sT[7]}, {sWL}
    v_lshlrev_b32 v3, 1, v{vL31}
    s_lshl_b32 {sT[0]}, {sT[7]}, 6
    buffer_load_ushort v{vKRS}, v3, {SB2}, {sT[0]} offen
    s_mul_i32 {sT[6]}, {sDT}, {224*1024}
    s_mul_i32 {sT[0]}, {sW}, {28*1024}
    s_add_u32 {sT[6]}, {sT[6]}, {sT[0]}
    s_add_u32 {sT[6]}, {sT[6]}, {sITO}
    s_add_u32 {sT[6]}, {sT[6]}, {UF}
    s_mul_i32 {sT[0]}, {sWH}, {112*1024}
    s_add_u32 {sAT[4]}, {sT[6]}, {sT[0]}
    s_sub_u32 {sT[0]}, {112*1024}, {sT[0]}
    s_add_u32 {sAT[0]}, {sT[6]}, {sT[0]}
    """)
    for k in range(1, 4):
        a(f"s_add_u32 {sAT[k]}, {sAT[0]}, {k*0x2000}\n s_add_u32 {sAT[4+k]}, {sAT[4]}, {k*0x2000}")
    wtile_tr_addr(a, 218, 4, sWL, sLB)
    a1_wpk_setup(a)
    a(f"""
    s_lshl_b32 {sT[5]}, {sDT}, 1
    s_add_u32 {sT[5]}, {sT[5]}, {sWH}
    s_mul_i32 {sT[8]}, {sT[7]}, {28*1024}
    s_lshl_b32 {sT[1]}, {sT[5]}, 11
    s_add_u32 {sT[8]}, {sT[8]}, {sT[1]}
    s_add_u32 {sT[8]}, {sT[8]}, {XF}
    s_mul_i32 {sT[9]}, {sT[7]}, 3584
    s_lshl_b32 {sT[1]}, {sT[5]}, 8
    s_add_u32 {sT[9]}, {sT[9]}, {sT[1]}
    s_add_u32 {sT[9]}, {sT[9]}, {ST2}
    s_mul_i32 {sT[12]}, {sT[7]}, {32*896}
    s_lshl_b32 {sT[1]}, {sT[5]}, 6
    s_add_u32 {sT[12]}, {sT[12]}, {sT[1]}
    s_mul_i32 {sW2X}, {sIT}, {16*16*4096}
    s_add_u32 {sW2X}, {sW2X}, {sW2B}
    """)

def phase_b(a):
    L = a.label("B")
    st = Stream(a)
    a(f"s_cmp_ge_u32 {sACT}, 7\n s_cbranch_scc1 {L}_skip")
    P2F = OPT.get("p2f", 16)
    for o in a.p2rest[:P2F]: a(o)
    a.counter_issue(4, 1)
    a(f"""
    v_lshlrev_b32 v3, 3, v{vHH}
    s_lshl_b32 {sT[0]}, {sFT}, 7
    s_lshl_b32 {sT[1]}, {sW}, 5
    s_add_u32 {sT[0]}, {sT[0]}, {sT[1]}
    """)
    for q in range(2): a(f"buffer_load_dwordx2 {vr(24+2*q,2)}, v3, {SB1}, {sT[0]} offen offset:{16*q}")
    b2_setup(a)
    c0 = -2 * 0.7978845608028654 * LOG2E
    c1 = c0 * 0.044715
    a(f"""
    s_cmp_lt_u32 {sFT}, 14
    s_cselect_b32 {sT[4]}, 1, 0
    s_lshl_b32 {sT[10]}, {sDT1}, 18
    s_lshl_b32 {sT[3]}, {sW}, 15
    s_add_u32 {sT[10]}, {sT[10]}, {sT[3]}
    s_add_u32 {sT[10]}, {sT[10]}, {sITO}
    s_add_u32 {sT[10]}, {sT[10]}, {HF}
    s_lshl_b32 {sT[0]}, {sT[4]}, 17
    s_add_u32 {sA1[0]}, {sT[10]}, {sT[0]}
    s_xor_b32 {sT[0]}, {sT[0]}, 0x20000
    s_add_u32 {sA1[4]}, {sT[10]}, {sT[0]}
    """)
    for k in range(1, 4):
        a(f"s_add_u32 {sA1[k]}, {sA1[0]}, {k*0x2000}\n s_add_u32 {sA1[4+k]}, {sA1[4]}, {k*0x2000}")
    a(f"""
    s_mul_i32 {sT[11]}, {sDT1}, {224*1024}
    s_lshl_b32 {sT[1]}, {sFT}, 12
    s_add_u32 {sT[11]}, {sT[11]}, {sT[1]}
    s_lshl_b32 {sT[1]}, {sW}, 10
    s_add_u32 {sT[11]}, {sT[11]}, {sT[1]}
    s_add_u32 {sT[11]}, {sT[11]}, {sITO}
    s_add_u32 {sT[11]}, {sT[11]}, {UF}
    s_mul_i32 {sT[0]}, {sT[4]}, {112*1024}
    s_add_u32 {sT[3]}, {sT[11]}, {sT[0]}
    s_sub_u32 {sT[0]}, {112*1024}, {sT[0]}
    s_add_u32 {sT[4]}, {sT[11]}, {sT[0]}
    v_lshlrev_b32 v{vPB}, 10, v{vL31}
    v_lshl_add_u32 v{vPB}, v{vHH}, 17, v{vPB}
    v_add_u32 v{vPB}, 1020, v{vPB}
    v_mov_b32 v216, {fbits(c1)}
    v_mov_b32 v217, {fbits(c0)}
    """)
    b1_tr_addr(a, vTR, sLB)
    for r_ in range(4):
        a(f"s_xor_b32 {sT[0]}, {sW}, {r_}\n s_mul_i32 {sT[0]}, {sT[0]}, 0x1800\n s_add_u32 {sT[0]}, {sT[0]}, 0x20000\n v_add_u32 v{r_}, {sT[0]}, v{vL16}")
    NO = OPT.get("no", 8)
    a.probe(vPB, sT[10], 5, 1, extra=lambda: [a(st.ld(x)) for x in range(NO)], nextra=NO)
    a.stamp("probe")
    st.q = [("a", x) for x in range(NO)]; st.issued = NO
    st.issue_upto(st.LOOK)
    for q in range(4):
        for p in (1, 0):
            a(f"v_lshlrev_b32 v{ACC+32*p+2*q}, 16, v{24+q}\n v_and_b32 v{ACC+32*p+2*q+1}, 0xffff0000, v{24+q}")
    for r in range(8): a(f"v_mov_b32 v{ACC+8+r}, 0\n v_mov_b32 v{ACC+40+r}, 0")
    sch0 = {}
    for k in range(P2F, 16): sch0.setdefault((k - P2F) // 2, []).append((a.p2rest[k], ("w", 8 + k // 2)))
    run_steps(a, st, 0, 32, 1, sch0, vTR)
    a.stamp("b1_p0")
    b1_epilogue(a, st, 0, sT[3])
    ent = {}
    def body(it):
        s2 = Stream(a); s2.q = list(st.q); s2.issued = st.issued; s2.dirty = True; s2.lq = list(st.lq)
        sched = {}; later = []; pre = []
        def put(s_, ops, tag):
            sched.setdefault(s_, []).extend((o, tag) for o in ops)
            if s_ < 64: pre.extend(ops)
        if it == 0:
            W2S = OPT.get("w2s", 48)
            for p in range(16): put(max(W2S + p, 33 + p), big_dma_ops(2, p, 1, ringoff(p)), ("w", 64 + p))
            for k in range(16, 28): put(64 + k - OPT.get("rfl", 14), big_dma_ops(2, k, 1, ringoff(k)), ("w", 64 + k))
            hi = a1_wpk_hi_ops(); own = a1_wpk_own_ops()
            for k, o in enumerate(hi): put(64 + 28 + 12 + k, [o], ("x", 0))
            for p in range(8):
                s_ = 64 + 28 + 17 + p + OPT.get("wqd", 2)
                if s_ < 120: put(s_, own[2*p:2*p+2], ("x", 0))
                else: later += own[2*p:2*p+2]
        else:
            W2S = OPT.get("w2s1", 60)
            for k in range(16, 28): put(W2S + k - 16, big_dma_ops(2, k, 1, ringoff(k)), ("w", 64 + k))
        run_steps(a, s2, 32, 64, 1, sched, vTR, {48: lambda: a("s_barrier"), 56: lambda: (a.counter_issue(68, 1), s2.q.append(("c", 0)))})
        a.stamp("b1_p1")
        b1_epilogue(a, s2, 1, sT[4])
        a(f"{L}_e{it}:")
        ent[it] = (pre, s2.issued)
        a.stamp("b1_end")
        def init():
            a(f"s_waitcnt vmcnt({s2.cnt(('c', 0))})")
            a.counter_check(68, 32)
            a(f"v_lshlrev_b32 v5, 16, v{vKRS}")
            for r in range(16): a(f"v_add_f32 v{B2ACC[0]+r}, v{RES+r}, v5")
            a(f"v_add_u32 v0, {sLB}, v{vL16}\n v_xor_b32 v1, 0x4000, v0\n v_xor_b32 v2, 0x10000, v0\n v_xor_b32 v3, 0x14000, v0")
        def wr(r_, off):
            for k in range(4): a(f"ds_write_b128 v0, {vr(B2ACC[r_]+4*k,4)} offset:{off+1024*k}")
        def early():
            wr(2, 0xA000); wr(3, 0xB000)
            a("s_barrier")
        run_steps(a, s2, 64, 120, it, sched, 218, {72: init, 64 + 28 + 8: early})
        a.stamp("mm")
        wr(1, 0x9000)
        a("s_waitcnt lgkmcnt(0)\n s_barrier")
        for r_, of in ((2, 0xA000), (3, 0xB000), (1, 0x9000)):
            for k in range(4): a(f"ds_read_b128 {vr(B2ACC[r_]+4*k,4)}, v{r_} offset:{of+1024*k}")
        return later
    later = two_its(a, L, body)
    main = a.lines; blk = []; a.lines = blk
    a(f"{L}_skip:")
    b2_setup(a)
    a(f"s_cmp_eq_u32 {sIT}, 0\n s_cbranch_scc0 {L}_sk1")
    for o in ent[0][0]: a(o)
    a(f"s_branch {L}_sk2\n {L}_sk1:")
    for o in ent[1][0]: a(o)
    a(f"{L}_sk2:")
    a.counter_wait(4, 1, 32, 2)
    a.counter_issue(68, 1)
    a(f"v_min_u32 v{vPB}, 27, v{vLANE}\n v_lshlrev_b32 v{vPB}, 10, v{vPB}\n v_add_u32 v{vPB}, 1020, v{vPB}")
    a.probe(vPB, sAT[OPT.get('skp', 0)], 5, 1, sleep=4)
    assert ent[0][1] == ent[1][1]
    for x in range(64, ent[0][1]): a(st.ld(x))
    a(f"s_waitcnt vmcnt(0)\n s_cmp_eq_u32 {sIT}, 0\n s_cbranch_scc1 {L}_e0\n s_branch {L}_e1")
    a.lines = main; a.stubs += blk
    K0 = B2ACC[0]
    a(f"v_mul_u32_u24 v0, 896, v{vL31}\n v_lshl_add_u32 v0, v{vHH}, 3, v0")
    for n_, r_ in enumerate((2, 3, 1)):
        a(f"s_waitcnt lgkmcnt({4*(2-n_)})")
        for k in range(8): a(f"v_pk_add_f32 {vr(K0+2*k,2)}, {vr(K0+2*k,2)}, {vr(B2ACC[r_]+2*k,2)}")
    for r in range(8): a(f"v_cvt_pk_bf16_f32 v{112+r}, v{K0+2*r}, v{K0+2*r+1}")
    a(f"s_cmp_eq_u32 {sIT}, 0\n s_cbranch_scc0 {L}_fin")
    a.lstore([f"buffer_store_dwordx4 v[112:115], v{vL16}, {SWS}, {sT[8]} offen", f"buffer_store_dwordx4 v[116:119], v{vL16}, {SWS}, {sT[8]} offen offset:1024"])
    stats_publish(a, K0, 72, sT[9])
    for o in later[0]: a(o)
    for r in range(16): a(f"v_mov_b32 v{RES+r}, v{K0+r}")
    a(f"s_branch {L}_end\n {L}_fin:")
    for q in range(4): a(f"buffer_store_dwordx2 {vr(112+2*q,2)}, v0, {SOUT}, {sT[12]} offen offset:{16*q}")
    a(f"{L}_end:")

def two_its(a, L, body):
    n0 = a.nstamp; names0 = list(getattr(a, "names", []))
    a(f"s_cmp_eq_u32 {sIT}, 0\n s_cbranch_scc0 {L}_i1")
    r0 = body(0)
    a(f"s_branch {L}_j\n {L}_i1:")
    a.nstamp = n0
    if STAMPS: a.names = names0
    r1 = body(1)
    a(f"{L}_j:")
    return r0, r1

def build():
    a = K(); a.stubs = []
    kernel_begin(a, KNAME)
    prologue(a)
    if STAMPS: a("v_mov_b32 v255, 0")
    if "echo" in OPT: a("s_memrealtime s[80:81]\n s_waitcnt lgkmcnt(0)\n s_mov_b32 s82, s80")
    a("L_iter:")
    a.stamp("start")
    phase_a1(a)
    a(f"s_cmp_ge_u32 {sACT}, 8\n s_cbranch_scc1 L_helper")
    phase_a2(a)
    a.stamp("a2_end")
    phase_b(a)
    a.stamp("b2_end")
    a(f"""
    L_next:
    s_cmp_eq_u32 {sIT}, 1
    s_cbranch_scc1 L_fin
    s_mov_b32 {sIT}, 1
    s_mov_b32 {sITO}, {ITB}
    s_branch L_iter
    L_helper:
    """)
    a(f"s_cmp_eq_u32 {sIT}, 0\n s_cbranch_scc1 L_hnl")
    kvr_loads(a)
    a("L_hnl:\n s_waitcnt vmcnt(0)")
    kvr_finish(a)
    helper_index(a)
    if not OPT.get('sub'): a.xstamp(53)
    a("s_waitcnt vmcnt(0)\n s_barrier")
    a(f"""
    s_cmp_eq_u32 {sIT}, 1
    s_cbranch_scc0 L_h0
    """)
    LW = OPT.get("lw", 1)
    if LW: l2_warm(a, ([(1, 0, 128)] if LW == 2 else []) + [(1, 128, 128), (2, 256, 192)])
    a("s_branch L_fin\n L_h0:")
    helper_work(a)
    a("s_branch L_next")
    a("L_fin:")
    a.stamp_dump()
    if "echo" in OPT:
        a("""
        s_memrealtime s[84:85]
        s_sub_u32 s82, s82, s80
        s_waitcnt lgkmcnt(0)
        s_mov_b32 s83, s84
        L_echo:
        s_memrealtime s[84:85]
        s_waitcnt lgkmcnt(0)
        s_sub_u32 s86, s84, s83
        s_cmp_lt_u32 s86, s82
        s_cbranch_scc1 L_echo
        """)
    a("L_end:\n s_endpgm")
    a.lines += a.stubs
    a.lines.append('L_codeend:')
    if STAMPS: open("stamps.txt", "w").write("\n".join(a.names))
    for i in range(len(a.lines) - 1):
        if a.lines[i].strip().startswith(f"s_add_u32 {sT[2]},") and a.lines[i+1].strip().startswith("s_add_u32 m0,"):
            a.lines[i], a.lines[i+1] = a.lines[i+1], a.lines[i]
    lines, n = haz.fix(a.lines)
    if OPT.get('align', 1):
        lines, st_ = align.align(lines, OPT.get('minrun', 5)); print('align', st_)
    hdr = f"; @launch grid=(256,1,1) block=(256,1,1) lds=163840\n"
    return hdr + '.amdgcn_target "amdgcn-amd-amdhsa--gfx950"\n.text\n' + "\n".join(lines) + "\n" + '.section .rodata,"a"\n' + descriptor(KNAME, 512, accum=256)

if __name__ == "__main__":
    out = sys.argv[1]
    for o in sys.argv[2:]:
        if o == "stamps": STAMPS = True
        else:
            k_, v_ = o.split("="); OPT[k_] = int(v_)
    open(out, "w").write(build())
```

```python
import sys, struct
sys.path.insert(0, "work")
from gen import *
import haz, align

KNAME = NAME + "_kernel"
S, D, F = 2048, 448, 1792
ITB = 0x4B8000 + 0x188000
PQ, KVP, KVF, ST, HF, UF = 0x0, 0x200000, 0x280000, 0x2C0000, 0x2F8000, 0x4B8000
assert UF + 14 * 112 * 1024 == ITB
XF = 2 * ITB
ST2 = XF + 0x1C0000
FILL_END = ST2 + 0x38000
WQP = 0x1000000
assert FILL_END <= WQP
STAMP_OFF = 0x2000000
WS_SIZE = 0x10000000
LOG2E = 1.4426950408889634
def fbits(x): return "0x%08x" % struct.unpack("<I", struct.pack("<f", x))[0]

SX, SWQKV, SWO, SW1, SW2, SB1, SB2, SOUT, SWS, SDBG = [f"s[{i}:{i+3}]" for i in range(4, 44, 4)]
sW, sRB, sH, sDT, sST, sFT, sACT, sIT, sITO, sBUD = "s3", "s44", "s45", "s46", "s47", "s48", "s49", "s50", "s51", "s52"
sWH, sWL, sLB = "s53", "s54", "s55"
sT = [f"s{i}" for i in range(56, 72)]
sW1B, sW2B = 's72', 's73'
sAT = [f"s{i}" for i in range(88, 96)]
SC = "sc1"
sDT1, sLOC, sXSH = 's99', 's100', 's101'
STAMPS = False
OPT = {}

def vr(b, n=1): return f"v{b}" if n == 1 else f"v[{b}:{b+n-1}]"
def ar(b, n=1): return f"a{b}" if n == 1 else f"a[{b}:{b+n-1}]"
MF = "v_mfma_f32_32x32x16_bf16"

vL16, vL16b, vHH, vL31, vLANE, vL8, vDW1, vDW2, CSK, CSV, vDWO, vMAX, vCNT, vCNA = range(240, 254)
assert CSK % 2 == 0
RES = 224
vKRS = 254
aW1, aW2 = 0, 128

class K(Asm):
    nstamp = 0
    stubs = None
    def stamp(self, name=""):
        if "echo" in OPT:
            if self.nstamp == OPT["echo"] % 32:
                self(f"s_memrealtime s[84:85]\n s_waitcnt lgkmcnt(0)\n s_cmp_eq_u32 {sIT}, {OPT['echo'] // 32}\n s_cselect_b32 s82, s84, s82")
            self.nstamp += 1
            return
        if not STAMPS: return
        if OPT.get("bud"):
            self(f"s_lshl_b32 s98, {sIT}, 5\n s_add_u32 s98, s98, {self.nstamp}\n s_mov_b32 m0, s98\n v_writelane_b32 v255, {sBUD}, m0")
            self.names = getattr(self, "names", []) + [name]; self.nstamp += 1
            return
        self(f"{'s_memtime' if OPT.get('clk') else 's_memrealtime'} s[96:97]\n s_lshl_b32 s98, {sIT}, 5\n s_add_u32 s98, s98, {self.nstamp}\n s_waitcnt lgkmcnt(0)\n s_mov_b32 m0, s98\n v_writelane_b32 v255, s96, m0")
        self.names = getattr(self, "names", []) + [name]
        self.nstamp += 1
        assert self.nstamp <= 32
    def xstamp(self, idx):
        if not STAMPS: return
        self(f"{'s_memtime' if OPT.get('clk') else 's_memrealtime'} s[96:97]\n s_waitcnt lgkmcnt(0)\n v_writelane_b32 v255, s96, {idx}")
    def stamp_dump(self):
        if not STAMPS: return
        self(f"""
        s_lshl_b32 s98, s2, 2
        s_add_u32 s98, s98, {sW}
        s_lshl_b32 s98, s98, 8
        s_add_u32 s98, s98, {STAMP_OFF}
        v_lshlrev_b32 v2, 2, v{vLANE}
        buffer_store_dword v255, v2, {SWS}, s98 offen
        """)
        if "dbg" in OPT:
            sel = {0: list(range(0, 14)), 1: [0, 12, 14, 15, 16, 18, 19, 35, 37, 40, 43, 46, 50, 51]}[OPT["dbg"]]
            L = self.label("DS")
            self(f"s_lshl_b32 s98, s2, 2\n s_add_u32 s98, s98, {sW}\n s_cmp_eq_u32 s98, {OPT.get('dbgw', 1)}\n s_cbranch_scc0 {L}")
            self("v_readlane_b32 s97, v255, 0")
            for i, ln in enumerate(sel):
                self(f"v_readlane_b32 s96, v255, {ln}\n s_sub_u32 s96, s96, s97\n v_writelane_b32 v3, s96, {i}")
            self(f"s_mov_b64 exec, 0x3fff\n buffer_store_dword v3, v2, {SDBG}, 0 offen offset:8\n s_mov_b64 exec, -1\n {L}:")
    def srd(self, dst, ptr, size):
        b = int(dst[2:dst.index(":")])
        self(f"s_mov_b32 s{b}, s{ptr}\n s_mov_b32 s{b+1}, s{ptr+1}\n s_mov_b32 s{b+2}, {size}\n s_mov_b32 s{b+3}, 0x00020000")
    def halfsum(self, v, tmp):
        self(f"v_mov_b32 {tmp}, {v}\n v_permlane32_swap_b32 {v}, {tmp}\n v_add_f32 {v}, {v}, {tmp}")
    def check_ops(self, regs):
        regs = list(regs); ops = []
        if len(regs) == 1:
            return [f"v_cmp_eq_u32 vcc, -1, v{regs[0]}"]
        if len(regs) % 2 == 1:
            ops.append(f"v_max3_u32 v{vMAX}, v{regs[0]}, v{regs[1]}, v{regs[2]}"); rest = regs[3:]
        else:
            ops.append(f"v_max_u32 v{vMAX}, v{regs[0]}, v{regs[1]}"); rest = regs[2:]
        for i in range(0, len(rest), 2):
            ops.append(f"v_max3_u32 v{vMAX}, v{vMAX}, v{rest[i]}, v{rest[i+1]}")
        ops.append(f"v_cmp_eq_u32 vcc, -1, v{vMAX}")
        return ops
    def check_branch(self, regs, reissue, wait_after):
        L = self.label("CK")
        self(f"s_cbranch_vccnz {L}_r\n {L}_k:")
        main = self.lines
        self.lines = self.stubs
        self(f"{L}_r:\n s_cmp_le_i32 {sBUD}, 0\n s_cbranch_scc1 {L}_k\n s_sub_u32 {sBUD}, {sBUD}, 1")
        reissue()
        self(f"s_waitcnt vmcnt({wait_after})")
        for o in self.check_ops(regs): self(o)
        self(f"s_cbranch_vccnz {L}_r\n s_branch {L}_k")
        self.lines = main
    def check(self, regs, reissue, wait_after, gran=4):
        if OPT.get("c1", 1): regs = list(regs)[gran-1::gran]
        for o in self.check_ops(regs): self(o)
        self.check_branch(regs, reissue, wait_after)
    def probe_issue(self, voff, soff, vt, nreg=1):
        ld = {1: "buffer_load_dword", 4: "buffer_load_dwordx4"}[nreg]
        self(f"{ld} {vr(vt,nreg)}, v{voff}, {SWS}, {soff} offen {SC}")
    def probe(self, voff, soff, vt, nreg=1, issued=False, sleep=0, extra=None, nextra=0):
        L = self.label("PB")
        if issued: self(f"s_branch {L}_c")
        if sleep: self(f"s_branch {L}_q")
        self(f"{L}_p:")
        if sleep: self(f"s_sleep {sleep}\n {L}_q:")
        self.probe_issue(voff, soff, vt, nreg)
        if extra: extra()
        self(f"s_sub_u32 {sBUD}, {sBUD}, 1\n {L}_c:\n s_waitcnt vmcnt({nextra})")
        if nreg == 1: self(f"v_cmp_eq_u32 vcc, -1, v{vt}")
        else:
            for o in self.check_ops(range(vt, vt + nreg)): self(o)
        self(f"""
        s_cmp_gt_i32 {sBUD}, 0
        s_cselect_b64 vcc, vcc, 0
        s_cbranch_vccnz {L}_p
        """)
    def loc_issue(self, vd):
        self(f"""
        v_and_b32 v{vd+2}, 3, v{vLANE}
        v_lshlrev_b32 v{vd+2}, 6, v{vd+2}
        v_bfe_u32 v{vd+3}, v{vLANE}, 2, 1
        v_lshl_add_u32 v{vd+2}, v{vd+3}, 3, v{vd+2}
        buffer_load_dwordx2 {vr(vd,2)}, v{vd+2}, {SDBG}, 0 offen offset:16 sc1
        """)
    def loc_eval(self, vd):
        L = self.label("LE")
        self(f"v_cmp_gt_u32 vcc, 0x200000, v{vd+1}\n s_cbranch_vccnz {L}_r\n {L}_k:")
        main = self.lines; self.lines = self.stubs
        self(f"""
        {L}_r:
        s_cmp_le_i32 {sBUD}, 0
        s_cbranch_scc1 {L}_k
        s_sub_u32 {sBUD}, {sBUD}, 1
        s_sleep 8
        buffer_load_dwordx2 {vr(vd,2)}, v{vd+2}, {SDBG}, 0 offen offset:16 sc1
        s_waitcnt vmcnt(0)
        v_cmp_gt_u32 vcc, 0x200000, v{vd+1}
        s_cbranch_vccnz {L}_r
        s_branch {L}_k
        """)
        self.lines = main
        self(f"""
        s_and_b32 {sT[0]}, s2, 7
        v_readlane_b32 s76, v{vd}, {sT[0]}
        v_readlane_b32 s77, v{vd+1}, {sT[0]}
        s_and_b32 s77, s77, 0xffff
        s_lshr_b64 s[76:77], s[76:77], {sXSH}
        s_and_b32 s76, s76, 63
        s_cmp_eq_u32 s76, 32
        s_cselect_b32 {sLOC}, {1 if OPT.get("loc", 1) else 0}, 0
        """)
    def lstore(self, ops):
        L = self.label("LS")
        self(f"s_cmp_eq_u32 {sLOC}, 0\n s_cbranch_scc1 {L}_g")
        for o in ops: self(o)
        self(f"{L}_r:")
        main = self.lines; self.lines = self.stubs
        self(f"{L}_g:")
        for o in ops: self(o + " " + SC)
        self(f"s_branch {L}_r")
        self.lines = main
    def counter_issue(self, off, nsh):
        self(f"v_min_u32 v{vCNA}, {nsh-1}, v{vLANE}\n v_lshlrev_b32 v{vCNA}, 6, v{vCNA}")
        self(f"buffer_load_dword v{vCNT}, v{vCNA}, {SDBG}, 0 offen offset:{off} sc1")
    def counter_check(self, off, target):
        L = self.label("CC")
        self(f"v_cmp_gt_u32 vcc, {target}, v{vCNT}\n s_cbranch_vccnz {L}_r\n {L}_k:")
        main = self.lines
        self.lines = self.stubs
        self(f"""
        {L}_r:
        s_cmp_le_i32 {sBUD}, 0
        s_cbranch_scc1 {L}_k
        s_sub_u32 {sBUD}, {sBUD}, 1
        s_sleep 8
        buffer_load_dword v{vCNT}, v{vCNA}, {SDBG}, 0 offen offset:{off} sc1
        s_waitcnt vmcnt(0)
        v_cmp_gt_u32 vcc, {target}, v{vCNT}
        s_cbranch_vccnz {L}_r
        s_branch {L}_k
        """)
        self.lines = main
    def counter_wait(self, off, nsh, target, vt):
        L = self.label("CW")
        self(f"""
        v_lshlrev_b32 v{vt+1}, 6, v{vLANE}
        s_mov_b64 exec, {(1<<nsh)-1}
        {L}_p:
        buffer_load_dword v{vt}, v{vt+1}, {SDBG}, 0 offen offset:{off} sc1
        s_waitcnt vmcnt(0)
        v_cmp_gt_u32 vcc, {target}, v{vt}
        s_cbranch_vccz {L}_o
        s_cmp_le_i32 {sBUD}, 0
        s_cbranch_scc1 {L}_o
        s_sub_u32 {sBUD}, {sBUD}, 1
        s_sleep 2
        s_branch {L}_p
        {L}_o:
        s_mov_b64 exec, -1
        """)

def wtile_dma_voff(a, vdst, rowstride):
    a(f"""
    v_lshrrev_b32 v2, 3, v{vLANE}
    v_mul_u32_u24 v{vdst}, {rowstride}, v2
    v_lshrrev_b32 v2, 4, v{vLANE}
    v_and_b32 v2, 1, v2
    v_lshlrev_b32 v2, 2, v2
    v_and_b32 v3, 7, v{vLANE}
    v_xor_b32 v2, v2, v3
    v_lshl_add_u32 v{vdst}, v2, 4, v{vdst}
    """)

def wtile_tr_addr(a, vdst, hhrows, s_keep, s_base):
    a(f"""
    v_lshrrev_b32 v2, 2, v{vLANE}
    v_and_b32 v2, 3, v2
    v_mul_u32_u24 v3, {hhrows}, v{vHH}
    v_add_u32 v2, v2, v3
    v_bfe_u32 v3, v2, 1, 1
    v_xor_b32 v3, {s_keep}, v3
    v_lshlrev_b32 v2, 7, v2
    v_lshl_add_u32 v2, v3, 6, v2
    v_lshrrev_b32 v3, 4, v{vLANE}
    v_and_b32 v3, 1, v3
    v_lshl_add_u32 v2, v3, 5, v2
    v_and_b32 v3, 3, v{vLANE}
    v_lshl_add_u32 v{vdst}, v3, 3, v2
    v_add_u32 v{vdst}, {s_base}, v{vdst}
    v_xor_b32 v{vdst+1}, 64, v{vdst}
    """)

def prologue(a):
    a(f"""
    s_cmp_ge_u32 s2, 256
    s_cbranch_scc1 L_end
    {"s_lshr_b32 s3, s2, 5" if OPT.get("bad") else ""}
    {"s_and_b32 s2, s2, 31" if OPT.get("bad") else ""}
    {"s_lshl_b32 s2, s2, 3" if OPT.get("bad") else ""}
    {"s_or_b32 s2, s2, s3" if OPT.get("bad") else ""}
    s_load_dwordx16 s[72:87], s[0:1], 0
    s_load_dwordx4 s[88:91], s[0:1], 64
    s_load_dwordx2 s[92:93], s[0:1], 80
    v_lshrrev_b32 v2, 6, v0
    v_and_b32 v{vLANE}, 63, v0
    v_readfirstlane_b32 {sW}, v2
    v_lshrrev_b32 v{vHH}, 5, v{vLANE}
    v_and_b32 v{vL31}, 31, v{vLANE}
    v_lshlrev_b32 v{vL16}, 4, v{vLANE}
    v_lshlrev_b32 v{vL8}, 3, v{vLANE}
    v_add_u32 v{vL16b}, 0x1000, v{vL16}
    s_and_b32 {sT[0]}, s2, 7
    s_lshr_b32 {sT[1]}, s2, 3
    s_lshr_b32 {sT[2]}, {sT[0]}, 1
    s_and_b32 {sT[3]}, {sT[0]}, 1
    s_lshl_b32 {sRB}, {sT[0]}, 1
    s_lshr_b32 {sT[4]}, {sT[1]}, 4
    s_add_u32 {sRB}, {sRB}, {sT[4]}
    s_and_b32 {sH}, {sT[1]}, 15
    s_mul_i32 {sT[4]}, {sT[1]}, 43
    s_lshr_b32 {sT[4]}, {sT[4]}, 7          ; j/3
    s_mul_i32 {sT[7]}, {sT[4]}, 3
    s_sub_u32 {sT[7]}, {sT[1]}, {sT[7]}     ; j%3
    s_lshl_b32 {sT[5]}, {sT[3]}, 2          ; 4p
    s_add_u32 {sDT1}, {sT[7]}, {sT[5]}
    s_add_u32 {sT[6]}, {sT[5]}, {sT[1]}
    s_sub_u32 {sT[6]}, {sT[6]}, 24
    s_cmp_ge_u32 {sT[1]}, 24
    s_cselect_b32 {sT[4]}, {sT[6]}, {sT[4]}
    s_cselect_b32 {sDT1}, 3, {sDT1}
    s_cmp_ge_u32 {sT[1]}, 28
    s_cselect_b32 {sT[4]}, 8, {sT[4]}
    s_mul_i32 {sT[5]}, {sT[1]}, 37
    s_lshr_b32 {sT[5]}, {sT[5]}, 8
    s_mul_i32 {sT[6]}, {sT[5]}, 7
    s_sub_u32 {sDT}, {sT[1]}, {sT[6]}
    s_lshl_b32 {sST}, {sT[0]}, 2
    s_add_u32 {sST}, {sST}, {sT[5]}
    s_getreg_b32 {sXSH}, hwreg(HW_REG_XCC_ID)
    s_and_b32 {sXSH}, {sXSH}, 15
    s_min_u32 {sXSH}, {sXSH}, 9
    s_mul_i32 {sXSH}, {sXSH}, 6
    s_mov_b32 {sLOC}, 0
    s_mul_i32 {sFT}, {sT[2]}, 7
    s_add_u32 {sFT}, {sFT}, {sT[4]}
    s_mov_b32 {sACT}, {sT[4]}
    s_mov_b32 {sIT}, 0
    s_mov_b32 {sITO}, 0
    s_mov_b32 {sBUD}, 1500000
    s_lshr_b32 {sWH}, {sW}, 1
    s_and_b32 {sWL}, {sW}, 1
    s_waitcnt lgkmcnt(0)
    """)
    a.srd(SX, 72, S * D * 2)
    a.srd(SWQKV, 74, D * 3 * D * 2)
    a.srd(SWS, 92, WS_SIZE)
    a.srd(SWO, 76, D * D * 2)
    a.srd(SW1, 80, S * F * 2)
    a.srd(SB1, 82, F * 2)
    a.srd(SW2, 84, F * S * 2)
    a.srd(SB2, 86, S * 2)
    a.srd(SOUT, 88, S * D * 2)
    a.srd(SDBG, 90, 256)

def late_setup(a):
    wtile_dma_voff(a, vDW1, 3584)
    wtile_dma_voff(a, vDW2, 4096)
    wtile_dma_voff(a, vDWO, 896)
    a(f"""
    s_mul_i32 {sW1B}, {sW}, {512*3584}
    s_min_u32 {sT[2]}, {sFT}, 27
    s_lshl_b32 {sT[2]}, {sT[2]}, 7
    s_add_u32 {sW1B}, {sW1B}, {sT[2]}
    s_mul_i32 {sW2B}, {sW}, {448*4096}
    s_min_u32 {sT[2]}, {sST}, 31
    s_lshl_b32 {sT[2]}, {sT[2]}, 7
    s_add_u32 {sW2B}, {sW2B}, {sT[2]}
    """)

XREG = 64
ACQ, ACK, ACV = 16, 32, 48
WFR = 176
TRA = 4
vM, vR, vC, vRS = 12, 13, 14, 15
XBASE = [0x8000, 0x18000, 0x20000, 0x10000]
def a1_lds(f):
    if f < 32: return 1024 * f
    if f < 64: return 0x10000 + 1024 * (f - 32)
    return 0x20000 + 1024 * (f - 64)
def a1_src(f):
    if f < 56: t, seg = f >> 1, 1 + (f & 1)
    else: t, seg = f - 56, 0
    return t * 16 * 2688 + seg * 896
CSL, RSL, KVL = 0x27000, 0x27400, 0x0


def a1_wraw_ops(f0, f1, vo, s_kv, s_q, s_w10):
    o = []
    for f in range(f0, f1, 4):
        sb = s_kv if f < 56 else s_q
        o.append(f"s_add_u32 {sT[2]}, {sb}, {a1_src(f)}\n s_add_u32 m0, {s_w10}, {a1_lds(f)}\n buffer_load_dwordx4 v{vo}, {SWQKV}, {sT[2]} offen lds")
    return o

def a1_wpk_setup(a):
    a(f"""
    s_mul_i32 {sT[13]}, {sH}, {84*1024}
    s_add_u32 {sT[13]}, {sT[13]}, {WQP}
    s_lshl_b32 {sT[15]}, {sW}, 10
    s_lshl_b32 {sT[14]}, {sW}, 14
    s_add_u32 {sT[14]}, {sT[14]}, {sT[13]}
    s_add_u32 {sT[13]}, {sT[13]}, {sT[15]}
    """)
def a1_wpk_hi_ops():
    return [f"s_add_u32 {sT[2]}, {sT[13]}, {f*1024}\n s_add_u32 m0, {sT[15]}, {a1_lds(f)}\n buffer_load_dwordx4 v{vL16}, {SWS}, {sT[2]} offen {SC} lds" for f in range(64, 84, 4)]
def a1_wpk_own_ops():
    return [f"s_add_u32 {sT[2]}, {sT[14]}, {i*1024}\n s_add_u32 m0, {sLB}, {i*1024}\n buffer_load_dwordx4 v{vL16}, {SWS}, {sT[2]} offen {SC} lds" for i in range(16)]

sWOG, sWOL = "s74", "s75"
def wo_setup(a):
    a(f"""
    s_mul_i32 {sWOG}, {sWH}, {224*896}
    s_mul_i32 {sT[2]}, {sWL}, {8*896}
    s_add_u32 {sWOG}, {sWOG}, {sT[2]}
    s_lshl_b32 {sT[2]}, {sDT}, 7
    s_add_u32 {sWOG}, {sWOG}, {sT[2]}
    s_lshl_b32 {sWOL}, {sWH}, 16
    s_lshl_b32 {sT[2]}, {sWL}, 10
    s_add_u32 {sWOL}, {sWOL}, {sT[2]}
    """)
def wo_ops():
    return [f"s_add_u32 {sT[2]}, {sWOG}, {j*16*896}\n s_add_u32 m0, {sWOL}, {0x8000 + j*2048}\n buffer_load_dwordx4 v{vDWO}, {SWO}, {sT[2]} offen lds" for j in range(15)]

def big_dma_ops(which, ks0, nks, ldsoff, sl=None):
    stride, srd, vo, sb = (3584, SW1, vDW1, sW1B) if which == 1 else (4096, SW2, vDW2, sW2B)
    return [f"s_add_u32 {sT[2]}, {sb}, {(ks0*16 + i*8)*stride}\n s_add_u32 m0, {sl or sLB}, {ldsoff + i*1024}\n buffer_load_dwordx4 v{vo}, {srd}, {sT[2]} offen lds" for i in range(2 * nks)]

def stats_loads(a, soff, T):
    for i in range(7):
        a(f"buffer_load_dwordx2 {vr(T+2*i,2)}, v{vL8}, {SWS}, {soff} offen offset:{i*512} {SC}")

def stats_math_ops(T, vm, vvar, U, pk=True):
    o = []
    if pk:
        for i in range(3): o.append(f"v_pk_add_f32 {vr(U+2*i,2)}, {vr(T+4*i,2)}, {vr(T+4*i+2,2)}")
        o.append(f"v_pk_add_f32 {vr(U,2)}, {vr(U,2)}, {vr(U+2,2)}")
        o.append(f"v_pk_add_f32 {vr(U+4,2)}, {vr(U+4,2)}, {vr(T+12,2)}")
        o.append(f"v_pk_add_f32 {vr(U,2)}, {vr(U,2)}, {vr(U+4,2)}")
    else:
        o.append(f"v_add_f32 v{U}, v{T}, v{T+2}"); o.append(f"v_add_f32 v{U+1}, v{T+1}, v{T+3}")
        for i in range(2, 7):
            o.append(f"v_add_f32 v{U}, v{U}, v{T+2*i}"); o.append(f"v_add_f32 v{U+1}, v{U+1}, v{T+2*i+1}")
    o += [f"v_mov_b32 v{vm}, v{U}", f"v_permlane32_swap_b32 v{vm}, v{U}", f"v_add_f32 v{vm}, v{vm}, v{U}"]
    o.append(f"v_mul_f32 v{U+2}, {fbits(1/14)}, v{vm}")
    o.append(f"v_mul_f32 v{vm}, {fbits(1/448)}, v{vm}")
    for i in range(7): o.append(f"v_sub_f32 v{T+2*i}, v{T+2*i}, v{U+2}")
    o += [f"v_mul_f32 v{U+3}, v{T}, v{T}", f"v_mul_f32 v{U+4}, v{T+2}, v{T+2}"]
    for i in range(2, 7): o.append(f"v_fmac_f32 v{U+3+(i&1)}, v{T+2*i}, v{T+2*i}")
    o.append(f"v_add_f32 v{U+3}, v{U+3}, v{U+4}")
    o.append(f"v_fmac_f32 v{U+1}, {fbits(1/32)}, v{U+3}")
    o += [f"v_mov_b32 v{vvar}, v{U+1}", f"v_permlane32_swap_b32 v{vvar}, v{U+1}", f"v_add_f32 v{vvar}, v{vvar}, v{U+1}"]
    o.append(f"v_mul_f32 v{vvar}, {fbits(1/448)}, v{vvar}")
    return o

def stats_publish(a, X, T, soff):
    for i in range(4): a(f"v_pk_add_f32 {vr(T+2*i,2)}, {vr(X+4*i,2)}, {vr(X+4*i+2,2)}")
    a(f"v_pk_add_f32 {vr(T,2)}, {vr(T,2)}, {vr(T+2,2)}")
    a(f"v_pk_add_f32 {vr(T+4,2)}, {vr(T+4,2)}, {vr(T+6,2)}")
    a(f"v_pk_add_f32 {vr(T,2)}, {vr(T,2)}, {vr(T+4,2)}")
    a(f"v_add_f32 v{T+16}, v{T}, v{T+1}")
    a.halfsum(f"v{T+16}", f"v{T+17}")
    a(f"v_mul_f32 v{T+18}, {fbits(-1/32)}, v{T+16}")
    for i in range(8): a(f"v_pk_add_f32 {vr(T+2*i,2)}, {vr(X+2*i,2)}, {vr(T+18,2)} op_sel_hi:[1,0]")
    a(f"v_pk_mul_f32 {vr(T+18,2)}, {vr(T,2)}, {vr(T,2)}")
    a(f"v_pk_mul_f32 {vr(T+20,2)}, {vr(T+2,2)}, {vr(T+2,2)}")
    for i in range(2, 8):
        d = T + 18 + 2 * (i & 1)
        a(f"v_pk_fma_f32 {vr(d,2)}, {vr(T+2*i,2)}, {vr(T+2*i,2)}, {vr(d,2)}")
    a(f"v_pk_add_f32 {vr(T+18,2)}, {vr(T+18,2)}, {vr(T+20,2)}")
    a(f"v_add_f32 v{T+17}, v{T+18}, v{T+19}")
    a.halfsum(f"v{T+17}", f"v{T+18}")
    a("s_mov_b32 exec_hi, 0")
    a.lstore([f"buffer_store_dwordx2 {vr(T+16,2)}, v{vL8}, {SWS}, {soff} offen"])
    a("s_mov_b64 exec, -1")

def a1_tr_setup(a, it):
    sh, delta = (9, 256) if it == 0 else (8, 512)
    a(f"""
    v_lshrrev_b32 v2, 2, v{vLANE}
    v_and_b32 v2, 3, v2
    v_lshrrev_b32 v3, 4, v{vLANE}
    v_and_b32 v3, 1, v3
    v_lshlrev_b32 v3, 2, v3
    v_and_b32 v10, 3, v{vLANE}
    v_add_u32 v3, v3, v10
    s_and_b32 {sT[0]}, {sH}, 1
    v_add_u32 v3, {sT[0]}, v3
    v_and_b32 v3, 7, v3
    v_lshlrev_b32 v3, 3, v3
    v_lshl_add_u32 v{TRA}, v2, 6, v3
    v_lshl_add_u32 v{TRA}, v{vHH}, {sh}, v{TRA}
    v_add_u32 v{TRA+1}, 0x10000, v{TRA}
    v_add_u32 v{TRA+2}, 0x20000, v{TRA}
    v_add_u32 v{TRA+3}, {delta}, v{TRA}
    v_add_u32 v{TRA+4}, {delta}, v{TRA+1}
    v_add_u32 v{TRA+5}, {delta}, v{TRA+2}
    s_lshl_b32 {sT[0]}, {sW}, 8
    s_add_u32 {sT[0]}, {sT[0]}, {RSL}
    v_lshlrev_b32 v11, 2, v{vLANE}
    v_add_u32 v11, {sT[0]}, v11
    v_lshlrev_b32 v{vRS}, 4, v{vHH}
    v_add_u32 v{vRS}, {sT[0]}, v{vRS}
    """)

def rowstats_ops():
    return [f"v_add_f32 v{vR}, {fbits(1e-5)}, v{vR}", f"v_rsq_f32 v{vR}, v{vR}", f"v_cmp_eq_u32 vcc, 0, v{vHH}",
            f"v_cndmask_b32 v3, v{vM}, v{vR}, vcc", f"ds_write_b32 v11, v3"]

def a1_rd(a, f, dst):
    ad = a1_lds(f); win, off = ad >> 16, ad & 0xffff
    a(f"ds_read_b64_tr_b16 {dst(0)}, v{TRA+win} offset:{off}")
    a(f"ds_read_b64_tr_b16 {dst(2)}, v{TRA+3+win} offset:{off}")

def w1_touch(r):
    return f"""s_lshl_b32 {sT[0]}, s2, 2
    s_add_u32 {sT[0]}, {sT[0]}, {sW}
    s_add_u32 {sT[0]}, {sT[0]}, {r*1024}
    s_mul_i32 {sT[1]}, {sT[0]}, 9363
    s_lshr_b32 {sT[1]}, {sT[1]}, 22
    s_mul_i32 {sT[2]}, {sT[1]}, 448
    s_sub_u32 {sT[0]}, {sT[0]}, {sT[2]}
    s_lshl_b32 {sT[0]}, {sT[0]}, 11
    s_lshl_b32 {sT[2]}, {sT[1]}, 1
    s_add_u32 {sT[15]}, {sT[2]}, 1
    s_sub_u32 {sT[2]}, {sT[2]}, 8
    s_cmp_lt_u32 {sT[1]}, 4
    s_cselect_b32 {sT[1]}, {sT[15]}, {sT[2]}
    s_mul_i32 {sT[1]}, {sT[1]}, {256*3584}
    s_add_u32 {sT[0]}, {sT[0]}, {sT[1]}
    buffer_load_dword v234, v{vKRS}, {SW1}, {sT[0]} offen"""

def code_warm(a, tag):
    L = a.label("CWM")
    a(f"""
    s_getpc_b64 s[76:77]
    {L}:
    s_sub_u32 s76, s76, {L}-{KNAME}
    s_subb_u32 s77, s77, 0
    s_lshr_b32 {sT[2]}, s2, 3
    s_lshl_b32 {sT[2]}, {sT[2]}, 2
    s_add_u32 {sT[2]}, {sT[2]}, {sW}
    s_mul_i32 {sT[2]}, {sT[2]}, 640
    v_min_u32 v2, 4, v{vLANE}
    v_lshlrev_b32 v2, 7, v2
    v_add_u32 v2, {sT[2]}, v2
    s_mov_b32 {sT[2]}, L_codeend-{KNAME}-4
    v_min_u32 v2, {sT[2]}, v2
    v_mov_b32 v3, s77
    v_add_co_u32 v2, vcc, s76, v2
    v_addc_co_u32 v3, vcc, 0, v3, vcc
    global_load_dword v{vMAX}, v[2:3], off
    """)

def a1_it0(a):
    L = a.label("A1f")
    XA, XV, DA = 224, 228, 230
    a(f"""
    v_lshrrev_b32 v2, 3, v{vLANE}
    v_mul_u32_u24 v2, 896, v2
    v_and_b32 v3, 7, v{vLANE}
    v_lshrrev_b32 v5, 4, v{vLANE}
    v_xor_b32 v3, v3, v5
    v_lshl_add_u32 v{XV}, v3, 4, v2
    v_xor_b32 v{XV+1}, 64, v{XV}
    s_lshl_b32 {sT[10]}, {sRB}, 2
    s_add_u32 {sT[10]}, {sT[10]}, {sW}
    s_mul_i32 {sT[10]}, {sT[10]}, {32*896}
    s_lshl_b32 {sLB}, {sWH}, 16
    s_lshl_b32 {sT[2]}, {sWL}, 14
    s_add_u32 {sLB}, {sLB}, {sT[2]}
    """)
    def xdma(j0, j1):
        return [f"s_add_u32 {sT[2]}, {sT[10]}, {aa*8*896 + j*128}\n s_add_u32 m0, {sLB}, {0x8000 + aa*4096 + (j-j0)*1024}\n buffer_load_dwordx4 v{XV + (aa&1)}, {SX}, {sT[2]} offen lds"
                for aa in range(4) for j in range(j0, j1)]
    for o in xdma(0, 4): a(o)
    a(f"""
    v_lshrrev_b32 v1, 2, v{vLANE}
    v_mul_u32_u24 v1, 2688, v1
    v_and_b32 v5, 3, v{vLANE}
    v_lshl_add_u32 v1, v5, 4, v1
    s_mul_i32 {sT[8]}, {sH}, 56
    s_and_b32 {sT[8]}, {sT[8]}, 0xfff0
    s_mul_i32 {sT[9]}, {sW}, {16*2688}
    s_add_u32 {sT[9]}, {sT[9]}, {sT[8]}
    s_mul_i32 {sT[2]}, {sWH}, {16*2688}
    s_add_u32 {sT[8]}, {sT[8]}, {sT[2]}
    s_mul_i32 {sT[2]}, {sWL}, 896
    s_add_u32 {sT[8]}, {sT[8]}, {sT[2]}
    s_lshl_b32 {sT[11]}, {sW}, 10
    """)
    a.xstamp(22)
    ncw = 0
    if OPT.get("cw", 1):
        code_warm(a, 0); ncw = 1
    for o in a1_wraw_ops(0, 32, 1, sT[8], sT[9], sT[11]): a(o)
    a.xstamp(23)
    a(f"""
    s_lshr_b32 {sT[12]}, 0xc1a3, {sH}
    s_and_b32 {sT[12]}, {sT[12]}, 1
    s_lshl_b32 {sT[0]}, 1, {sH}
    s_sub_u32 {sT[0]}, {sT[0]}, 1
    s_and_b32 {sT[0]}, {sT[0]}, 0xc1a3
    s_bcnt1_i32_b32 {sT[0]}, {sT[0]}
    s_lshl_b32 {sT[0]}, {sT[0]}, 4
    s_add_u32 {sT[0]}, {sT[0]}, {sRB}
    s_lshl_b32 {sT[0]}, {sT[0]}, 2
    s_add_u32 {sT[0]}, {sT[0]}, {sW}
    s_lshl_b32 {sT[14]}, {sT[0]}, 13
    s_cmp_ge_u32 {sT[14]}, {ST}
    s_cselect_b32 {sT[12]}, 0, {sT[12]}
    s_cmp_eq_u32 {sT[12]}, 0
    s_cselect_b32 {sT[14]}, 0x20000000, {sT[14]}
    v_mov_b32 v236, -1
    v_mov_b32 v237, -1
    v_mov_b32 v238, -1
    v_mov_b32 v239, -1
    """)
    fills = [f"buffer_store_dwordx4 v[236:239], v{vL16b if i&4 else vL16}, {SWS}, {sT[14]} offen offset:{(i&3)*1024} {SC}" for i in range(8)]
    late_setup(a)
    wo_setup(a)
    a1_tr_setup(a, 0)
    a(f"""
    v_lshrrev_b32 v2, 3, v{vL31}
    v_lshlrev_b32 v2, 12, v2
    v_and_b32 v3, 7, v{vL31}
    v_lshl_add_u32 v2, v3, 7, v2
    v_add_u32 v2, {sLB}, v2
    v_lshrrev_b32 v3, 1, v{vL31}
    v_and_b32 v3, 7, v3
    v_xor_b32 v3, v3, v{vHH}
    """)
    for q in range(4): a(f"v_xor_b32 v10, {2*q}, v3\n v_lshl_add_u32 v{XA+q}, v10, 4, v2")
    a(f"""
    v_mov_b32 v{DA}, 0
    v_mov_b32 v{DA+1}, 0
    v_mov_b32 v{DA+2}, 0
    v_mov_b32 v{DA+3}, 0
    v_mov_b32 v{CSK}, 0
    v_mov_b32 v{CSV}, 0
    v_mov_b32 v{vC}, 0x3f803f80
    v_lshlrev_b32 v235, 7, v{vLANE}
    v_min_u32 v{vKRS}, 0x780, v235
    s_lshr_b32 {sT[13]}, s2, 2
    s_lshl_b32 {sT[13]}, {sT[13]}, 13
    s_cmp_eq_u32 {sW}, 3
    s_cselect_b32 {sT[13]}, {sT[13]}, 0x1000000
    s_waitcnt vmcnt({8+ncw}) lgkmcnt(0)
    """)
    a.stamp("a1_xland")
    def xrd(t0, t1):
        for t in range(t0, t1):
            a(f"ds_read_b128 {vr(XREG+4*t,4)}, v{XA+(t&3)} offset:{0x8000 + ((t-t0)>>2)*1024}")
            if t - t0 == 11: a("s_waitcnt lgkmcnt(4)")
        a("s_waitcnt lgkmcnt(0)")
    def dots(i0, i1, vm, every):
        for i in range(i0, i1):
            if vm and (i - i0) % every == 0: a(vm.pop(0))
            a(f"v_dot2c_f32_bf16 v{DA+(i&1)}, v{XREG+i}, v{vC}")
            a(f"v_dot2c_f32_bf16 v{DA+2+(i&1)}, v{XREG+i}, v{XREG+i}")
        assert not vm
    xrd(0, 16)
    vm = fills + xdma(4, 7)
    TP = OPT.get("tp", 1)
    tch = [w1_touch(0), w1_touch(1)]
    wl = (tch if TP == 0 else []) + a1_wraw_ops(32, 84, 1, sT[8], sT[9], sT[11]) + [f"buffer_load_dword v234, v235, {SWO}, {sT[13]} offen"] + (tch if TP == 1 else [])
    nwl = len(wl)
    a.xstamp(24)
    dots(0, 64, vm, 3)
    a.xstamp(25)
    a(f"""
    s_waitcnt vmcnt(12)
    s_barrier
    s_cmp_eq_u32 {sW}, 0
    s_cbranch_scc1 {L}_sg
    {L}_sgr:
    """)
    a.stubs += [l for l in f"""{L}_sg:
    s_lshl_b64 s[76:77], 1, {sXSH}
    s_and_b32 s77, s77, 0xffff
    s_or_b32 s77, s77, 0x10000
    s_and_b32 {sT[0]}, s2, 3
    s_lshl_b32 {sT[0]}, {sT[0]}, 6
    s_bfe_u32 {sT[1]}, s2, 0x10002
    s_lshl_b32 {sT[1]}, {sT[1]}, 3
    s_add_u32 {sT[0]}, {sT[0]}, {sT[1]}
    v_mov_b32 v2, s76
    v_mov_b32 v3, s77
    s_mov_b64 exec, 1
    buffer_atomic_add_x2 v[2:3], off, {SDBG}, {sT[0]} offset:16 sc1
    s_mov_b64 exec, -1
    s_branch {L}_sgr""".split("\n")]
    a.stamp("a1_main")
    LA = 3
    def rd(t):
        for s_ in range(2):
            b = WFR + 8 * (t & 3) + 4 * s_
            a1_rd(a, 2 * t + s_, lambda o, b=b: vr(b + o, 2))
    def cs(win, n):
        a(f"s_lshl_b32 {sT[0]}, {sW}, 11\n v_add_u32 v2, {sT[0]}, v{TRA+win}\n v_add_u32 v3, {sT[0]}, v{TRA+3+win}")
        regs = [16, 24, 208, 216]
        for i in range(n):
            for s_ in range(2):
                a(f"ds_read_b64_tr_b16 {vr(regs[i]+4*s_,2)}, v2 offset:{8192*i+1024*s_}")
                a(f"ds_read_b64_tr_b16 {vr(regs[i]+4*s_+2,2)}, v3 offset:{8192*i+1024*s_}")
        a("s_waitcnt lgkmcnt(0)")
        for i in range(n):
            for k in range(4):
                a(f"v_dot2c_f32_bf16 v{CSK}, v{regs[i]+k}, v{vC}")
                a(f"v_dot2c_f32_bf16 v{CSV}, v{regs[i]+4+k}, v{vC}")
    def loop(t0, t1):
        for t in range(t0, t0 + LA): rd(t)
        for t in range(t0, t1):
            if t + LA < t1: rd(t + LA)
            a(f"s_waitcnt lgkmcnt({4*min(LA, t1-1-t)})")
            w = WFR + 8 * (t & 3)
            x = vr(XREG + 4 * t, 4)
            c = lambda base: (vr(base, 16) if t else "0")
            a(f"{MF} {vr(ACK,16)}, {x}, {vr(w,4)}, {c(ACK)}")
            a(f"{MF} {vr(ACV,16)}, {x}, {vr(w+4,4)}, {c(ACV)}")
            if wl: a(wl.pop(0))
    loop(0, 16)
    assert not wl
    a.xstamp(26)
    NPT = 0
    if OPT.get("pt", 0):
        sh = OPT.get("pt")
        a(f"v_lshlrev_b32 v236, {sh}, v{vLANE}")
        if sh >= 19: a(f"v_min_u32 v236, 0x1180000, v236")
        for srd in (SB1, SB2, SOUT, SWS, SW2):
            a(f"buffer_load_dword v234, v236, {srd}, 0 offen"); NPT += 1
        nwl += NPT
    cs(0, 4)
    a.xstamp(27)
    a(f"s_waitcnt vmcnt({nwl})")
    a.xstamp(28)
    xrd(16, 28)
    NRA = 4
    ra = big_dma_ops(1, 16, 8, 0x8000)
    dots(64, 112, ra[:NRA], 8)
    a(f"v_add_f32 v{vM}, v{DA}, v{DA+1}\n v_add_f32 v{vR}, v{DA+2}, v{DA+3}")
    a.halfsum(f"v{vM}", f"v{DA}")
    a.halfsum(f"v{vR}", f"v{DA+1}")
    a(f"""
    v_mul_f32 v{vM}, {fbits(1/448)}, v{vM}
    v_mul_f32 v{vR}, {fbits(1/448)}, v{vR}
    v_fma_f32 v{vR}, -v{vM}, v{vM}, v{vR}
    v_max_f32 v{vR}, 0, v{vR}
    """)
    for o in rowstats_ops(): a(o)
    a.xstamp(29)
    a(f"s_waitcnt vmcnt({8+NRA+NPT+(2 if TP == 1 else 0)})\n s_barrier")
    a.xstamp(30)
    cs(1, 3)
    a(f"""
    v_mov_b32 v22, v{CSK}
    v_mov_b32 v23, v{CSV}
    v_permlane32_swap_b32 v{CSK}, v22
    v_permlane32_swap_b32 v{CSV}, v23
    v_add_f32 v22, v{CSK}, v22
    v_add_f32 v23, v{CSV}, v23
    s_lshl_b32 {sT[0]}, {sW}, 2
    v_lshlrev_b32 v10, 4, v{vL31}
    v_add_u32 v10, 0x27800, v10
    v_add_u32 v11, {sT[0]}, v10
    ds_write_b32 v11, v22 offset:512
    ds_write_b32 v11, v23 offset:1024
    s_lshl_b32 {sT[13]}, {sW}, 13
    """)
    a.loc_issue(228)
    a.xstamp(31)
    wl += ra[NRA:NRA + 12]
    a.ra_rest = ra[NRA + 12:]
    loop(16, 28)
    assert not wl
    T23 = OPT.get("t23", 1)
    if T23 == 1:
        a(w1_touch(2)); a(w1_touch(3))
    a.xstamp(21)
    a("s_barrier")
    for k in range(1, 3): a(f"ds_read_b128 {vr(16+4*k,4)}, v10 offset:{512*k}")
    a(f"s_waitcnt vmcnt({14 if T23 == 1 else 12})")
    a.loc_eval(228)
    a(f"""
    s_waitcnt lgkmcnt(0)
    v_add_f32 v20, v20, v21
    v_add_f32 v22, v22, v23
    v_add_f32 v24, v24, v25
    v_add_f32 v26, v26, v27
    v_add_f32 v{CSK}, v20, v22
    v_add_f32 v{CSV}, v24, v26
    """)

def a1_it0_q(a, ret):
    QLA, QB = 4, 32
    def qrd(t): a1_rd(a, 56 + t, lambda o, t=t: vr(QB + 4 * (t & 7) + o, 2))
    a(f"""
    s_lshl_b32 {sT[0]}, {sW}, 10
    v_add_u32 v176, {sT[0]}, v{TRA+1}
    v_add_u32 v177, {sT[0]}, v{TRA+4}
    v_add_u32 v178, {sT[0]}, v{TRA+2}
    v_add_u32 v179, {sT[0]}, v{TRA+5}
    v_mov_b32 v180, 0
    """)
    for i in range(7):
        ad = a1_lds(56 + 4 * i); b = 176 if (ad >> 16) == 1 else 178
        a(f"ds_read_b64_tr_b16 {vr(196+4*i,2)}, v{b} offset:{ad & 0xffff}")
        a(f"ds_read_b64_tr_b16 {vr(196+4*i+2,2)}, v{b+1} offset:{ad & 0xffff}")
    a("s_waitcnt lgkmcnt(0)")
    for t in range(QLA): qrd(t)
    for j in range(28): a(f"v_dot2c_f32_bf16 v180, v{196+j}, v{vC}")
    a(f"""
    v_mov_b32 v181, v180
    v_permlane32_swap_b32 v180, v181
    v_add_f32 v180, v180, v181
    s_waitcnt lgkmcnt(0)
    ds_write_b32 v11, v180
    """)
    assert not a.ra_rest
    w2q = big_dma_ops(1, 24, 4, 0, sT[13])
    b1_tr_addr(a, 182, sLB)
    st = [f"ds_read_b64_tr_b16 {ar(aW1 + 8*t + 4*i + 2*u, 2)}, v{182+i} offset:{0x8000 + t*2048 + 4*u*128}" for t in range(8) for i in range(2) for u in range(2)]
    a("s_waitcnt vmcnt(3)")
    lq = [("q", t) for t in range(QLA) for _ in range(2)]
    for t in range(28):
        if t + QLA < 28:
            qrd(t + QLA); lq += [("q", t + QLA)] * 2
        idx = max(i for i, x in enumerate(lq) if x == ("q", t))
        a(f"s_waitcnt lgkmcnt({min(15, len(lq) - 1 - idx)})")
        a(f"{MF} {vr(ACQ,16)}, {vr(QB+4*(t&7),4)}, {vr(XREG+4*t,4)}, {vr(ACQ,16) if t else '0'}")
        for _ in range(2 if t < 8 or t >= 24 else 1):
            if st:
                a(st.pop(0)); lq.append(("s", 0))
        if t % 3 == 0 and w2q: a(w2q.pop(0))
    assert not w2q and not st
    a("s_waitcnt lgkmcnt(0)")
    a(f"""
    s_barrier
    ds_read_b128 v[176:179], v10
    v_lshlrev_b32 v180, 2, v{vL31}
    v_add_u32 v180, {CSL}, v180
    s_add_u32 s79, {sT[13]}, 0x20000
    s_cmp_eq_u32 {sW}, 3
    s_cselect_b32 s79, 0x16000, s79
    """)
    kvr_loads(a)
    a(f"""
    s_waitcnt lgkmcnt(0)
    v_add_f32 v176, v176, v177
    v_add_f32 v178, v178, v179
    v_add_f32 v176, v176, v178
    ds_write_b32 v180, v176
    s_branch {ret}
    """)

def a1_it1(a):
    LA = 2
    a1_tr_setup(a, 1)
    a(f"""
    s_lshl_b32 {sT[0]}, {sRB}, 2
    s_add_u32 {sT[0]}, {sT[0]}, {sW}
    s_mul_i32 {sAT[0]}, {sT[0]}, {28*1024}
    s_add_u32 {sAT[0]}, {sAT[0]}, {XF}
    s_add_u32 {sAT[1]}, {sAT[0]}, 0x2000
    s_add_u32 {sAT[2]}, {sAT[0]}, 0x4000
    s_add_u32 {sAT[3]}, {sAT[0]}, 0x6000
    s_mul_i32 {sT[8]}, {sT[0]}, 3584
    s_add_u32 {sT[8]}, {sT[8]}, {ST2}
    """)
    a.counter_issue(132, 1)
    def xload(t):
        a(f"buffer_load_dwordx4 {vr(XREG+4*t,4)}, v{vL16b if t&4 else vL16}, {SWS}, {sAT[t>>3]} offen offset:{(t&3)*1024} {SC}")
    def rd(t):
        for s_, f in enumerate((2 * t, 2 * t + 1, 56 + t)):
            b = WFR + 12 * (t % 3) + 4 * s_
            a1_rd(a, f, lambda o, b=b: vr(b + o, 2))
    NX = OPT.get("nx", 16)
    OX = OPT.get("ox", 8)
    def sx():
        stats_loads(a, sT[8], 32)
        for t in range(OX): xload(t)
    sx()
    a(f"s_waitcnt vmcnt({7+OX})\n s_barrier")
    for t in range(LA): rd(t)
    a(f"s_waitcnt vmcnt({OX})")
    a.check(range(32, 46), sx, OX, 2)
    for t in range(OX, NX): xload(t)
    a.nstamp -= 2
    a.stamp()
    for o in stats_math_ops(32, vM, vR, 16) + rowstats_ops(): a(o)
    a.counter_check(132, 32)
    a.stamp()
    if STAMPS: a.names = a.names[:-2]
    a("s_waitcnt lgkmcnt(0)")
    wq = wo_ops(); nd = [0]
    def xchk(t, now):
        hi = min(28, now + NX)
        n = hi - t - 4 + nd[0]
        a(f"s_waitcnt vmcnt({n})")
        a.check(range(XREG + 4 * t, XREG + 4 * t + 16), lambda t=t, hi=hi: [xload(tt) for tt in range(t, hi)], n if nd[0] == 0 else 0)
    xchk(0, 0)
    for t in range(28):
        if t + LA < 28: rd(t + LA)
        a(f"s_waitcnt lgkmcnt({6*min(LA, 27-t)})")
        w = WFR + 12 * (t % 3)
        x = vr(XREG + 4 * t, 4)
        c = lambda base: (vr(base, 16) if t else "0")
        a(f"{MF} {vr(ACK,16)}, {x}, {vr(w,4)}, {c(ACK)}")
        if t + NX < 28: xload(t + NX)
        elif wq:
            a(wq.pop(0)); nd[0] += 1
        a(f"{MF} {vr(ACV,16)}, {x}, {vr(w+4,4)}, {c(ACV)}")
        if t % 4 == 3 and t + 1 < 28: xchk(t + 1, t + 1)
        a(f"{MF} {vr(ACQ,16)}, {vr(w+8,4)}, {x}, {c(ACQ)}")
    a.wo_rest = wq
    a("s_barrier")

def phase_a1(a):
    L = a.label("A1")
    RR, MM, T0 = 176, 192, 208
    a(f"s_cmp_eq_u32 {sIT}, 0\n s_cbranch_scc0 {L}_it1")
    a1_it0(a)
    a(f"s_branch {L}_epi\n {L}_it1:")
    a1_it1(a)
    a(f"""
    {L}_epi:
    """)
    a.stamp("a1_epi")
    for q in range(4):
        a(f"ds_read_b128 {vr(MM+4*q,4)}, v{vRS} offset:{128+32*q}")
        a(f"ds_read_b128 {vr(RR+4*q,4)}, v{vRS} offset:{32*q}")
    a(f"""
    s_mov_b32 {sT[3]}, {fbits(1e-6)}
    v_mov_b32 v0, {fbits(1e-6)}
    v_mov_b32 v1, {fbits(LOG2E)}
    s_lshl_b32 {sT[0]}, {sW}, 12
    s_add_u32 {sT[0]}, {sT[0]}, 0x10000
    v_add_u32 v2, {sT[0]}, v{vL16}
    s_lshl_b32 {sT[5]}, {sW}, 10
    s_add_u32 {sT[0]}, {sT[5]}, 0x10000
    v_add_u32 v3, {sT[0]}, v{vL16}
    s_lshl_b32 {sT[6]}, {sH}, 4
    s_add_u32 {sT[6]}, {sT[6]}, {sRB}
    s_lshl_b32 {sT[6]}, {sT[6]}, 12
    s_add_u32 {sT[6]}, {sT[6]}, {sT[5]}
    s_lshr_b32 {sT[6]}, {sT[6]}, 1
    s_add_u32 {sT[6]}, {sT[6]}, {sITO}
    s_add_u32 {sT[6]}, {sT[6]}, {KVP}
    s_waitcnt lgkmcnt(0)
    """)
    k0, v0 = ACK, ACV
    P = lambda b, r: vr(b + 2 * r, 2)
    CS = vr(CSK, 2)
    for r in range(8): a(f"v_pk_fma_f32 {P(k0,r)}, {P(MM,r)}, {CS}, {P(k0,r)} op_sel_hi:[1,0,1] neg_lo:[1,0,0] neg_hi:[1,0,0]")
    for r in range(8): a(f"v_pk_fma_f32 {P(k0,r)}, {P(k0,r)}, {P(RR,r)}, v[0:1] op_sel_hi:[1,1,0]")
    for r in range(8): a(f"v_pk_mul_f32 {P(T0,r)}, {P(k0,r)}, v[0:1] op_sel:[0,1] op_sel_hi:[1,1]")
    for r in range(8):
        a(f"v_exp_f32_e64 v{T0+2*r}, v{T0+2*r} clamp")
        a(f"v_max_f32 v{k0+2*r}, {sT[3]}, v{k0+2*r}")
        a(f"v_exp_f32_e64 v{T0+2*r+1}, v{T0+2*r+1} clamp")
        a(f"v_max_f32 v{k0+2*r+1}, {sT[3]}, v{k0+2*r+1}")
        a(f"v_pk_fma_f32 {P(v0,r)}, {P(MM,r)}, {CS}, {P(v0,r)} op_sel:[0,1,0] op_sel_hi:[1,1,1] neg_lo:[1,0,0] neg_hi:[1,0,0]")
    for r in range(8): a(f"v_pk_mul_f32 {P(v0,r)}, {P(v0,r)}, {P(RR,r)}")
    for r in range(8): a(f"v_pk_add_f32 {P(k0,r)}, {P(k0,r)}, {P(T0,r)}")
    for r in range(8): a(f"v_cvt_pk_bf16_f32 v{v0+r}, v{v0+2*r}, v{v0+2*r+1}")
    a("s_mov_b32 exec_lo, 0xf0000000\n s_mov_b32 exec_hi, 0xf0000000")
    for r in range(8): a(f"v_mov_b32 v{ACV+r}, 0x3f803f80")
    a("s_mov_b64 exec, -1")
    for r in range(8): a(f"v_cvt_pk_bf16_f32 v{k0+r}, v{k0+2*r}, v{k0+2*r+1}")
    KVA = 176
    a(f"{MF} {vr(KVA,16)}, {vr(ACK,4)}, {vr(ACV,4)}, 0")
    a(f"{MF} {vr(KVA,16)}, {vr(ACK+4,4)}, {vr(ACV+4,4)}, {vr(KVA,16)}")
    for q in range(4): a(f"ds_write_b128 v2, {vr(KVA+4*q,4)} offset:{KVL+1024*q}")
    a("s_waitcnt lgkmcnt(0)\n s_barrier")
    for w2 in range(4): a(f"ds_read_b128 {vr(192+4*w2,4)}, v3 offset:{KVL+4096*w2}")
    a(f"""
    s_waitcnt lgkmcnt(0)
    v_pk_add_f32 v[192:193], v[192:193], v[196:197]
    v_pk_add_f32 v[194:195], v[194:195], v[198:199]
    v_pk_add_f32 v[200:201], v[200:201], v[204:205]
    v_pk_add_f32 v[202:203], v[202:203], v[206:207]
    v_pk_add_f32 v[192:193], v[192:193], v[200:201]
    v_pk_add_f32 v[194:195], v[194:195], v[202:203]
    v_cvt_pk_bf16_f32 v192, v192, v193
    v_cvt_pk_bf16_f32 v193, v194, v195
    buffer_store_dwordx2 v[192:193], v{vL8}, {SWS}, {sT[6]} offen {SC}
    """)
    a.stamp("a1_kvp")
    kvr_setup(a)
    a(f"s_cmp_eq_u32 {sIT}, 0\n s_cbranch_scc1 {L}_cq\n {L}_cqr:")
    main = a.lines; a.lines = a.stubs
    a(f"{L}_cq:")
    a1_it0_q(a, f"{L}_cqr")
    a.lines = main
    T1 = 208
    a(f"v_lshlrev_b32 v2, 4, v{vHH}\n v_add_u32 v2, {CSL}, v2")
    for q in range(4): a(f"ds_read_b128 {vr(T1+4*q,4)}, v2 offset:{32*q}")
    a(f"""
    s_lshl_b32 {sT[5]}, {sRB}, 2
    s_add_u32 {sT[5]}, {sT[5]}, {sW}
    s_lshl_b32 {sT[5]}, {sT[5]}, 4
    s_add_u32 {sT[5]}, {sT[5]}, {sH}
    s_lshl_b32 {sT[5]}, {sT[5]}, 11
    s_add_u32 {sT[5]}, {sT[5]}, {sITO}
    s_waitcnt lgkmcnt(0)
    """)
    for r in range(8): a(f"v_pk_fma_f32 {P(ACQ,r)}, {P(T1,r)}, v[{vM}:{vR}], {P(ACQ,r)} op_sel_hi:[1,0,1] neg_lo:[1,0,0] neg_hi:[1,0,0]")
    for r in range(8): a(f"v_pk_fma_f32 {P(ACQ,r)}, {P(ACQ,r)}, v[{vM}:{vR}], v[0:1] op_sel:[0,1,0] op_sel_hi:[1,1,0]")
    for r in range(8): a(f"v_pk_mul_f32 {P(T1,r)}, {P(ACQ,r)}, v[0:1] op_sel:[0,1] op_sel_hi:[1,1]")
    for r in range(16):
        a(f"v_exp_f32_e64 v{T1+r}, v{T1+r} clamp")
        a(f"v_max_f32 v{ACQ+r}, {sT[3]}, v{ACQ+r}")
    for r in range(8): a(f"v_pk_add_f32 {P(ACQ,r)}, {P(ACQ,r)}, {P(T1,r)}")
    for r in range(8): a(f"v_cvt_pk_bf16_f32 v{T1+r}, v{ACQ+2*r}, v{ACQ+2*r+1}")
    a.lstore([f"buffer_store_dwordx4 {vr(T1,4)}, v{vL16}, {SWS}, {sT[5]} offen", f"buffer_store_dwordx4 {vr(T1+4,4)}, v{vL16}, {SWS}, {sT[5]} offen offset:1024"])
    a.stamp("a1_end")

def helper_index(a):
    a(f"""
    s_and_b32 {sT[0]}, s2, 7
    s_lshl_b32 {sT[0]}, {sT[0]}, 2
    s_lshr_b32 {sT[1]}, s2, 3
    s_add_u32 {sT[0]}, {sT[0]}, {sT[1]}
    s_sub_u32 {sT[0]}, {sT[0]}, 28
    s_lshl_b32 {sT[0]}, {sT[0]}, 2
    s_add_u32 {sT[0]}, {sT[0]}, {sW}         ; hw 0..127
    """)

KB, KAD, KSA = 128, 190, 191
def kvr_setup(a):
    t2, t3, t4, t5 = 184, 185, 186, 187
    a(f"""
    v_lshrrev_b32 v{t2}, 4, v{vLANE}
    v_and_b32 v{t3}, 15, v{vLANE}
    v_lshlrev_b32 v{t2}, 11, v{t2}
    v_lshl_add_u32 v{KAD}, v{t3}, 3, v{t2}
    s_lshr_b32 {sT[0]}, s2, 3
    s_lshr_b32 {sT[1]}, {sT[0]}, 1
    s_and_b32 {sT[8]}, {sT[0]}, 1
    s_lshl_b32 {sT[6]}, {sT[1]}, 15
    s_lshl_b32 {sT[4]}, {sT[8]}, 10
    s_add_u32 {sT[6]}, {sT[6]}, {sT[4]}
    s_lshl_b32 {sT[4]}, {sW}, 7
    s_add_u32 {sT[6]}, {sT[6]}, {sT[4]}
    s_add_u32 {sT[6]}, {sT[6]}, {sITO}
    s_add_u32 {sT[6]}, {sT[6]}, {KVP}
    s_lshl_b32 {sT[4]}, {sWL}, 4
    v_add_u32 v{t3}, {sT[4]}, v{t3}
    v_cmp_le_u32 vcc, 14, v{t3}
    v_cndmask_b32 v{t4}, 0, 1, vcc
    v_mul_u32_u24 v{t5}, 14, v{t4}
    v_sub_u32 v{t5}, v{t3}, v{t5}
    v_cmp_le_u32 vcc, 28, v{t3}
    v_and_b32 v{t2}, 1, v{t3}
    v_add_u32 v{t2}, 14, v{t2}
    v_cndmask_b32 v{t5}, v{t5}, v{t2}, vcc
    v_bfe_u32 v{t2}, v{t3}, 1, 1
    v_cndmask_b32 v{t4}, v{t4}, v{t2}, vcc
    v_and_b32 v{t2}, 3, v{t5}
    v_lshrrev_b32 v{t5}, 2, v{t5}
    v_lshl_add_u32 v{t2}, v{t5}, 3, v{t2}
    v_lshl_add_u32 v{t2}, v{t4}, 2, v{t2}
    v_lshlrev_b32 v{KSA}, 4, v{t2}
    s_lshl_b32 {sT[7]}, {sT[0]}, 10
    s_lshl_b32 {sT[4]}, {sWH}, 9
    s_add_u32 {sT[7]}, {sT[7]}, {sT[4]}
    s_and_b32 {sT[4]}, s2, 7
    s_lshl_b32 {sT[4]}, {sT[4]}, 15
    s_add_u32 {sT[7]}, {sT[7]}, {sT[4]}
    s_add_u32 {sT[7]}, {sT[7]}, {sITO}
    s_add_u32 {sT[7]}, {sT[7]}, {KVF}
    s_and_b32 {sT[4]}, {sT[8]}, {sWH}
    s_cmp_eq_u32 {sT[4]}, 1
    s_cselect_b32 {sT[10]}, 0, -1
    """)
KL = 144
def kvr_loads(a):
    for i in range(4):
        a(f"s_add_u32 {sT[2]}, {sT[6]}, {i*0x2000}")
        a(f"buffer_load_dwordx2 {vr(KL+2*i,2)}, v{KAD}, {SWS}, {sT[2]} offen {SC}")
        a(f"buffer_load_dwordx2 {vr(KL+8+2*i,2)}, v{KAD}, {SWS}, {sT[2]} offen offset:512 {SC}")
def kvr_finish(a):
    B, SA = KB, KSA
    a(f"v_mov_b32 v{B+8}, 0x3f80\n v_mov_b32 v{B+9}, 0x3f800000")
    a.check(range(KL, KL + 16), lambda: (a(f"s_sleep {OPT.get('rsl', 5)}"), kvr_loads(a)), 0, 2)
    bs = (B, B + 4)
    for i in range(4):
        for k, b in enumerate(bs):
            for e in range(4):
                src = KL + 8 * k + 2 * i + (e >> 1)
                a(f"v_dot2_f32_bf16 v{b+e}, v{src}, v{B+8+(e&1)}, {'0' if i == 0 else 'v%d' % (b+e)}")
    for b in bs: a(f"v_permlane32_swap_b32 v{b}, v{b+2}\n v_permlane32_swap_b32 v{b+1}, v{b+3}")
    for b in bs: a(f"v_pk_add_f32 v[{b}:{b+1}], v[{b}:{b+1}], v[{b+2}:{b+3}]")
    for b in bs: a(f"v_permlane16_swap_b32 v{b}, v{b+1}")
    for b in bs: a(f"v_add_f32 v{b}, v{b}, v{b+1}")
    for b in bs: a(f"v_mov_b32 v{b+1}, v{b}")
    for b in bs: a(f"v_permlane16_swap_b32 v{b}, v{b+1}")
    O = B + 32
    a(f"""
    v_cvt_pk_bf16_f32 v{O}, v{B}, v{B+1}
    v_cvt_pk_bf16_f32 v{O+2}, v{B+4}, v{B+5}
    v_and_b32 v{O+2}, {sT[10]}, v{O+2}
    v_mov_b32 v{O+1}, v{O}
    v_mov_b32 v{O+3}, v{O+2}
    v_permlane32_swap_b32 v{O}, v{O+1}
    v_permlane32_swap_b32 v{O+2}, v{O+3}
    s_mov_b64 exec, 0xffff
    """)
    a.lstore([f"buffer_store_dwordx4 {vr(O,4)}, v{SA}, {SWS}, {sT[7]} offen"])
    a("s_mov_b64 exec, -1")

RED = 0x20000
def red_addrs(a, base, partner_xor, v_own, v_par):
    a(f"""
    s_lshl_b32 {sT[0]}, {sW}, 13
    s_add_u32 {sT[0]}, {sT[0]}, {base}
    v_add_u32 v{v_own}, {sT[0]}, v{vL16}
    v_xor_b32 v{v_par}, {partner_xor*8192}, v{v_own}
    """)
def pair_reduce(a, acc0, acc1, v_own, v_par, after_barrier=None):
    for q in range(4): a(f"ds_write_b128 v{v_own}, {vr(acc1+4*q,4)} offset:{1024*q}")
    a("s_waitcnt lgkmcnt(0)\n s_barrier")
    for q in range(4): a(f"ds_read_b128 {vr(acc1+4*q,4)}, v{v_par} offset:{1024*q}")
    if after_barrier: after_barrier()
    for q in range(4):
        a(f"s_waitcnt lgkmcnt({3-q})")
        for r in range(2): a(f"v_pk_add_f32 {vr(acc0+4*q+2*r,2)}, {vr(acc0+4*q+2*r,2)}, {vr(acc1+4*q+2*r,2)}")

def l2_warm(a, what):
    a(f"""
    s_lshr_b32 {sT[8]}, s2, 3
    s_sub_u32 {sT[8]}, {sT[8]}, 28
    s_and_b32 {sT[9]}, s2, 7
    v_mul_u32_u24 v12, 37, v{vLANE}
    v_lshrrev_b32 v12, 8, v12                ; lane/7
    v_mul_u32_u24 v13, 7, v12
    v_sub_u32 v13, v{vLANE}, v13
    v_min_u32 v12, 7, v12
    v_mul_u32_u24 v12, 3584, v12
    v_lshl_add_u32 v12, v13, 7, v12
    v_lshrrev_b32 v13, 2, v{vLANE}
    v_lshlrev_b32 v13, 12, v13
    v_and_b32 v14, 3, v{vLANE}
    v_lshl_add_u32 v13, v14, 7, v13
    """)
    for which, row0, nrows in what:
        q = nrows // 4
        if which == 1:
            a(f"""
            s_mul_i32 {sT[10]}, {sT[8]}, {512*3584}
            s_mul_i32 {sT[11]}, {sW}, {q*3584}
            s_add_u32 {sT[10]}, {sT[10]}, {sT[11]}
            s_lshr_b32 {sT[11]}, {sT[9]}, 1
            s_mul_i32 {sT[11]}, {sT[11]}, 896
            s_add_u32 {sT[10]}, {sT[10]}, {sT[11]}
            """)
            for i in range(q // 8):
                a(f"s_add_u32 {sT[11]}, {sT[10]}, {(row0 + 8*i)*3584}\n buffer_load_dword v15, v12, {SW1}, {sT[11]} offen")
        else:
            a(f"""
            s_mul_i32 {sT[10]}, {sT[8]}, {448*4096}
            s_mul_i32 {sT[11]}, {sW}, {q*4096}
            s_add_u32 {sT[10]}, {sT[10]}, {sT[11]}
            s_lshl_b32 {sT[11]}, {sT[9]}, 9
            s_add_u32 {sT[10]}, {sT[10]}, {sT[11]}
            """)
            for i in range(q // 16):
                a(f"s_add_u32 {sT[11]}, {sT[10]}, {(row0 + 16*i)*4096}\n buffer_load_dword v15, v13, {SW2}, {sT[11]} offen")

def helper_work(a):
    L = a.label("HW")
    a(f"""
    v_lshrrev_b32 v4, 2, v{vLANE}
    v_mul_u32_u24 v4, 2688, v4
    v_and_b32 v5, 3, v{vLANE}
    v_lshl_add_u32 v4, v5, 4, v4
    v_mov_b32 v8, -1
    v_mov_b32 v9, -1
    v_mov_b32 v10, -1
    v_mov_b32 v11, -1
    v_lshlrev_b32 v6, 7, v{vLANE}
    """)
    def warm(srd, lo, hi):
        if not OPT.get("warm", 1): return
        LL = a.label("HWW")
        a(f"""
        s_lshl_b32 {sT[1]}, {sT[0]}, 13
        s_add_u32 {sT[1]}, {sT[1]}, {lo}
        {LL}:
        buffer_load_dword v7, v6, {srd}, {sT[1]} offen
        s_add_u32 {sT[1]}, {sT[1]}, {128*8192}
        s_cmp_lt_u32 {sT[1]}, {hi}
        s_cbranch_scc1 {LL}
        """)
    def fill(lo, hi):
        LL = a.label("HWF")
        a(f"""
        s_lshl_b32 {sT[1]}, {sT[0]}, 10
        s_add_u32 {sT[1]}, {sT[1]}, {lo}
        {LL}:
        buffer_store_dwordx4 v[8:11], v{vL16}, {SWS}, {sT[1]} offen {SC}
        s_add_u32 {sT[1]}, {sT[1]}, {128*1024}
        s_cmp_lt_u32 {sT[1]}, {hi}
        s_cbranch_scc1 {LL}
        """)
    def signal(off):
        LL = a.label("HWS")
        a(f"""
        s_waitcnt vmcnt(0)
        s_barrier
        s_cmp_lg_u32 {sW}, 0
        s_cbranch_scc1 {LL}
        v_mov_b32 v2, 1
        v_mov_b32 v3, {off}
        s_mov_b64 exec, 1
        buffer_atomic_add v2, v3, {SDBG}, 0 offen sc1
        s_mov_b64 exec, -1
        {LL}:
        """)
        a.xstamp({196: 54, 4: 55, 68: 56, 132: 57}[off])
    fill(ST, UF)
    signal(196)
    if OPT.get('t23', 1) == 2: warm(SW1, 0, F * S * 2)
    if OPT.get('lw0', 0): l2_warm(a, [(1, 128, 128)])
    fill(UF, ITB)
    signal(4)
    if OPT.get('hw', 1) == 0: warm(SW2, 0, F * S * 2)
    for i in range(11):
        a(f"""
        s_add_u32 {sT[1]}, {sT[0]}, {128*i}
        s_min_u32 {sT[1]}, {sT[1]}, 1343
        s_mul_i32 {sT[2]}, {sT[1]}, 3121
        s_lshr_b32 {sT[2]}, {sT[2]}, 18
        s_mul_i32 {sT[3]}, {sT[2]}, 84
        s_sub_u32 {sT[3]}, {sT[1]}, {sT[3]}
        s_mul_i32 {sT[2]}, {sT[2]}, 56
        s_and_b32 {sT[2]}, {sT[2]}, 0xfff0
        s_lshr_b32 {sT[4]}, {sT[3]}, 1
        s_and_b32 {sT[5]}, {sT[3]}, 1
        s_add_u32 {sT[5]}, {sT[5]}, 1
        s_sub_u32 {sT[6]}, {sT[3]}, 56
        s_cmp_lt_u32 {sT[3]}, 56
        s_cselect_b32 {sT[4]}, {sT[4]}, {sT[6]}
        s_cselect_b32 {sT[5]}, {sT[5]}, 0
        s_mul_i32 {sT[4]}, {sT[4]}, {16*2688}
        s_mul_i32 {sT[5]}, {sT[5]}, 896
        s_add_u32 {sT[2]}, {sT[2]}, {sT[4]}
        s_add_u32 {sT[2]}, {sT[2]}, {sT[5]}
        buffer_load_dwordx4 {vr(16+4*i,4)}, v4, {SWQKV}, {sT[2]} offen
        """)
    a("s_waitcnt vmcnt(0)")
    for i in range(11):
        a(f"""
        s_add_u32 {sT[1]}, {sT[0]}, {128*i}
        s_min_u32 {sT[1]}, {sT[1]}, 1343
        s_lshl_b32 {sT[2]}, {sT[1]}, 10
        s_add_u32 {sT[2]}, {sT[2]}, {WQP}
        buffer_store_dwordx4 {vr(16+4*i,4)}, v{vL16}, {SWS}, {sT[2]} offen {SC}
        """)
    fill(XF, FILL_END)
    signal(68)
    if OPT.get('hw', 1) == 1: warm(SW2, 0, F * S * 2)
    if OPT.get('hw', 1) == 3: l2_warm(a, [(2, 0, 448)])
    fill(ITB, XF)
    signal(132)
    a.counter_wait(68, 1, 32, 2)
    a("s_barrier")
    a1_wpk_setup(a)
    for o in a1_wpk_own_ops() + a1_wpk_hi_ops(): a(o)

def phase_a2(a):
    L = a.label("A2")
    PQR, KVR, WB = 64, 128, 192
    AC0, AC1 = 16, 32
    a(f"""
    s_lshl_b32 {sT[5]}, {sST}, 1
    s_add_u32 {sT[5]}, {sT[5]}, {sWL}
    s_lshl_b32 {sAT[0]}, {sT[5]}, 15
    s_lshl_b32 {sT[1]}, {sWH}, 14
    s_add_u32 {sAT[0]}, {sAT[0]}, {sT[1]}
    s_add_u32 {sAT[0]}, {sAT[0]}, {sITO}
    s_add_u32 {sAT[1]}, {sAT[0]}, 0x2000
    s_add_u32 {sAT[2]}, {sT[1]}, {sITO}
    s_add_u32 {sAT[2]}, {sAT[2]}, {KVF}
    s_add_u32 {sAT[3]}, {sAT[2]}, 0x2000
    """)
    def pq_loads(i0=0, i1=16):
        for i in range(i0, i1):
            a(f"buffer_load_dwordx4 {vr(PQR+4*i,4)}, v{vL16b if i&4 else vL16}, {SWS}, {sAT[i>>3]} offen offset:{(i&3)*1024} {SC}")
    def kv_loads(i0=0):
        for i in range(i0, 16):
            a(f"buffer_load_dwordx4 {vr(KVR+4*i,4)}, v{vL16b if i&4 else vL16}, {SWS}, {sAT[2+(i>>3)]} offen offset:{(i&3)*1024} {SC}")
    a(f"""
    s_and_b32 {sT[0]}, s2, 7
    s_lshl_b32 {sT[0]}, {sT[0]}, 15
    s_add_u32 {sAT[2]}, {sAT[2]}, {sT[0]}
    s_add_u32 {sAT[3]}, {sAT[3]}, {sT[0]}
    v_min_u32 v4, 15, v{vLANE}
    v_lshlrev_b32 v4, 10, v4
    v_add_u32 v4, 1020, v4
    """)
    def stage(aw, n, va, off, urows):
        for t in range(n):
            for i in range(2):
                for u in range(2):
                    a(f"ds_read_b64_tr_b16 {ar(aw + 8*t + 4*i + 2*u, 2)}, v{va+i} offset:{off + t*2048 + urows*u*128}")
    def setup():
        a(f"s_lshl_b32 {sT[11]}, {sWH}, 16\n s_add_u32 {sT[11]}, {sT[11]}, 0x8000")
        wtile_tr_addr(a, 6, 14, sWH, sT[11])
        b1_tr_addr(a, 14, sLB)
        red_addrs(a, RED, 2, 8, 9)
        for r in range(16): a(f"v_mov_b32 v{AC0+r}, v{RES+r}")
        a(f"""
        s_mul_i32 {sT[8]}, {sT[5]}, 3584
        s_add_u32 {sT[8]}, {sT[8]}, {sITO}
        s_add_u32 {sT[8]}, {sT[8]}, {ST}
        s_lshl_b32 {sT[1]}, {sDT}, 1
        s_add_u32 {sT[1]}, {sT[1]}, {sWH}
        s_lshl_b32 {sT[9]}, {sT[1]}, 8
        s_add_u32 {sT[9]}, {sT[9]}, {sT[8]}
        s_lshl_b32 {sT[12]}, {sT[1]}, 17
        s_lshl_b32 {sT[0]}, {sT[5]}, 11
        s_add_u32 {sT[12]}, {sT[12]}, {sT[0]}
        s_add_u32 {sT[12]}, {sT[12]}, {sITO}
        s_add_u32 {sT[12]}, {sT[12]}, {HF}
        v_lshrrev_b32 v2, 1, v{vLANE}
        v_lshlrev_b32 v2, 9, v2
        v_and_b32 v3, 1, v{vLANE}
        v_mul_u32_u24 v3, 96, v3
        v_add_u32 v11, v2, v3
        """)
    a(f"s_cmp_eq_u32 {sIT}, 0\n s_cbranch_scc1 {L}_s0")
    PS = OPT.get("ps", 16)
    if OPT.get("sfirst", 0): setup()
    pq_loads(0, PS)
    kvr_loads(a)
    pq_loads(PS, 16)
    if not OPT.get("sfirst", 0): setup()
    P1M = OPT.get("p1m", 0)
    if P1M:
        a("s_barrier")
        for o in big_dma_ops(1, 0, 8, 0): a(o)
    a(f"s_waitcnt vmcnt({16-PS+(16 if P1M else 0)})\n {L}_s0r:")
    main = a.lines; a.lines = a.stubs
    a(f"{L}_s0:")
    for o in wo_ops(): a(o)
    setup()
    a(f"s_waitcnt vmcnt(17)\n s_branch {L}_s0r")
    a.lines = main
    kvr_finish(a)
    a.stamp("a2_pq")
    for o in a.wo_rest: a(o)
    a(f"s_cmp_eq_u32 {sIT}, 0\n s_cbranch_scc1 {L}_s1\n {L}_s1r:")
    main = a.lines; a.lines = a.stubs
    a(f"{L}_s1:")
    pq_loads()
    a(f"""
    v_mul_u32_u24 v2, 896, v{vL31}
    v_lshl_add_u32 v2, v{vHH}, 3, v2
    s_mul_i32 {sT[0]}, {sT[5]}, {32*896}
    s_lshl_b32 {sT[1]}, {sDT}, 7
    s_add_u32 {sT[0]}, {sT[0]}, {sT[1]}
    s_lshl_b32 {sT[1]}, {sWH}, 6
    s_add_u32 {sT[0]}, {sT[0]}, {sT[1]}
    """)
    for q in range(4): a(f"buffer_load_dwordx2 {vr(48+2*q,2)}, v2, {SX}, {sT[0]} offen offset:{16*q}")
    for o in big_dma_ops(1, 28, 4, 0, "s79"): a(o)
    a(f"s_lshl_b32 {sT[11]}, {sW}, 13\n s_sub_u32 {sT[11]}, {sT[11]}, {sLB}\n v_add_u32 v12, {sT[11]}, v14\n v_add_u32 v13, {sT[11]}, v15")
    stage(aW1 + 64, 4, 12, 0, 4)
    a(f"s_waitcnt lgkmcnt(0)\n s_branch {L}_s1r")
    a.lines = main
    a("s_waitcnt vmcnt(0)")
    a.check(range(PQR, PQR + 64), lambda: (a("s_sleep 4"), pq_loads()), 0)
    if not OPT.get('sub'): a.xstamp(59)
    a("s_barrier")
    NB = [48, RES, PQR]
    def num_ops(hd):
        n = NB[hd % 3]
        return [f"{MF} {vr(n,16)}, {vr(KVR+8*hd,4)}, {vr(PQR+8*hd,4)}, 0",
                f"{MF} {vr(n,16)}, {vr(KVR+8*hd+4,4)}, {vr(PQR+8*hd+4,4)}, {vr(n,16)}"]
    p1 = [] if P1M else big_dma_ops(1, 0, 8, 0)
    nd = [0]; ndc = [0]
    def kvchk(hd):
        a(f"s_waitcnt vmcnt({14-2*hd+nd[0]})")
        a.check(range(KVR + 8 * hd, KVR + 8 * hd + 8), lambda hd=hd: kv_loads(2 * hd), 0 if nd[0] else 14 - 2 * hd)
    def wrd_ops(hd):
        o = []
        for t in range(2):
            for nb in range(2):
                b = WB + 16 * (hd & 1) + 4 * (2 * t + nb)
                for u in range(2):
                    o.append(f"ds_read_b64_tr_b16 {vr(b+2*u,2)}, v{6+nb} offset:{(28*hd+8*t+4*u)*128}")
        return o
    def wrd(hd):
        for o in wrd_ops(hd): a(o)
    def div_ops(hd):
        n = NB[hd % 3]
        ops = [f"v_add_f32 v10, {fbits(1e-6)}, v{n+15}", "v_rcp_f32 v10, v10"]
        for r in range(14): ops.append(f"v_mul_f32 v{n+r}, v{n+r}, v10")
        for r in range(7): ops.append(f"v_cvt_pk_bf16_f32 v{n+r}, v{n+2*r}, v{n+2*r+1}")
        ops.append(f"v_mov_b32 v{n+7}, 0")
        return ops
    def out_ops(hd):
        ops = []
        for t in range(2):
            for nb in range(2):
                acc = (AC0, AC1)[nb]
                c = vr(acc, 16) if (hd or t or nb == 0) else "0"
                ops.append(f"{MF} {vr(acc,16)}, {vr(WB+16*(hd&1)+4*(2*t+nb),4)}, {vr(NB[hd%3]+4*t,4)}, {c}")
        return ops
    kv_loads()
    a(f"s_cmp_eq_u32 {sIT}, 0\n s_cbranch_scc1 {L}_s2\n {L}_s2r:")
    main = a.lines; a.lines = a.stubs
    a(f"{L}_s2:")
    a(f"s_sub_u32 {sT[11]}, s79, {sLB}\n v_add_u32 v12, {sT[11]}, v14\n v_add_u32 v13, {sT[11]}, v15")
    stage(aW1 + 96, 4, 12, 0, 4)
    a("s_waitcnt lgkmcnt(0)")
    for q in range(8): a(f"v_lshlrev_b32 v{AC0+2*q}, 16, v{48+q}\n v_and_b32 v{AC0+2*q+1}, 0xffff0000, v{48+q}")
    a(f"s_branch {L}_s2r")
    a.lines = main
    wrd(0)
    kvchk(0)
    for o in num_ops(0): a(o)
    a.stamp("a2_kv")
    kvchk(1)
    for o in num_ops(1): a(o)
    for o in div_ops(0): a(o)
    for hd in range(8):
        va = div_ops(hd + 1) if hd + 1 < 8 else []
        ds = wrd_ops(hd + 1) if hd + 1 < 8 else []
        mf = []
        if hd + 2 < 8:
            kvchk(hd + 2)
            mf += num_ops(hd + 2)
        nnum = len(mf)
        mf += out_ops(hd)
        per = -(-len(va) // len(mf))
        nds = 0
        for j, o in enumerate(mf):
            if j == nnum: a(f"s_waitcnt lgkmcnt({nds})")
            a(o)
            for _ in range(2):
                if ds:
                    a(ds.pop(0)); nds += 1
            if j >= 2 and p1:
                a(p1.pop(0)); nd[0] += 1
            for _ in range(per):
                if va: a(va.pop(0))
        assert not va and not ds
        if hd == 0:
            a.counter_issue(196, 1); nd[0] += 1; ndc[0] = nd[0]
    assert not p1
    a.stamp("a2_mm")
    pair_reduce(a, AC0, AC1, 8, 9)
    a(f"s_waitcnt vmcnt({nd[0] - ndc[0]})")
    a.counter_check(196, 32)
    stats_publish(a, AC0, 64, sT[9])
    p2 = big_dma_ops(1, 8, 8, 0x8000)
    n2 = 0
    for o in p2[:n2]: a(o)
    stats_loads(a, sT[8], 96)
    for r in range(16): a(f"v_mov_b32 v{RES+r}, v{AC0+r}")
    TW = 128
    a(f"""
    s_add_u32 {sT[0]}, {sLB}, 0x8000
    v_lshrrev_b32 v2, 1, v{vL31}
    v_and_b32 v2, 7, v2
    v_xor_b32 v2, v2, v{vHH}
    v_lshlrev_b32 v3, 6, v{vL31}
    v_add_u32 v3, {sT[0]}, v3
    """)
    for q in range(4): a(f"v_xor_b32 v4, {2*q}, v2\n v_lshl_add_u32 v{TW+q}, v4, 3, v3")
    a(f"""
    v_lshrrev_b32 v2, 2, v{vLANE}
    v_and_b32 v2, 3, v2
    v_lshl_add_u32 v2, v{vHH}, 3, v2
    v_lshrrev_b32 v3, 4, v{vLANE}
    v_and_b32 v3, 1, v3
    v_lshlrev_b32 v3, 2, v3
    v_and_b32 v4, 3, v{vLANE}
    v_add_u32 v3, v3, v4
    v_lshrrev_b32 v4, 1, v2
    v_xor_b32 v3, v3, v4
    v_lshlrev_b32 v2, 6, v2
    v_add_u32 v2, {sT[0]}, v2
    v_lshl_add_u32 v{TW+4}, v3, 3, v2
    v_xor_b32 v3, 2, v3
    v_lshl_add_u32 v{TW+5}, v3, 3, v2
    s_waitcnt vmcnt(0)
    """)
    a.check(range(96, 110), lambda: stats_loads(a, sT[8], 96), 0, 2)
    a.stamp("a2_st")
    for o in stats_math_ops(96, 80, 82, 112): a(o)
    a(f"""
    v_add_f32 v84, {fbits(1e-5)}, v82
    v_rsq_f32 v84, v84
    v_mov_b32 v86, {fbits(1e-5)}
    v_mul_f32 v85, v82, v84
    v_fmac_f32 v86, v85, v84
    v_rsq_f32 v86, v86
    v_mul_f32 v84, v84, v86
    v_mul_f32 v86, -v80, v84
    """)
    for r in range(8): a(f"v_pk_fma_f32 {vr(32+2*r,2)}, {vr(AC0+2*r,2)}, v[84:85], v[86:87] op_sel_hi:[1,0,0]")
    for r in range(8): a(f"v_cvt_pk_bf16_f32 v{112+r}, v{32+2*r}, v{32+2*r+1}")
    for q in range(4): a(f"ds_write_b64 v{TW+q}, {vr(112+2*q,2)}")
    a(f"""
    ds_read_b64_tr_b16 v[120:121], v{TW+4}
    ds_read_b64_tr_b16 v[122:123], v{TW+5} offset:256
    ds_read_b64_tr_b16 v[124:125], v{TW+4} offset:1024
    ds_read_b64_tr_b16 v[126:127], v{TW+5} offset:1280
    s_waitcnt lgkmcnt(2)
    buffer_store_dwordx4 v[120:123], v{vL16}, {SWS}, {sT[12]} offen {SC}
    s_waitcnt lgkmcnt(0)
    buffer_store_dwordx4 v[124:127], v{vL16}, {SWS}, {sT[12]} offen offset:1024 {SC}
    s_barrier
    """)
    a.p2rest = p2[n2:]

ACC, WBF, WIN = 8, 72, 104
NWF = 28
def ringoff(t): return ((t & 15) >> 3) * 0x8000 + (t & 7) * 2048
vTR, vPB = 6, 4
sA1 = [f"s{i}" for i in range(80, 88)]
sW2X = "s78"

def b1_tr_addr(a, vd, sbase):
    wtile_tr_addr(a, vd, 8, sWH, sbase)
    a(f"s_lshl_b32 {sT[2]}, {sWL}, 5\n v_xor_b32 v{vd}, {sT[2]}, v{vd}\n v_xor_b32 v{vd+1}, {sT[2]}, v{vd+1}")

class Stream:
    def __init__(self, a):
        self.a = a; self.q = []; self.issued = 0; self.dirty = False; self.lq = []
        self.LOOK = OPT.get("look", 12)
    def info(self, s):
        if s < 64: return 1, s >> 5, s & 31
        s -= 64
        return 2, s // 28, s % 28
    def areg(self, s): return WIN + 4 * (s % NWF)
    def ld(self, s):
        g, p, t = self.info(s)
        tab = (sA1 if g == 1 else sAT)[4 * p + (t >> 3)]
        return f"buffer_load_dwordx4 {vr(self.areg(s),4)}, v{vL16b if t&4 else vL16}, {SWS}, {tab} offen offset:{(t&3)*1024} {SC}"
    def issue_upto(self, n):
        while self.issued < min(n, 120):
            self.a(self.ld(self.issued)); self.q.append(("a", self.issued)); self.issued += 1
    def other(self, op, tag=("x", 0)):
        self.a(op); self.q.append(tag); self.dirty = True
    def cnt(self, item):
        idx = max(i for i, x in enumerate(self.q) if x == item)
        return min(len(self.q) - 1 - idx, 63)
    def check(self, s, n=4):
        a = self.a
        c = self.cnt(("a", s + n - 1))
        a(f"s_waitcnt vmcnt({c})")
        hi = self.issued
        regs = [self.areg(x) + k for x in range(s, s + n) for k in range(4)]
        a.check(regs, lambda: (a("s_sleep 1"), [a(self.ld(x)) for x in range(s, hi)]), 0 if self.dirty else c)

def wsrc(g, t, s, i, it, p, o=0, n=4):
    if g == 1:
        if t < 16: return vr(WBF + 8 * (s & 3) + 4 * i + o, n)
        return ar(aW1 + 8 * (t - 16) + 4 * i + o, n)
    if t >= 16: return vr(WBF + 8 * (s & 3) + 4 * i + o, n)
    return ar(aW2 + 8 * t + 4 * i + o, n)
def needs_rd(g, t, it, p):
    if g == 1: return t < 16
    return t >= 16 or (it == 0 and p == 0)

def run_steps(a, st, s0, s1, it, sched, tr, hooks={}):
    LA = 3
    def rd(s):
        if s >= s1 and not (s < 64 and s1 < 64) and not (s0 >= 64 and s < 120 and s1 < 120): return
        g, p, t = st.info(s)
        if not needs_rd(g, t, it, p): return
        if ("w", s) in st.q: a(f"s_waitcnt vmcnt({st.cnt(('w', s))})")
        urows = 4 if g == 1 else 8
        for i in range(2):
            for u in range(2):
                a(f"ds_read_b64_tr_b16 {wsrc(g,t,s,i,it,p,2*u,2)}, v{tr+i} offset:{ringoff(t) + urows*u*128}")
        st.lq.append(s)
    for s in range(s0, s1):
        g, p, t = st.info(s)
        if s in hooks: hooks[s]()
        if (s - (0 if g == 1 else 64)) % 4 == 0: st.check(s)
        if s == s0:
            for x in range(s0, s0 + LA):
                if x not in st.lq: rd(x)
        rd(s + LA)
        if needs_rd(g, t, it, p):
            n = len([x for x in st.lq if x > s])
            a(f"s_waitcnt lgkmcnt({4*n})")
        ex = list(sched.get(s, []))
        for i in range(2):
            if g == 1:
                acc = ACC + 32 * p + 16 * i
                c_ = vr(acc, 16) if (t or i == 0) else "0"
                a(f"{MF} {vr(acc,16)}, {wsrc(g,t,s,i,it,p)}, {vr(st.areg(s),4)}, {c_}")
            else:
                r_ = i + 2 * (1 - p)
                acc = B2ACC[r_]
                c_ = vr(acc, 16) if (t or r_ == 0) else "0"
                a(f"{MF} {vr(acc,16)}, {vr(st.areg(s),4)}, {wsrc(g,t,s,i,it,p)}, {c_}")
            if ex:
                o, tag = ex.pop(0); st.other(o, tag)
            tgt = s + 1 + OPT.get("look2", 12)
            if s < 92: tgt = min(tgt, max(92, s + 1 + OPT.get("lk2", 12)))
            st.issue_upto(min(tgt, st.issued + 1))
        assert not ex
B2ACC = {2: 8, 3: 24, 0: 40, 1: 56}

def b1_epilogue(a, st, p, s_store):
    A = ACC + 32 * p
    a("s_waitcnt lgkmcnt(0)")
    for r_ in (3, 2, 1):
        for k in range(2): a(f"ds_write_b128 v0, {vr(A+8*r_+4*k,4)} offset:{(r_-1)*2048+1024*k}")
    base = 32 * (p + 1)
    E1, E2 = OPT.get("e1", 16), OPT.get("e2", 20)
    st.issue_upto(base + E1)
    a("s_waitcnt lgkmcnt(0)\n s_barrier")
    for r_ in (1, 2, 3):
        for k in range(2): a(f"ds_read_b128 {vr(A+8*r_+4*k,4)}, v{r_} offset:{(r_-1)*2048+1024*k}")
    st.issue_upto(base + E2)
    if p == 0: a.counter_check(4, 32)
    for r_ in (1, 2, 3):
        a(f"s_waitcnt lgkmcnt({2*(3-r_)})")
        for k in range(4): a(f"v_pk_add_f32 {vr(A+2*k,2)}, {vr(A+2*k,2)}, {vr(A+8*r_+2*k,2)}")
    U, T = A, A + 8
    for r in range(4): a(f"v_pk_mul_f32 {vr(T+2*r,2)}, {vr(U+2*r,2)}, {vr(U+2*r,2)}")
    for r in range(4): a(f"v_pk_fma_f32 {vr(T+2*r,2)}, {vr(T+2*r,2)}, v[216:217], v[216:217] op_sel:[0,0,1] op_sel_hi:[1,0,1]")
    for r in range(4): a(f"v_pk_mul_f32 {vr(T+2*r,2)}, {vr(T+2*r,2)}, {vr(U+2*r,2)}")
    for r in range(8): a(f"v_exp_f32 v{T+r}, v{T+r}")
    for r in range(4): a(f"v_pk_add_f32 {vr(T+2*r,2)}, {vr(T+2*r,2)}, 1.0 op_sel_hi:[1,0]")
    for r in range(8): a(f"v_rcp_f32 v{T+r}, v{T+r}")
    for r in range(4): a(f"v_pk_mul_f32 {vr(T+2*r,2)}, {vr(T+2*r,2)}, {vr(U+2*r,2)}")
    for r in range(4): a(f"v_cvt_pk_bf16_f32 v{220+r}, v{T+2*r}, v{T+2*r+1}")
    st.other(f"buffer_store_dwordx4 v[220:223], v{vL16}, {SWS}, {s_store} offen {SC}")

def w2x_ops(p):
    return [o.replace(sW2B, sW2X) for o in big_dma_ops(2, p, 1, ringoff(p))]

def b2_setup(a):
    a(f"""
    s_lshl_b32 {sT[7]}, {sST}, 1
    s_add_u32 {sT[7]}, {sT[7]}, {sWL}
    v_lshlrev_b32 v3, 1, v{vL31}
    s_lshl_b32 {sT[0]}, {sT[7]}, 6
    buffer_load_ushort v{vKRS}, v3, {SB2}, {sT[0]} offen
    s_mul_i32 {sT[6]}, {sDT}, {224*1024}
    s_mul_i32 {sT[0]}, {sW}, {28*1024}
    s_add_u32 {sT[6]}, {sT[6]}, {sT[0]}
    s_add_u32 {sT[6]}, {sT[6]}, {sITO}
    s_add_u32 {sT[6]}, {sT[6]}, {UF}
    s_mul_i32 {sT[0]}, {sWH}, {112*1024}
    s_add_u32 {sAT[4]}, {sT[6]}, {sT[0]}
    s_sub_u32 {sT[0]}, {112*1024}, {sT[0]}
    s_add_u32 {sAT[0]}, {sT[6]}, {sT[0]}
    """)
    for k in range(1, 4):
        a(f"s_add_u32 {sAT[k]}, {sAT[0]}, {k*0x2000}\n s_add_u32 {sAT[4+k]}, {sAT[4]}, {k*0x2000}")
    wtile_tr_addr(a, 218, 4, sWL, sLB)
    a1_wpk_setup(a)
    a(f"""
    s_lshl_b32 {sT[5]}, {sDT}, 1
    s_add_u32 {sT[5]}, {sT[5]}, {sWH}
    s_mul_i32 {sT[8]}, {sT[7]}, {28*1024}
    s_lshl_b32 {sT[1]}, {sT[5]}, 11
    s_add_u32 {sT[8]}, {sT[8]}, {sT[1]}
    s_add_u32 {sT[8]}, {sT[8]}, {XF}
    s_mul_i32 {sT[9]}, {sT[7]}, 3584
    s_lshl_b32 {sT[1]}, {sT[5]}, 8
    s_add_u32 {sT[9]}, {sT[9]}, {sT[1]}
    s_add_u32 {sT[9]}, {sT[9]}, {ST2}
    s_mul_i32 {sT[12]}, {sT[7]}, {32*896}
    s_lshl_b32 {sT[1]}, {sT[5]}, 6
    s_add_u32 {sT[12]}, {sT[12]}, {sT[1]}
    s_mul_i32 {sW2X}, {sIT}, {16*16*4096}
    s_add_u32 {sW2X}, {sW2X}, {sW2B}
    """)

def phase_b(a):
    L = a.label("B")
    st = Stream(a)
    a(f"s_cmp_ge_u32 {sACT}, 7\n s_cbranch_scc1 {L}_skip")
    if OPT.get("p1m", 0):
        a(f"s_cmp_eq_u32 {sIT}, 0\n s_cbranch_scc1 {L}_p1\n {L}_p1r:")
        main = a.lines; a.lines = a.stubs
        a(f"{L}_p1:")
        for o in big_dma_ops(1, 0, 8, 0): a(o)
        a(f"s_branch {L}_p1r")
        a.lines = main
    P2F = OPT.get("p2f", 16)
    for o in a.p2rest[:P2F]: a(o)
    a.counter_issue(4, 1)
    a(f"""
    v_lshlrev_b32 v3, 3, v{vHH}
    s_lshl_b32 {sT[0]}, {sFT}, 7
    s_lshl_b32 {sT[1]}, {sW}, 5
    s_add_u32 {sT[0]}, {sT[0]}, {sT[1]}
    """)
    for q in range(2): a(f"buffer_load_dwordx2 {vr(24+2*q,2)}, v3, {SB1}, {sT[0]} offen offset:{16*q}")
    b2_setup(a)
    c0 = -2 * 0.7978845608028654 * LOG2E
    c1 = c0 * 0.044715
    a(f"""
    s_cmp_lt_u32 {sFT}, 14
    s_cselect_b32 {sT[4]}, 1, 0
    s_lshl_b32 {sT[10]}, {sDT1}, 18
    s_lshl_b32 {sT[3]}, {sW}, 15
    s_add_u32 {sT[10]}, {sT[10]}, {sT[3]}
    s_add_u32 {sT[10]}, {sT[10]}, {sITO}
    s_add_u32 {sT[10]}, {sT[10]}, {HF}
    s_lshl_b32 {sT[0]}, {sT[4]}, 17
    s_add_u32 {sA1[0]}, {sT[10]}, {sT[0]}
    s_xor_b32 {sT[0]}, {sT[0]}, 0x20000
    s_add_u32 {sA1[4]}, {sT[10]}, {sT[0]}
    """)
    for k in range(1, 4):
        a(f"s_add_u32 {sA1[k]}, {sA1[0]}, {k*0x2000}\n s_add_u32 {sA1[4+k]}, {sA1[4]}, {k*0x2000}")
    a(f"""
    s_mul_i32 {sT[11]}, {sDT1}, {224*1024}
    s_lshl_b32 {sT[1]}, {sFT}, 12
    s_add_u32 {sT[11]}, {sT[11]}, {sT[1]}
    s_lshl_b32 {sT[1]}, {sW}, 10
    s_add_u32 {sT[11]}, {sT[11]}, {sT[1]}
    s_add_u32 {sT[11]}, {sT[11]}, {sITO}
    s_add_u32 {sT[11]}, {sT[11]}, {UF}
    s_mul_i32 {sT[0]}, {sT[4]}, {112*1024}
    s_add_u32 {sT[3]}, {sT[11]}, {sT[0]}
    s_sub_u32 {sT[0]}, {112*1024}, {sT[0]}
    s_add_u32 {sT[4]}, {sT[11]}, {sT[0]}
    v_lshlrev_b32 v{vPB}, 10, v{vL31}
    v_lshl_add_u32 v{vPB}, v{vHH}, 17, v{vPB}
    v_add_u32 v{vPB}, 1020, v{vPB}
    v_mov_b32 v216, {fbits(c1)}
    v_mov_b32 v217, {fbits(c0)}
    """)
    b1_tr_addr(a, vTR, sLB)
    for r_ in range(4):
        a(f"s_xor_b32 {sT[0]}, {sW}, {r_}\n s_mul_i32 {sT[0]}, {sT[0]}, 0x1800\n s_add_u32 {sT[0]}, {sT[0]}, 0x20000\n v_add_u32 v{r_}, {sT[0]}, v{vL16}")
    NO = OPT.get("no", 8)
    a.probe(vPB, sT[10], 5, 1, extra=lambda: [a(st.ld(x)) for x in range(NO)], nextra=NO)
    a.stamp("probe")
    st.q = [("a", x) for x in range(NO)]; st.issued = NO
    st.issue_upto(st.LOOK)
    for q in range(4):
        for p in (1, 0):
            a(f"v_lshlrev_b32 v{ACC+32*p+2*q}, 16, v{24+q}\n v_and_b32 v{ACC+32*p+2*q+1}, 0xffff0000, v{24+q}")
    for r in range(8): a(f"v_mov_b32 v{ACC+8+r}, 0\n v_mov_b32 v{ACC+40+r}, 0")
    sch0 = {}
    for k in range(P2F, 16): sch0.setdefault((k - P2F) // 2, []).append((a.p2rest[k], ("w", 8 + k // 2)))
    run_steps(a, st, 0, 32, 1, sch0, vTR)
    a.stamp("b1_p0")
    b1_epilogue(a, st, 0, sT[3])
    ent = {}
    def body(it):
        s2 = Stream(a); s2.q = list(st.q); s2.issued = st.issued; s2.dirty = True; s2.lq = list(st.lq)
        sched = {}; later = []; pre = []
        def put(s_, ops, tag):
            sched.setdefault(s_, []).extend((o, tag) for o in ops)
            if s_ < 64: pre.extend(ops)
        if it == 0:
            W2S = OPT.get("w2s", 48)
            for p in range(16): put(max(W2S + p, 33 + p), big_dma_ops(2, p, 1, ringoff(p)), ("w", 64 + p))
            for k in range(16, 28): put(64 + k - OPT.get("rfl", 14), big_dma_ops(2, k, 1, ringoff(k)), ("w", 64 + k))
            hi = a1_wpk_hi_ops(); own = a1_wpk_own_ops()
            for k, o in enumerate(hi): put(64 + 28 + 12 + k, [o], ("x", 0))
            for p in range(8):
                s_ = 64 + 28 + 17 + p + OPT.get("wqd", 2)
                if s_ < 120: put(s_, own[2*p:2*p+2], ("x", 0))
                else: later += own[2*p:2*p+2]
        else:
            W2S = OPT.get("w2s1", 60)
            for k in range(16, 28): put(W2S + k - 16, big_dma_ops(2, k, 1, ringoff(k)), ("w", 64 + k))
        run_steps(a, s2, 32, 64, 1, sched, vTR, {48: lambda: a("s_barrier"), 56: lambda: (a.counter_issue(68, 1), s2.q.append(("c", 0)))})
        a.stamp("b1_p1")
        b1_epilogue(a, s2, 1, sT[4])
        a(f"{L}_e{it}:")
        ent[it] = (pre, s2.issued)
        a.stamp("b1_end")
        def init():
            a(f"s_waitcnt vmcnt({s2.cnt(('c', 0))})")
            a.counter_check(68, 32)
            a(f"v_lshlrev_b32 v5, 16, v{vKRS}")
            for r in range(16): a(f"v_add_f32 v{B2ACC[0]+r}, v{RES+r}, v5")
            a(f"v_add_u32 v0, {sLB}, v{vL16}\n v_xor_b32 v1, 0x4000, v0\n v_xor_b32 v2, 0x10000, v0\n v_xor_b32 v3, 0x14000, v0")
        def wr(r_, off):
            for k in range(4): a(f"ds_write_b128 v0, {vr(B2ACC[r_]+4*k,4)} offset:{off+1024*k}")
        def early():
            wr(2, 0xA000); wr(3, 0xB000)
            a("s_barrier")
        run_steps(a, s2, 64, 120, it, sched, 218, {72: init, 64 + 28 + 8: early})
        a.stamp("mm")
        wr(1, 0x9000)
        a("s_waitcnt lgkmcnt(0)\n s_barrier")
        for r_, of in ((2, 0xA000), (3, 0xB000), (1, 0x9000)):
            for k in range(4): a(f"ds_read_b128 {vr(B2ACC[r_]+4*k,4)}, v{r_} offset:{of+1024*k}")
        return later
    later = two_its(a, L, body)
    main = a.lines; blk = []; a.lines = blk
    a(f"{L}_skip:")
    b2_setup(a)
    a(f"s_cmp_eq_u32 {sIT}, 0\n s_cbranch_scc0 {L}_sk1")
    for o in ent[0][0]: a(o)
    a(f"s_branch {L}_sk2\n {L}_sk1:")
    for o in ent[1][0]: a(o)
    a(f"{L}_sk2:")
    a.counter_wait(4, 1, 32, 2)
    a.counter_issue(68, 1)
    a(f"v_min_u32 v{vPB}, 27, v{vLANE}\n v_lshlrev_b32 v{vPB}, 10, v{vPB}\n v_add_u32 v{vPB}, 1020, v{vPB}")
    a.probe(vPB, sAT[OPT.get('skp', 0)], 5, 1, sleep=4)
    assert ent[0][1] == ent[1][1]
    for x in range(64, ent[0][1]): a(st.ld(x))
    a(f"s_waitcnt vmcnt(0)\n s_cmp_eq_u32 {sIT}, 0\n s_cbranch_scc1 {L}_e0\n s_branch {L}_e1")
    a.lines = main; a.stubs += blk
    K0 = B2ACC[0]
    a(f"v_mul_u32_u24 v0, 896, v{vL31}\n v_lshl_add_u32 v0, v{vHH}, 3, v0")
    for n_, r_ in enumerate((2, 3, 1)):
        a(f"s_waitcnt lgkmcnt({4*(2-n_)})")
        for k in range(8): a(f"v_pk_add_f32 {vr(K0+2*k,2)}, {vr(K0+2*k,2)}, {vr(B2ACC[r_]+2*k,2)}")
    for r in range(8): a(f"v_cvt_pk_bf16_f32 v{112+r}, v{K0+2*r}, v{K0+2*r+1}")
    a(f"s_cmp_eq_u32 {sIT}, 0\n s_cbranch_scc0 {L}_fin")
    a.lstore([f"buffer_store_dwordx4 v[112:115], v{vL16}, {SWS}, {sT[8]} offen", f"buffer_store_dwordx4 v[116:119], v{vL16}, {SWS}, {sT[8]} offen offset:1024"])
    stats_publish(a, K0, 72, sT[9])
    for o in later[0]: a(o)
    for r in range(16): a(f"v_mov_b32 v{RES+r}, v{K0+r}")
    a(f"s_branch {L}_end\n {L}_fin:")
    for q in range(4): a(f"buffer_store_dwordx2 {vr(112+2*q,2)}, v0, {SOUT}, {sT[12]} offen offset:{16*q}")
    a(f"{L}_end:")

def two_its(a, L, body):
    n0 = a.nstamp; names0 = list(getattr(a, "names", []))
    a(f"s_cmp_eq_u32 {sIT}, 0\n s_cbranch_scc0 {L}_i1")
    r0 = body(0)
    a(f"s_branch {L}_j\n {L}_i1:")
    a.nstamp = n0
    if STAMPS: a.names = names0
    r1 = body(1)
    a(f"{L}_j:")
    return r0, r1

def build():
    a = K(); a.stubs = []
    kernel_begin(a, KNAME)
    prologue(a)
    if STAMPS: a("v_mov_b32 v255, 0")
    if "echo" in OPT: a("s_memrealtime s[80:81]\n s_waitcnt lgkmcnt(0)\n s_mov_b32 s82, s80")
    a("L_iter:")
    a.stamp("start")
    phase_a1(a)
    a(f"s_cmp_ge_u32 {sACT}, 8\n s_cbranch_scc1 L_helper")
    phase_a2(a)
    a.stamp("a2_end")
    phase_b(a)
    a.stamp("b2_end")
    a(f"""
    L_next:
    s_cmp_eq_u32 {sIT}, 1
    s_cbranch_scc1 L_fin
    s_mov_b32 {sIT}, 1
    s_mov_b32 {sITO}, {ITB}
    s_branch L_iter
    L_helper:
    """)
    a(f"s_cmp_eq_u32 {sIT}, 0\n s_cbranch_scc1 L_hnl")
    kvr_loads(a)
    a("L_hnl:\n s_waitcnt vmcnt(0)")
    kvr_finish(a)
    helper_index(a)
    if not OPT.get('sub'): a.xstamp(53)
    a("s_waitcnt vmcnt(0)\n s_barrier")
    a(f"""
    s_cmp_eq_u32 {sIT}, 1
    s_cbranch_scc0 L_h0
    """)
    LW = OPT.get("lw", 1)
    if LW: l2_warm(a, ([(1, 0, 128)] if LW == 2 else []) + [(1, 128, 128), (2, 256, 192)])
    a("s_branch L_fin\n L_h0:")
    helper_work(a)
    a("s_branch L_next")
    a("L_fin:")
    a.stamp_dump()
    if "echo" in OPT:
        a("""
        s_memrealtime s[84:85]
        s_sub_u32 s82, s82, s80
        s_waitcnt lgkmcnt(0)
        s_mov_b32 s83, s84
        L_echo:
        s_memrealtime s[84:85]
        s_waitcnt lgkmcnt(0)
        s_sub_u32 s86, s84, s83
        s_cmp_lt_u32 s86, s82
        s_cbranch_scc1 L_echo
        """)
    a("L_end:\n s_endpgm")
    a.lines += a.stubs
    a.lines.append('L_codeend:')
    if STAMPS: open("stamps.txt", "w").write("\n".join(a.names))
    for i in range(len(a.lines) - 1):
        if a.lines[i].strip().startswith(f"s_add_u32 {sT[2]},") and a.lines[i+1].strip().startswith("s_add_u32 m0,"):
            a.lines[i], a.lines[i+1] = a.lines[i+1], a.lines[i]
    lines, n = haz.fix(a.lines)
    if OPT.get('align', 1):
        lines, st_ = align.align(lines, OPT.get('minrun', 5)); print('align', st_)
    hdr = f"; @launch grid=(256,1,1) block=(256,1,1) lds=163840\n"
    return hdr + '.amdgcn_target "amdgcn-amd-amdhsa--gfx950"\n.text\n' + "\n".join(lines) + "\n" + '.section .rodata,"a"\n' + descriptor(KNAME, 512, accum=256)

if __name__ == "__main__":
    out = sys.argv[1]
    for o in sys.argv[2:]:
        if o == "stamps": STAMPS = True
        else:
            k_, v_ = o.split("="); OPT[k_] = int(v_)
    open(out, "w").write(build())
```

```python
import sys, struct
sys.path.insert(0, "work")
from gen import *
import haz, align

KNAME = NAME + "_kernel"
S, D, F = 2048, 448, 1792
ITB = 0x4B8000 + 0x188000
PQ, KVP, KVF, ST, HF, UF = 0x0, 0x200000, 0x280000, 0x2C0000, 0x2F8000, 0x4B8000
assert UF + 14 * 112 * 1024 == ITB
XF = 2 * ITB
ST2 = XF + 0x1C0000
FILL_END = ST2 + 0x38000
WQP = 0x1000000
assert FILL_END <= WQP
STAMP_OFF = 0x2000000
WS_SIZE = 0x10000000
LOG2E = 1.4426950408889634
def fbits(x): return "0x%08x" % struct.unpack("<I", struct.pack("<f", x))[0]

SX, SWQKV, SWO, SW1, SW2, SB1, SB2, SOUT, SWS, SDBG = [f"s[{i}:{i+3}]" for i in range(4, 44, 4)]
sW, sRB, sH, sDT, sST, sFT, sACT, sIT, sITO, sBUD = "s3", "s44", "s45", "s46", "s47", "s48", "s49", "s50", "s51", "s52"
sWH, sWL, sLB = "s53", "s54", "s55"
sT = [f"s{i}" for i in range(56, 72)]
sW1B, sW2B = 's72', 's73'
sAT = [f"s{i}" for i in range(88, 96)]
SC = "sc1"
sDT1, sLOC, sXSH = 's99', 's100', 's101'
STAMPS = False
OPT = {}

def vr(b, n=1): return f"v{b}" if n == 1 else f"v[{b}:{b+n-1}]"
def ar(b, n=1): return f"a{b}" if n == 1 else f"a[{b}:{b+n-1}]"
MF = "v_mfma_f32_32x32x16_bf16"

vL16, vL16b, vHH, vL31, vLANE, vL8, vDW1, vDW2, CSK, CSV, vDWO, vMAX, vCNT, vCNA = range(240, 254)
assert CSK % 2 == 0
RES = 224
vKRS = 254
aW1, aW2 = 0, 128

class K(Asm):
    nstamp = 0
    stubs = None
    def stamp(self, name=""):
        if "echo" in OPT:
            if self.nstamp == OPT["echo"] % 32:
                self(f"s_memrealtime s[84:85]\n s_waitcnt lgkmcnt(0)\n s_cmp_eq_u32 {sIT}, {OPT['echo'] // 32}\n s_cselect_b32 s82, s84, s82")
            self.nstamp += 1
            return
        if not STAMPS: return
        if OPT.get("bud"):
            self(f"s_lshl_b32 s98, {sIT}, 5\n s_add_u32 s98, s98, {self.nstamp}\n s_mov_b32 m0, s98\n v_writelane_b32 v255, {sBUD}, m0")
            self.names = getattr(self, "names", []) + [name]; self.nstamp += 1
            return
        self(f"{'s_memtime' if OPT.get('clk') else 's_memrealtime'} s[96:97]\n s_lshl_b32 s98, {sIT}, 5\n s_add_u32 s98, s98, {self.nstamp}\n s_waitcnt lgkmcnt(0)\n s_mov_b32 m0, s98\n v_writelane_b32 v255, s96, m0")
        self.names = getattr(self, "names", []) + [name]
        self.nstamp += 1
        assert self.nstamp <= 32
    def xstamp(self, idx):
        if not STAMPS: return
        self(f"{'s_memtime' if OPT.get('clk') else 's_memrealtime'} s[96:97]\n s_waitcnt lgkmcnt(0)\n v_writelane_b32 v255, s96, {idx}")
    def stamp_dump(self):
        if not STAMPS: return
        self(f"""
        s_lshl_b32 s98, s2, 2
        s_add_u32 s98, s98, {sW}
        s_lshl_b32 s98, s98, 8
        s_add_u32 s98, s98, {STAMP_OFF}
        v_lshlrev_b32 v2, 2, v{vLANE}
        buffer_store_dword v255, v2, {SWS}, s98 offen
        """)
        if "dbg" in OPT:
            sel = {0: list(range(0, 14)), 1: [0, 12, 14, 15, 16, 18, 19, 35, 37, 40, 43, 46, 50, 51]}[OPT["dbg"]]
            L = self.label("DS")
            self(f"s_lshl_b32 s98, s2, 2\n s_add_u32 s98, s98, {sW}\n s_cmp_eq_u32 s98, {OPT.get('dbgw', 1)}\n s_cbranch_scc0 {L}")
            self("v_readlane_b32 s97, v255, 0")
            for i, ln in enumerate(sel):
                self(f"v_readlane_b32 s96, v255, {ln}\n s_sub_u32 s96, s96, s97\n v_writelane_b32 v3, s96, {i}")
            self(f"s_mov_b64 exec, 0x3fff\n buffer_store_dword v3, v2, {SDBG}, 0 offen offset:8\n s_mov_b64 exec, -1\n {L}:")
    def srd(self, dst, ptr, size):
        b = int(dst[2:dst.index(":")])
        self(f"s_mov_b32 s{b}, s{ptr}\n s_mov_b32 s{b+1}, s{ptr+1}\n s_mov_b32 s{b+2}, {size}\n s_mov_b32 s{b+3}, 0x00020000")
    def halfsum(self, v, tmp):
        self(f"v_mov_b32 {tmp}, {v}\n v_permlane32_swap_b32 {v}, {tmp}\n v_add_f32 {v}, {v}, {tmp}")
    def check_ops(self, regs):
        regs = list(regs); ops = []
        if len(regs) == 1:
            return [f"v_cmp_eq_u32 vcc, -1, v{regs[0]}"]
        if len(regs) % 2 == 1:
            ops.append(f"v_max3_u32 v{vMAX}, v{regs[0]}, v{regs[1]}, v{regs[2]}"); rest = regs[3:]
        else:
            ops.append(f"v_max_u32 v{vMAX}, v{regs[0]}, v{regs[1]}"); rest = regs[2:]
        for i in range(0, len(rest), 2):
            ops.append(f"v_max3_u32 v{vMAX}, v{vMAX}, v{rest[i]}, v{rest[i+1]}")
        ops.append(f"v_cmp_eq_u32 vcc, -1, v{vMAX}")
        return ops
    def check_branch(self, regs, reissue, wait_after):
        L = self.label("CK")
        self(f"s_cbranch_vccnz {L}_r\n {L}_k:")
        main = self.lines
        self.lines = self.stubs
        self(f"{L}_r:\n s_cmp_le_i32 {sBUD}, 0\n s_cbranch_scc1 {L}_k\n s_sub_u32 {sBUD}, {sBUD}, 1")
        reissue()
        self(f"s_waitcnt vmcnt({wait_after})")
        for o in self.check_ops(regs): self(o)
        self(f"s_cbranch_vccnz {L}_r\n s_branch {L}_k")
        self.lines = main
    def check(self, regs, reissue, wait_after, gran=4):
        if OPT.get("c1", 1): regs = list(regs)[gran-1::gran]
        for o in self.check_ops(regs): self(o)
        self.check_branch(regs, reissue, wait_after)
    def probe_issue(self, voff, soff, vt, nreg=1):
        ld = {1: "buffer_load_dword", 4: "buffer_load_dwordx4"}[nreg]
        self(f"{ld} {vr(vt,nreg)}, v{voff}, {SWS}, {soff} offen {SC}")
    def probe(self, voff, soff, vt, nreg=1, issued=False, sleep=0, extra=None, nextra=0):
        L = self.label("PB")
        if issued: self(f"s_branch {L}_c")
        if sleep: self(f"s_branch {L}_q")
        self(f"{L}_p:")
        if sleep: self(f"s_sleep {sleep}\n {L}_q:")
        self.probe_issue(voff, soff, vt, nreg)
        if extra: extra()
        self(f"s_sub_u32 {sBUD}, {sBUD}, 1\n {L}_c:\n s_waitcnt vmcnt({nextra})")
        if nreg == 1: self(f"v_cmp_eq_u32 vcc, -1, v{vt}")
        else:
            for o in self.check_ops(range(vt, vt + nreg)): self(o)
        self(f"""
        s_cmp_gt_i32 {sBUD}, 0
        s_cselect_b64 vcc, vcc, 0
        s_cbranch_vccnz {L}_p
        """)
    def loc_issue(self, vd):
        self(f"""
        v_and_b32 v{vd+2}, 3, v{vLANE}
        v_lshlrev_b32 v{vd+2}, 6, v{vd+2}
        v_bfe_u32 v{vd+3}, v{vLANE}, 2, 1
        v_lshl_add_u32 v{vd+2}, v{vd+3}, 3, v{vd+2}
        buffer_load_dwordx2 {vr(vd,2)}, v{vd+2}, {SDBG}, 0 offen offset:16 sc1
        """)
    def loc_eval(self, vd):
        L = self.label("LE")
        self(f"v_cmp_gt_u32 vcc, 0x200000, v{vd+1}\n s_cbranch_vccnz {L}_r\n {L}_k:")
        main = self.lines; self.lines = self.stubs
        self(f"""
        {L}_r:
        s_cmp_le_i32 {sBUD}, 0
        s_cbranch_scc1 {L}_k
        s_sub_u32 {sBUD}, {sBUD}, 1
        s_sleep 8
        buffer_load_dwordx2 {vr(vd,2)}, v{vd+2}, {SDBG}, 0 offen offset:16 sc1
        s_waitcnt vmcnt(0)
        v_cmp_gt_u32 vcc, 0x200000, v{vd+1}
        s_cbranch_vccnz {L}_r
        s_branch {L}_k
        """)
        self.lines = main
        self(f"""
        s_and_b32 {sT[0]}, s2, 7
        v_readlane_b32 s76, v{vd}, {sT[0]}
        v_readlane_b32 s77, v{vd+1}, {sT[0]}
        s_and_b32 s77, s77, 0xffff
        s_lshr_b64 s[76:77], s[76:77], {sXSH}
        s_and_b32 s76, s76, 63
        s_cmp_eq_u32 s76, 32
        s_cselect_b32 {sLOC}, {1 if OPT.get("loc", 1) else 0}, 0
        """)
    def lstore(self, ops):
        L = self.label("LS")
        self(f"s_cmp_eq_u32 {sLOC}, 0\n s_cbranch_scc1 {L}_g")
        for o in ops: self(o)
        self(f"{L}_r:")
        main = self.lines; self.lines = self.stubs
        self(f"{L}_g:")
        for o in ops: self(o + " " + SC)
        self(f"s_branch {L}_r")
        self.lines = main
    def counter_issue(self, off, nsh):
        self(f"v_min_u32 v{vCNA}, {nsh-1}, v{vLANE}\n v_lshlrev_b32 v{vCNA}, 6, v{vCNA}")
        self(f"buffer_load_dword v{vCNT}, v{vCNA}, {SDBG}, 0 offen offset:{off} sc1")
    def counter_check(self, off, target):
        L = self.label("CC")
        self(f"v_cmp_gt_u32 vcc, {target}, v{vCNT}\n s_cbranch_vccnz {L}_r\n {L}_k:")
        main = self.lines
        self.lines = self.stubs
        self(f"""
        {L}_r:
        s_cmp_le_i32 {sBUD}, 0
        s_cbranch_scc1 {L}_k
        s_sub_u32 {sBUD}, {sBUD}, 1
        s_sleep 8
        buffer_load_dword v{vCNT}, v{vCNA}, {SDBG}, 0 offen offset:{off} sc1
        s_waitcnt vmcnt(0)
        v_cmp_gt_u32 vcc, {target}, v{vCNT}
        s_cbranch_vccnz {L}_r
        s_branch {L}_k
        """)
        self.lines = main
    def counter_wait(self, off, nsh, target, vt):
        L = self.label("CW")
        self(f"""
        v_lshlrev_b32 v{vt+1}, 6, v{vLANE}
        s_mov_b64 exec, {(1<<nsh)-1}
        {L}_p:
        buffer_load_dword v{vt}, v{vt+1}, {SDBG}, 0 offen offset:{off} sc1
        s_waitcnt vmcnt(0)
        v_cmp_gt_u32 vcc, {target}, v{vt}
        s_cbranch_vccz {L}_o
        s_cmp_le_i32 {sBUD}, 0
        s_cbranch_scc1 {L}_o
        s_sub_u32 {sBUD}, {sBUD}, 1
        s_sleep 2
        s_branch {L}_p
        {L}_o:
        s_mov_b64 exec, -1
        """)

def wtile_dma_voff(a, vdst, rowstride):
    a(f"""
    v_lshrrev_b32 v2, 3, v{vLANE}
    v_mul_u32_u24 v{vdst}, {rowstride}, v2
    v_lshrrev_b32 v2, 4, v{vLANE}
    v_and_b32 v2, 1, v2
    v_lshlrev_b32 v2, 2, v2
    v_and_b32 v3, 7, v{vLANE}
    v_xor_b32 v2, v2, v3
    v_lshl_add_u32 v{vdst}, v2, 4, v{vdst}
    """)

def wtile_tr_addr(a, vdst, hhrows, s_keep, s_base):
    a(f"""
    v_lshrrev_b32 v2, 2, v{vLANE}
    v_and_b32 v2, 3, v2
    v_mul_u32_u24 v3, {hhrows}, v{vHH}
    v_add_u32 v2, v2, v3
    v_bfe_u32 v3, v2, 1, 1
    v_xor_b32 v3, {s_keep}, v3
    v_lshlrev_b32 v2, 7, v2
    v_lshl_add_u32 v2, v3, 6, v2
    v_lshrrev_b32 v3, 4, v{vLANE}
    v_and_b32 v3, 1, v3
    v_lshl_add_u32 v2, v3, 5, v2
    v_and_b32 v3, 3, v{vLANE}
    v_lshl_add_u32 v{vdst}, v3, 3, v2
    v_add_u32 v{vdst}, {s_base}, v{vdst}
    v_xor_b32 v{vdst+1}, 64, v{vdst}
    """)

def prologue(a):
    a(f"""
    s_cmp_ge_u32 s2, 256
    s_cbranch_scc1 L_end
    {"s_lshr_b32 s3, s2, 5" if OPT.get("bad") else ""}
    {"s_and_b32 s2, s2, 31" if OPT.get("bad") else ""}
    {"s_lshl_b32 s2, s2, 3" if OPT.get("bad") else ""}
    {"s_or_b32 s2, s2, s3" if OPT.get("bad") else ""}
    s_load_dwordx16 s[72:87], s[0:1], 0
    s_load_dwordx4 s[88:91], s[0:1], 64
    s_load_dwordx2 s[92:93], s[0:1], 80
    v_lshrrev_b32 v2, 6, v0
    v_and_b32 v{vLANE}, 63, v0
    v_readfirstlane_b32 {sW}, v2
    v_lshrrev_b32 v{vHH}, 5, v{vLANE}
    v_and_b32 v{vL31}, 31, v{vLANE}
    v_lshlrev_b32 v{vL16}, 4, v{vLANE}
    v_lshlrev_b32 v{vL8}, 3, v{vLANE}
    v_add_u32 v{vL16b}, 0x1000, v{vL16}
    s_and_b32 {sT[0]}, s2, 7
    s_lshr_b32 {sT[1]}, s2, 3
    s_lshr_b32 {sT[2]}, {sT[0]}, 1
    s_and_b32 {sT[3]}, {sT[0]}, 1
    s_lshl_b32 {sRB}, {sT[0]}, 1
    s_lshr_b32 {sT[4]}, {sT[1]}, 4
    s_add_u32 {sRB}, {sRB}, {sT[4]}
    s_and_b32 {sH}, {sT[1]}, 15
    s_mul_i32 {sT[4]}, {sT[1]}, 43
    s_lshr_b32 {sT[4]}, {sT[4]}, 7          ; j/3
    s_mul_i32 {sT[7]}, {sT[4]}, 3
    s_sub_u32 {sT[7]}, {sT[1]}, {sT[7]}     ; j%3
    s_lshl_b32 {sT[5]}, {sT[3]}, 2          ; 4p
    s_add_u32 {sDT1}, {sT[7]}, {sT[5]}
    s_add_u32 {sT[6]}, {sT[5]}, {sT[1]}
    s_sub_u32 {sT[6]}, {sT[6]}, 24
    s_cmp_ge_u32 {sT[1]}, 24
    s_cselect_b32 {sT[4]}, {sT[6]}, {sT[4]}
    s_cselect_b32 {sDT1}, 3, {sDT1}
    s_cmp_ge_u32 {sT[1]}, 28
    s_cselect_b32 {sT[4]}, 8, {sT[4]}
    s_mul_i32 {sT[5]}, {sT[1]}, 37
    s_lshr_b32 {sT[5]}, {sT[5]}, 8
    s_mul_i32 {sT[6]}, {sT[5]}, 7
    s_sub_u32 {sDT}, {sT[1]}, {sT[6]}
    s_lshl_b32 {sST}, {sT[0]}, 2
    s_add_u32 {sST}, {sST}, {sT[5]}
    s_getreg_b32 {sXSH}, hwreg(HW_REG_XCC_ID)
    s_and_b32 {sXSH}, {sXSH}, 15
    s_min_u32 {sXSH}, {sXSH}, 9
    s_mul_i32 {sXSH}, {sXSH}, 6
    s_mov_b32 {sLOC}, 0
    s_mul_i32 {sFT}, {sT[2]}, 7
    s_add_u32 {sFT}, {sFT}, {sT[4]}
    s_mov_b32 {sACT}, {sT[4]}
    s_mov_b32 {sIT}, 0
    s_mov_b32 {sITO}, 0
    s_mov_b32 {sBUD}, 1500000
    s_lshr_b32 {sWH}, {sW}, 1
    s_and_b32 {sWL}, {sW}, 1
    s_waitcnt lgkmcnt(0)
    """)
    a.srd(SX, 72, S * D * 2)
    a.srd(SWQKV, 74, D * 3 * D * 2)
    a.srd(SWS, 92, WS_SIZE)
    a.srd(SWO, 76, D * D * 2)
    a.srd(SW1, 80, S * F * 2)
    a.srd(SB1, 82, F * 2)
    a.srd(SW2, 84, F * S * 2)
    a.srd(SB2, 86, S * 2)
    a.srd(SOUT, 88, S * D * 2)
    a.srd(SDBG, 90, 256)

def late_setup(a):
    wtile_dma_voff(a, vDW1, 3584)
    wtile_dma_voff(a, vDW2, 4096)
    wtile_dma_voff(a, vDWO, 896)
    a(f"""
    s_mul_i32 {sW1B}, {sW}, {512*3584}
    s_min_u32 {sT[2]}, {sFT}, 27
    s_lshl_b32 {sT[2]}, {sT[2]}, 7
    s_add_u32 {sW1B}, {sW1B}, {sT[2]}
    s_mul_i32 {sW2B}, {sW}, {448*4096}
    s_min_u32 {sT[2]}, {sST}, 31
    s_lshl_b32 {sT[2]}, {sT[2]}, 7
    s_add_u32 {sW2B}, {sW2B}, {sT[2]}
    """)

XREG = 64
ACQ, ACK, ACV = 16, 32, 48
WFR = 176
TRA = 4
vM, vR, vC, vRS = 12, 13, 14, 15
XBASE = [0x8000, 0x18000, 0x20000, 0x10000]
def a1_lds(f):
    if f < 32: return 1024 * f
    if f < 64: return 0x10000 + 1024 * (f - 32)
    return 0x20000 + 1024 * (f - 64)
def a1_src(f):
    if f < 56: t, seg = f >> 1, 1 + (f & 1)
    else: t, seg = f - 56, 0
    return t * 16 * 2688 + seg * 896
CSL, RSL, KVL = 0x27000, 0x27400, 0x0


def a1_wraw_ops(f0, f1, vo, s_kv, s_q, s_w10):
    o = []
    for f in range(f0, f1, 4):
        sb = s_kv if f < 56 else s_q
        o.append(f"s_add_u32 {sT[2]}, {sb}, {a1_src(f)}\n s_add_u32 m0, {s_w10}, {a1_lds(f)}\n buffer_load_dwordx4 v{vo}, {SWQKV}, {sT[2]} offen lds")
    return o

def a1_wpk_setup(a):
    a(f"""
    s_mul_i32 {sT[13]}, {sH}, {84*1024}
    s_add_u32 {sT[13]}, {sT[13]}, {WQP}
    s_lshl_b32 {sT[15]}, {sW}, 10
    s_lshl_b32 {sT[14]}, {sW}, 14
    s_add_u32 {sT[14]}, {sT[14]}, {sT[13]}
    s_add_u32 {sT[13]}, {sT[13]}, {sT[15]}
    """)
def a1_wpk_hi_ops():
    return [f"s_add_u32 {sT[2]}, {sT[13]}, {f*1024}\n s_add_u32 m0, {sT[15]}, {a1_lds(f)}\n buffer_load_dwordx4 v{vL16}, {SWS}, {sT[2]} offen {SC} lds" for f in range(64, 84, 4)]
def a1_wpk_own_ops():
    return [f"s_add_u32 {sT[2]}, {sT[14]}, {i*1024}\n s_add_u32 m0, {sLB}, {i*1024}\n buffer_load_dwordx4 v{vL16}, {SWS}, {sT[2]} offen {SC} lds" for i in range(16)]

sWOG, sWOL = "s74", "s75"
def wo_setup(a):
    a(f"""
    s_mul_i32 {sWOG}, {sWH}, {224*896}
    s_mul_i32 {sT[2]}, {sWL}, {8*896}
    s_add_u32 {sWOG}, {sWOG}, {sT[2]}
    s_lshl_b32 {sT[2]}, {sDT}, 7
    s_add_u32 {sWOG}, {sWOG}, {sT[2]}
    s_lshl_b32 {sWOL}, {sWH}, 16
    s_lshl_b32 {sT[2]}, {sWL}, 10
    s_add_u32 {sWOL}, {sWOL}, {sT[2]}
    """)
def wo_ops():
    return [f"s_add_u32 {sT[2]}, {sWOG}, {j*16*896}\n s_add_u32 m0, {sWOL}, {0x8000 + j*2048}\n buffer_load_dwordx4 v{vDWO}, {SWO}, {sT[2]} offen lds" for j in range(15)]

def big_dma_ops(which, ks0, nks, ldsoff, sl=None):
    stride, srd, vo, sb = (3584, SW1, vDW1, sW1B) if which == 1 else (4096, SW2, vDW2, sW2B)
    return [f"s_add_u32 {sT[2]}, {sb}, {(ks0*16 + i*8)*stride}\n s_add_u32 m0, {sl or sLB}, {ldsoff + i*1024}\n buffer_load_dwordx4 v{vo}, {srd}, {sT[2]} offen lds" for i in range(2 * nks)]

def stats_loads(a, soff, T):
    for i in range(7):
        a(f"buffer_load_dwordx2 {vr(T+2*i,2)}, v{vL8}, {SWS}, {soff} offen offset:{i*512} {SC}")

def stats_math_ops(T, vm, vvar, U, pk=True):
    o = []
    if pk:
        for i in range(3): o.append(f"v_pk_add_f32 {vr(U+2*i,2)}, {vr(T+4*i,2)}, {vr(T+4*i+2,2)}")
        o.append(f"v_pk_add_f32 {vr(U,2)}, {vr(U,2)}, {vr(U+2,2)}")
        o.append(f"v_pk_add_f32 {vr(U+4,2)}, {vr(U+4,2)}, {vr(T+12,2)}")
        o.append(f"v_pk_add_f32 {vr(U,2)}, {vr(U,2)}, {vr(U+4,2)}")
    else:
        o.append(f"v_add_f32 v{U}, v{T}, v{T+2}"); o.append(f"v_add_f32 v{U+1}, v{T+1}, v{T+3}")
        for i in range(2, 7):
            o.append(f"v_add_f32 v{U}, v{U}, v{T+2*i}"); o.append(f"v_add_f32 v{U+1}, v{U+1}, v{T+2*i+1}")
    o += [f"v_mov_b32 v{vm}, v{U}", f"v_permlane32_swap_b32 v{vm}, v{U}", f"v_add_f32 v{vm}, v{vm}, v{U}"]
    o.append(f"v_mul_f32 v{U+2}, {fbits(1/14)}, v{vm}")
    o.append(f"v_mul_f32 v{vm}, {fbits(1/448)}, v{vm}")
    for i in range(7): o.append(f"v_sub_f32 v{T+2*i}, v{T+2*i}, v{U+2}")
    o += [f"v_mul_f32 v{U+3}, v{T}, v{T}", f"v_mul_f32 v{U+4}, v{T+2}, v{T+2}"]
    for i in range(2, 7): o.append(f"v_fmac_f32 v{U+3+(i&1)}, v{T+2*i}, v{T+2*i}")
    o.append(f"v_add_f32 v{U+3}, v{U+3}, v{U+4}")
    o.append(f"v_fmac_f32 v{U+1}, {fbits(1/32)}, v{U+3}")
    o += [f"v_mov_b32 v{vvar}, v{U+1}", f"v_permlane32_swap_b32 v{vvar}, v{U+1}", f"v_add_f32 v{vvar}, v{vvar}, v{U+1}"]
    o.append(f"v_mul_f32 v{vvar}, {fbits(1/448)}, v{vvar}")
    return o

def stats_publish(a, X, T, soff):
    for i in range(4): a(f"v_pk_add_f32 {vr(T+2*i,2)}, {vr(X+4*i,2)}, {vr(X+4*i+2,2)}")
    a(f"v_pk_add_f32 {vr(T,2)}, {vr(T,2)}, {vr(T+2,2)}")
    a(f"v_pk_add_f32 {vr(T+4,2)}, {vr(T+4,2)}, {vr(T+6,2)}")
    a(f"v_pk_add_f32 {vr(T,2)}, {vr(T,2)}, {vr(T+4,2)}")
    a(f"v_add_f32 v{T+16}, v{T}, v{T+1}")
    a.halfsum(f"v{T+16}", f"v{T+17}")
    a(f"v_mul_f32 v{T+18}, {fbits(-1/32)}, v{T+16}")
    for i in range(8): a(f"v_pk_add_f32 {vr(T+2*i,2)}, {vr(X+2*i,2)}, {vr(T+18,2)} op_sel_hi:[1,0]")
    a(f"v_pk_mul_f32 {vr(T+18,2)}, {vr(T,2)}, {vr(T,2)}")
    a(f"v_pk_mul_f32 {vr(T+20,2)}, {vr(T+2,2)}, {vr(T+2,2)}")
    for i in range(2, 8):
        d = T + 18 + 2 * (i & 1)
        a(f"v_pk_fma_f32 {vr(d,2)}, {vr(T+2*i,2)}, {vr(T+2*i,2)}, {vr(d,2)}")
    a(f"v_pk_add_f32 {vr(T+18,2)}, {vr(T+18,2)}, {vr(T+20,2)}")
    a(f"v_add_f32 v{T+17}, v{T+18}, v{T+19}")
    a.halfsum(f"v{T+17}", f"v{T+18}")
    a("s_mov_b32 exec_hi, 0")
    a.lstore([f"buffer_store_dwordx2 {vr(T+16,2)}, v{vL8}, {SWS}, {soff} offen"])
    a("s_mov_b64 exec, -1")

def a1_tr_setup(a, it):
    sh, delta = (9, 256) if it == 0 else (8, 512)
    a(f"""
    v_lshrrev_b32 v2, 2, v{vLANE}
    v_and_b32 v2, 3, v2
    v_lshrrev_b32 v3, 4, v{vLANE}
    v_and_b32 v3, 1, v3
    v_lshlrev_b32 v3, 2, v3
    v_and_b32 v10, 3, v{vLANE}
    v_add_u32 v3, v3, v10
    s_and_b32 {sT[0]}, {sH}, 1
    v_add_u32 v3, {sT[0]}, v3
    v_and_b32 v3, 7, v3
    v_lshlrev_b32 v3, 3, v3
    v_lshl_add_u32 v{TRA}, v2, 6, v3
    v_lshl_add_u32 v{TRA}, v{vHH}, {sh}, v{TRA}
    v_add_u32 v{TRA+1}, 0x10000, v{TRA}
    v_add_u32 v{TRA+2}, 0x20000, v{TRA}
    v_add_u32 v{TRA+3}, {delta}, v{TRA}
    v_add_u32 v{TRA+4}, {delta}, v{TRA+1}
    v_add_u32 v{TRA+5}, {delta}, v{TRA+2}
    s_lshl_b32 {sT[0]}, {sW}, 8
    s_add_u32 {sT[0]}, {sT[0]}, {RSL}
    v_lshlrev_b32 v11, 2, v{vLANE}
    v_add_u32 v11, {sT[0]}, v11
    v_lshlrev_b32 v{vRS}, 4, v{vHH}
    v_add_u32 v{vRS}, {sT[0]}, v{vRS}
    """)

def rowstats_ops():
    return [f"v_add_f32 v{vR}, {fbits(1e-5)}, v{vR}", f"v_rsq_f32 v{vR}, v{vR}", f"v_cmp_eq_u32 vcc, 0, v{vHH}",
            f"v_cndmask_b32 v3, v{vM}, v{vR}, vcc", f"ds_write_b32 v11, v3"]

def a1_rd(a, f, dst):
    ad = a1_lds(f); win, off = ad >> 16, ad & 0xffff
    a(f"ds_read_b64_tr_b16 {dst(0)}, v{TRA+win} offset:{off}")
    a(f"ds_read_b64_tr_b16 {dst(2)}, v{TRA+3+win} offset:{off}")

def w1_touch(r):
    return f"""s_lshl_b32 {sT[0]}, s2, 2
    s_add_u32 {sT[0]}, {sT[0]}, {sW}
    s_add_u32 {sT[0]}, {sT[0]}, {r*1024}
    s_mul_i32 {sT[1]}, {sT[0]}, 9363
    s_lshr_b32 {sT[1]}, {sT[1]}, 22
    s_mul_i32 {sT[2]}, {sT[1]}, 448
    s_sub_u32 {sT[0]}, {sT[0]}, {sT[2]}
    s_lshl_b32 {sT[0]}, {sT[0]}, 11
    s_lshl_b32 {sT[2]}, {sT[1]}, 1
    s_add_u32 {sT[15]}, {sT[2]}, 1
    s_sub_u32 {sT[2]}, {sT[2]}, 8
    s_cmp_lt_u32 {sT[1]}, 4
    s_cselect_b32 {sT[1]}, {sT[15]}, {sT[2]}
    s_mul_i32 {sT[1]}, {sT[1]}, {256*3584}
    s_add_u32 {sT[0]}, {sT[0]}, {sT[1]}
    buffer_load_dword v234, v{vKRS}, {SW1}, {sT[0]} offen"""

def code_warm(a, tag):
    L = a.label("CWM")
    a(f"""
    s_getpc_b64 s[76:77]
    {L}:
    s_sub_u32 s76, s76, {L}-{KNAME}
    s_subb_u32 s77, s77, 0
    s_lshr_b32 {sT[2]}, s2, 3
    s_lshl_b32 {sT[2]}, {sT[2]}, 2
    s_add_u32 {sT[2]}, {sT[2]}, {sW}
    s_mul_i32 {sT[2]}, {sT[2]}, 640
    v_min_u32 v2, 4, v{vLANE}
    v_lshlrev_b32 v2, 7, v2
    v_add_u32 v2, {sT[2]}, v2
    s_mov_b32 {sT[2]}, L_codeend-{KNAME}-4
    v_min_u32 v2, {sT[2]}, v2
    v_mov_b32 v3, s77
    v_add_co_u32 v2, vcc, s76, v2
    v_addc_co_u32 v3, vcc, 0, v3, vcc
    global_load_dword v{vMAX}, v[2:3], off
    """)

def a1_it0(a):
    L = a.label("A1f")
    XA, XV, DA = 224, 228, 230
    a(f"""
    v_lshrrev_b32 v2, 3, v{vLANE}
    v_mul_u32_u24 v2, 896, v2
    v_and_b32 v3, 7, v{vLANE}
    v_lshrrev_b32 v5, 4, v{vLANE}
    v_xor_b32 v3, v3, v5
    v_lshl_add_u32 v{XV}, v3, 4, v2
    v_xor_b32 v{XV+1}, 64, v{XV}
    s_lshl_b32 {sT[10]}, {sRB}, 2
    s_add_u32 {sT[10]}, {sT[10]}, {sW}
    s_mul_i32 {sT[10]}, {sT[10]}, {32*896}
    s_lshl_b32 {sLB}, {sWH}, 16
    s_lshl_b32 {sT[2]}, {sWL}, 14
    s_add_u32 {sLB}, {sLB}, {sT[2]}
    """)
    def xdma(j0, j1):
        return [f"s_add_u32 {sT[2]}, {sT[10]}, {aa*8*896 + j*128}\n s_add_u32 m0, {sLB}, {0x8000 + aa*4096 + (j-j0)*1024}\n buffer_load_dwordx4 v{XV + (aa&1)}, {SX}, {sT[2]} offen lds"
                for aa in range(4) for j in range(j0, j1)]
    for o in xdma(0, 4): a(o)
    a(f"""
    v_lshrrev_b32 v1, 2, v{vLANE}
    v_mul_u32_u24 v1, 2688, v1
    v_and_b32 v5, 3, v{vLANE}
    v_lshl_add_u32 v1, v5, 4, v1
    s_mul_i32 {sT[8]}, {sH}, 56
    s_and_b32 {sT[8]}, {sT[8]}, 0xfff0
    s_mul_i32 {sT[9]}, {sW}, {16*2688}
    s_add_u32 {sT[9]}, {sT[9]}, {sT[8]}
    s_mul_i32 {sT[2]}, {sWH}, {16*2688}
    s_add_u32 {sT[8]}, {sT[8]}, {sT[2]}
    s_mul_i32 {sT[2]}, {sWL}, 896
    s_add_u32 {sT[8]}, {sT[8]}, {sT[2]}
    s_lshl_b32 {sT[11]}, {sW}, 10
    """)
    a.xstamp(22)
    ncw = 0
    if OPT.get("cw", 1):
        code_warm(a, 0); ncw = 1
    for o in a1_wraw_ops(0, 32, 1, sT[8], sT[9], sT[11]): a(o)
    a.xstamp(23)
    a(f"""
    s_lshr_b32 {sT[12]}, 0xc1a3, {sH}
    s_and_b32 {sT[12]}, {sT[12]}, 1
    s_lshl_b32 {sT[0]}, 1, {sH}
    s_sub_u32 {sT[0]}, {sT[0]}, 1
    s_and_b32 {sT[0]}, {sT[0]}, 0xc1a3
    s_bcnt1_i32_b32 {sT[0]}, {sT[0]}
    s_lshl_b32 {sT[0]}, {sT[0]}, 4
    s_add_u32 {sT[0]}, {sT[0]}, {sRB}
    s_lshl_b32 {sT[0]}, {sT[0]}, 2
    s_add_u32 {sT[0]}, {sT[0]}, {sW}
    s_lshl_b32 {sT[14]}, {sT[0]}, 13
    s_cmp_ge_u32 {sT[14]}, {ST}
    s_cselect_b32 {sT[12]}, 0, {sT[12]}
    s_cmp_eq_u32 {sT[12]}, 0
    s_cselect_b32 {sT[14]}, 0x20000000, {sT[14]}
    v_mov_b32 v236, -1
    v_mov_b32 v237, -1
    v_mov_b32 v238, -1
    v_mov_b32 v239, -1
    """)
    fills = [f"buffer_store_dwordx4 v[236:239], v{vL16b if i&4 else vL16}, {SWS}, {sT[14]} offen offset:{(i&3)*1024} {SC}" for i in range(8)]
    late_setup(a)
    wo_setup(a)
    a1_tr_setup(a, 0)
    a(f"""
    v_lshrrev_b32 v2, 3, v{vL31}
    v_lshlrev_b32 v2, 12, v2
    v_and_b32 v3, 7, v{vL31}
    v_lshl_add_u32 v2, v3, 7, v2
    v_add_u32 v2, {sLB}, v2
    v_lshrrev_b32 v3, 1, v{vL31}
    v_and_b32 v3, 7, v3
    v_xor_b32 v3, v3, v{vHH}
    """)
    for q in range(4): a(f"v_xor_b32 v10, {2*q}, v3\n v_lshl_add_u32 v{XA+q}, v10, 4, v2")
    a(f"""
    v_mov_b32 v{DA}, 0
    v_mov_b32 v{DA+1}, 0
    v_mov_b32 v{DA+2}, 0
    v_mov_b32 v{DA+3}, 0
    v_mov_b32 v{CSK}, 0
    v_mov_b32 v{CSV}, 0
    v_mov_b32 v{vC}, 0x3f803f80
    v_lshlrev_b32 v235, 7, v{vLANE}
    v_min_u32 v{vKRS}, 0x780, v235
    s_lshr_b32 {sT[13]}, s2, 2
    s_lshl_b32 {sT[13]}, {sT[13]}, 13
    s_cmp_eq_u32 {sW}, 3
    s_cselect_b32 {sT[13]}, {sT[13]}, 0x1000000
    s_waitcnt vmcnt({8+ncw}) lgkmcnt(0)
    """)
    a.stamp("a1_xland")
    def xrd(t0, t1):
        for t in range(t0, t1):
            a(f"ds_read_b128 {vr(XREG+4*t,4)}, v{XA+(t&3)} offset:{0x8000 + ((t-t0)>>2)*1024}")
            if t - t0 == 11: a("s_waitcnt lgkmcnt(4)")
        a("s_waitcnt lgkmcnt(0)")
    def dots(i0, i1, vm, every):
        for i in range(i0, i1):
            if vm and (i - i0) % every == 0: a(vm.pop(0))
            a(f"v_dot2c_f32_bf16 v{DA+(i&1)}, v{XREG+i}, v{vC}")
            a(f"v_dot2c_f32_bf16 v{DA+2+(i&1)}, v{XREG+i}, v{XREG+i}")
        assert not vm
    xrd(0, 16)
    vm = fills + xdma(4, 7)
    TP = OPT.get("tp", 1)
    tch = [w1_touch(0), w1_touch(1)]
    wl = (tch if TP == 0 else []) + a1_wraw_ops(32, 84, 1, sT[8], sT[9], sT[11]) + [f"buffer_load_dword v234, v235, {SWO}, {sT[13]} offen"] + (tch if TP == 1 else [])
    nwl = len(wl)
    a.xstamp(24)
    dots(0, 64, vm, 3)
    a.xstamp(25)
    a(f"""
    s_waitcnt vmcnt(12)
    s_barrier
    s_cmp_eq_u32 {sW}, 0
    s_cbranch_scc1 {L}_sg
    {L}_sgr:
    """)
    a.stubs += [l for l in f"""{L}_sg:
    s_lshl_b64 s[76:77], 1, {sXSH}
    s_and_b32 s77, s77, 0xffff
    s_or_b32 s77, s77, 0x10000
    s_and_b32 {sT[0]}, s2, 3
    s_lshl_b32 {sT[0]}, {sT[0]}, 6
    s_bfe_u32 {sT[1]}, s2, 0x10002
    s_lshl_b32 {sT[1]}, {sT[1]}, 3
    s_add_u32 {sT[0]}, {sT[0]}, {sT[1]}
    v_mov_b32 v2, s76
    v_mov_b32 v3, s77
    s_mov_b64 exec, 1
    buffer_atomic_add_x2 v[2:3], off, {SDBG}, {sT[0]} offset:16 sc1
    s_mov_b64 exec, -1
    s_branch {L}_sgr""".split("\n")]
    a.stamp("a1_main")
    LA = 3
    def rd(t):
        for s_ in range(2):
            b = WFR + 8 * (t & 3) + 4 * s_
            a1_rd(a, 2 * t + s_, lambda o, b=b: vr(b + o, 2))
    def cs(win, n):
        a(f"s_lshl_b32 {sT[0]}, {sW}, 11\n v_add_u32 v2, {sT[0]}, v{TRA+win}\n v_add_u32 v3, {sT[0]}, v{TRA+3+win}")
        regs = [16, 24, 208, 216]
        for i in range(n):
            for s_ in range(2):
                a(f"ds_read_b64_tr_b16 {vr(regs[i]+4*s_,2)}, v2 offset:{8192*i+1024*s_}")
                a(f"ds_read_b64_tr_b16 {vr(regs[i]+4*s_+2,2)}, v3 offset:{8192*i+1024*s_}")
        a("s_waitcnt lgkmcnt(0)")
        for i in range(n):
            for k in range(4):
                a(f"v_dot2c_f32_bf16 v{CSK}, v{regs[i]+k}, v{vC}")
                a(f"v_dot2c_f32_bf16 v{CSV}, v{regs[i]+4+k}, v{vC}")
    def loop(t0, t1):
        for t in range(t0, t0 + LA): rd(t)
        for t in range(t0, t1):
            if t + LA < t1: rd(t + LA)
            a(f"s_waitcnt lgkmcnt({4*min(LA, t1-1-t)})")
            w = WFR + 8 * (t & 3)
            x = vr(XREG + 4 * t, 4)
            c = lambda base: (vr(base, 16) if t else "0")
            a(f"{MF} {vr(ACK,16)}, {x}, {vr(w,4)}, {c(ACK)}")
            a(f"{MF} {vr(ACV,16)}, {x}, {vr(w+4,4)}, {c(ACV)}")
            if wl: a(wl.pop(0))
    loop(0, 16)
    assert not wl
    a.xstamp(26)
    NPT = 0
    if OPT.get("pt", 0):
        sh = OPT.get("pt")
        a(f"v_lshlrev_b32 v236, {sh}, v{vLANE}")
        if sh >= 19: a(f"v_min_u32 v236, 0x1180000, v236")
        for srd in (SB1, SB2, SOUT, SWS, SW2):
            a(f"buffer_load_dword v234, v236, {srd}, 0 offen"); NPT += 1
        nwl += NPT
    cs(0, 4)
    a.xstamp(27)
    a(f"s_waitcnt vmcnt({nwl})")
    a.xstamp(28)
    xrd(16, 28)
    NRA = 4
    ra = big_dma_ops(1, 16, 8, 0x8000)
    dots(64, 112, ra[:NRA], 8)
    a(f"v_add_f32 v{vM}, v{DA}, v{DA+1}\n v_add_f32 v{vR}, v{DA+2}, v{DA+3}")
    a.halfsum(f"v{vM}", f"v{DA}")
    a.halfsum(f"v{vR}", f"v{DA+1}")
    a(f"""
    v_mul_f32 v{vM}, {fbits(1/448)}, v{vM}
    v_mul_f32 v{vR}, {fbits(1/448)}, v{vR}
    v_fma_f32 v{vR}, -v{vM}, v{vM}, v{vR}
    v_max_f32 v{vR}, 0, v{vR}
    """)
    for o in rowstats_ops(): a(o)
    a.xstamp(29)
    a(f"s_waitcnt vmcnt({8+NRA+NPT+(2 if TP == 1 else 0)})\n s_barrier")
    a.xstamp(30)
    cs(1, 3)
    a(f"""
    v_mov_b32 v22, v{CSK}
    v_mov_b32 v23, v{CSV}
    v_permlane32_swap_b32 v{CSK}, v22
    v_permlane32_swap_b32 v{CSV}, v23
    v_add_f32 v22, v{CSK}, v22
    v_add_f32 v23, v{CSV}, v23
    s_lshl_b32 {sT[0]}, {sW}, 2
    v_lshlrev_b32 v10, 4, v{vL31}
    v_add_u32 v10, 0x27800, v10
    v_add_u32 v11, {sT[0]}, v10
    ds_write_b32 v11, v22 offset:512
    ds_write_b32 v11, v23 offset:1024
    s_lshl_b32 {sT[13]}, {sW}, 13
    """)
    a.loc_issue(228)
    a.xstamp(31)
    wl += ra[NRA:NRA + 12]
    a.ra_rest = ra[NRA + 12:]
    loop(16, 28)
    assert not wl
    T23 = OPT.get("t23", 1)
    if T23 == 1:
        a(w1_touch(2)); a(w1_touch(3))
    a.xstamp(21)
    a("s_barrier")
    for k in range(1, 3): a(f"ds_read_b128 {vr(16+4*k,4)}, v10 offset:{512*k}")
    a(f"s_waitcnt vmcnt({14 if T23 == 1 else 12})")
    a.loc_eval(228)
    a(f"""
    s_waitcnt lgkmcnt(0)
    v_add_f32 v20, v20, v21
    v_add_f32 v22, v22, v23
    v_add_f32 v24, v24, v25
    v_add_f32 v26, v26, v27
    v_add_f32 v{CSK}, v20, v22
    v_add_f32 v{CSV}, v24, v26
    """)

def a1_it0_q(a, ret):
    QLA, QB = 4, 32
    def qrd(t): a1_rd(a, 56 + t, lambda o, t=t: vr(QB + 4 * (t & 7) + o, 2))
    a(f"""
    s_lshl_b32 {sT[0]}, {sW}, 10
    v_add_u32 v176, {sT[0]}, v{TRA+1}
    v_add_u32 v177, {sT[0]}, v{TRA+4}
    v_add_u32 v178, {sT[0]}, v{TRA+2}
    v_add_u32 v179, {sT[0]}, v{TRA+5}
    v_mov_b32 v180, 0
    """)
    for i in range(7):
        ad = a1_lds(56 + 4 * i); b = 176 if (ad >> 16) == 1 else 178
        a(f"ds_read_b64_tr_b16 {vr(196+4*i,2)}, v{b} offset:{ad & 0xffff}")
        a(f"ds_read_b64_tr_b16 {vr(196+4*i+2,2)}, v{b+1} offset:{ad & 0xffff}")
    a("s_waitcnt lgkmcnt(0)")
    for t in range(QLA): qrd(t)
    for j in range(28): a(f"v_dot2c_f32_bf16 v180, v{196+j}, v{vC}")
    a(f"""
    v_mov_b32 v181, v180
    v_permlane32_swap_b32 v180, v181
    v_add_f32 v180, v180, v181
    s_waitcnt lgkmcnt(0)
    ds_write_b32 v11, v180
    """)
    assert not a.ra_rest
    w2q = big_dma_ops(1, 24, 4, 0, sT[13])
    b1_tr_addr(a, 182, sLB)
    st = [f"ds_read_b64_tr_b16 {ar(aW1 + 8*t + 4*i + 2*u, 2)}, v{182+i} offset:{0x8000 + t*2048 + 4*u*128}" for t in range(8) for i in range(2) for u in range(2)]
    a("s_waitcnt vmcnt(3)")
    lq = [("q", t) for t in range(QLA) for _ in range(2)]
    for t in range(28):
        if t + QLA < 28:
            qrd(t + QLA); lq += [("q", t + QLA)] * 2
        idx = max(i for i, x in enumerate(lq) if x == ("q", t))
        a(f"s_waitcnt lgkmcnt({min(15, len(lq) - 1 - idx)})")
        a(f"{MF} {vr(ACQ,16)}, {vr(QB+4*(t&7),4)}, {vr(XREG+4*t,4)}, {vr(ACQ,16) if t else '0'}")
        for _ in range(2 if t < 8 or t >= 24 else 1):
            if st:
                a(st.pop(0)); lq.append(("s", 0))
        if t % 3 == 0 and w2q: a(w2q.pop(0))
    assert not w2q and not st
    a("s_waitcnt lgkmcnt(0)")
    a(f"""
    s_barrier
    ds_read_b128 v[176:179], v10
    v_lshlrev_b32 v180, 2, v{vL31}
    v_add_u32 v180, {CSL}, v180
    s_add_u32 s79, {sT[13]}, 0x20000
    s_cmp_eq_u32 {sW}, 3
    s_cselect_b32 s79, 0x16000, s79
    """)
    kvr_loads(a)
    a(f"""
    s_waitcnt lgkmcnt(0)
    v_add_f32 v176, v176, v177
    v_add_f32 v178, v178, v179
    v_add_f32 v176, v176, v178
    ds_write_b32 v180, v176
    s_branch {ret}
    """)

def a1_it1(a):
    LA = 2
    a1_tr_setup(a, 1)
    a(f"""
    s_lshl_b32 {sT[0]}, {sRB}, 2
    s_add_u32 {sT[0]}, {sT[0]}, {sW}
    s_mul_i32 {sAT[0]}, {sT[0]}, {28*1024}
    s_add_u32 {sAT[0]}, {sAT[0]}, {XF}
    s_add_u32 {sAT[1]}, {sAT[0]}, 0x2000
    s_add_u32 {sAT[2]}, {sAT[0]}, 0x4000
    s_add_u32 {sAT[3]}, {sAT[0]}, 0x6000
    s_mul_i32 {sT[8]}, {sT[0]}, 3584
    s_add_u32 {sT[8]}, {sT[8]}, {ST2}
    """)
    a.counter_issue(132, 1)
    def xload(t):
        a(f"buffer_load_dwordx4 {vr(XREG+4*t,4)}, v{vL16b if t&4 else vL16}, {SWS}, {sAT[t>>3]} offen offset:{(t&3)*1024} {SC}")
    def rd(t):
        for s_, f in enumerate((2 * t, 2 * t + 1, 56 + t)):
            b = WFR + 12 * (t % 3) + 4 * s_
            a1_rd(a, f, lambda o, b=b: vr(b + o, 2))
    NX = OPT.get("nx", 16)
    OX = OPT.get("ox", 8)
    def sx():
        stats_loads(a, sT[8], 32)
        for t in range(OX): xload(t)
    sx()
    a(f"s_waitcnt vmcnt({7+OX})\n s_barrier")
    for t in range(LA): rd(t)
    a(f"s_waitcnt vmcnt({OX})")
    a.check(range(32, 46), sx, OX, 2)
    for t in range(OX, NX): xload(t)
    a.nstamp -= 2
    a.stamp()
    for o in stats_math_ops(32, vM, vR, 16) + rowstats_ops(): a(o)
    a.counter_check(132, 32)
    a.stamp()
    if STAMPS: a.names = a.names[:-2]
    a("s_waitcnt lgkmcnt(0)")
    wq = wo_ops(); nd = [0]
    def xchk(t, now):
        hi = min(28, now + NX)
        n = hi - t - 4 + nd[0]
        a(f"s_waitcnt vmcnt({n})")
        a.check(range(XREG + 4 * t, XREG + 4 * t + 16), lambda t=t, hi=hi: [xload(tt) for tt in range(t, hi)], n if nd[0] == 0 else 0)
    xchk(0, 0)
    for t in range(28):
        if t + LA < 28: rd(t + LA)
        a(f"s_waitcnt lgkmcnt({6*min(LA, 27-t)})")
        w = WFR + 12 * (t % 3)
        x = vr(XREG + 4 * t, 4)
        c = lambda base: (vr(base, 16) if t else "0")
        a(f"{MF} {vr(ACK,16)}, {x}, {vr(w,4)}, {c(ACK)}")
        if t + NX < 28: xload(t + NX)
        elif wq:
            a(wq.pop(0)); nd[0] += 1
        a(f"{MF} {vr(ACV,16)}, {x}, {vr(w+4,4)}, {c(ACV)}")
        if t % 4 == 3 and t + 1 < 28: xchk(t + 1, t + 1)
        a(f"{MF} {vr(ACQ,16)}, {vr(w+8,4)}, {x}, {c(ACQ)}")
    a.wo_rest = wq
    a("s_barrier")

def phase_a1(a):
    L = a.label("A1")
    RR, MM, T0 = 176, 192, 208
    a(f"s_cmp_eq_u32 {sIT}, 0\n s_cbranch_scc0 {L}_it1")
    a1_it0(a)
    a(f"s_branch {L}_epi\n {L}_it1:")
    a1_it1(a)
    a(f"""
    {L}_epi:
    """)
    a.stamp("a1_epi")
    for q in range(4):
        a(f"ds_read_b128 {vr(MM+4*q,4)}, v{vRS} offset:{128+32*q}")
        a(f"ds_read_b128 {vr(RR+4*q,4)}, v{vRS} offset:{32*q}")
    a(f"""
    s_mov_b32 {sT[3]}, {fbits(1e-6)}
    v_mov_b32 v0, {fbits(1e-6)}
    v_mov_b32 v1, {fbits(LOG2E)}
    s_lshl_b32 {sT[0]}, {sW}, 12
    s_add_u32 {sT[0]}, {sT[0]}, 0x10000
    v_add_u32 v2, {sT[0]}, v{vL16}
    s_lshl_b32 {sT[5]}, {sW}, 10
    s_add_u32 {sT[0]}, {sT[5]}, 0x10000
    v_add_u32 v3, {sT[0]}, v{vL16}
    s_lshl_b32 {sT[6]}, {sH}, 4
    s_add_u32 {sT[6]}, {sT[6]}, {sRB}
    s_lshl_b32 {sT[6]}, {sT[6]}, 12
    s_add_u32 {sT[6]}, {sT[6]}, {sT[5]}
    s_lshr_b32 {sT[6]}, {sT[6]}, 1
    s_add_u32 {sT[6]}, {sT[6]}, {sITO}
    s_add_u32 {sT[6]}, {sT[6]}, {KVP}
    s_waitcnt lgkmcnt(0)
    """)
    k0, v0 = ACK, ACV
    P = lambda b, r: vr(b + 2 * r, 2)
    CS = vr(CSK, 2)
    for r in range(8): a(f"v_pk_fma_f32 {P(k0,r)}, {P(MM,r)}, {CS}, {P(k0,r)} op_sel_hi:[1,0,1] neg_lo:[1,0,0] neg_hi:[1,0,0]")
    for r in range(8): a(f"v_pk_fma_f32 {P(k0,r)}, {P(k0,r)}, {P(RR,r)}, v[0:1] op_sel_hi:[1,1,0]")
    for r in range(8): a(f"v_pk_mul_f32 {P(T0,r)}, {P(k0,r)}, v[0:1] op_sel:[0,1] op_sel_hi:[1,1]")
    for r in range(8):
        a(f"v_exp_f32_e64 v{T0+2*r}, v{T0+2*r} clamp")
        a(f"v_max_f32 v{k0+2*r}, {sT[3]}, v{k0+2*r}")
        a(f"v_exp_f32_e64 v{T0+2*r+1}, v{T0+2*r+1} clamp")
        a(f"v_max_f32 v{k0+2*r+1}, {sT[3]}, v{k0+2*r+1}")
        a(f"v_pk_fma_f32 {P(v0,r)}, {P(MM,r)}, {CS}, {P(v0,r)} op_sel:[0,1,0] op_sel_hi:[1,1,1] neg_lo:[1,0,0] neg_hi:[1,0,0]")
    for r in range(8): a(f"v_pk_mul_f32 {P(v0,r)}, {P(v0,r)}, {P(RR,r)}")
    for r in range(8): a(f"v_pk_add_f32 {P(k0,r)}, {P(k0,r)}, {P(T0,r)}")
    for r in range(8): a(f"v_cvt_pk_bf16_f32 v{v0+r}, v{v0+2*r}, v{v0+2*r+1}")
    a("s_mov_b32 exec_lo, 0xf0000000\n s_mov_b32 exec_hi, 0xf0000000")
    for r in range(8): a(f"v_mov_b32 v{ACV+r}, 0x3f803f80")
    a("s_mov_b64 exec, -1")
    for r in range(8): a(f"v_cvt_pk_bf16_f32 v{k0+r}, v{k0+2*r}, v{k0+2*r+1}")
    KVA = 176
    a(f"{MF} {vr(KVA,16)}, {vr(ACK,4)}, {vr(ACV,4)}, 0")
    a(f"{MF} {vr(KVA,16)}, {vr(ACK+4,4)}, {vr(ACV+4,4)}, {vr(KVA,16)}")
    for q in range(4): a(f"ds_write_b128 v2, {vr(KVA+4*q,4)} offset:{KVL+1024*q}")
    a("s_waitcnt lgkmcnt(0)\n s_barrier")
    for w2 in range(4): a(f"ds_read_b128 {vr(192+4*w2,4)}, v3 offset:{KVL+4096*w2}")
    a(f"""
    s_waitcnt lgkmcnt(0)
    v_pk_add_f32 v[192:193], v[192:193], v[196:197]
    v_pk_add_f32 v[194:195], v[194:195], v[198:199]
    v_pk_add_f32 v[200:201], v[200:201], v[204:205]
    v_pk_add_f32 v[202:203], v[202:203], v[206:207]
    v_pk_add_f32 v[192:193], v[192:193], v[200:201]
    v_pk_add_f32 v[194:195], v[194:195], v[202:203]
    v_cvt_pk_bf16_f32 v192, v192, v193
    v_cvt_pk_bf16_f32 v193, v194, v195
    buffer_store_dwordx2 v[192:193], v{vL8}, {SWS}, {sT[6]} offen {SC}
    """)
    a.stamp("a1_kvp")
    kvr_setup(a)
    a(f"s_cmp_eq_u32 {sIT}, 0\n s_cbranch_scc1 {L}_cq\n {L}_cqr:")
    main = a.lines; a.lines = a.stubs
    a(f"{L}_cq:")
    a1_it0_q(a, f"{L}_cqr")
    a.lines = main
    T1 = 208
    a(f"v_lshlrev_b32 v2, 4, v{vHH}\n v_add_u32 v2, {CSL}, v2")
    for q in range(4): a(f"ds_read_b128 {vr(T1+4*q,4)}, v2 offset:{32*q}")
    a(f"""
    s_lshl_b32 {sT[5]}, {sRB}, 2
    s_add_u32 {sT[5]}, {sT[5]}, {sW}
    s_lshl_b32 {sT[5]}, {sT[5]}, 4
    s_add_u32 {sT[5]}, {sT[5]}, {sH}
    s_lshl_b32 {sT[5]}, {sT[5]}, 11
    s_add_u32 {sT[5]}, {sT[5]}, {sITO}
    s_waitcnt lgkmcnt(0)
    """)
    for r in range(8): a(f"v_pk_fma_f32 {P(ACQ,r)}, {P(T1,r)}, v[{vM}:{vR}], {P(ACQ,r)} op_sel_hi:[1,0,1] neg_lo:[1,0,0] neg_hi:[1,0,0]")
    for r in range(8): a(f"v_pk_fma_f32 {P(ACQ,r)}, {P(ACQ,r)}, v[{vM}:{vR}], v[0:1] op_sel:[0,1,0] op_sel_hi:[1,1,0]")
    for r in range(8): a(f"v_pk_mul_f32 {P(T1,r)}, {P(ACQ,r)}, v[0:1] op_sel:[0,1] op_sel_hi:[1,1]")
    for r in range(16):
        a(f"v_exp_f32_e64 v{T1+r}, v{T1+r} clamp")
        a(f"v_max_f32 v{ACQ+r}, {sT[3]}, v{ACQ+r}")
    for r in range(8): a(f"v_pk_add_f32 {P(ACQ,r)}, {P(ACQ,r)}, {P(T1,r)}")
    for r in range(8): a(f"v_cvt_pk_bf16_f32 v{T1+r}, v{ACQ+2*r}, v{ACQ+2*r+1}")
    a.lstore([f"buffer_store_dwordx4 {vr(T1,4)}, v{vL16}, {SWS}, {sT[5]} offen", f"buffer_store_dwordx4 {vr(T1+4,4)}, v{vL16}, {SWS}, {sT[5]} offen offset:1024"])
    a.stamp("a1_end")

def helper_index(a):
    a(f"""
    s_and_b32 {sT[0]}, s2, 7
    s_lshl_b32 {sT[0]}, {sT[0]}, 2
    s_lshr_b32 {sT[1]}, s2, 3
    s_add_u32 {sT[0]}, {sT[0]}, {sT[1]}
    s_sub_u32 {sT[0]}, {sT[0]}, 28
    s_lshl_b32 {sT[0]}, {sT[0]}, 2
    s_add_u32 {sT[0]}, {sT[0]}, {sW}         ; hw 0..127
    """)

KB, KAD, KSA = 128, 190, 191
def kvr_setup(a):
    t2, t3, t4, t5 = 184, 185, 186, 187
    a(f"""
    v_lshrrev_b32 v{t2}, 4, v{vLANE}
    v_and_b32 v{t3}, 15, v{vLANE}
    v_lshlrev_b32 v{t2}, 11, v{t2}
    v_lshl_add_u32 v{KAD}, v{t3}, 3, v{t2}
    s_lshr_b32 {sT[0]}, s2, 3
    s_lshr_b32 {sT[1]}, {sT[0]}, 1
    s_and_b32 {sT[8]}, {sT[0]}, 1
    s_lshl_b32 {sT[6]}, {sT[1]}, 15
    s_lshl_b32 {sT[4]}, {sT[8]}, 10
    s_add_u32 {sT[6]}, {sT[6]}, {sT[4]}
    s_lshl_b32 {sT[4]}, {sW}, 7
    s_add_u32 {sT[6]}, {sT[6]}, {sT[4]}
    s_add_u32 {sT[6]}, {sT[6]}, {sITO}
    s_add_u32 {sT[6]}, {sT[6]}, {KVP}
    s_lshl_b32 {sT[4]}, {sWL}, 4
    v_add_u32 v{t3}, {sT[4]}, v{t3}
    v_cmp_le_u32 vcc, 14, v{t3}
    v_cndmask_b32 v{t4}, 0, 1, vcc
    v_mul_u32_u24 v{t5}, 14, v{t4}
    v_sub_u32 v{t5}, v{t3}, v{t5}
    v_cmp_le_u32 vcc, 28, v{t3}
    v_and_b32 v{t2}, 1, v{t3}
    v_add_u32 v{t2}, 14, v{t2}
    v_cndmask_b32 v{t5}, v{t5}, v{t2}, vcc
    v_bfe_u32 v{t2}, v{t3}, 1, 1
    v_cndmask_b32 v{t4}, v{t4}, v{t2}, vcc
    v_and_b32 v{t2}, 3, v{t5}
    v_lshrrev_b32 v{t5}, 2, v{t5}
    v_lshl_add_u32 v{t2}, v{t5}, 3, v{t2}
    v_lshl_add_u32 v{t2}, v{t4}, 2, v{t2}
    v_lshlrev_b32 v{KSA}, 4, v{t2}
    s_lshl_b32 {sT[7]}, {sT[0]}, 10
    s_lshl_b32 {sT[4]}, {sWH}, 9
    s_add_u32 {sT[7]}, {sT[7]}, {sT[4]}
    s_and_b32 {sT[4]}, s2, 7
    s_lshl_b32 {sT[4]}, {sT[4]}, 15
    s_add_u32 {sT[7]}, {sT[7]}, {sT[4]}
    s_add_u32 {sT[7]}, {sT[7]}, {sITO}
    s_add_u32 {sT[7]}, {sT[7]}, {KVF}
    s_and_b32 {sT[4]}, {sT[8]}, {sWH}
    s_cmp_eq_u32 {sT[4]}, 1
    s_cselect_b32 {sT[10]}, 0, -1
    """)
KL = 144
def kvr_loads(a):
    for i in range(4):
        a(f"s_add_u32 {sT[2]}, {sT[6]}, {i*0x2000}")
        a(f"buffer_load_dwordx2 {vr(KL+2*i,2)}, v{KAD}, {SWS}, {sT[2]} offen {SC}")
        a(f"buffer_load_dwordx2 {vr(KL+8+2*i,2)}, v{KAD}, {SWS}, {sT[2]} offen offset:512 {SC}")
def kvr_finish(a):
    B, SA = KB, KSA
    a(f"v_mov_b32 v{B+8}, 0x3f80\n v_mov_b32 v{B+9}, 0x3f800000")
    a.check(range(KL, KL + 16), lambda: (a(f"s_sleep {OPT.get('rsl', 5)}"), kvr_loads(a)), 0, 2)
    bs = (B, B + 4)
    for i in range(4):
        for k, b in enumerate(bs):
            for e in range(4):
                src = KL + 8 * k + 2 * i + (e >> 1)
                a(f"v_dot2_f32_bf16 v{b+e}, v{src}, v{B+8+(e&1)}, {'0' if i == 0 else 'v%d' % (b+e)}")
    for b in bs: a(f"v_permlane32_swap_b32 v{b}, v{b+2}\n v_permlane32_swap_b32 v{b+1}, v{b+3}")
    for b in bs: a(f"v_pk_add_f32 v[{b}:{b+1}], v[{b}:{b+1}], v[{b+2}:{b+3}]")
    for b in bs: a(f"v_permlane16_swap_b32 v{b}, v{b+1}")
    for b in bs: a(f"v_add_f32 v{b}, v{b}, v{b+1}")
    for b in bs: a(f"v_mov_b32 v{b+1}, v{b}")
    for b in bs: a(f"v_permlane16_swap_b32 v{b}, v{b+1}")
    O = B + 32
    a(f"""
    v_cvt_pk_bf16_f32 v{O}, v{B}, v{B+1}
    v_cvt_pk_bf16_f32 v{O+2}, v{B+4}, v{B+5}
    v_and_b32 v{O+2}, {sT[10]}, v{O+2}
    v_mov_b32 v{O+1}, v{O}
    v_mov_b32 v{O+3}, v{O+2}
    v_permlane32_swap_b32 v{O}, v{O+1}
    v_permlane32_swap_b32 v{O+2}, v{O+3}
    s_mov_b64 exec, 0xffff
    """)
    a.lstore([f"buffer_store_dwordx4 {vr(O,4)}, v{SA}, {SWS}, {sT[7]} offen"])
    a("s_mov_b64 exec, -1")

RED = 0x20000
def red_addrs(a, base, partner_xor, v_own, v_par):
    a(f"""
    s_lshl_b32 {sT[0]}, {sW}, 13
    s_add_u32 {sT[0]}, {sT[0]}, {base}
    v_add_u32 v{v_own}, {sT[0]}, v{vL16}
    v_xor_b32 v{v_par}, {partner_xor*8192}, v{v_own}
    """)
def pair_reduce(a, acc0, acc1, v_own, v_par, after_barrier=None):
    for q in range(4): a(f"ds_write_b128 v{v_own}, {vr(acc1+4*q,4)} offset:{1024*q}")
    a("s_waitcnt lgkmcnt(0)\n s_barrier")
    for q in range(4): a(f"ds_read_b128 {vr(acc1+4*q,4)}, v{v_par} offset:{1024*q}")
    if after_barrier: after_barrier()
    for q in range(4):
        a(f"s_waitcnt lgkmcnt({3-q})")
        for r in range(2): a(f"v_pk_add_f32 {vr(acc0+4*q+2*r,2)}, {vr(acc0+4*q+2*r,2)}, {vr(acc1+4*q+2*r,2)}")

def l2_warm(a, what):
    a(f"""
    s_lshr_b32 {sT[8]}, s2, 3
    s_sub_u32 {sT[8]}, {sT[8]}, 28
    s_and_b32 {sT[9]}, s2, 7
    v_mul_u32_u24 v12, 37, v{vLANE}
    v_lshrrev_b32 v12, 8, v12                ; lane/7
    v_mul_u32_u24 v13, 7, v12
    v_sub_u32 v13, v{vLANE}, v13
    v_min_u32 v12, 7, v12
    v_mul_u32_u24 v12, 3584, v12
    v_lshl_add_u32 v12, v13, 7, v12
    v_lshrrev_b32 v13, 2, v{vLANE}
    v_lshlrev_b32 v13, 12, v13
    v_and_b32 v14, 3, v{vLANE}
    v_lshl_add_u32 v13, v14, 7, v13
    """)
    for which, row0, nrows in what:
        q = nrows // 4
        if which == 1:
            a(f"""
            s_mul_i32 {sT[10]}, {sT[8]}, {512*3584}
            s_mul_i32 {sT[11]}, {sW}, {q*3584}
            s_add_u32 {sT[10]}, {sT[10]}, {sT[11]}
            s_lshr_b32 {sT[11]}, {sT[9]}, 1
            s_mul_i32 {sT[11]}, {sT[11]}, 896
            s_add_u32 {sT[10]}, {sT[10]}, {sT[11]}
            """)
            for i in range(q // 8):
                a(f"s_add_u32 {sT[11]}, {sT[10]}, {(row0 + 8*i)*3584}\n buffer_load_dword v15, v12, {SW1}, {sT[11]} offen")
        else:
            a(f"""
            s_mul_i32 {sT[10]}, {sT[8]}, {448*4096}
            s_mul_i32 {sT[11]}, {sW}, {q*4096}
            s_add_u32 {sT[10]}, {sT[10]}, {sT[11]}
            s_lshl_b32 {sT[11]}, {sT[9]}, 9
            s_add_u32 {sT[10]}, {sT[10]}, {sT[11]}
            """)
            for i in range(q // 16):
                a(f"s_add_u32 {sT[11]}, {sT[10]}, {(row0 + 16*i)*4096}\n buffer_load_dword v15, v13, {SW2}, {sT[11]} offen")

def helper_work(a):
    L = a.label("HW")
    a(f"""
    v_lshrrev_b32 v4, 2, v{vLANE}
    v_mul_u32_u24 v4, 2688, v4
    v_and_b32 v5, 3, v{vLANE}
    v_lshl_add_u32 v4, v5, 4, v4
    v_mov_b32 v8, -1
    v_mov_b32 v9, -1
    v_mov_b32 v10, -1
    v_mov_b32 v11, -1
    v_lshlrev_b32 v6, 7, v{vLANE}
    """)
    def warm(srd, lo, hi):
        if not OPT.get("warm", 1): return
        LL = a.label("HWW")
        a(f"""
        s_lshl_b32 {sT[1]}, {sT[0]}, 13
        s_add_u32 {sT[1]}, {sT[1]}, {lo}
        {LL}:
        buffer_load_dword v7, v6, {srd}, {sT[1]} offen
        s_add_u32 {sT[1]}, {sT[1]}, {128*8192}
        s_cmp_lt_u32 {sT[1]}, {hi}
        s_cbranch_scc1 {LL}
        """)
    def fill(lo, hi):
        LL = a.label("HWF")
        a(f"""
        s_lshl_b32 {sT[1]}, {sT[0]}, 10
        s_add_u32 {sT[1]}, {sT[1]}, {lo}
        {LL}:
        buffer_store_dwordx4 v[8:11], v{vL16}, {SWS}, {sT[1]} offen {SC}
        s_add_u32 {sT[1]}, {sT[1]}, {128*1024}
        s_cmp_lt_u32 {sT[1]}, {hi}
        s_cbranch_scc1 {LL}
        """)
    def signal(off):
        LL = a.label("HWS")
        a(f"""
        s_waitcnt vmcnt(0)
        s_barrier
        s_cmp_lg_u32 {sW}, 0
        s_cbranch_scc1 {LL}
        v_mov_b32 v2, 1
        v_mov_b32 v3, {off}
        s_mov_b64 exec, 1
        buffer_atomic_add v2, v3, {SDBG}, 0 offen sc1
        s_mov_b64 exec, -1
        {LL}:
        """)
        a.xstamp({196: 54, 4: 55, 68: 56, 132: 57}[off])
    fill(ST, UF)
    signal(196)
    if OPT.get('t23', 1) == 2: warm(SW1, 0, F * S * 2)
    if OPT.get('lw0', 0): l2_warm(a, [(1, 128, 128)])
    fill(UF, ITB)
    signal(4)
    if OPT.get('hw', 1) == 0: warm(SW2, 0, F * S * 2)
    for i in range(11):
        a(f"""
        s_add_u32 {sT[1]}, {sT[0]}, {128*i}
        s_min_u32 {sT[1]}, {sT[1]}, 1343
        s_mul_i32 {sT[2]}, {sT[1]}, 3121
        s_lshr_b32 {sT[2]}, {sT[2]}, 18
        s_mul_i32 {sT[3]}, {sT[2]}, 84
        s_sub_u32 {sT[3]}, {sT[1]}, {sT[3]}
        s_mul_i32 {sT[2]}, {sT[2]}, 56
        s_and_b32 {sT[2]}, {sT[2]}, 0xfff0
        s_lshr_b32 {sT[4]}, {sT[3]}, 1
        s_and_b32 {sT[5]}, {sT[3]}, 1
        s_add_u32 {sT[5]}, {sT[5]}, 1
        s_sub_u32 {sT[6]}, {sT[3]}, 56
        s_cmp_lt_u32 {sT[3]}, 56
        s_cselect_b32 {sT[4]}, {sT[4]}, {sT[6]}
        s_cselect_b32 {sT[5]}, {sT[5]}, 0
        s_mul_i32 {sT[4]}, {sT[4]}, {16*2688}
        s_mul_i32 {sT[5]}, {sT[5]}, 896
        s_add_u32 {sT[2]}, {sT[2]}, {sT[4]}
        s_add_u32 {sT[2]}, {sT[2]}, {sT[5]}
        buffer_load_dwordx4 {vr(16+4*i,4)}, v4, {SWQKV}, {sT[2]} offen
        """)
    a("s_waitcnt vmcnt(0)")
    for i in range(11):
        a(f"""
        s_add_u32 {sT[1]}, {sT[0]}, {128*i}
        s_min_u32 {sT[1]}, {sT[1]}, 1343
        s_lshl_b32 {sT[2]}, {sT[1]}, 10
        s_add_u32 {sT[2]}, {sT[2]}, {WQP}
        buffer_store_dwordx4 {vr(16+4*i,4)}, v{vL16}, {SWS}, {sT[2]} offen {SC}
        """)
    fill(XF, FILL_END)
    signal(68)
    if OPT.get('hw', 1) == 1: warm(SW2, 0, F * S * 2)
    if OPT.get('hw', 1) == 3: l2_warm(a, [(2, 0, 448)])
    fill(ITB, XF)
    signal(132)
    a.counter_wait(68, 1, 32, 2)
    a("s_barrier")
    a1_wpk_setup(a)
    for o in a1_wpk_own_ops() + a1_wpk_hi_ops(): a(o)

def phase_a2(a):
    L = a.label("A2")
    PQR, KVR, WB = 64, 128, 192
    AC0, AC1 = 16, 32
    a(f"""
    s_lshl_b32 {sT[5]}, {sST}, 1
    s_add_u32 {sT[5]}, {sT[5]}, {sWL}
    s_lshl_b32 {sAT[0]}, {sT[5]}, 15
    s_lshl_b32 {sT[1]}, {sWH}, 14
    s_add_u32 {sAT[0]}, {sAT[0]}, {sT[1]}
    s_add_u32 {sAT[0]}, {sAT[0]}, {sITO}
    s_add_u32 {sAT[1]}, {sAT[0]}, 0x2000
    s_add_u32 {sAT[2]}, {sT[1]}, {sITO}
    s_add_u32 {sAT[2]}, {sAT[2]}, {KVF}
    s_add_u32 {sAT[3]}, {sAT[2]}, 0x2000
    """)
    def pq_loads(i0=0, i1=16):
        for i in range(i0, i1):
            a(f"buffer_load_dwordx4 {vr(PQR+4*i,4)}, v{vL16b if i&4 else vL16}, {SWS}, {sAT[i>>3]} offen offset:{(i&3)*1024} {SC}")
    def kv_loads(i0=0):
        for i in range(i0, 16):
            a(f"buffer_load_dwordx4 {vr(KVR+4*i,4)}, v{vL16b if i&4 else vL16}, {SWS}, {sAT[2+(i>>3)]} offen offset:{(i&3)*1024} {SC}")
    a(f"""
    s_and_b32 {sT[0]}, s2, 7
    s_lshl_b32 {sT[0]}, {sT[0]}, 15
    s_add_u32 {sAT[2]}, {sAT[2]}, {sT[0]}
    s_add_u32 {sAT[3]}, {sAT[3]}, {sT[0]}
    v_min_u32 v4, 15, v{vLANE}
    v_lshlrev_b32 v4, 10, v4
    v_add_u32 v4, 1020, v4
    """)
    def stage(aw, n, va, off, urows):
        for t in range(n):
            for i in range(2):
                for u in range(2):
                    a(f"ds_read_b64_tr_b16 {ar(aw + 8*t + 4*i + 2*u, 2)}, v{va+i} offset:{off + t*2048 + urows*u*128}")
    def setup():
        a(f"s_lshl_b32 {sT[11]}, {sWH}, 16\n s_add_u32 {sT[11]}, {sT[11]}, 0x8000")
        wtile_tr_addr(a, 6, 14, sWH, sT[11])
        b1_tr_addr(a, 14, sLB)
        red_addrs(a, RED, 2, 8, 9)
        for r in range(16): a(f"v_mov_b32 v{AC0+r}, v{RES+r}")
        a(f"""
        s_mul_i32 {sT[8]}, {sT[5]}, 3584
        s_add_u32 {sT[8]}, {sT[8]}, {sITO}
        s_add_u32 {sT[8]}, {sT[8]}, {ST}
        s_lshl_b32 {sT[1]}, {sDT}, 1
        s_add_u32 {sT[1]}, {sT[1]}, {sWH}
        s_lshl_b32 {sT[9]}, {sT[1]}, 8
        s_add_u32 {sT[9]}, {sT[9]}, {sT[8]}
        s_lshl_b32 {sT[12]}, {sT[1]}, 17
        s_lshl_b32 {sT[0]}, {sT[5]}, 11
        s_add_u32 {sT[12]}, {sT[12]}, {sT[0]}
        s_add_u32 {sT[12]}, {sT[12]}, {sITO}
        s_add_u32 {sT[12]}, {sT[12]}, {HF}
        v_lshrrev_b32 v2, 1, v{vLANE}
        v_lshlrev_b32 v2, 9, v2
        v_and_b32 v3, 1, v{vLANE}
        v_mul_u32_u24 v3, 96, v3
        v_add_u32 v11, v2, v3
        """)
    a(f"s_cmp_eq_u32 {sIT}, 0\n s_cbranch_scc1 {L}_s0")
    PS = OPT.get("ps", 16)
    if OPT.get("sfirst", 0): setup()
    pq_loads(0, PS)
    kvr_loads(a)
    pq_loads(PS, 16)
    if not OPT.get("sfirst", 0): setup()
    P1M = OPT.get("p1m", 0)
    if P1M:
        a("s_barrier")
        for o in big_dma_ops(1, 0, 8, 0): a(o)
    a(f"s_waitcnt vmcnt({16-PS+(16 if P1M else 0)})\n {L}_s0r:")
    main = a.lines; a.lines = a.stubs
    a(f"{L}_s0:")
    for o in wo_ops(): a(o)
    setup()
    a(f"s_waitcnt vmcnt(17)\n s_branch {L}_s0r")
    a.lines = main
    kvr_finish(a)
    a.stamp("a2_pq")
    for o in a.wo_rest: a(o)
    a(f"s_cmp_eq_u32 {sIT}, 0\n s_cbranch_scc1 {L}_s1\n {L}_s1r:")
    main = a.lines; a.lines = a.stubs
    a(f"{L}_s1:")
    pq_loads()
    a(f"""
    v_mul_u32_u24 v2, 896, v{vL31}
    v_lshl_add_u32 v2, v{vHH}, 3, v2
    s_mul_i32 {sT[0]}, {sT[5]}, {32*896}
    s_lshl_b32 {sT[1]}, {sDT}, 7
    s_add_u32 {sT[0]}, {sT[0]}, {sT[1]}
    s_lshl_b32 {sT[1]}, {sWH}, 6
    s_add_u32 {sT[0]}, {sT[0]}, {sT[1]}
    """)
    for q in range(4): a(f"buffer_load_dwordx2 {vr(48+2*q,2)}, v2, {SX}, {sT[0]} offen offset:{16*q}")
    for o in big_dma_ops(1, 28, 4, 0, "s79"): a(o)
    a(f"s_lshl_b32 {sT[11]}, {sW}, 13\n s_sub_u32 {sT[11]}, {sT[11]}, {sLB}\n v_add_u32 v12, {sT[11]}, v14\n v_add_u32 v13, {sT[11]}, v15")
    stage(aW1 + 64, 4, 12, 0, 4)
    a(f"s_waitcnt lgkmcnt(0)\n s_branch {L}_s1r")
    a.lines = main
    a("s_waitcnt vmcnt(0)")
    a.check(range(PQR, PQR + 64), lambda: (a("s_sleep 4"), pq_loads()), 0)
    if not OPT.get('sub'): a.xstamp(59)
    a("s_barrier")
    NB = [48, RES, PQR]
    def num_ops(hd):
        n = NB[hd % 3]
        return [f"{MF} {vr(n,16)}, {vr(KVR+8*hd,4)}, {vr(PQR+8*hd,4)}, 0",
                f"{MF} {vr(n,16)}, {vr(KVR+8*hd+4,4)}, {vr(PQR+8*hd+4,4)}, {vr(n,16)}"]
    p1 = [] if P1M else big_dma_ops(1, 0, 8, 0)
    nd = [0]; ndc = [0]
    def kvchk(hd):
        a(f"s_waitcnt vmcnt({14-2*hd+nd[0]})")
        a.check(range(KVR + 8 * hd, KVR + 8 * hd + 8), lambda hd=hd: kv_loads(2 * hd), 0 if nd[0] else 14 - 2 * hd)
    def wrd_ops(hd):
        o = []
        for t in range(2):
            for nb in range(2):
                b = WB + 16 * (hd & 1) + 4 * (2 * t + nb)
                for u in range(2):
                    o.append(f"ds_read_b64_tr_b16 {vr(b+2*u,2)}, v{6+nb} offset:{(28*hd+8*t+4*u)*128}")
        return o
    def wrd(hd):
        for o in wrd_ops(hd): a(o)
    def div_ops(hd):
        n = NB[hd % 3]
        ops = [f"v_add_f32 v10, {fbits(1e-6)}, v{n+15}", "v_rcp_f32 v10, v10"]
        for r in range(14): ops.append(f"v_mul_f32 v{n+r}, v{n+r}, v10")
        for r in range(7): ops.append(f"v_cvt_pk_bf16_f32 v{n+r}, v{n+2*r}, v{n+2*r+1}")
        ops.append(f"v_mov_b32 v{n+7}, 0")
        return ops
    def out_ops(hd):
        ops = []
        for t in range(2):
            for nb in range(2):
                acc = (AC0, AC1)[nb]
                c = vr(acc, 16) if (hd or t or nb == 0) else "0"
                ops.append(f"{MF} {vr(acc,16)}, {vr(WB+16*(hd&1)+4*(2*t+nb),4)}, {vr(NB[hd%3]+4*t,4)}, {c}")
        return ops
    kv_loads()
    a(f"s_cmp_eq_u32 {sIT}, 0\n s_cbranch_scc1 {L}_s2\n {L}_s2r:")
    main = a.lines; a.lines = a.stubs
    a(f"{L}_s2:")
    a(f"s_sub_u32 {sT[11]}, s79, {sLB}\n v_add_u32 v12, {sT[11]}, v14\n v_add_u32 v13, {sT[11]}, v15")
    stage(aW1 + 96, 4, 12, 0, 4)
    a("s_waitcnt lgkmcnt(0)")
    for q in range(8): a(f"v_lshlrev_b32 v{AC0+2*q}, 16, v{48+q}\n v_and_b32 v{AC0+2*q+1}, 0xffff0000, v{48+q}")
    a(f"s_branch {L}_s2r")
    a.lines = main
    wrd(0)
    kvchk(0)
    for o in num_ops(0): a(o)
    a.stamp("a2_kv")
    kvchk(1)
    for o in num_ops(1): a(o)
    for o in div_ops(0): a(o)
    for hd in range(8):
        va = div_ops(hd + 1) if hd + 1 < 8 else []
        ds = wrd_ops(hd + 1) if hd + 1 < 8 else []
        mf = []
        if hd + 2 < 8:
            kvchk(hd + 2)
            mf += num_ops(hd + 2)
        nnum = len(mf)
        mf += out_ops(hd)
        per = -(-len(va) // len(mf))
        nds = 0
        for j, o in enumerate(mf):
            if j == nnum: a(f"s_waitcnt lgkmcnt({nds})")
            a(o)
            for _ in range(2):
                if ds:
                    a(ds.pop(0)); nds += 1
            if j >= 2 and p1:
                a(p1.pop(0)); nd[0] += 1
            for _ in range(per):
                if va: a(va.pop(0))
        assert not va and not ds
        if hd == 0:
            a.counter_issue(196, 1); nd[0] += 1; ndc[0] = nd[0]
    assert not p1
    a.stamp("a2_mm")
    pair_reduce(a, AC0, AC1, 8, 9)
    a(f"s_waitcnt vmcnt({nd[0] - ndc[0]})")
    a.counter_check(196, 32)
    stats_publish(a, AC0, 64, sT[9])
    p2 = big_dma_ops(1, 8, 8, 0x8000)
    n2 = 0
    for o in p2[:n2]: a(o)
    stats_loads(a, sT[8], 96)
    for r in range(16): a(f"v_mov_b32 v{RES+r}, v{AC0+r}")
    TW = 128
    a(f"""
    s_add_u32 {sT[0]}, {sLB}, 0x8000
    v_lshrrev_b32 v2, 1, v{vL31}
    v_and_b32 v2, 7, v2
    v_xor_b32 v2, v2, v{vHH}
    v_lshlrev_b32 v3, 6, v{vL31}
    v_add_u32 v3, {sT[0]}, v3
    """)
    for q in range(4): a(f"v_xor_b32 v4, {2*q}, v2\n v_lshl_add_u32 v{TW+q}, v4, 3, v3")
    a(f"""
    v_lshrrev_b32 v2, 2, v{vLANE}
    v_and_b32 v2, 3, v2
    v_lshl_add_u32 v2, v{vHH}, 3, v2
    v_lshrrev_b32 v3, 4, v{vLANE}
    v_and_b32 v3, 1, v3
    v_lshlrev_b32 v3, 2, v3
    v_and_b32 v4, 3, v{vLANE}
    v_add_u32 v3, v3, v4
    v_lshrrev_b32 v4, 1, v2
    v_xor_b32 v3, v3, v4
    v_lshlrev_b32 v2, 6, v2
    v_add_u32 v2, {sT[0]}, v2
    v_lshl_add_u32 v{TW+4}, v3, 3, v2
    v_xor_b32 v3, 2, v3
    v_lshl_add_u32 v{TW+5}, v3, 3, v2
    s_waitcnt vmcnt(0)
    """)
    a.check(range(96, 110), lambda: stats_loads(a, sT[8], 96), 0, 2)
    a.stamp("a2_st")
    for o in stats_math_ops(96, 80, 82, 112): a(o)
    a(f"""
    v_add_f32 v84, {fbits(1e-5)}, v82
    v_rsq_f32 v84, v84
    v_mov_b32 v86, {fbits(1e-5)}
    v_mul_f32 v85, v82, v84
    v_fmac_f32 v86, v85, v84
    v_rsq_f32 v86, v86
    v_mul_f32 v84, v84, v86
    v_mul_f32 v86, -v80, v84
    """)
    for r in range(8): a(f"v_pk_fma_f32 {vr(32+2*r,2)}, {vr(AC0+2*r,2)}, v[84:85], v[86:87] op_sel_hi:[1,0,0]")
    for r in range(8): a(f"v_cvt_pk_bf16_f32 v{112+r}, v{32+2*r}, v{32+2*r+1}")
    for q in range(4): a(f"ds_write_b64 v{TW+q}, {vr(112+2*q,2)}")
    a(f"""
    ds_read_b64_tr_b16 v[120:121], v{TW+4}
    ds_read_b64_tr_b16 v[122:123], v{TW+5} offset:256
    ds_read_b64_tr_b16 v[124:125], v{TW+4} offset:1024
    ds_read_b64_tr_b16 v[126:127], v{TW+5} offset:1280
    s_waitcnt lgkmcnt(2)
    buffer_store_dwordx4 v[120:123], v{vL16}, {SWS}, {sT[12]} offen {SC}
    s_waitcnt lgkmcnt(0)
    buffer_store_dwordx4 v[124:127], v{vL16}, {SWS}, {sT[12]} offen offset:1024 {SC}
    s_barrier
    """)
    a.p2rest = p2[n2:]

ACC, WBF, WIN = 8, 72, 104
NWF = 28
def ringoff(t): return ((t & 15) >> 3) * 0x8000 + (t & 7) * 2048
vTR, vPB = 6, 4
sA1 = [f"s{i}" for i in range(80, 88)]
sW2X = "s78"

def b1_tr_addr(a, vd, sbase):
    wtile_tr_addr(a, vd, 8, sWH, sbase)
    a(f"s_lshl_b32 {sT[2]}, {sWL}, 5\n v_xor_b32 v{vd}, {sT[2]}, v{vd}\n v_xor_b32 v{vd+1}, {sT[2]}, v{vd+1}")

class Stream:
    def __init__(self, a):
        self.a = a; self.q = []; self.issued = 0; self.dirty = False; self.lq = []
        self.LOOK = OPT.get("look", 12)
    def info(self, s):
        if s < 64: return 1, s >> 5, s & 31
        s -= 64
        return 2, s // 28, s % 28
    def areg(self, s): return WIN + 4 * (s % NWF)
    def ld(self, s):
        g, p, t = self.info(s)
        tab = (sA1 if g == 1 else sAT)[4 * p + (t >> 3)]
        return f"buffer_load_dwordx4 {vr(self.areg(s),4)}, v{vL16b if t&4 else vL16}, {SWS}, {tab} offen offset:{(t&3)*1024} {SC}"
    def issue_upto(self, n):
        while self.issued < min(n, 120):
            self.a(self.ld(self.issued)); self.q.append(("a", self.issued)); self.issued += 1
    def other(self, op, tag=("x", 0)):
        self.a(op); self.q.append(tag); self.dirty = True
    def cnt(self, item):
        idx = max(i for i, x in enumerate(self.q) if x == item)
        return min(len(self.q) - 1 - idx, 63)
    def check(self, s, n=4):
        a = self.a
        c = self.cnt(("a", s + n - 1))
        a(f"s_waitcnt vmcnt({c})")
        hi = self.issued
        regs = [self.areg(x) + k for x in range(s, s + n) for k in range(4)]
        a.check(regs, lambda: (a("s_sleep 1"), [a(self.ld(x)) for x in range(s, hi)]), 0 if self.dirty else c)

def wsrc(g, t, s, i, it, p, o=0, n=4):
    if g == 1:
        if t < 16: return vr(WBF + 8 * (s & 3) + 4 * i + o, n)
        return ar(aW1 + 8 * (t - 16) + 4 * i + o, n)
    if t >= 16: return vr(WBF + 8 * (s & 3) + 4 * i + o, n)
    return ar(aW2 + 8 * t + 4 * i + o, n)
def needs_rd(g, t, it, p):
    if g == 1: return t < 16
    return t >= 16 or (it == 0 and p == 0)

def run_steps(a, st, s0, s1, it, sched, tr, hooks={}):
    LA = 3
    def rd(s):
        if s >= s1 and not (s < 64 and s1 < 64) and not (s0 >= 64 and s < 120 and s1 < 120): return
        g, p, t = st.info(s)
        if not needs_rd(g, t, it, p): return
        if ("w", s) in st.q: a(f"s_waitcnt vmcnt({st.cnt(('w', s))})")
        urows = 4 if g == 1 else 8
        for i in range(2):
            for u in range(2):
                a(f"ds_read_b64_tr_b16 {wsrc(g,t,s,i,it,p,2*u,2)}, v{tr+i} offset:{ringoff(t) + urows*u*128}")
        st.lq.append(s)
    for s in range(s0, s1):
        g, p, t = st.info(s)
        if s in hooks: hooks[s]()
        if (s - (0 if g == 1 else 64)) % 4 == 0: st.check(s)
        if s == s0:
            for x in range(s0, s0 + LA):
                if x not in st.lq: rd(x)
        rd(s + LA)
        if needs_rd(g, t, it, p):
            n = len([x for x in st.lq if x > s])
            a(f"s_waitcnt lgkmcnt({4*n})")
        ex = list(sched.get(s, []))
        for i in range(2):
            if g == 1:
                acc = ACC + 32 * p + 16 * i
                c_ = vr(acc, 16) if (t or i == 0) else "0"
                a(f"{MF} {vr(acc,16)}, {wsrc(g,t,s,i,it,p)}, {vr(st.areg(s),4)}, {c_}")
            else:
                r_ = i + 2 * (1 - p)
                acc = B2ACC[r_]
                c_ = vr(acc, 16) if (t or r_ == 0) else "0"
                a(f"{MF} {vr(acc,16)}, {vr(st.areg(s),4)}, {wsrc(g,t,s,i,it,p)}, {c_}")
            if ex:
                o, tag = ex.pop(0); st.other(o, tag)
            tgt = s + 1 + OPT.get("look2", 12)
            if s < 92: tgt = min(tgt, max(92, s + 1 + OPT.get("lk2", 12)))
            st.issue_upto(min(tgt, st.issued + 1))
        assert not ex
B2ACC = {2: 8, 3: 24, 0: 40, 1: 56}

def b1_epilogue(a, st, p, s_store):
    A = ACC + 32 * p
    a("s_waitcnt lgkmcnt(0)")
    for r_ in (3, 2, 1):
        for k in range(2): a(f"ds_write_b128 v0, {vr(A+8*r_+4*k,4)} offset:{(r_-1)*2048+1024*k}")
    base = 32 * (p + 1)
    E1, E2 = OPT.get("e1", 16), OPT.get("e2", 20)
    st.issue_upto(base + E1)
    a("s_waitcnt lgkmcnt(0)\n s_barrier")
    for r_ in (1, 2, 3):
        for k in range(2): a(f"ds_read_b128 {vr(A+8*r_+4*k,4)}, v{r_} offset:{(r_-1)*2048+1024*k}")
    st.issue_upto(base + E2)
    if p == 0: a.counter_check(4, 32)
    for r_ in (1, 2, 3):
        a(f"s_waitcnt lgkmcnt({2*(3-r_)})")
        for k in range(4): a(f"v_pk_add_f32 {vr(A+2*k,2)}, {vr(A+2*k,2)}, {vr(A+8*r_+2*k,2)}")
    U, T = A, A + 8
    for r in range(4): a(f"v_pk_mul_f32 {vr(T+2*r,2)}, {vr(U+2*r,2)}, {vr(U+2*r,2)}")
    for r in range(4): a(f"v_pk_fma_f32 {vr(T+2*r,2)}, {vr(T+2*r,2)}, v[216:217], v[216:217] op_sel:[0,0,1] op_sel_hi:[1,0,1]")
    for r in range(4): a(f"v_pk_mul_f32 {vr(T+2*r,2)}, {vr(T+2*r,2)}, {vr(U+2*r,2)}")
    for r in range(8): a(f"v_exp_f32 v{T+r}, v{T+r}")
    for r in range(4): a(f"v_pk_add_f32 {vr(T+2*r,2)}, {vr(T+2*r,2)}, 1.0 op_sel_hi:[1,0]")
    for r in range(8): a(f"v_rcp_f32 v{T+r}, v{T+r}")
    for r in range(4): a(f"v_pk_mul_f32 {vr(T+2*r,2)}, {vr(T+2*r,2)}, {vr(U+2*r,2)}")
    for r in range(4): a(f"v_cvt_pk_bf16_f32 v{220+r}, v{T+2*r}, v{T+2*r+1}")
    st.other(f"buffer_store_dwordx4 v[220:223], v{vL16}, {SWS}, {s_store} offen {SC}")

def w2x_ops(p):
    return [o.replace(sW2B, sW2X) for o in big_dma_ops(2, p, 1, ringoff(p))]

def b2_setup(a):
    a(f"""
    s_lshl_b32 {sT[7]}, {sST}, 1
    s_add_u32 {sT[7]}, {sT[7]}, {sWL}
    v_lshlrev_b32 v3, 1, v{vL31}
    s_lshl_b32 {sT[0]}, {sT[7]}, 6
    buffer_load_ushort v{vKRS}, v3, {SB2}, {sT[0]} offen
    s_mul_i32 {sT[6]}, {sDT}, {224*1024}
    s_mul_i32 {sT[0]}, {sW}, {28*1024}
    s_add_u32 {sT[6]}, {sT[6]}, {sT[0]}
    s_add_u32 {sT[6]}, {sT[6]}, {sITO}
    s_add_u32 {sT[6]}, {sT[6]}, {UF}
    s_mul_i32 {sT[0]}, {sWH}, {112*1024}
    s_add_u32 {sAT[4]}, {sT[6]}, {sT[0]}
    s_sub_u32 {sT[0]}, {112*1024}, {sT[0]}
    s_add_u32 {sAT[0]}, {sT[6]}, {sT[0]}
    """)
    for k in range(1, 4):
        a(f"s_add_u32 {sAT[k]}, {sAT[0]}, {k*0x2000}\n s_add_u32 {sAT[4+k]}, {sAT[4]}, {k*0x2000}")
    wtile_tr_addr(a, 218, 4, sWL, sLB)
    a1_wpk_setup(a)
    a(f"""
    s_lshl_b32 {sT[5]}, {sDT}, 1
    s_add_u32 {sT[5]}, {sT[5]}, {sWH}
    s_mul_i32 {sT[8]}, {sT[7]}, {28*1024}
    s_lshl_b32 {sT[1]}, {sT[5]}, 11
    s_add_u32 {sT[8]}, {sT[8]}, {sT[1]}
    s_add_u32 {sT[8]}, {sT[8]}, {XF}
    s_mul_i32 {sT[9]}, {sT[7]}, 3584
    s_lshl_b32 {sT[1]}, {sT[5]}, 8
    s_add_u32 {sT[9]}, {sT[9]}, {sT[1]}
    s_add_u32 {sT[9]}, {sT[9]}, {ST2}
    s_mul_i32 {sT[12]}, {sT[7]}, {32*896}
    s_lshl_b32 {sT[1]}, {sT[5]}, 6
    s_add_u32 {sT[12]}, {sT[12]}, {sT[1]}
    s_mul_i32 {sW2X}, {sIT}, {16*16*4096}
    s_add_u32 {sW2X}, {sW2X}, {sW2B}
    """)

def phase_b(a):
    L = a.label("B")
    st = Stream(a)
    a(f"s_cmp_ge_u32 {sACT}, 7\n s_cbranch_scc1 {L}_skip")
    if OPT.get("p1m", 0):
        a(f"s_cmp_eq_u32 {sIT}, 0\n s_cbranch_scc1 {L}_p1\n {L}_p1r:")
        main = a.lines; a.lines = a.stubs
        a(f"{L}_p1:")
        for o in big_dma_ops(1, 0, 8, 0): a(o)
        a(f"s_branch {L}_p1r")
        a.lines = main
    P2F = OPT.get("p2f", 16)
    for o in a.p2rest[:P2F]: a(o)
    a.counter_issue(4, 1)
    a(f"""
    v_lshlrev_b32 v3, 3, v{vHH}
    s_lshl_b32 {sT[0]}, {sFT}, 7
    s_lshl_b32 {sT[1]}, {sW}, 5
    s_add_u32 {sT[0]}, {sT[0]}, {sT[1]}
    """)
    for q in range(2): a(f"buffer_load_dwordx2 {vr(24+2*q,2)}, v3, {SB1}, {sT[0]} offen offset:{16*q}")
    b2_setup(a)
    c0 = -2 * 0.7978845608028654 * LOG2E
    c1 = c0 * 0.044715
    a(f"""
    s_cmp_lt_u32 {sFT}, 14
    s_cselect_b32 {sT[4]}, 1, 0
    s_lshl_b32 {sT[10]}, {sDT1}, 18
    s_lshl_b32 {sT[3]}, {sW}, 15
    s_add_u32 {sT[10]}, {sT[10]}, {sT[3]}
    s_add_u32 {sT[10]}, {sT[10]}, {sITO}
    s_add_u32 {sT[10]}, {sT[10]}, {HF}
    s_lshl_b32 {sT[0]}, {sT[4]}, 17
    s_add_u32 {sA1[0]}, {sT[10]}, {sT[0]}
    s_xor_b32 {sT[0]}, {sT[0]}, 0x20000
    s_add_u32 {sA1[4]}, {sT[10]}, {sT[0]}
    """)
    for k in range(1, 4):
        a(f"s_add_u32 {sA1[k]}, {sA1[0]}, {k*0x2000}\n s_add_u32 {sA1[4+k]}, {sA1[4]}, {k*0x2000}")
    a(f"""
    s_mul_i32 {sT[11]}, {sDT1}, {224*1024}
    s_lshl_b32 {sT[1]}, {sFT}, 12
    s_add_u32 {sT[11]}, {sT[11]}, {sT[1]}
    s_lshl_b32 {sT[1]}, {sW}, 10
    s_add_u32 {sT[11]}, {sT[11]}, {sT[1]}
    s_add_u32 {sT[11]}, {sT[11]}, {sITO}
    s_add_u32 {sT[11]}, {sT[11]}, {UF}
    s_mul_i32 {sT[0]}, {sT[4]}, {112*1024}
    s_add_u32 {sT[3]}, {sT[11]}, {sT[0]}
    s_sub_u32 {sT[0]}, {112*1024}, {sT[0]}
    s_add_u32 {sT[4]}, {sT[11]}, {sT[0]}
    v_lshlrev_b32 v{vPB}, 10, v{vL31}
    v_lshl_add_u32 v{vPB}, v{vHH}, 17, v{vPB}
    v_add_u32 v{vPB}, 1020, v{vPB}
    v_mov_b32 v216, {fbits(c1)}
    v_mov_b32 v217, {fbits(c0)}
    """)
    b1_tr_addr(a, vTR, sLB)
    for r_ in range(4):
        a(f"s_xor_b32 {sT[0]}, {sW}, {r_}\n s_mul_i32 {sT[0]}, {sT[0]}, 0x1800\n s_add_u32 {sT[0]}, {sT[0]}, 0x20000\n v_add_u32 v{r_}, {sT[0]}, v{vL16}")
    NO = OPT.get("no", 8)
    a.probe(vPB, sT[10], 5, 1, extra=lambda: [a(st.ld(x)) for x in range(NO)], nextra=NO)
    a.stamp("probe")
    st.q = [("a", x) for x in range(NO)]; st.issued = NO
    st.issue_upto(st.LOOK)
    for q in range(4):
        for p in (1, 0):
            a(f"v_lshlrev_b32 v{ACC+32*p+2*q}, 16, v{24+q}\n v_and_b32 v{ACC+32*p+2*q+1}, 0xffff0000, v{24+q}")
    for r in range(8): a(f"v_mov_b32 v{ACC+8+r}, 0\n v_mov_b32 v{ACC+40+r}, 0")
    sch0 = {}
    for k in range(P2F, 16): sch0.setdefault((k - P2F) // 2, []).append((a.p2rest[k], ("w", 8 + k // 2)))
    run_steps(a, st, 0, 32, 1, sch0, vTR)
    a.stamp("b1_p0")
    b1_epilogue(a, st, 0, sT[3])
    ent = {}
    def body(it):
        s2 = Stream(a); s2.q = list(st.q); s2.issued = st.issued; s2.dirty = True; s2.lq = list(st.lq)
        sched = {}; later = []; pre = []
        def put(s_, ops, tag):
            sched.setdefault(s_, []).extend((o, tag) for o in ops)
            if s_ < 64: pre.extend(ops)
        if it == 0:
            W2S = OPT.get("w2s", 48)
            for p in range(16): put(max(W2S + p, 33 + p), big_dma_ops(2, p, 1, ringoff(p)), ("w", 64 + p))
            for k in range(16, 28): put(64 + k - OPT.get("rfl", 14), big_dma_ops(2, k, 1, ringoff(k)), ("w", 64 + k))
            hi = a1_wpk_hi_ops(); own = a1_wpk_own_ops()
            for k, o in enumerate(hi): put(64 + 28 + 12 + k, [o], ("x", 0))
            for p in range(8):
                s_ = 64 + 28 + 17 + p + OPT.get("wqd", 2)
                if s_ < 120: put(s_, own[2*p:2*p+2], ("x", 0))
                else: later += own[2*p:2*p+2]
        else:
            W2S = OPT.get("w2s1", 60)
            for k in range(16, 28): put(W2S + k - 16, big_dma_ops(2, k, 1, ringoff(k)), ("w", 64 + k))
        run_steps(a, s2, 32, 64, 1, sched, vTR, {48: lambda: a("s_barrier"), 56: lambda: (a.counter_issue(68, 1), s2.q.append(("c", 0)))})
        a.stamp("b1_p1")
        b1_epilogue(a, s2, 1, sT[4])
        a(f"{L}_e{it}:")
        ent[it] = (pre, s2.issued)
        a.stamp("b1_end")
        def init():
            a(f"s_waitcnt vmcnt({s2.cnt(('c', 0))})")
            a.counter_check(68, 32)
            a(f"v_lshlrev_b32 v5, 16, v{vKRS}")
            for r in range(16): a(f"v_add_f32 v{B2ACC[0]+r}, v{RES+r}, v5")
            a(f"v_add_u32 v0, {sLB}, v{vL16}\n v_xor_b32 v1, 0x4000, v0\n v_xor_b32 v2, 0x10000, v0\n v_xor_b32 v3, 0x14000, v0")
        def wr(r_, off):
            for k in range(4): a(f"ds_write_b128 v0, {vr(B2ACC[r_]+4*k,4)} offset:{off+1024*k}")
        def early():
            wr(2, 0xA000); wr(3, 0xB000)
            a("s_barrier")
        run_steps(a, s2, 64, 120, it, sched, 218, {72: init, 64 + 28 + 8: early})
        a.stamp("mm")
        wr(1, 0x9000)
        a("s_waitcnt lgkmcnt(0)\n s_barrier")
        for r_, of in ((2, 0xA000), (3, 0xB000), (1, 0x9000)):
            for k in range(4): a(f"ds_read_b128 {vr(B2ACC[r_]+4*k,4)}, v{r_} offset:{of+1024*k}")
        return later
    later = two_its(a, L, body)
    main = a.lines; blk = []; a.lines = blk
    a(f"{L}_skip:")
    b2_setup(a)
    a(f"s_cmp_eq_u32 {sIT}, 0\n s_cbranch_scc0 {L}_sk1")
    for o in ent[0][0]: a(o)
    a(f"s_branch {L}_sk2\n {L}_sk1:")
    for o in ent[1][0]: a(o)
    a(f"{L}_sk2:")
    a.counter_wait(4, 1, 32, 2)
    a.counter_issue(68, 1)
    a(f"v_min_u32 v{vPB}, 27, v{vLANE}\n v_lshlrev_b32 v{vPB}, 10, v{vPB}\n v_add_u32 v{vPB}, 1020, v{vPB}")
    a.probe(vPB, sAT[OPT.get('skp', 0)], 5, 1, sleep=4)
    assert ent[0][1] == ent[1][1]
    for x in range(64, ent[0][1]): a(st.ld(x))
    a(f"s_waitcnt vmcnt(0)\n s_cmp_eq_u32 {sIT}, 0\n s_cbranch_scc1 {L}_e0\n s_branch {L}_e1")
    a.lines = main; a.stubs += blk
    K0 = B2ACC[0]
    a(f"v_mul_u32_u24 v0, 896, v{vL31}\n v_lshl_add_u32 v0, v{vHH}, 3, v0")
    for n_, r_ in enumerate((2, 3, 1)):
        a(f"s_waitcnt lgkmcnt({4*(2-n_)})")
        for k in range(8): a(f"v_pk_add_f32 {vr(K0+2*k,2)}, {vr(K0+2*k,2)}, {vr(B2ACC[r_]+2*k,2)}")
    if OPT.get("pert"):
        a(f"s_add_u32 {sT[0]}, s2, {sW}\n s_cmp_eq_u32 {sT[0]}, 0\n s_cselect_b32 {sT[0]}, {sIT}, 0\n s_mov_b32 exec_lo, {sT[0]}\n s_mov_b32 exec_hi, 0\n v_add_f32 v{K0}, {fbits(OPT['pert']/1000)}, v{K0}\n s_mov_b64 exec, -1")
    for r in range(8): a(f"v_cvt_pk_bf16_f32 v{112+r}, v{K0+2*r}, v{K0+2*r+1}")
    a(f"s_cmp_eq_u32 {sIT}, 0\n s_cbranch_scc0 {L}_fin")
    a.lstore([f"buffer_store_dwordx4 v[112:115], v{vL16}, {SWS}, {sT[8]} offen", f"buffer_store_dwordx4 v[116:119], v{vL16}, {SWS}, {sT[8]} offen offset:1024"])
    stats_publish(a, K0, 72, sT[9])
    for o in later[0]: a(o)
    for r in range(16): a(f"v_mov_b32 v{RES+r}, v{K0+r}")
    a(f"s_branch {L}_end\n {L}_fin:")
    for q in range(4): a(f"buffer_store_dwordx2 {vr(112+2*q,2)}, v0, {SOUT}, {sT[12]} offen offset:{16*q}")
    a(f"{L}_end:")

def two_its(a, L, body):
    n0 = a.nstamp; names0 = list(getattr(a, "names", []))
    a(f"s_cmp_eq_u32 {sIT}, 0\n s_cbranch_scc0 {L}_i1")
    r0 = body(0)
    a(f"s_branch {L}_j\n {L}_i1:")
    a.nstamp = n0
    if STAMPS: a.names = names0
    r1 = body(1)
    a(f"{L}_j:")
    return r0, r1

def build():
    a = K(); a.stubs = []
    kernel_begin(a, KNAME)
    prologue(a)
    if STAMPS: a("v_mov_b32 v255, 0")
    if "echo" in OPT: a("s_memrealtime s[80:81]\n s_waitcnt lgkmcnt(0)\n s_mov_b32 s82, s80")
    a("L_iter:")
    a.stamp("start")
    phase_a1(a)
    a(f"s_cmp_ge_u32 {sACT}, 8\n s_cbranch_scc1 L_helper")
    phase_a2(a)
    a.stamp("a2_end")
    phase_b(a)
    a.stamp("b2_end")
    a(f"""
    L_next:
    s_cmp_eq_u32 {sIT}, 1
    s_cbranch_scc1 L_fin
    s_mov_b32 {sIT}, 1
    s_mov_b32 {sITO}, {ITB}
    s_branch L_iter
    L_helper:
    """)
    a(f"s_cmp_eq_u32 {sIT}, 0\n s_cbranch_scc1 L_hnl")
    kvr_loads(a)
    a("L_hnl:\n s_waitcnt vmcnt(0)")
    kvr_finish(a)
    helper_index(a)
    if not OPT.get('sub'): a.xstamp(53)
    a("s_waitcnt vmcnt(0)\n s_barrier")
    a(f"""
    s_cmp_eq_u32 {sIT}, 1
    s_cbranch_scc0 L_h0
    """)
    LW = OPT.get("lw", 1)
    if LW: l2_warm(a, ([(1, 0, 128)] if LW == 2 else []) + [(1, 128, 128), (2, 256, 192)])
    a("s_branch L_fin\n L_h0:")
    helper_work(a)
    a("s_branch L_next")
    a("L_fin:")
    a.stamp_dump()
    if "echo" in OPT:
        a("""
        s_memrealtime s[84:85]
        s_sub_u32 s82, s82, s80
        s_waitcnt lgkmcnt(0)
        s_mov_b32 s83, s84
        L_echo:
        s_memrealtime s[84:85]
        s_waitcnt lgkmcnt(0)
        s_sub_u32 s86, s84, s83
        s_cmp_lt_u32 s86, s82
        s_cbranch_scc1 L_echo
        """)
    a("L_end:\n s_endpgm")
    a.lines += a.stubs
    a.lines.append('L_codeend:')
    if STAMPS: open("stamps.txt", "w").write("\n".join(a.names))
    for i in range(len(a.lines) - 1):
        if a.lines[i].strip().startswith(f"s_add_u32 {sT[2]},") and a.lines[i+1].strip().startswith("s_add_u32 m0,"):
            a.lines[i], a.lines[i+1] = a.lines[i+1], a.lines[i]
    lines, n = haz.fix(a.lines)
    if OPT.get('align', 1):
        lines, st_ = align.align(lines, OPT.get('minrun', 5)); print('align', st_)
    hdr = f"; @launch grid=(256,1,1) block=(256,1,1) lds=163840\n"
    return hdr + '.amdgcn_target "amdgcn-amd-amdhsa--gfx950"\n.text\n' + "\n".join(lines) + "\n" + '.section .rodata,"a"\n' + descriptor(KNAME, 512, accum=256)

if __name__ == "__main__":
    out = sys.argv[1]
    for o in sys.argv[2:]:
        if o == "stamps": STAMPS = True
        else:
            k_, v_ = o.split("="); OPT[k_] = int(v_)
    open(out, "w").write(build())
```

```python
import sys, struct
sys.path.insert(0, "work")
from gen import *
import haz, align

KNAME = NAME + "_kernel"
S, D, F = 2048, 448, 1792
ITB = 0x4B8000 + 0x188000
PQ, KVP, KVF, ST, HF, UF = 0x0, 0x200000, 0x280000, 0x2C0000, 0x2F8000, 0x4B8000
assert UF + 14 * 112 * 1024 == ITB
XF = 2 * ITB
ST2 = XF + 0x1C0000
FILL_END = ST2 + 0x38000
WQP = 0x1000000
assert FILL_END <= WQP
STAMP_OFF = 0x2000000
WS_SIZE = 0x10000000
LOG2E = 1.4426950408889634
def fbits(x): return "0x%08x" % struct.unpack("<I", struct.pack("<f", x))[0]

SX, SWQKV, SWO, SW1, SW2, SB1, SB2, SOUT, SWS, SDBG = [f"s[{i}:{i+3}]" for i in range(4, 44, 4)]
sW, sRB, sH, sDT, sST, sFT, sACT, sIT, sITO, sBUD = "s3", "s44", "s45", "s46", "s47", "s48", "s49", "s50", "s51", "s52"
sWH, sWL, sLB = "s53", "s54", "s55"
sT = [f"s{i}" for i in range(56, 72)]
sW1B, sW2B = 's72', 's73'
sAT = [f"s{i}" for i in range(88, 96)]
SC = "sc1"
sA1 = [f"s{i}" for i in range(80, 88)]
sDT1, sLOC, sXSH = 's99', 's100', 's101'
STAMPS = False
OPT = {}

def vr(b, n=1): return f"v{b}" if n == 1 else f"v[{b}:{b+n-1}]"
def ar(b, n=1): return f"a{b}" if n == 1 else f"a[{b}:{b+n-1}]"
MF = "v_mfma_f32_32x32x16_bf16"

vL16, vL16b, vHH, vL31, vLANE, vL8, vDW1, vDW2, CSK, CSV, vDWO, vMAX, vCNT, vCNA = range(240, 254)
assert CSK % 2 == 0
RES = 224
vKRS = 254
aW1, aW2 = 0, 128

class K(Asm):
    nstamp = 0
    stubs = None
    def stamp(self, name=""):
        if "echo" in OPT:
            if self.nstamp == OPT["echo"] % 32:
                self(f"s_memrealtime s[84:85]\n s_waitcnt lgkmcnt(0)\n s_cmp_eq_u32 {sIT}, {OPT['echo'] // 32}\n s_cselect_b32 s82, s84, s82")
            self.nstamp += 1
            return
        if not STAMPS: return
        if OPT.get("bud"):
            self(f"s_lshl_b32 s98, {sIT}, 5\n s_add_u32 s98, s98, {self.nstamp}\n s_mov_b32 m0, s98\n v_writelane_b32 v255, {sBUD}, m0")
            self.names = getattr(self, "names", []) + [name]; self.nstamp += 1
            return
        self(f"{'s_memtime' if OPT.get('clk') else 's_memrealtime'} s[96:97]\n s_lshl_b32 s98, {sIT}, 5\n s_add_u32 s98, s98, {self.nstamp}\n s_waitcnt lgkmcnt(0)\n s_mov_b32 m0, s98\n v_writelane_b32 v255, s96, m0")
        self.names = getattr(self, "names", []) + [name]
        self.nstamp += 1
        assert self.nstamp <= 32
    def xstamp(self, idx):
        if not STAMPS: return
        self(f"{'s_memtime' if OPT.get('clk') else 's_memrealtime'} s[96:97]\n s_waitcnt lgkmcnt(0)\n v_writelane_b32 v255, s96, {idx}")
    def stamp_dump(self):
        if not STAMPS: return
        self(f"""
        s_lshl_b32 s98, s2, 2
        s_add_u32 s98, s98, {sW}
        s_lshl_b32 s98, s98, 8
        s_add_u32 s98, s98, {STAMP_OFF}
        v_lshlrev_b32 v2, 2, v{vLANE}
        buffer_store_dword v255, v2, {SWS}, s98 offen
        """)
        if "dbg" in OPT:
            sel = {0: list(range(0, 14)), 1: [0, 12, 14, 15, 16, 18, 19, 35, 37, 40, 43, 46, 50, 51]}[OPT["dbg"]]
            L = self.label("DS")
            self(f"s_lshl_b32 s98, s2, 2\n s_add_u32 s98, s98, {sW}\n s_cmp_eq_u32 s98, {OPT.get('dbgw', 1)}\n s_cbranch_scc0 {L}")
            self("v_readlane_b32 s97, v255, 0")
            for i, ln in enumerate(sel):
                self(f"v_readlane_b32 s96, v255, {ln}\n s_sub_u32 s96, s96, s97\n v_writelane_b32 v3, s96, {i}")
            self(f"s_mov_b64 exec, 0x3fff\n buffer_store_dword v3, v2, {SDBG}, 0 offen offset:8\n s_mov_b64 exec, -1\n {L}:")
    def srd(self, dst, ptr, size):
        b = int(dst[2:dst.index(":")])
        self(f"s_mov_b32 s{b}, s{ptr}\n s_mov_b32 s{b+1}, s{ptr+1}\n s_mov_b32 s{b+2}, {size}\n s_mov_b32 s{b+3}, 0x00020000")
    def halfsum(self, v, tmp):
        self(f"v_mov_b32 {tmp}, {v}\n v_permlane32_swap_b32 {v}, {tmp}\n v_add_f32 {v}, {v}, {tmp}")
    def check_ops(self, regs):
        regs = list(regs); ops = []
        if len(regs) == 1:
            return [f"v_cmp_eq_u32 vcc, -1, v{regs[0]}"]
        if len(regs) % 2 == 1:
            ops.append(f"v_max3_u32 v{vMAX}, v{regs[0]}, v{regs[1]}, v{regs[2]}"); rest = regs[3:]
        else:
            ops.append(f"v_max_u32 v{vMAX}, v{regs[0]}, v{regs[1]}"); rest = regs[2:]
        for i in range(0, len(rest), 2):
            ops.append(f"v_max3_u32 v{vMAX}, v{vMAX}, v{rest[i]}, v{rest[i+1]}")
        ops.append(f"v_cmp_eq_u32 vcc, -1, v{vMAX}")
        return ops
    def check_branch(self, regs, reissue, wait_after):
        L = self.label("CK")
        self(f"s_cbranch_vccnz {L}_r\n {L}_k:")
        main = self.lines
        self.lines = self.stubs
        self(f"{L}_r:\n s_cmp_le_i32 {sBUD}, 0\n s_cbranch_scc1 {L}_k\n s_sub_u32 {sBUD}, {sBUD}, 1")
        reissue()
        self(f"s_waitcnt vmcnt({wait_after})")
        for o in self.check_ops(regs): self(o)
        self(f"s_cbranch_vccnz {L}_r\n s_branch {L}_k")
        self.lines = main
    def check(self, regs, reissue, wait_after, gran=4):
        if OPT.get("c1", 1): regs = list(regs)[gran-1::gran]
        for o in self.check_ops(regs): self(o)
        self.check_branch(regs, reissue, wait_after)
    def probe_issue(self, voff, soff, vt, nreg=1):
        ld = {1: "buffer_load_dword", 4: "buffer_load_dwordx4"}[nreg]
        self(f"{ld} {vr(vt,nreg)}, v{voff}, {SWS}, {soff} offen {SC}")
    def probe(self, voff, soff, vt, nreg=1, issued=False, sleep=0, extra=None, nextra=0):
        L = self.label("PB")
        if issued: self(f"s_branch {L}_c")
        if sleep: self(f"s_branch {L}_q")
        self(f"{L}_p:")
        if sleep: self(f"s_sleep {sleep}\n {L}_q:")
        self.probe_issue(voff, soff, vt, nreg)
        if extra: extra()
        self(f"s_sub_u32 {sBUD}, {sBUD}, 1\n {L}_c:\n s_waitcnt vmcnt({nextra})")
        if nreg == 1: self(f"v_cmp_eq_u32 vcc, -1, v{vt}")
        else:
            for o in self.check_ops(range(vt, vt + nreg)): self(o)
        self(f"""
        s_cmp_gt_i32 {sBUD}, 0
        s_cselect_b64 vcc, vcc, 0
        s_cbranch_vccnz {L}_p
        """)
    def loc_issue(self, vd):
        self(f"""
        v_and_b32 v{vd+2}, 3, v{vLANE}
        v_lshlrev_b32 v{vd+2}, 6, v{vd+2}
        v_bfe_u32 v{vd+3}, v{vLANE}, 2, 1
        v_lshl_add_u32 v{vd+2}, v{vd+3}, 3, v{vd+2}
        buffer_load_dwordx2 {vr(vd,2)}, v{vd+2}, {SDBG}, 0 offen offset:16 sc1
        """)
    def loc_eval(self, vd):
        L = self.label("LE")
        self(f"v_cmp_gt_u32 vcc, 0x200000, v{vd+1}\n s_cbranch_vccnz {L}_r\n {L}_k:")
        main = self.lines; self.lines = self.stubs
        self(f"""
        {L}_r:
        s_cmp_le_i32 {sBUD}, 0
        s_cbranch_scc1 {L}_k
        s_sub_u32 {sBUD}, {sBUD}, 1
        s_sleep 8
        buffer_load_dwordx2 {vr(vd,2)}, v{vd+2}, {SDBG}, 0 offen offset:16 sc1
        s_waitcnt vmcnt(0)
        v_cmp_gt_u32 vcc, 0x200000, v{vd+1}
        s_cbranch_vccnz {L}_r
        s_branch {L}_k
        """)
        self.lines = main
        self(f"""
        s_and_b32 {sT[0]}, s2, 7
        v_readlane_b32 s76, v{vd}, {sT[0]}
        v_readlane_b32 s77, v{vd+1}, {sT[0]}
        s_and_b32 s77, s77, 0xffff
        s_lshr_b64 s[76:77], s[76:77], {sXSH}
        s_and_b32 s76, s76, 63
        s_cmp_eq_u32 s76, 32
        s_cselect_b32 {sLOC}, {1 if OPT.get("loc", 1) else 0}, 0
        """)
    def lstore(self, ops):
        L = self.label("LS")
        self(f"s_cmp_eq_u32 {sLOC}, 0\n s_cbranch_scc1 {L}_g")
        for o in ops: self(o)
        self(f"{L}_r:")
        main = self.lines; self.lines = self.stubs
        self(f"{L}_g:")
        for o in ops: self(o + " " + SC)
        self(f"s_branch {L}_r")
        self.lines = main
    def counter_issue(self, off, nsh):
        self(f"v_min_u32 v{vCNA}, {nsh-1}, v{vLANE}\n v_lshlrev_b32 v{vCNA}, 6, v{vCNA}")
        self(f"buffer_load_dword v{vCNT}, v{vCNA}, {SDBG}, 0 offen offset:{off} sc1")
    def counter_check(self, off, target):
        L = self.label("CC")
        self(f"v_cmp_gt_u32 vcc, {target}, v{vCNT}\n s_cbranch_vccnz {L}_r\n {L}_k:")
        main = self.lines
        self.lines = self.stubs
        self(f"""
        {L}_r:
        s_cmp_le_i32 {sBUD}, 0
        s_cbranch_scc1 {L}_k
        s_sub_u32 {sBUD}, {sBUD}, 1
        s_sleep 8
        buffer_load_dword v{vCNT}, v{vCNA}, {SDBG}, 0 offen offset:{off} sc1
        s_waitcnt vmcnt(0)
        v_cmp_gt_u32 vcc, {target}, v{vCNT}
        s_cbranch_vccnz {L}_r
        s_branch {L}_k
        """)
        self.lines = main
    def counter_wait(self, off, nsh, target, vt):
        L = self.label("CW")
        self(f"""
        v_lshlrev_b32 v{vt+1}, 6, v{vLANE}
        s_mov_b64 exec, {(1<<nsh)-1}
        {L}_p:
        buffer_load_dword v{vt}, v{vt+1}, {SDBG}, 0 offen offset:{off} sc1
        s_waitcnt vmcnt(0)
        v_cmp_gt_u32 vcc, {target}, v{vt}
        s_cbranch_vccz {L}_o
        s_cmp_le_i32 {sBUD}, 0
        s_cbranch_scc1 {L}_o
        s_sub_u32 {sBUD}, {sBUD}, 1
        s_sleep {OPT.get('cws', 12)}
        s_branch {L}_p
        {L}_o:
        s_mov_b64 exec, -1
        """)

def wtile_dma_voff(a, vdst, rowstride):
    a(f"""
    v_lshrrev_b32 v2, 3, v{vLANE}
    v_mul_u32_u24 v{vdst}, {rowstride}, v2
    v_lshrrev_b32 v2, 4, v{vLANE}
    v_and_b32 v2, 1, v2
    v_lshlrev_b32 v2, 2, v2
    v_and_b32 v3, 7, v{vLANE}
    v_xor_b32 v2, v2, v3
    v_lshl_add_u32 v{vdst}, v2, 4, v{vdst}
    """)

def wtile_tr_addr(a, vdst, hhrows, s_keep, s_base):
    a(f"""
    v_lshrrev_b32 v2, 2, v{vLANE}
    v_and_b32 v2, 3, v2
    v_mul_u32_u24 v3, {hhrows}, v{vHH}
    v_add_u32 v2, v2, v3
    v_bfe_u32 v3, v2, 1, 1
    v_xor_b32 v3, {s_keep}, v3
    v_lshlrev_b32 v2, 7, v2
    v_lshl_add_u32 v2, v3, 6, v2
    v_lshrrev_b32 v3, 4, v{vLANE}
    v_and_b32 v3, 1, v3
    v_lshl_add_u32 v2, v3, 5, v2
    v_and_b32 v3, 3, v{vLANE}
    v_lshl_add_u32 v{vdst}, v3, 3, v2
    v_add_u32 v{vdst}, {s_base}, v{vdst}
    v_xor_b32 v{vdst+1}, 64, v{vdst}
    """)

def prologue(a):
    a(f"""
    s_cmp_ge_u32 s2, 256
    s_cbranch_scc1 L_end
    {"s_lshr_b32 s3, s2, 5" if OPT.get("bad") else ""}
    {"s_and_b32 s2, s2, 31" if OPT.get("bad") else ""}
    {"s_lshl_b32 s2, s2, 3" if OPT.get("bad") else ""}
    {"s_or_b32 s2, s2, s3" if OPT.get("bad") else ""}
    s_load_dwordx16 s[72:87], s[0:1], 0
    s_load_dwordx4 s[88:91], s[0:1], 64
    s_load_dwordx2 s[92:93], s[0:1], 80
    v_lshrrev_b32 v2, 6, v0
    v_and_b32 v{vLANE}, 63, v0
    v_readfirstlane_b32 {sW}, v2
    v_lshrrev_b32 v{vHH}, 5, v{vLANE}
    v_and_b32 v{vL31}, 31, v{vLANE}
    v_lshlrev_b32 v{vL16}, 4, v{vLANE}
    v_lshlrev_b32 v{vL8}, 3, v{vLANE}
    v_add_u32 v{vL16b}, 0x1000, v{vL16}
    s_and_b32 {sT[0]}, s2, 7
    s_lshr_b32 {sT[1]}, s2, 3
    s_lshr_b32 {sT[2]}, {sT[0]}, 1
    s_and_b32 {sT[3]}, {sT[0]}, 1
    s_lshl_b32 {sRB}, {sT[0]}, 1
    s_lshr_b32 {sT[4]}, {sT[1]}, 4
    s_add_u32 {sRB}, {sRB}, {sT[4]}
    s_and_b32 {sH}, {sT[1]}, 15
    s_mul_i32 {sT[4]}, {sT[1]}, 43
    s_lshr_b32 {sT[4]}, {sT[4]}, 7          ; j/3
    s_mul_i32 {sT[7]}, {sT[4]}, 3
    s_sub_u32 {sT[7]}, {sT[1]}, {sT[7]}     ; j%3
    s_lshl_b32 {sT[5]}, {sT[3]}, 2          ; 4p
    s_add_u32 {sDT1}, {sT[7]}, {sT[5]}
    s_add_u32 {sT[6]}, {sT[5]}, {sT[1]}
    s_sub_u32 {sT[6]}, {sT[6]}, 24
    s_cmp_ge_u32 {sT[1]}, 24
    s_cselect_b32 {sT[4]}, {sT[6]}, {sT[4]}
    s_cselect_b32 {sDT1}, 3, {sDT1}
    s_cmp_ge_u32 {sT[1]}, 28
    s_cselect_b32 {sT[4]}, 8, {sT[4]}
    s_mul_i32 {sT[5]}, {sT[1]}, 37
    s_lshr_b32 {sT[5]}, {sT[5]}, 8
    s_mul_i32 {sT[6]}, {sT[5]}, 7
    s_sub_u32 {sDT}, {sT[1]}, {sT[6]}
    s_lshl_b32 {sST}, {sT[0]}, 2
    s_add_u32 {sST}, {sST}, {sT[5]}
    s_getreg_b32 {sXSH}, hwreg(HW_REG_XCC_ID)
    s_and_b32 {sXSH}, {sXSH}, 15
    s_min_u32 {sXSH}, {sXSH}, 9
    s_mul_i32 {sXSH}, {sXSH}, 6
    s_mov_b32 {sLOC}, 0
    s_mul_i32 {sFT}, {sT[2]}, 7
    s_add_u32 {sFT}, {sFT}, {sT[4]}
    s_mov_b32 {sACT}, {sT[4]}
    s_mov_b32 {sIT}, 0
    s_mov_b32 {sITO}, 0
    s_mov_b32 {sBUD}, 1500000
    s_lshr_b32 {sWH}, {sW}, 1
    s_and_b32 {sWL}, {sW}, 1
    s_waitcnt lgkmcnt(0)
    """)
    a.srd(SX, 72, S * D * 2)
    a.srd(SWQKV, 74, D * 3 * D * 2)
    a.srd(SWS, 92, WS_SIZE)
    a.srd(SWO, 76, D * D * 2)
    a.srd(SW1, 80, S * F * 2)
    a.srd(SB1, 82, F * 2)
    a.srd(SW2, 84, F * S * 2)
    a.srd(SB2, 86, S * 2)
    a.srd(SOUT, 88, S * D * 2)
    a.srd(SDBG, 90, 256)

def late_setup(a):
    wtile_dma_voff(a, vDW1, 3584)
    wtile_dma_voff(a, vDW2, 4096)
    wtile_dma_voff(a, vDWO, 896)
    a(f"""
    s_mul_i32 {sW1B}, {sW}, {512*3584}
    s_min_u32 {sT[2]}, {sFT}, 27
    s_lshl_b32 {sT[2]}, {sT[2]}, 7
    s_add_u32 {sW1B}, {sW1B}, {sT[2]}
    s_mul_i32 {sW2B}, {sW}, {448*4096}
    s_min_u32 {sT[2]}, {sST}, 31
    s_lshl_b32 {sT[2]}, {sT[2]}, 7
    s_add_u32 {sW2B}, {sW2B}, {sT[2]}
    """)

XREG = 64
ACQ, ACK, ACV = 16, 32, 48
WFR = 176
TRA = 4
vM, vR, vC, vRS = 12, 13, 14, 15
XBASE = [0x8000, 0x18000, 0x20000, 0x10000]
def a1_lds(f):
    if f < 32: return 1024 * f
    if f < 64: return 0x10000 + 1024 * (f - 32)
    return 0x20000 + 1024 * (f - 64)
def a1_src(f):
    if f < 56: t, seg = f >> 1, 1 + (f & 1)
    else: t, seg = f - 56, 0
    return t * 16 * 2688 + seg * 896
CSL, RSL, KVL = 0x27000, 0x27400, 0x0


def a1_wraw_ops(f0, f1, vo, s_kv, s_q, s_w10):
    o = []
    for f in range(f0, f1, 4):
        sb = s_kv if f < 56 else s_q
        o.append(f"s_add_u32 {sT[2]}, {sb}, {a1_src(f)}\n s_add_u32 m0, {s_w10}, {a1_lds(f)}\n buffer_load_dwordx4 v{vo}, {SWQKV}, {sT[2]} offen lds")
    return o

def a1_wpk_setup(a):
    a(f"""
    s_mul_i32 {sT[13]}, {sH}, {84*1024}
    s_add_u32 {sT[13]}, {sT[13]}, {WQP}
    s_lshl_b32 {sT[15]}, {sW}, 10
    s_lshl_b32 {sT[14]}, {sW}, 14
    s_add_u32 {sT[14]}, {sT[14]}, {sT[13]}
    s_add_u32 {sT[13]}, {sT[13]}, {sT[15]}
    """)
def a1_wpk_hi_ops():
    return [f"s_add_u32 {sT[2]}, {sT[13]}, {f*1024}\n s_add_u32 m0, {sT[15]}, {a1_lds(f)}\n buffer_load_dwordx4 v{vL16}, {SWS}, {sT[2]} offen {SC} lds" for f in range(64, 84, 4)]
def a1_wpk_own_ops():
    return [f"s_add_u32 {sT[2]}, {sT[14]}, {i*1024}\n s_add_u32 m0, {sLB}, {i*1024}\n buffer_load_dwordx4 v{vL16}, {SWS}, {sT[2]} offen {SC} lds" for i in range(16)]

sWOG, sWOL = "s74", "s75"
def wo_setup(a):
    a(f"""
    s_mul_i32 {sWOG}, {sWH}, {224*896}
    s_mul_i32 {sT[2]}, {sWL}, {8*896}
    s_add_u32 {sWOG}, {sWOG}, {sT[2]}
    s_lshl_b32 {sT[2]}, {sDT}, 7
    s_add_u32 {sWOG}, {sWOG}, {sT[2]}
    s_lshl_b32 {sWOL}, {sWH}, 16
    s_lshl_b32 {sT[2]}, {sWL}, 10
    s_add_u32 {sWOL}, {sWOL}, {sT[2]}
    """)
def wo_ops():
    return [f"s_add_u32 {sT[2]}, {sWOG}, {j*16*896}\n s_add_u32 m0, {sWOL}, {0x8000 + j*2048}\n buffer_load_dwordx4 v{vDWO}, {SWO}, {sT[2]} offen lds" for j in range(15)]

def big_dma_ops(which, ks0, nks, ldsoff, sl=None):
    stride, srd, vo, sb = (3584, SW1, vDW1, sW1B) if which == 1 else (4096, SW2, vDW2, sW2B)
    return [f"s_add_u32 {sT[2]}, {sb}, {(ks0*16 + i*8)*stride}\n s_add_u32 m0, {sl or sLB}, {ldsoff + i*1024}\n buffer_load_dwordx4 v{vo}, {srd}, {sT[2]} offen lds" for i in range(2 * nks)]

def stats_loads(a, soff, T):
    for i in range(7):
        a(f"buffer_load_dwordx2 {vr(T+2*i,2)}, v{vL8}, {SWS}, {soff} offen offset:{i*512} {SC}")

def stats_math_ops(T, vm, vvar, U, pk=True):
    o = []
    if pk:
        for i in range(3): o.append(f"v_pk_add_f32 {vr(U+2*i,2)}, {vr(T+4*i,2)}, {vr(T+4*i+2,2)}")
        o.append(f"v_pk_add_f32 {vr(U,2)}, {vr(U,2)}, {vr(U+2,2)}")
        o.append(f"v_pk_add_f32 {vr(U+4,2)}, {vr(U+4,2)}, {vr(T+12,2)}")
        o.append(f"v_pk_add_f32 {vr(U,2)}, {vr(U,2)}, {vr(U+4,2)}")
    else:
        o.append(f"v_add_f32 v{U}, v{T}, v{T+2}"); o.append(f"v_add_f32 v{U+1}, v{T+1}, v{T+3}")
        for i in range(2, 7):
            o.append(f"v_add_f32 v{U}, v{U}, v{T+2*i}"); o.append(f"v_add_f32 v{U+1}, v{U+1}, v{T+2*i+1}")
    o += [f"v_mov_b32 v{vm}, v{U}", f"v_permlane32_swap_b32 v{vm}, v{U}", f"v_add_f32 v{vm}, v{vm}, v{U}"]
    o.append(f"v_mul_f32 v{U+2}, {fbits(1/14)}, v{vm}")
    o.append(f"v_mul_f32 v{vm}, {fbits(1/448)}, v{vm}")
    for i in range(7): o.append(f"v_sub_f32 v{T+2*i}, v{T+2*i}, v{U+2}")
    o += [f"v_mul_f32 v{U+3}, v{T}, v{T}", f"v_mul_f32 v{U+4}, v{T+2}, v{T+2}"]
    for i in range(2, 7): o.append(f"v_fmac_f32 v{U+3+(i&1)}, v{T+2*i}, v{T+2*i}")
    o.append(f"v_add_f32 v{U+3}, v{U+3}, v{U+4}")
    o.append(f"v_fmac_f32 v{U+1}, {fbits(1/32)}, v{U+3}")
    o += [f"v_mov_b32 v{vvar}, v{U+1}", f"v_permlane32_swap_b32 v{vvar}, v{U+1}", f"v_add_f32 v{vvar}, v{vvar}, v{U+1}"]
    o.append(f"v_mul_f32 v{vvar}, {fbits(1/448)}, v{vvar}")
    return o

def stats_publish(a, X, T, soff):
    for i in range(4): a(f"v_pk_add_f32 {vr(T+2*i,2)}, {vr(X+4*i,2)}, {vr(X+4*i+2,2)}")
    a(f"v_pk_add_f32 {vr(T,2)}, {vr(T,2)}, {vr(T+2,2)}")
    a(f"v_pk_add_f32 {vr(T+4,2)}, {vr(T+4,2)}, {vr(T+6,2)}")
    a(f"v_pk_add_f32 {vr(T,2)}, {vr(T,2)}, {vr(T+4,2)}")
    a(f"v_add_f32 v{T+16}, v{T}, v{T+1}")
    a.halfsum(f"v{T+16}", f"v{T+17}")
    a(f"v_mul_f32 v{T+18}, {fbits(-1/32)}, v{T+16}")
    for i in range(8): a(f"v_pk_add_f32 {vr(T+2*i,2)}, {vr(X+2*i,2)}, {vr(T+18,2)} op_sel_hi:[1,0]")
    a(f"v_pk_mul_f32 {vr(T+18,2)}, {vr(T,2)}, {vr(T,2)}")
    a(f"v_pk_mul_f32 {vr(T+20,2)}, {vr(T+2,2)}, {vr(T+2,2)}")
    for i in range(2, 8):
        d = T + 18 + 2 * (i & 1)
        a(f"v_pk_fma_f32 {vr(d,2)}, {vr(T+2*i,2)}, {vr(T+2*i,2)}, {vr(d,2)}")
    a(f"v_pk_add_f32 {vr(T+18,2)}, {vr(T+18,2)}, {vr(T+20,2)}")
    a(f"v_add_f32 v{T+17}, v{T+18}, v{T+19}")
    a.halfsum(f"v{T+17}", f"v{T+18}")
    a("s_mov_b32 exec_hi, 0")
    a.lstore([f"buffer_store_dwordx2 {vr(T+16,2)}, v{vL8}, {SWS}, {soff} offen"])
    a("s_mov_b64 exec, -1")

def a1_tr_setup(a, it):
    sh, delta = (9, 256) if it == 0 else (8, 512)
    a(f"""
    v_lshrrev_b32 v2, 2, v{vLANE}
    v_and_b32 v2, 3, v2
    v_lshrrev_b32 v3, 4, v{vLANE}
    v_and_b32 v3, 1, v3
    v_lshlrev_b32 v3, 2, v3
    v_and_b32 v10, 3, v{vLANE}
    v_add_u32 v3, v3, v10
    s_and_b32 {sT[0]}, {sH}, 1
    v_add_u32 v3, {sT[0]}, v3
    v_and_b32 v3, 7, v3
    v_lshlrev_b32 v3, 3, v3
    v_lshl_add_u32 v{TRA}, v2, 6, v3
    v_lshl_add_u32 v{TRA}, v{vHH}, {sh}, v{TRA}
    v_add_u32 v{TRA+1}, 0x10000, v{TRA}
    v_add_u32 v{TRA+2}, 0x20000, v{TRA}
    v_add_u32 v{TRA+3}, {delta}, v{TRA}
    v_add_u32 v{TRA+4}, {delta}, v{TRA+1}
    v_add_u32 v{TRA+5}, {delta}, v{TRA+2}
    s_lshl_b32 {sT[0]}, {sW}, 8
    s_add_u32 {sT[0]}, {sT[0]}, {RSL}
    v_lshlrev_b32 v11, 2, v{vLANE}
    v_add_u32 v11, {sT[0]}, v11
    v_lshlrev_b32 v{vRS}, 4, v{vHH}
    v_add_u32 v{vRS}, {sT[0]}, v{vRS}
    """)

def rowstats_ops():
    return [f"v_add_f32 v{vR}, {fbits(1e-5)}, v{vR}", f"v_rsq_f32 v{vR}, v{vR}", f"v_cmp_eq_u32 vcc, 0, v{vHH}",
            f"v_cndmask_b32 v3, v{vM}, v{vR}, vcc", f"ds_write_b32 v11, v3"]

def a1_rd(a, f, dst):
    ad = a1_lds(f); win, off = ad >> 16, ad & 0xffff
    a(f"ds_read_b64_tr_b16 {dst(0)}, v{TRA+win} offset:{off}")
    a(f"ds_read_b64_tr_b16 {dst(2)}, v{TRA+3+win} offset:{off}")

def w1_touch(r):
    return f"""s_lshl_b32 {sT[0]}, s2, 2
    s_add_u32 {sT[0]}, {sT[0]}, {sW}
    s_add_u32 {sT[0]}, {sT[0]}, {r*1024}
    s_mul_i32 {sT[1]}, {sT[0]}, 9363
    s_lshr_b32 {sT[1]}, {sT[1]}, 22
    s_mul_i32 {sT[2]}, {sT[1]}, 448
    s_sub_u32 {sT[0]}, {sT[0]}, {sT[2]}
    s_lshl_b32 {sT[0]}, {sT[0]}, 11
    s_lshl_b32 {sT[2]}, {sT[1]}, 1
    s_add_u32 {sT[15]}, {sT[2]}, 1
    s_sub_u32 {sT[2]}, {sT[2]}, 8
    s_cmp_lt_u32 {sT[1]}, 4
    s_cselect_b32 {sT[1]}, {sT[15]}, {sT[2]}
    s_mul_i32 {sT[1]}, {sT[1]}, {256*3584}
    s_add_u32 {sT[0]}, {sT[0]}, {sT[1]}
    buffer_load_dword v234, v{vKRS}, {SW1}, {sT[0]} offen"""

def w2_touch(r):
    return f"""s_mul_i32 {sT[0]}, {sW}, 448
    s_add_u32 {sT[0]}, {sT[0]}, s2
    s_lshl_b32 {sT[0]}, {sT[0]}, 12
    s_add_u32 {sT[0]}, {sT[0]}, {r*2048}
    buffer_load_dword v234, v{vKRS}, {SW2}, {sT[0]} offen"""

def code_warm(a, tag):
    L = a.label("CWM")
    a(f"""
    s_getpc_b64 s[76:77]
    {L}:
    s_sub_u32 s76, s76, {L}-{KNAME}
    s_subb_u32 s77, s77, 0
    s_lshr_b32 {sT[2]}, s2, 3
    s_lshl_b32 {sT[2]}, {sT[2]}, 2
    s_add_u32 {sT[2]}, {sT[2]}, {sW}
    s_mul_i32 {sT[2]}, {sT[2]}, 640
    v_min_u32 v2, 4, v{vLANE}
    v_lshlrev_b32 v2, 7, v2
    v_add_u32 v2, {sT[2]}, v2
    s_mov_b32 {sT[2]}, L_codeend-{KNAME}-4
    v_min_u32 v2, {sT[2]}, v2
    v_mov_b32 v3, s77
    v_add_co_u32 v2, vcc, s76, v2
    v_addc_co_u32 v3, vcc, 0, v3, vcc
    global_load_dword v{vMAX}, v[2:3], off
    """)

def a1_it0(a):
    L = a.label("A1f")
    XA, XV, DA = 224, 228, 230
    a(f"""
    v_lshrrev_b32 v2, 3, v{vLANE}
    v_mul_u32_u24 v2, 896, v2
    v_and_b32 v3, 7, v{vLANE}
    v_lshrrev_b32 v5, 4, v{vLANE}
    v_xor_b32 v3, v3, v5
    v_lshl_add_u32 v{XV}, v3, 4, v2
    v_xor_b32 v{XV+1}, 64, v{XV}
    s_lshl_b32 {sT[10]}, {sRB}, 2
    s_add_u32 {sT[10]}, {sT[10]}, {sW}
    s_mul_i32 {sT[10]}, {sT[10]}, {32*896}
    s_lshl_b32 {sLB}, {sWH}, 16
    s_lshl_b32 {sT[2]}, {sWL}, 14
    s_add_u32 {sLB}, {sLB}, {sT[2]}
    """)
    def xdma(j0, j1):
        return [f"s_add_u32 {sT[2]}, {sT[10]}, {aa*8*896 + j*128}\n s_add_u32 m0, {sLB}, {0x8000 + aa*4096 + (j-j0)*1024}\n buffer_load_dwordx4 v{XV + (aa&1)}, {SX}, {sT[2]} offen lds"
                for aa in range(4) for j in range(j0, j1)]
    for o in xdma(0, 4): a(o)
    a(f"""
    v_lshrrev_b32 v1, 2, v{vLANE}
    v_mul_u32_u24 v1, 2688, v1
    v_and_b32 v5, 3, v{vLANE}
    v_lshl_add_u32 v1, v5, 4, v1
    s_mul_i32 {sT[8]}, {sH}, 56
    s_and_b32 {sT[8]}, {sT[8]}, 0xfff0
    s_mul_i32 {sT[9]}, {sW}, {16*2688}
    s_add_u32 {sT[9]}, {sT[9]}, {sT[8]}
    s_mul_i32 {sT[2]}, {sWH}, {16*2688}
    s_add_u32 {sT[8]}, {sT[8]}, {sT[2]}
    s_mul_i32 {sT[2]}, {sWL}, 896
    s_add_u32 {sT[8]}, {sT[8]}, {sT[2]}
    s_lshl_b32 {sT[11]}, {sW}, 10
    """)
    a.xstamp(22)
    ncw = 0
    if OPT.get("cw", 1):
        code_warm(a, 0); ncw = 1
    for o in a1_wraw_ops(0, 32, 1, sT[8], sT[9], sT[11]): a(o)
    a.xstamp(23)
    a(f"""
    s_lshr_b32 {sT[12]}, 0xc1a3, {sH}
    s_and_b32 {sT[12]}, {sT[12]}, 1
    s_lshl_b32 {sT[0]}, 1, {sH}
    s_sub_u32 {sT[0]}, {sT[0]}, 1
    s_and_b32 {sT[0]}, {sT[0]}, 0xc1a3
    s_bcnt1_i32_b32 {sT[0]}, {sT[0]}
    s_lshl_b32 {sT[0]}, {sT[0]}, 4
    s_add_u32 {sT[0]}, {sT[0]}, {sRB}
    s_lshl_b32 {sT[0]}, {sT[0]}, 2
    s_add_u32 {sT[0]}, {sT[0]}, {sW}
    s_lshl_b32 {sT[14]}, {sT[0]}, 13
    s_cmp_ge_u32 {sT[14]}, {ST}
    s_cselect_b32 {sT[12]}, 0, {sT[12]}
    s_cmp_eq_u32 {sT[12]}, 0
    s_cselect_b32 {sT[14]}, 0x20000000, {sT[14]}
    v_mov_b32 v236, -1
    v_mov_b32 v237, -1
    v_mov_b32 v238, -1
    v_mov_b32 v239, -1
    """)
    fills = [f"buffer_store_dwordx4 v[236:239], v{vL16b if i&4 else vL16}, {SWS}, {sT[14]} offen offset:{(i&3)*1024} {SC}" for i in range(8)]
    late_setup(a)
    wo_setup(a)
    a1_tr_setup(a, 0)
    a(f"""
    v_lshrrev_b32 v2, 3, v{vL31}
    v_lshlrev_b32 v2, 12, v2
    v_and_b32 v3, 7, v{vL31}
    v_lshl_add_u32 v2, v3, 7, v2
    v_add_u32 v2, {sLB}, v2
    v_lshrrev_b32 v3, 1, v{vL31}
    v_and_b32 v3, 7, v3
    v_xor_b32 v3, v3, v{vHH}
    """)
    for q in range(4): a(f"v_xor_b32 v10, {2*q}, v3\n v_lshl_add_u32 v{XA+q}, v10, 4, v2")
    a(f"""
    v_mov_b32 v{DA}, 0
    v_mov_b32 v{DA+1}, 0
    v_mov_b32 v{DA+2}, 0
    v_mov_b32 v{DA+3}, 0
    v_mov_b32 v{CSK}, 0
    v_mov_b32 v{CSV}, 0
    v_mov_b32 v{vC}, 0x3f803f80
    v_lshlrev_b32 v235, 7, v{vLANE}
    v_min_u32 v{vKRS}, 0x780, v235
    s_lshr_b32 {sT[13]}, s2, 2
    s_lshl_b32 {sT[13]}, {sT[13]}, 13
    s_cmp_eq_u32 {sW}, 3
    s_cselect_b32 {sT[13]}, {sT[13]}, 0x1000000
    s_waitcnt vmcnt({8+ncw}) lgkmcnt(0)
    """)
    a.stamp("a1_xland")
    def xrd(t0, t1):
        for t in range(t0, t1):
            a(f"ds_read_b128 {vr(XREG+4*t,4)}, v{XA+(t&3)} offset:{0x8000 + ((t-t0)>>2)*1024}")
            if t - t0 == 11: a("s_waitcnt lgkmcnt(4)")
        a("s_waitcnt lgkmcnt(0)")
    def dots(i0, i1, vm, every):
        for i in range(i0, i1):
            if vm and (i - i0) % every == 0: a(vm.pop(0))
            a(f"v_dot2c_f32_bf16 v{DA+(i&1)}, v{XREG+i}, v{vC}")
            a(f"v_dot2c_f32_bf16 v{DA+2+(i&1)}, v{XREG+i}, v{XREG+i}")
        assert not vm
    xrd(0, 16)
    vm = fills + xdma(4, 7)
    TP = OPT.get("tp", 1)
    tch = [w1_touch(0), w1_touch(1)]
    wl = (tch if TP == 0 else []) + a1_wraw_ops(32, 84, 1, sT[8], sT[9], sT[11]) + [f"buffer_load_dword v234, v235, {SWO}, {sT[13]} offen"] + (tch if TP == 1 else [])
    nwl = len(wl)
    a.xstamp(24)
    dots(0, 64, vm, 3)
    a.xstamp(25)
    a(f"""
    s_waitcnt vmcnt(12)
    s_barrier
    s_cmp_eq_u32 {sW}, 0
    s_cbranch_scc1 {L}_sg
    {L}_sgr:
    """)
    a.stubs += [l for l in f"""{L}_sg:
    s_lshl_b64 s[76:77], 1, {sXSH}
    s_and_b32 s77, s77, 0xffff
    s_or_b32 s77, s77, 0x10000
    s_and_b32 {sT[0]}, s2, 3
    s_lshl_b32 {sT[0]}, {sT[0]}, 6
    s_bfe_u32 {sT[1]}, s2, 0x10002
    s_lshl_b32 {sT[1]}, {sT[1]}, 3
    s_add_u32 {sT[0]}, {sT[0]}, {sT[1]}
    v_mov_b32 v2, s76
    v_mov_b32 v3, s77
    s_mov_b64 exec, 1
    buffer_atomic_add_x2 v[2:3], off, {SDBG}, {sT[0]} offset:16 sc1
    s_mov_b64 exec, -1
    s_branch {L}_sgr""".split("\n")]
    a.stamp("a1_main")
    LA = 3
    def rd(t):
        for s_ in range(2):
            b = WFR + 8 * (t & 3) + 4 * s_
            a1_rd(a, 2 * t + s_, lambda o, b=b: vr(b + o, 2))
    def cs(win, n):
        a(f"s_lshl_b32 {sT[0]}, {sW}, 11\n v_add_u32 v2, {sT[0]}, v{TRA+win}\n v_add_u32 v3, {sT[0]}, v{TRA+3+win}")
        regs = [16, 24, 208, 216]
        for i in range(n):
            for s_ in range(2):
                a(f"ds_read_b64_tr_b16 {vr(regs[i]+4*s_,2)}, v2 offset:{8192*i+1024*s_}")
                a(f"ds_read_b64_tr_b16 {vr(regs[i]+4*s_+2,2)}, v3 offset:{8192*i+1024*s_}")
        a("s_waitcnt lgkmcnt(0)")
        for i in range(n):
            for k in range(4):
                a(f"v_dot2c_f32_bf16 v{CSK}, v{regs[i]+k}, v{vC}")
                a(f"v_dot2c_f32_bf16 v{CSV}, v{regs[i]+4+k}, v{vC}")
    def loop(t0, t1):
        for t in range(t0, t0 + LA): rd(t)
        for t in range(t0, t1):
            a(f"s_waitcnt lgkmcnt({4*min(LA-1, t1-1-t)})")
            w = WFR + 8 * (t & 3)
            x = vr(XREG + 4 * t, 4)
            c = lambda base: (vr(base, 16) if t else "0")
            def rdp(s_):
                if t + LA < t1:
                    b = WFR + 8 * ((t + LA) & 3) + 4 * s_
                    a1_rd(a, 2 * (t + LA) + s_, lambda o, b=b: vr(b + o, 2))
            a(f"{MF} {vr(ACK,16)}, {x}, {vr(w,4)}, {c(ACK)}")
            rdp(0)
            a(f"{MF} {vr(ACV,16)}, {x}, {vr(w+4,4)}, {c(ACV)}")
            rdp(1)
            if wl: a(wl.pop(0))
    loop(0, 16)
    assert not wl
    a.xstamp(26)
    NPT = 0
    if OPT.get("pt", 0):
        sh = OPT.get("pt")
        a(f"v_lshlrev_b32 v236, {sh}, v{vLANE}")
        if sh >= 19: a(f"v_min_u32 v236, 0x1180000, v236")
        for srd in (SB1, SB2, SOUT, SWS, SW2):
            a(f"buffer_load_dword v234, v236, {srd}, 0 offen"); NPT += 1
        nwl += NPT
    cs(0, 4)
    a.xstamp(27)
    a(f"s_waitcnt vmcnt({nwl})")
    a.xstamp(28)
    xrd(16, 28)
    NRA = 4
    ra = big_dma_ops(1, 16, 8, 0x8000)
    dots(64, 112, ra[:NRA], 8)
    a(f"v_add_f32 v{vM}, v{DA}, v{DA+1}\n v_add_f32 v{vR}, v{DA+2}, v{DA+3}")
    a.halfsum(f"v{vM}", f"v{DA}")
    a.halfsum(f"v{vR}", f"v{DA+1}")
    a(f"""
    v_mul_f32 v{vM}, {fbits(1/448)}, v{vM}
    v_mul_f32 v{vR}, {fbits(1/448)}, v{vR}
    v_fma_f32 v{vR}, -v{vM}, v{vM}, v{vR}
    v_max_f32 v{vR}, 0, v{vR}
    """)
    for o in rowstats_ops(): a(o)
    a.xstamp(29)
    a(f"s_waitcnt vmcnt({8+NRA+NPT+(2 if TP == 1 else 0)})\n s_barrier")
    a.xstamp(30)
    cs(1, 3)
    a(f"""
    v_mov_b32 v22, v{CSK}
    v_mov_b32 v23, v{CSV}
    v_permlane32_swap_b32 v{CSK}, v22
    v_permlane32_swap_b32 v{CSV}, v23
    v_add_f32 v22, v{CSK}, v22
    v_add_f32 v23, v{CSV}, v23
    s_lshl_b32 {sT[0]}, {sW}, 2
    v_lshlrev_b32 v10, 4, v{vL31}
    v_add_u32 v10, 0x27800, v10
    v_add_u32 v11, {sT[0]}, v10
    ds_write_b32 v11, v22 offset:512
    ds_write_b32 v11, v23 offset:1024
    s_lshl_b32 {sT[13]}, {sW}, 13
    """)
    a.loc_issue(228)
    a.xstamp(31)
    wl += ra[NRA:NRA + 12]
    a.ra_rest = ra[NRA + 12:]
    loop(16, 28)
    assert not wl
    T23 = OPT.get("t23", 1)
    if T23 == 1:
        a(w1_touch(2)); a(w1_touch(3))
    NBT = 2 if OPT.get("bt", 1) else 0
    if NBT: a(f"buffer_load_dword v234, v235, {SB1}, 0 offen\n buffer_load_dword v234, v235, {SB2}, 0 offen")
    TW2 = 2 if OPT.get("tw2", 0) == 1 else 0
    for r in range(TW2): a(w2_touch(r))
    TW2 += NBT
    a.TW2 = TW2
    a.xstamp(21)
    a("s_barrier")
    for k in range(1, 3): a(f"ds_read_b128 {vr(16+4*k,4)}, v10 offset:{512*k}")
    a(f"s_waitcnt vmcnt({(14 if T23 == 1 else 12) + TW2})")
    a.loc_eval(228)
    a(f"""
    s_waitcnt lgkmcnt(0)
    v_add_f32 v20, v20, v21
    v_add_f32 v22, v22, v23
    v_add_f32 v24, v24, v25
    v_add_f32 v26, v26, v27
    v_add_f32 v{CSK}, v20, v22
    v_add_f32 v{CSV}, v24, v26
    """)

def a1_it0_q(a, ret):
    QLA, QB = 4, 32
    def qrd(t): a1_rd(a, 56 + t, lambda o, t=t: vr(QB + 4 * (t & 7) + o, 2))
    a(f"""
    s_lshl_b32 {sT[0]}, {sW}, 10
    v_add_u32 v176, {sT[0]}, v{TRA+1}
    v_add_u32 v177, {sT[0]}, v{TRA+4}
    v_add_u32 v178, {sT[0]}, v{TRA+2}
    v_add_u32 v179, {sT[0]}, v{TRA+5}
    v_mov_b32 v180, 0
    """)
    for i in range(7):
        ad = a1_lds(56 + 4 * i); b = 176 if (ad >> 16) == 1 else 178
        a(f"ds_read_b64_tr_b16 {vr(196+4*i,2)}, v{b} offset:{ad & 0xffff}")
        a(f"ds_read_b64_tr_b16 {vr(196+4*i+2,2)}, v{b+1} offset:{ad & 0xffff}")
    a("s_waitcnt lgkmcnt(0)")
    for t in range(QLA): qrd(t)
    for j in range(28): a(f"v_dot2c_f32_bf16 v180, v{196+j}, v{vC}")
    a(f"""
    v_mov_b32 v181, v180
    v_permlane32_swap_b32 v180, v181
    v_add_f32 v180, v180, v181
    s_waitcnt lgkmcnt(0)
    ds_write_b32 v11, v180
    """)
    assert not a.ra_rest
    a(f"""
    v_mul_u32_u24 v188, 896, v{vL31}
    v_lshl_add_u32 v188, v{vHH}, 3, v188
    s_min_u32 {sT[0]}, {sST}, 31
    s_lshl_b32 {sT[0]}, {sT[0]}, 1
    s_add_u32 {sT[0]}, {sT[0]}, {sWL}
    s_mul_i32 {sT[0]}, {sT[0]}, {32*896}
    s_lshl_b32 {sT[1]}, {sDT}, 7
    s_add_u32 {sT[0]}, {sT[0]}, {sT[1]}
    s_lshl_b32 {sT[1]}, {sWH}, 6
    s_add_u32 {sT[12]}, {sT[0]}, {sT[1]}
    """)
    w2q = [f"buffer_load_dwordx2 {vr((224, 226, 236, 238)[q],2)}, v188, {SX}, {sT[12]} offen offset:{16*q}" for q in range(4)] + big_dma_ops(1, 24, 4, 0, sT[13])
    b1_tr_addr(a, 182, sLB)
    st = [f"ds_read_b64_tr_b16 {ar(aW1 + 8*t + 4*i + 2*u, 2)}, v{182+i} offset:{0x8000 + t*2048 + 4*u*128}" for t in range(8) for i in range(2) for u in range(2)]
    a(f"s_waitcnt vmcnt({3 + a.TW2})")
    lq = [("q", t) for t in range(QLA) for _ in range(2)]
    for t in range(28):
        if t + QLA < 28:
            qrd(t + QLA); lq += [("q", t + QLA)] * 2
        idx = max(i for i, x in enumerate(lq) if x == ("q", t))
        a(f"s_waitcnt lgkmcnt({min(15, len(lq) - 1 - idx)})")
        a(f"{MF} {vr(ACQ,16)}, {vr(QB+4*(t&7),4)}, {vr(XREG+4*t,4)}, {vr(ACQ,16) if t else '0'}")
        for _ in range(2 if t < 8 or t >= 24 else 1):
            if st:
                a(st.pop(0)); lq.append(("s", 0))
        if t % 2 == 0 and w2q: a(w2q.pop(0))
    assert not w2q and not st
    a("s_waitcnt lgkmcnt(0)")
    a(f"""
    s_barrier
    ds_read_b128 v[176:179], v10
    v_lshlrev_b32 v180, 2, v{vL31}
    v_add_u32 v180, {CSL}, v180
    s_add_u32 s79, {sT[13]}, 0x20000
    s_cmp_eq_u32 {sW}, 3
    s_cselect_b32 s79, 0x16000, s79
    """)
    kvr_loads(a)
    a(f"""
    s_waitcnt lgkmcnt(0)
    v_add_f32 v176, v176, v177
    v_add_f32 v178, v178, v179
    v_add_f32 v176, v176, v178
    ds_write_b32 v180, v176
    s_branch {ret}
    """)

XORD = [t for t in range(28) if not (t >> 1) & 1] + [t for t in range(28) if (t >> 1) & 1]
def x_tables(a):
    a(f"""
    s_lshl_b32 {sT[0]}, {sRB}, 2
    s_add_u32 {sT[0]}, {sT[0]}, {sW}
    s_mul_i32 {sA1[0]}, {sT[0]}, {28*1024}
    s_add_u32 {sA1[0]}, {sA1[0]}, {XF}
    s_add_u32 {sA1[1]}, {sA1[0]}, 0x2000
    s_add_u32 {sA1[2]}, {sA1[0]}, 0x4000
    s_add_u32 {sA1[3]}, {sA1[0]}, 0x6000
    s_mul_i32 {sA1[4]}, {sT[0]}, 3584
    s_add_u32 {sA1[4]}, {sA1[4]}, {ST2}
    """)
def xr(n): return XREG + 4 * ((n + 2) % 28)
def xload(a, n):
    t = XORD[n]
    a(f"buffer_load_dwordx4 {vr(xr(n),4)}, v{vL16b if t&4 else vL16}, {SWS}, {sA1[t>>3]} offen offset:{(t&3)*1024} {SC}")

def a1_it1(a):
    LA = 2
    a1_tr_setup(a, 1)
    def rd(n, parts=(0, 1, 2)):
        if n >= 28: return
        t = XORD[n]
        for s_, f in enumerate((2 * t, 2 * t + 1, 56 + t)):
            if s_ not in parts: continue
            b = WFR + 12 * (n % 3) + 4 * s_
            a1_rd(a, f, lambda o, b=b: vr(b + o, 2))
    for n in range(LA): rd(n)
    a.nstamp -= 2
    a.stamp(); a.stamp()
    if STAMPS: a.names = a.names[:-2]
    Q = [("x", n) for n in range(14)]
    def cnt(tag): return len(Q) - 1 - max(i for i, x in enumerate(Q) if x == tag)
    issued = [14]
    def xchk(n0, n1):
        a(f"s_waitcnt vmcnt({cnt(('x', n1 - 1))})")
        hi = issued[0]
        a.check([xr(k) + e for k in range(n0, n1) for e in range(4)], lambda: (a("s_sleep 1"), [xload(a, k) for k in range(n0, hi)]), 0)
    groups = {0: 4, 4: 8, 8: 14, 14: 18, 18: 22, 22: 28}
    X2S = OPT.get("x2s", 5)
    SR, SU = 72, 86
    wq = wo_ops(); va = []
    xchk(0, 4)
    for n in range(28):
        if OPT.get("sub") and n % 4 == 0: a.xstamp(52 + n // 4)
        if n == OPT.get("xb", 5): a("s_barrier")
        a(f"s_waitcnt lgkmcnt({6 if n < 27 else 0})")
        w = WFR + 12 * (n % 3)
        x = vr(xr(n), 4)
        c = lambda base: (vr(base, 16) if n else "0")
        def vm():
            if n >= X2S and issued[0] < 28:
                xload(a, issued[0]); Q.append(("x", issued[0])); issued[0] += 1
            elif issued[0] == 28 and ("s", 0) not in Q:
                stats_loads(a, sA1[4], SR); Q.extend([("s", 0)] * 7)
                a.counter_issue(132, 1); Q.append(("s", 0))
            elif issued[0] == 28 and wq:
                a(wq.pop(0)); Q.append(("w", 0))
        def fill(k):
            for _ in range(k):
                if va: a(va.pop(0))
        a(f"{MF} {vr(ACK,16)}, {x}, {vr(w,4)}, {c(ACK)}")
        rd(n + LA, (0,)); vm(); fill(3)
        a(f"{MF} {vr(ACV,16)}, {x}, {vr(w+4,4)}, {c(ACV)}")
        rd(n + LA, (1,))
        if issued[0] < 28: vm()
        if n + 1 in groups: xchk(n + 1, groups[n + 1])
        if n == 22:
            a(f"s_waitcnt vmcnt({cnt(('s', 0))})")
            a.check(range(SR, SR + 14), lambda: stats_loads(a, sA1[4], SR), 0, 2)
            a.counter_check(132, 32)
            va = stats_math_ops(SR, vM, vR, SU, pk=False) + rowstats_ops()[:-1]
        fill(4)
        a(f"{MF} {vr(ACQ,16)}, {vr(w+8,4)}, {x}, {c(ACQ)}")
        rd(n + LA, (2,))
        fill(3)
    if OPT.get("sub"): a.xstamp(59)
    while va: a(va.pop(0))
    a(rowstats_ops()[-1])
    a.wo_rest = wq
    a("s_barrier")

def phase_a1(a):
    L = a.label("A1")
    RR, MM, T0 = 176, 192, 208
    a(f"s_cmp_eq_u32 {sIT}, 0\n s_cbranch_scc0 {L}_it1")
    a1_it0(a)
    a(f"s_branch {L}_epi\n {L}_it1:")
    a1_it1(a)
    a(f"""
    {L}_epi:
    """)
    a.stamp("a1_epi")
    for q in range(4):
        a(f"ds_read_b128 {vr(MM+4*q,4)}, v{vRS} offset:{128+32*q}")
        a(f"ds_read_b128 {vr(RR+4*q,4)}, v{vRS} offset:{32*q}")
    a(f"""
    s_mov_b32 {sT[3]}, {fbits(1e-6)}
    v_mov_b32 v0, {fbits(1e-6)}
    v_mov_b32 v1, {fbits(LOG2E)}
    s_lshl_b32 {sT[0]}, {sW}, 12
    s_add_u32 {sT[0]}, {sT[0]}, 0x10000
    v_add_u32 v2, {sT[0]}, v{vL16}
    s_lshl_b32 {sT[5]}, {sW}, 10
    s_add_u32 {sT[0]}, {sT[5]}, 0x10000
    v_add_u32 v3, {sT[0]}, v{vL16}
    s_lshl_b32 {sT[6]}, {sH}, 4
    s_add_u32 {sT[6]}, {sT[6]}, {sRB}
    s_lshl_b32 {sT[6]}, {sT[6]}, 12
    s_add_u32 {sT[6]}, {sT[6]}, {sT[5]}
    s_lshr_b32 {sT[6]}, {sT[6]}, 1
    s_add_u32 {sT[6]}, {sT[6]}, {sITO}
    s_add_u32 {sT[6]}, {sT[6]}, {KVP}
    s_waitcnt lgkmcnt(0)
    """)
    k0, v0 = ACK, ACV
    P = lambda b, r: vr(b + 2 * r, 2)
    CS = vr(CSK, 2)
    for r in range(8): a(f"v_pk_fma_f32 {P(k0,r)}, {P(MM,r)}, {CS}, {P(k0,r)} op_sel_hi:[1,0,1] neg_lo:[1,0,0] neg_hi:[1,0,0]")
    for r in range(8): a(f"v_pk_fma_f32 {P(k0,r)}, {P(k0,r)}, {P(RR,r)}, v[0:1] op_sel_hi:[1,1,0]")
    for r in range(8): a(f"v_pk_mul_f32 {P(T0,r)}, {P(k0,r)}, v[0:1] op_sel:[0,1] op_sel_hi:[1,1]")
    for r in range(8):
        a(f"v_exp_f32_e64 v{T0+2*r}, v{T0+2*r} clamp")
        a(f"v_max_f32 v{k0+2*r}, {sT[3]}, v{k0+2*r}")
        a(f"v_exp_f32_e64 v{T0+2*r+1}, v{T0+2*r+1} clamp")
        a(f"v_max_f32 v{k0+2*r+1}, {sT[3]}, v{k0+2*r+1}")
        a(f"v_pk_fma_f32 {P(v0,r)}, {P(MM,r)}, {CS}, {P(v0,r)} op_sel:[0,1,0] op_sel_hi:[1,1,1] neg_lo:[1,0,0] neg_hi:[1,0,0]")
    for r in range(8): a(f"v_pk_mul_f32 {P(v0,r)}, {P(v0,r)}, {P(RR,r)}")
    for r in range(8): a(f"v_pk_add_f32 {P(k0,r)}, {P(k0,r)}, {P(T0,r)}")
    for r in range(8): a(f"v_cvt_pk_bf16_f32 v{v0+r}, v{v0+2*r}, v{v0+2*r+1}")
    a("s_mov_b32 exec_lo, 0xf0000000\n s_mov_b32 exec_hi, 0xf0000000")
    for r in range(8): a(f"v_mov_b32 v{ACV+r}, 0x3f803f80")
    a("s_mov_b64 exec, -1")
    for r in range(8): a(f"v_cvt_pk_bf16_f32 v{k0+r}, v{k0+2*r}, v{k0+2*r+1}")
    KVA = 176
    a(f"{MF} {vr(KVA,16)}, {vr(ACK,4)}, {vr(ACV,4)}, 0")
    a(f"{MF} {vr(KVA,16)}, {vr(ACK+4,4)}, {vr(ACV+4,4)}, {vr(KVA,16)}")
    for q in range(4): a(f"ds_write_b128 v2, {vr(KVA+4*q,4)} offset:{KVL+1024*q}")
    a("s_waitcnt lgkmcnt(0)\n s_barrier")
    for w2 in range(4): a(f"ds_read_b128 {vr(192+4*w2,4)}, v3 offset:{KVL+4096*w2}")
    a(f"""
    s_waitcnt lgkmcnt(0)
    v_pk_add_f32 v[192:193], v[192:193], v[196:197]
    v_pk_add_f32 v[194:195], v[194:195], v[198:199]
    v_pk_add_f32 v[200:201], v[200:201], v[204:205]
    v_pk_add_f32 v[202:203], v[202:203], v[206:207]
    v_pk_add_f32 v[192:193], v[192:193], v[200:201]
    v_pk_add_f32 v[194:195], v[194:195], v[202:203]
    v_cvt_pk_bf16_f32 v192, v192, v193
    v_cvt_pk_bf16_f32 v193, v194, v195
    buffer_store_dwordx2 v[192:193], v{vL8}, {SWS}, {sT[6]} offen {SC}
    """)
    a.stamp("a1_kvp")
    kvr_setup(a)
    a(f"s_cmp_eq_u32 {sIT}, 0\n s_cbranch_scc1 {L}_cq\n {L}_cqr:")
    main = a.lines; a.lines = a.stubs
    a(f"{L}_cq:")
    a1_it0_q(a, f"{L}_cqr")
    a.lines = main
    T1 = 208
    a(f"v_lshlrev_b32 v2, 4, v{vHH}\n v_add_u32 v2, {CSL}, v2")
    for q in range(4): a(f"ds_read_b128 {vr(T1+4*q,4)}, v2 offset:{32*q}")
    a(f"""
    s_lshl_b32 {sT[5]}, {sRB}, 2
    s_add_u32 {sT[5]}, {sT[5]}, {sW}
    s_lshl_b32 {sT[5]}, {sT[5]}, 4
    s_add_u32 {sT[5]}, {sT[5]}, {sH}
    s_lshl_b32 {sT[5]}, {sT[5]}, 11
    s_add_u32 {sT[5]}, {sT[5]}, {sITO}
    s_waitcnt lgkmcnt(0)
    """)
    for r in range(8): a(f"v_pk_fma_f32 {P(ACQ,r)}, {P(T1,r)}, v[{vM}:{vR}], {P(ACQ,r)} op_sel_hi:[1,0,1] neg_lo:[1,0,0] neg_hi:[1,0,0]")
    for r in range(8): a(f"v_pk_fma_f32 {P(ACQ,r)}, {P(ACQ,r)}, v[{vM}:{vR}], v[0:1] op_sel:[0,1,0] op_sel_hi:[1,1,0]")
    for r in range(8): a(f"v_pk_mul_f32 {P(T1,r)}, {P(ACQ,r)}, v[0:1] op_sel:[0,1] op_sel_hi:[1,1]")
    for r in range(16):
        a(f"v_exp_f32_e64 v{T1+r}, v{T1+r} clamp")
        a(f"v_max_f32 v{ACQ+r}, {sT[3]}, v{ACQ+r}")
    for r in range(8): a(f"v_pk_add_f32 {P(ACQ,r)}, {P(ACQ,r)}, {P(T1,r)}")
    for r in range(8): a(f"v_cvt_pk_bf16_f32 v{T1+r}, v{ACQ+2*r}, v{ACQ+2*r+1}")
    a.lstore([f"buffer_store_dwordx4 {vr(T1,4)}, v{vL16}, {SWS}, {sT[5]} offen", f"buffer_store_dwordx4 {vr(T1+4,4)}, v{vL16}, {SWS}, {sT[5]} offen offset:1024"])
    a.stamp("a1_end")

def helper_index(a):
    a(f"""
    s_and_b32 {sT[0]}, s2, 7
    s_lshl_b32 {sT[0]}, {sT[0]}, 2
    s_lshr_b32 {sT[1]}, s2, 3
    s_add_u32 {sT[0]}, {sT[0]}, {sT[1]}
    s_sub_u32 {sT[0]}, {sT[0]}, 28
    s_lshl_b32 {sT[0]}, {sT[0]}, 2
    s_add_u32 {sT[0]}, {sT[0]}, {sW}         ; hw 0..127
    """)

KB, KAD, KSA = 128, 190, 191
def kvr_setup(a):
    t2, t3, t4, t5 = 184, 185, 186, 187
    a(f"""
    v_lshrrev_b32 v{t2}, 4, v{vLANE}
    v_and_b32 v{t3}, 15, v{vLANE}
    v_lshlrev_b32 v{t2}, 11, v{t2}
    v_lshl_add_u32 v{KAD}, v{t3}, 3, v{t2}
    s_lshr_b32 {sT[0]}, s2, 3
    s_lshr_b32 {sT[1]}, {sT[0]}, 1
    s_and_b32 {sT[8]}, {sT[0]}, 1
    s_lshl_b32 {sT[6]}, {sT[1]}, 15
    s_lshl_b32 {sT[4]}, {sT[8]}, 10
    s_add_u32 {sT[6]}, {sT[6]}, {sT[4]}
    s_lshl_b32 {sT[4]}, {sW}, 7
    s_add_u32 {sT[6]}, {sT[6]}, {sT[4]}
    s_add_u32 {sT[6]}, {sT[6]}, {sITO}
    s_add_u32 {sT[6]}, {sT[6]}, {KVP}
    s_lshl_b32 {sT[4]}, {sWL}, 4
    v_add_u32 v{t3}, {sT[4]}, v{t3}
    v_cmp_le_u32 vcc, 14, v{t3}
    v_cndmask_b32 v{t4}, 0, 1, vcc
    v_mul_u32_u24 v{t5}, 14, v{t4}
    v_sub_u32 v{t5}, v{t3}, v{t5}
    v_cmp_le_u32 vcc, 28, v{t3}
    v_and_b32 v{t2}, 1, v{t3}
    v_add_u32 v{t2}, 14, v{t2}
    v_cndmask_b32 v{t5}, v{t5}, v{t2}, vcc
    v_bfe_u32 v{t2}, v{t3}, 1, 1
    v_cndmask_b32 v{t4}, v{t4}, v{t2}, vcc
    v_and_b32 v{t2}, 3, v{t5}
    v_lshrrev_b32 v{t5}, 2, v{t5}
    v_lshl_add_u32 v{t2}, v{t5}, 3, v{t2}
    v_lshl_add_u32 v{t2}, v{t4}, 2, v{t2}
    v_lshlrev_b32 v{KSA}, 4, v{t2}
    s_lshl_b32 {sT[7]}, {sT[0]}, 10
    s_lshl_b32 {sT[4]}, {sWH}, 9
    s_add_u32 {sT[7]}, {sT[7]}, {sT[4]}
    s_and_b32 {sT[4]}, s2, 7
    s_lshl_b32 {sT[4]}, {sT[4]}, 15
    s_add_u32 {sT[7]}, {sT[7]}, {sT[4]}
    s_add_u32 {sT[7]}, {sT[7]}, {sITO}
    s_add_u32 {sT[7]}, {sT[7]}, {KVF}
    s_and_b32 {sT[4]}, {sT[8]}, {sWH}
    s_cmp_eq_u32 {sT[4]}, 1
    s_cselect_b32 {sT[10]}, 0, -1
    """)
KL = 144
def kvr_loads(a):
    for i in range(4):
        a(f"s_add_u32 {sT[2]}, {sT[6]}, {i*0x2000}")
        a(f"buffer_load_dwordx2 {vr(KL+2*i,2)}, v{KAD}, {SWS}, {sT[2]} offen {SC}")
        a(f"buffer_load_dwordx2 {vr(KL+8+2*i,2)}, v{KAD}, {SWS}, {sT[2]} offen offset:512 {SC}")
def kvr_finish(a):
    B, SA = KB, KSA
    a(f"v_mov_b32 v{B+8}, 0x3f80\n v_mov_b32 v{B+9}, 0x3f800000")
    a.check(range(KL, KL + 16), lambda: (a(f"s_sleep {OPT.get('rsl', 5)}"), kvr_loads(a)), 0, 2)
    bs = (B, B + 4)
    for i in range(4):
        for k, b in enumerate(bs):
            for e in range(4):
                src = KL + 8 * k + 2 * i + (e >> 1)
                a(f"v_dot2_f32_bf16 v{b+e}, v{src}, v{B+8+(e&1)}, {'0' if i == 0 else 'v%d' % (b+e)}")
    for b in bs: a(f"v_permlane32_swap_b32 v{b}, v{b+2}\n v_permlane32_swap_b32 v{b+1}, v{b+3}")
    for b in bs: a(f"v_pk_add_f32 v[{b}:{b+1}], v[{b}:{b+1}], v[{b+2}:{b+3}]")
    for b in bs: a(f"v_permlane16_swap_b32 v{b}, v{b+1}")
    for b in bs: a(f"v_add_f32 v{b}, v{b}, v{b+1}")
    for b in bs: a(f"v_mov_b32 v{b+1}, v{b}")
    for b in bs: a(f"v_permlane16_swap_b32 v{b}, v{b+1}")
    O = B + 32
    a(f"""
    v_cvt_pk_bf16_f32 v{O}, v{B}, v{B+1}
    v_cvt_pk_bf16_f32 v{O+2}, v{B+4}, v{B+5}
    v_and_b32 v{O+2}, {sT[10]}, v{O+2}
    v_mov_b32 v{O+1}, v{O}
    v_mov_b32 v{O+3}, v{O+2}
    v_permlane32_swap_b32 v{O}, v{O+1}
    v_permlane32_swap_b32 v{O+2}, v{O+3}
    s_mov_b64 exec, 0xffff
    """)
    a.lstore([f"buffer_store_dwordx4 {vr(O,4)}, v{SA}, {SWS}, {sT[7]} offen"])
    a("s_mov_b64 exec, -1")

RED = 0x20000
def red_addrs(a, base, partner_xor, v_own, v_par):
    a(f"""
    s_lshl_b32 {sT[0]}, {sW}, 13
    s_add_u32 {sT[0]}, {sT[0]}, {base}
    v_add_u32 v{v_own}, {sT[0]}, v{vL16}
    v_xor_b32 v{v_par}, {partner_xor*8192}, v{v_own}
    """)
def pair_reduce(a, acc0, acc1, v_own, v_par, after_barrier=None):
    for q in range(4): a(f"ds_write_b128 v{v_own}, {vr(acc1+4*q,4)} offset:{1024*q}")
    a("s_waitcnt lgkmcnt(0)\n s_barrier")
    for q in range(4): a(f"ds_read_b128 {vr(acc1+4*q,4)}, v{v_par} offset:{1024*q}")
    if after_barrier: after_barrier()
    for q in range(4):
        a(f"s_waitcnt lgkmcnt({3-q})")
        for r in range(2): a(f"v_pk_add_f32 {vr(acc0+4*q+2*r,2)}, {vr(acc0+4*q+2*r,2)}, {vr(acc1+4*q+2*r,2)}")

def hf_gate(a, v):
    a(f"""
    v_lshlrev_b32 v{v}, 11, v{vLANE}
    v_add_u32 v{v}, 2044, v{v}
    s_mul_i32 {sT[1]}, {sW}, {3*128*1024}
    s_add_u32 {sT[1]}, {sT[1]}, {sITO}
    s_add_u32 {sT[1]}, {sT[1]}, {HF}
    """)
    a.probe(v, sT[1], v + 1, 1, sleep=8)

def l2_warm(a, what):
    a(f"""
    s_lshr_b32 {sT[8]}, s2, 3
    s_sub_u32 {sT[8]}, {sT[8]}, 28
    s_and_b32 {sT[9]}, s2, 7
    v_mul_u32_u24 v12, 37, v{vLANE}
    v_lshrrev_b32 v12, 8, v12                ; lane/7
    v_mul_u32_u24 v13, 7, v12
    v_sub_u32 v13, v{vLANE}, v13
    v_min_u32 v12, 7, v12
    v_mul_u32_u24 v12, 3584, v12
    v_lshl_add_u32 v12, v13, 7, v12
    v_lshrrev_b32 v13, 2, v{vLANE}
    v_lshlrev_b32 v13, 12, v13
    v_and_b32 v14, 3, v{vLANE}
    v_lshl_add_u32 v13, v14, 7, v13
    """)
    for which, row0, nrows in what:
        q = nrows // 4
        if which == 1:
            a(f"""
            s_mul_i32 {sT[10]}, {sT[8]}, {512*3584}
            s_mul_i32 {sT[11]}, {sW}, {q*3584}
            s_add_u32 {sT[10]}, {sT[10]}, {sT[11]}
            s_lshr_b32 {sT[11]}, {sT[9]}, 1
            s_mul_i32 {sT[11]}, {sT[11]}, 896
            s_add_u32 {sT[10]}, {sT[10]}, {sT[11]}
            """)
            for i in range(q // 8):
                a(f"s_add_u32 {sT[11]}, {sT[10]}, {(row0 + 8*i)*3584}\n buffer_load_dword v15, v12, {SW1}, {sT[11]} offen")
        else:
            a(f"""
            s_mul_i32 {sT[10]}, {sT[8]}, {448*4096}
            s_mul_i32 {sT[11]}, {sW}, {q*4096}
            s_add_u32 {sT[10]}, {sT[10]}, {sT[11]}
            s_lshl_b32 {sT[11]}, {sT[9]}, 9
            s_add_u32 {sT[10]}, {sT[10]}, {sT[11]}
            """)
            for i in range(q // 16):
                a(f"s_add_u32 {sT[11]}, {sT[10]}, {(row0 + 16*i)*4096}\n buffer_load_dword v15, v13, {SW2}, {sT[11]} offen")

def helper_work(a):
    L = a.label("HW")
    a(f"""
    v_lshrrev_b32 v4, 2, v{vLANE}
    v_mul_u32_u24 v4, 2688, v4
    v_and_b32 v5, 3, v{vLANE}
    v_lshl_add_u32 v4, v5, 4, v4
    v_mov_b32 v8, -1
    v_mov_b32 v9, -1
    v_mov_b32 v10, -1
    v_mov_b32 v11, -1
    v_lshlrev_b32 v6, 7, v{vLANE}
    """)
    def warm(srd, lo, hi):
        if not OPT.get("warm", 1): return
        LL = a.label("HWW")
        a(f"""
        s_lshl_b32 {sT[1]}, {sT[0]}, 13
        s_add_u32 {sT[1]}, {sT[1]}, {lo}
        {LL}:
        buffer_load_dword v7, v6, {srd}, {sT[1]} offen
        {"s_waitcnt vmcnt(%d)" % (OPT["thr"] - 1) if OPT.get("thr") else ""}
        s_add_u32 {sT[1]}, {sT[1]}, {128*8192}
        s_cmp_lt_u32 {sT[1]}, {hi}
        s_cbranch_scc1 {LL}
        """)
    def fill(lo, hi):
        LL = a.label("HWF")
        a(f"""
        s_lshl_b32 {sT[1]}, {sT[0]}, 10
        s_add_u32 {sT[1]}, {sT[1]}, {lo}
        {LL}:
        buffer_store_dwordx4 v[8:11], v{vL16}, {SWS}, {sT[1]} offen {SC}
        s_add_u32 {sT[1]}, {sT[1]}, {128*1024}
        s_cmp_lt_u32 {sT[1]}, {hi}
        s_cbranch_scc1 {LL}
        """)
    def signal(off):
        LL = a.label("HWS")
        a(f"""
        s_waitcnt vmcnt(0)
        s_barrier
        s_cmp_lg_u32 {sW}, 0
        s_cbranch_scc1 {LL}
        v_mov_b32 v2, 1
        v_mov_b32 v3, {off}
        s_mov_b64 exec, 1
        buffer_atomic_add v2, v3, {SDBG}, 0 offen sc1
        s_mov_b64 exec, -1
        {LL}:
        """)
        if not OPT.get('sub'): a.xstamp({196: 54, 4: 55, 68: 56, 132: 57}[off])
    def lfill(base, gsize):
        LL = a.label("HWL")
        a(f"""
        s_and_b32 {sT[1]}, s2, 7
        s_mul_i32 {sT[7]}, {sT[1]}, {gsize}
        s_add_u32 {sT[7]}, {sT[7]}, {base}
        s_and_b32 {sT[1]}, {sT[0]}, 15
        s_lshl_b32 {sT[1]}, {sT[1]}, 10
        s_add_u32 {sT[1]}, {sT[1]}, {sT[7]}
        s_add_u32 {sT[7]}, {sT[7]}, {gsize}
        {LL}:
        """)
        a.lstore([f"buffer_store_dwordx4 v[8:11], v{vL16}, {SWS}, {sT[1]} offen"])
        a(f"""
        s_add_u32 {sT[1]}, {sT[1]}, 0x4000
        s_cmp_lt_u32 {sT[1]}, {sT[7]}
        s_cbranch_scc1 {LL}
        """)
    def wqp_loads():
        for i in range(11):
            a(f"""
        s_add_u32 {sT[1]}, {sT[0]}, {128*i}
        s_min_u32 {sT[1]}, {sT[1]}, 1343
        s_mul_i32 {sT[2]}, {sT[1]}, 3121
        s_lshr_b32 {sT[2]}, {sT[2]}, 18
        s_mul_i32 {sT[3]}, {sT[2]}, 84
        s_sub_u32 {sT[3]}, {sT[1]}, {sT[3]}
        s_mul_i32 {sT[2]}, {sT[2]}, 56
        s_and_b32 {sT[2]}, {sT[2]}, 0xfff0
        s_lshr_b32 {sT[4]}, {sT[3]}, 1
        s_and_b32 {sT[5]}, {sT[3]}, 1
        s_add_u32 {sT[5]}, {sT[5]}, 1
        s_sub_u32 {sT[6]}, {sT[3]}, 56
        s_cmp_lt_u32 {sT[3]}, 56
        s_cselect_b32 {sT[4]}, {sT[4]}, {sT[6]}
        s_cselect_b32 {sT[5]}, {sT[5]}, 0
        s_mul_i32 {sT[4]}, {sT[4]}, {16*2688}
        s_mul_i32 {sT[5]}, {sT[5]}, 896
        s_add_u32 {sT[2]}, {sT[2]}, {sT[4]}
        s_add_u32 {sT[2]}, {sT[2]}, {sT[5]}
        buffer_load_dwordx4 {vr(16+4*i,4)}, v4, {SWQKV}, {sT[2]} offen
        """)
    def wqp_stores():
        for i in range(11):
            a(f"""
        s_add_u32 {sT[1]}, {sT[0]}, {128*i}
        s_min_u32 {sT[1]}, {sT[1]}, 1343
        s_lshl_b32 {sT[2]}, {sT[1]}, 10
        s_add_u32 {sT[2]}, {sT[2]}, {WQP}
        buffer_store_dwordx4 {vr(16+4*i,4)}, v{vL16}, {SWS}, {sT[2]} offen {SC}
        """)
    WP = OPT.get("wp", 0)
    fill(ST, UF)
    signal(196)
    if WP == 0: wqp_loads()
    fill(UF, ITB)
    signal(4)
    if WP == 0: wqp_stores()
    lfill(XF, 8 * 28 * 1024); lfill(ST2, 8 * 3584)
    if WP == 0: signal(68)
    else: wqp_loads()
    if OPT.get('g2', 0):
        a.counter_wait(196, 1, 32, 2)
        hf_gate(a, 12)
    if WP == 1:
        a("s_waitcnt vmcnt(0)")
        wqp_stores()
        signal(68)
    warm(SW2, 0, F * S * 2)
    fill(ITB + KVP, ITB + KVF)
    fill(ITB + HF, 2 * ITB)
    lfill(ITB + PQ, 0x40000); lfill(ITB + KVF, 0x8000); lfill(ITB + ST, 8 * 3584)
    signal(132)
    a.counter_wait(68, 1, 32, 2)
    a("s_barrier")
    a1_wpk_setup(a)
    for o in a1_wpk_own_ops() + a1_wpk_hi_ops(): a(o)
    x_tables(a)
    a(f"v_min_u32 v4, 6, v{vLANE}\n v_lshlrev_b32 v4, 12, v4\n v_add_u32 v4, 2044, v4\n s_waitcnt vmcnt(0)\n s_barrier")
    a.probe(4, sA1[0], 5, 1, sleep=6)
    for n in range(14): xload(a, n)

def phase_a2(a):
    L = a.label("A2")
    PQR, KVR, WB = 64, 128, 192
    AC0, AC1 = 16, 32
    a(f"""
    s_lshl_b32 {sT[5]}, {sST}, 1
    s_add_u32 {sT[5]}, {sT[5]}, {sWL}
    s_lshl_b32 {sAT[0]}, {sT[5]}, 15
    s_lshl_b32 {sT[1]}, {sWH}, 14
    s_add_u32 {sAT[0]}, {sAT[0]}, {sT[1]}
    s_add_u32 {sAT[0]}, {sAT[0]}, {sITO}
    s_add_u32 {sAT[1]}, {sAT[0]}, 0x2000
    s_add_u32 {sAT[2]}, {sT[1]}, {sITO}
    s_add_u32 {sAT[2]}, {sAT[2]}, {KVF}
    s_add_u32 {sAT[3]}, {sAT[2]}, 0x2000
    """)
    def pq_loads(i0=0, i1=16):
        for i in range(i0, i1):
            a(f"buffer_load_dwordx4 {vr(PQR+4*i,4)}, v{vL16b if i&4 else vL16}, {SWS}, {sAT[i>>3]} offen offset:{(i&3)*1024} {SC}")
    def kv_loads(i0=0):
        for i in range(i0, 16):
            a(f"buffer_load_dwordx4 {vr(KVR+4*i,4)}, v{vL16b if i&4 else vL16}, {SWS}, {sAT[2+(i>>3)]} offen offset:{(i&3)*1024} {SC}")
    a(f"""
    s_and_b32 {sT[0]}, s2, 7
    s_lshl_b32 {sT[0]}, {sT[0]}, 15
    s_add_u32 {sAT[2]}, {sAT[2]}, {sT[0]}
    s_add_u32 {sAT[3]}, {sAT[3]}, {sT[0]}
    v_min_u32 v4, 15, v{vLANE}
    v_lshlrev_b32 v4, 10, v4
    v_add_u32 v4, 1020, v4
    """)
    def stage(aw, n, va, off, urows):
        for t in range(n):
            for i in range(2):
                for u in range(2):
                    a(f"ds_read_b64_tr_b16 {ar(aw + 8*t + 4*i + 2*u, 2)}, v{va+i} offset:{off + t*2048 + urows*u*128}")
    def setup():
        a(f"s_lshl_b32 {sT[11]}, {sWH}, 16\n s_add_u32 {sT[11]}, {sT[11]}, 0x8000")
        wtile_tr_addr(a, 6, 14, sWH, sT[11])
        b1_tr_addr(a, 14, sLB)
        red_addrs(a, RED, 2, 8, 9)
        for r in range(16): a(f"v_mov_b32 v{AC0+r}, v{RES+r}")
        a(f"""
        s_mul_i32 {sT[8]}, {sT[5]}, 3584
        s_add_u32 {sT[8]}, {sT[8]}, {sITO}
        s_add_u32 {sT[8]}, {sT[8]}, {ST}
        s_lshl_b32 {sT[1]}, {sDT}, 1
        s_add_u32 {sT[1]}, {sT[1]}, {sWH}
        s_lshl_b32 {sT[9]}, {sT[1]}, 8
        s_add_u32 {sT[9]}, {sT[9]}, {sT[8]}
        s_lshl_b32 {sT[12]}, {sT[1]}, 17
        s_lshl_b32 {sT[0]}, {sT[5]}, 11
        s_add_u32 {sT[12]}, {sT[12]}, {sT[0]}
        s_add_u32 {sT[12]}, {sT[12]}, {sITO}
        s_add_u32 {sT[12]}, {sT[12]}, {HF}
        v_lshrrev_b32 v2, 1, v{vLANE}
        v_lshlrev_b32 v2, 9, v2
        v_and_b32 v3, 1, v{vLANE}
        v_mul_u32_u24 v3, 96, v3
        v_add_u32 v11, v2, v3
        """)
    a(f"s_cmp_eq_u32 {sIT}, 0\n s_cbranch_scc1 {L}_s0")
    PS = OPT.get("ps", 16)
    if OPT.get("sfirst", 0): setup()
    pq_loads(0, PS)
    kvr_loads(a)
    pq_loads(PS, 16)
    if not OPT.get("sfirst", 0): setup()
    P1M = OPT.get("p1m", 0)
    if P1M:
        a("s_barrier")
        for o in big_dma_ops(1, 0, 8, 0): a(o)
    a(f"s_waitcnt vmcnt({16-PS+(16 if P1M else 0)})\n {L}_s0r:")
    main = a.lines; a.lines = a.stubs
    a(f"{L}_s0:")
    for o in wo_ops(): a(o)
    setup()
    a(f"s_waitcnt vmcnt(17)\n s_branch {L}_s0r")
    a.lines = main
    kvr_finish(a)
    a.stamp("a2_pq")
    for o in a.wo_rest: a(o)
    a(f"s_cmp_eq_u32 {sIT}, 0\n s_cbranch_scc1 {L}_s1\n {L}_s1r:")
    main = a.lines; a.lines = a.stubs
    a(f"{L}_s1:")
    pq_loads()
    for o in big_dma_ops(1, 28, 4, 0, "s79"): a(o)
    a(f"s_lshl_b32 {sT[11]}, {sW}, 13\n s_sub_u32 {sT[11]}, {sT[11]}, {sLB}\n v_add_u32 v12, {sT[11]}, v14\n v_add_u32 v13, {sT[11]}, v15")
    stage(aW1 + 64, 4, 12, 0, 4)
    if OPT.get("rc", 1): a(f"s_waitcnt vmcnt(8) lgkmcnt(0)\n s_branch {L}_s1w")
    else: a(f"s_waitcnt lgkmcnt(0)\n s_branch {L}_s1r")
    a.lines = main
    a(f"s_waitcnt vmcnt(0)\n {L}_s1w:")
    a.check(range(PQR, PQR + 64), lambda: (a("s_sleep 4"), pq_loads()), 0)
    if not OPT.get('sub'): a.xstamp(59)
    a("s_barrier")
    NB = [48, RES, PQR]
    def num_ops(hd):
        n = NB[hd % 3]
        return [f"{MF} {vr(n,16)}, {vr(KVR+8*hd,4)}, {vr(PQR+8*hd,4)}, 0",
                f"{MF} {vr(n,16)}, {vr(KVR+8*hd+4,4)}, {vr(PQR+8*hd+4,4)}, {vr(n,16)}"]
    p1 = [] if P1M else big_dma_ops(1, 0, 8, 0)
    nd = [0]; ndc = [0]
    def kvchk(hd):
        a(f"s_waitcnt vmcnt({14-2*hd+nd[0]})")
        a.check(range(KVR + 8 * hd, KVR + 8 * hd + 8), lambda hd=hd: kv_loads(2 * hd), 0 if nd[0] else 14 - 2 * hd)
    def wrd_ops(hd):
        o = []
        for t in range(2):
            for nb in range(2):
                b = WB + 16 * (hd & 1) + 4 * (2 * t + nb)
                for u in range(2):
                    o.append(f"ds_read_b64_tr_b16 {vr(b+2*u,2)}, v{6+nb} offset:{(28*hd+8*t+4*u)*128}")
        return o
    def wrd(hd):
        for o in wrd_ops(hd): a(o)
    def div_ops(hd):
        n = NB[hd % 3]
        ops = [f"v_add_f32 v10, {fbits(1e-6)}, v{n+15}", "v_rcp_f32 v10, v10"]
        for r in range(14): ops.append(f"v_mul_f32 v{n+r}, v{n+r}, v10")
        for r in range(7): ops.append(f"v_cvt_pk_bf16_f32 v{n+r}, v{n+2*r}, v{n+2*r+1}")
        ops.append(f"v_mov_b32 v{n+7}, 0")
        return ops
    def out_ops(hd):
        ops = []
        for t in range(2):
            for nb in range(2):
                acc = (AC0, AC1)[nb]
                c = vr(acc, 16) if (hd or t or nb == 0) else "0"
                ops.append(f"{MF} {vr(acc,16)}, {vr(WB+16*(hd&1)+4*(2*t+nb),4)}, {vr(NB[hd%3]+4*t,4)}, {c}")
        return ops
    kv_loads()
    a(f"s_cmp_eq_u32 {sIT}, 0\n s_cbranch_scc1 {L}_s2\n {L}_s2r:")
    main = a.lines; a.lines = a.stubs
    a(f"{L}_s2:\n s_waitcnt vmcnt(16)")
    a(f"s_sub_u32 {sT[11]}, s79, {sLB}\n v_add_u32 v12, {sT[11]}, v14\n v_add_u32 v13, {sT[11]}, v15")
    stage(aW1 + 96, 4, 12, 0, 4)
    a("s_waitcnt lgkmcnt(0)")
    for q in range(8):
        src = (224, 225, 226, 227, 236, 237, 238, 239)[q]
        a(f"v_lshlrev_b32 v{AC0+2*q}, 16, v{src}\n v_and_b32 v{AC0+2*q+1}, 0xffff0000, v{src}")
    a(f"s_branch {L}_s2r")
    a.lines = main
    wrd(0)
    kvchk(0)
    for o in num_ops(0): a(o)
    a.stamp("a2_kv")
    kvchk(1)
    for o in num_ops(1): a(o)
    for o in div_ops(0): a(o)
    for hd in range(8):
        va = div_ops(hd + 1) if hd + 1 < 8 else []
        ds = wrd_ops(hd + 1) if hd + 1 < 8 else []
        mf = []
        if hd + 2 < 8:
            kvchk(hd + 2)
            mf += num_ops(hd + 2)
        nnum = len(mf)
        mf += out_ops(hd)
        per = -(-len(va) // len(mf))
        nds = 0
        for j, o in enumerate(mf):
            if j == nnum: a(f"s_waitcnt lgkmcnt({nds})")
            a(o)
            for _ in range(2):
                if ds:
                    a(ds.pop(0)); nds += 1
            if j >= 2 and p1:
                a(p1.pop(0)); nd[0] += 1
            for _ in range(per):
                if va: a(va.pop(0))
        assert not va and not ds
        if hd == OPT.get('c196h', 5):
            a.counter_issue(196, 1); nd[0] += 1; ndc[0] = nd[0]
    assert not p1
    a.stamp("a2_mm")
    pair_reduce(a, AC0, AC1, 8, 9)
    a(f"s_waitcnt vmcnt({nd[0] - ndc[0]})")
    a.counter_check(196, 32)
    stats_publish(a, AC0, 64, sT[9])
    p2 = big_dma_ops(1, 8, 8, 0x8000)
    n2 = 0
    for o in p2[:n2]: a(o)
    stats_loads(a, sT[8], 96)
    for r in range(16): a(f"v_mov_b32 v{RES+r}, v{AC0+r}")
    TW = 128
    a(f"""
    s_add_u32 {sT[0]}, {sLB}, 0x8000
    v_lshrrev_b32 v2, 1, v{vL31}
    v_and_b32 v2, 7, v2
    v_xor_b32 v2, v2, v{vHH}
    v_lshlrev_b32 v3, 6, v{vL31}
    v_add_u32 v3, {sT[0]}, v3
    """)
    for q in range(4): a(f"v_xor_b32 v4, {2*q}, v2\n v_lshl_add_u32 v{TW+q}, v4, 3, v3")
    a(f"""
    v_lshrrev_b32 v2, 2, v{vLANE}
    v_and_b32 v2, 3, v2
    v_lshl_add_u32 v2, v{vHH}, 3, v2
    v_lshrrev_b32 v3, 4, v{vLANE}
    v_and_b32 v3, 1, v3
    v_lshlrev_b32 v3, 2, v3
    v_and_b32 v4, 3, v{vLANE}
    v_add_u32 v3, v3, v4
    v_lshrrev_b32 v4, 1, v2
    v_xor_b32 v3, v3, v4
    v_lshlrev_b32 v2, 6, v2
    v_add_u32 v2, {sT[0]}, v2
    v_lshl_add_u32 v{TW+4}, v3, 3, v2
    v_xor_b32 v3, 2, v3
    v_lshl_add_u32 v{TW+5}, v3, 3, v2
    s_waitcnt vmcnt(0)
    """)
    a.check(range(96, 110), lambda: stats_loads(a, sT[8], 96), 0, 2)
    a.stamp("a2_st")
    if OPT.get("tw2", 0) == 3:
        a(f"s_cmp_eq_u32 {sIT}, 0\n s_cbranch_scc1 {L}_t2\n {L}_t2r:")
        a.stubs += [f"{L}_t2:"] + [l.replace("v234", f"v{vCNT}") for r in range(2) for l in w2_touch(r).split("\n")] + [f"s_branch {L}_t2r"]
    for o in stats_math_ops(96, 80, 82, 112): a(o)
    a(f"""
    v_add_f32 v84, {fbits(1e-5)}, v82
    v_rsq_f32 v84, v84
    v_mov_b32 v86, {fbits(1e-5)}
    v_mul_f32 v85, v82, v84
    v_fmac_f32 v86, v85, v84
    v_rsq_f32 v86, v86
    v_mul_f32 v84, v84, v86
    v_mul_f32 v86, -v80, v84
    """)
    for r in range(8): a(f"v_pk_fma_f32 {vr(32+2*r,2)}, {vr(AC0+2*r,2)}, v[84:85], v[86:87] op_sel_hi:[1,0,0]")
    for r in range(8): a(f"v_cvt_pk_bf16_f32 v{112+r}, v{32+2*r}, v{32+2*r+1}")
    for q in range(4): a(f"ds_write_b64 v{TW+q}, {vr(112+2*q,2)}")
    a(f"""
    ds_read_b64_tr_b16 v[120:121], v{TW+4}
    ds_read_b64_tr_b16 v[122:123], v{TW+5} offset:256
    ds_read_b64_tr_b16 v[124:125], v{TW+4} offset:1024
    ds_read_b64_tr_b16 v[126:127], v{TW+5} offset:1280
    s_waitcnt lgkmcnt(2)
    buffer_store_dwordx4 v[120:123], v{vL16}, {SWS}, {sT[12]} offen {SC}
    s_waitcnt lgkmcnt(0)
    buffer_store_dwordx4 v[124:127], v{vL16}, {SWS}, {sT[12]} offen offset:1024 {SC}
    s_barrier
    """)
    a.p2rest = p2[n2:]

ACC, WBF, WIN = 8, 72, 104
NWF = 28
def ringoff(t): return ((t & 15) >> 3) * 0x8000 + (t & 7) * 2048
vTR, vPB = 6, 4
sW2X = "s78"

def b1_tr_addr(a, vd, sbase):
    wtile_tr_addr(a, vd, 8, sWH, sbase)
    a(f"s_lshl_b32 {sT[2]}, {sWL}, 5\n v_xor_b32 v{vd}, {sT[2]}, v{vd}\n v_xor_b32 v{vd+1}, {sT[2]}, v{vd+1}")

class Stream:
    def __init__(self, a):
        self.a = a; self.q = []; self.issued = 0; self.dirty = False; self.lq = []
        self.LOOK = OPT.get("look", 12); self.perm = False
    def info(self, s):
        if s < 64: return 1, s >> 5, s & 31
        s -= 64
        p, t = s // 28, s % 28
        if p == 1 and self.perm: t = (t + 16) % 28
        return 2, p, t
    def areg(self, s): return WIN + 4 * (s % NWF)
    def ld(self, s):
        g, p, t = self.info(s)
        tab = (sA1 if g == 1 else sAT)[4 * p + (t >> 3)]
        return f"buffer_load_dwordx4 {vr(self.areg(s),4)}, v{vL16b if t&4 else vL16}, {SWS}, {tab} offen offset:{(t&3)*1024} {SC}"
    def issue_upto(self, n):
        while self.issued < min(n, 120):
            self.a(self.ld(self.issued)); self.q.append(("a", self.issued)); self.issued += 1
    def other(self, op, tag=("x", 0)):
        self.a(op); self.q.append(tag); self.dirty = True
    def cnt(self, item):
        idx = max(i for i, x in enumerate(self.q) if x == item)
        return min(len(self.q) - 1 - idx, 63)
    def check(self, s, n=4):
        a = self.a
        c = self.cnt(("a", s + n - 1))
        a(f"s_waitcnt vmcnt({c})")
        hi = self.issued
        regs = [self.areg(x) + k for x in range(s, s + n) for k in range(4)]
        a.check(regs, lambda: (a("s_sleep 1"), [a(self.ld(x)) for x in range(s, hi)]), 0 if self.dirty else c)

def wsrc(g, t, s, i, it, p, o=0, n=4):
    if g == 1:
        if t < 16: return vr(WBF + 8 * (s & 3) + 4 * i + o, n)
        return ar(aW1 + 8 * (t - 16) + 4 * i + o, n)
    if t >= 16: return vr(WBF + 8 * (s & 3) + 4 * i + o, n)
    return ar(aW2 + 8 * t + 4 * i + o, n)
def needs_rd(g, t, it, p):
    if g == 1: return t < 16
    return t >= 16 or (it == 0 and p == 0)

def run_steps(a, st, s0, s1, it, sched, tr, hooks={}):
    LA = 3
    def rd(s, parts=(0, 1)):
        if s >= s1 and not (s < 64 and s1 < 64) and not (s0 >= 64 and s < 120 and s1 < 120): return
        g, p, t = st.info(s)
        if not needs_rd(g, t, it, p): return
        if ("w", s) in st.q and 0 in parts: a(f"s_waitcnt vmcnt({st.cnt(('w', s))})")
        urows = 4 if g == 1 else 8
        for i in parts:
            for u in range(2):
                a(f"ds_read_b64_tr_b16 {wsrc(g,t,s,i,it,p,2*u,2)}, v{tr+i} offset:{ringoff(t) + urows*u*128}")
        if 1 in parts: st.lq.append(s)
    for s in range(s0, s1):
        g, p, t = st.info(s)
        if s in hooks: hooks[s]()
        if (s - (0 if g == 1 else 64)) % 4 == 0: st.check(s)
        if s == s0:
            for x in range(s0, s0 + LA):
                if x not in st.lq: rd(x)
        if needs_rd(g, t, it, p):
            n = len([x for x in st.lq if x > s])
            a(f"s_waitcnt lgkmcnt({4*n})")
        ex = list(sched.get(s, []))
        for i in range(2):
            if g == 1:
                acc = ACC + 32 * p + 16 * i
                c_ = vr(acc, 16) if (t or i == 0) else "0"
                a(f"{MF} {vr(acc,16)}, {wsrc(g,t,s,i,it,p)}, {vr(st.areg(s),4)}, {c_}")
            else:
                r_ = i + 2 * (1 - p)
                acc = B2ACC[r_]
                first = (s - 64) % 28 == 0
                c_ = "0" if first and (r_ != 0 or it == 0) else vr(acc, 16)
                a(f"{MF} {vr(acc,16)}, {vr(st.areg(s),4)}, {wsrc(g,t,s,i,it,p)}, {c_}")
            rd(s + LA, (i,))
            if ex:
                o, tag = ex.pop(0); st.other(o, tag)
            tgt = s + 1 + OPT.get("look2", 12)
            if s < 92: tgt = min(tgt, max(92, s + 1 + OPT.get("lk2", 12)))
            st.issue_upto(min(tgt, st.issued + 1))
        assert not ex
B2ACC = {2: 8, 3: 24, 0: 40, 1: 56}

def b1_epilogue(a, st, p, s_store):
    A = ACC + 32 * p
    a("s_waitcnt lgkmcnt(0)")
    for r_ in (3, 2, 1):
        for k in range(2): a(f"ds_write_b128 v0, {vr(A+8*r_+4*k,4)} offset:{(r_-1)*2048+1024*k}")
    base = 32 * (p + 1)
    E1, E2 = OPT.get("e1", 16), OPT.get("e2", 20)
    st.issue_upto(base + E1)
    a("s_waitcnt lgkmcnt(0)\n s_barrier")
    for r_ in (1, 2, 3):
        for k in range(2): a(f"ds_read_b128 {vr(A+8*r_+4*k,4)}, v{r_} offset:{(r_-1)*2048+1024*k}")
    st.issue_upto(base + E2)
    if p == 0: a.counter_check(4, 32)
    for r_ in (1, 2, 3):
        a(f"s_waitcnt lgkmcnt({2*(3-r_)})")
        for k in range(4): a(f"v_pk_add_f32 {vr(A+2*k,2)}, {vr(A+2*k,2)}, {vr(A+8*r_+2*k,2)}")
    U, T = A, A + 8
    for r in range(4): a(f"v_pk_mul_f32 {vr(T+2*r,2)}, {vr(U+2*r,2)}, {vr(U+2*r,2)}")
    for r in range(4): a(f"v_pk_fma_f32 {vr(T+2*r,2)}, {vr(T+2*r,2)}, v[216:217], v[216:217] op_sel:[0,0,1] op_sel_hi:[1,0,1]")
    for r in range(4): a(f"v_pk_mul_f32 {vr(T+2*r,2)}, {vr(T+2*r,2)}, {vr(U+2*r,2)}")
    for r in range(8): a(f"v_exp_f32 v{T+r}, v{T+r}")
    for r in range(4): a(f"v_pk_add_f32 {vr(T+2*r,2)}, {vr(T+2*r,2)}, 1.0 op_sel_hi:[1,0]")
    for r in range(8): a(f"v_rcp_f32 v{T+r}, v{T+r}")
    for r in range(4): a(f"v_pk_mul_f32 {vr(T+2*r,2)}, {vr(T+2*r,2)}, {vr(U+2*r,2)}")
    for r in range(4): a(f"v_cvt_pk_bf16_f32 v{220+r}, v{T+2*r}, v{T+2*r+1}")
    st.other(f"buffer_store_dwordx4 v[220:223], v{vL16}, {SWS}, {s_store} offen {SC}")

def w2x_ops(p):
    return [o.replace(sW2B, sW2X) for o in big_dma_ops(2, p, 1, ringoff(p))]

def b2_setup(a):
    a(f"""
    s_lshl_b32 {sT[7]}, {sST}, 1
    s_add_u32 {sT[7]}, {sT[7]}, {sWL}
    v_lshlrev_b32 v3, 1, v{vL31}
    s_lshl_b32 {sT[0]}, {sT[7]}, 6
    buffer_load_ushort v{vKRS}, v3, {SB2}, {sT[0]} offen
    s_mul_i32 {sT[6]}, {sDT}, {224*1024}
    s_mul_i32 {sT[0]}, {sW}, {28*1024}
    s_add_u32 {sT[6]}, {sT[6]}, {sT[0]}
    s_add_u32 {sT[6]}, {sT[6]}, {sITO}
    s_add_u32 {sT[6]}, {sT[6]}, {UF}
    s_cmp_eq_u32 {sIT}, 0
    s_cselect_b32 {sT[0]}, 1, {sWH}
    s_mul_i32 {sT[0]}, {sT[0]}, {112*1024}
    s_add_u32 {sAT[4]}, {sT[6]}, {sT[0]}
    s_sub_u32 {sT[0]}, {112*1024}, {sT[0]}
    s_add_u32 {sAT[0]}, {sT[6]}, {sT[0]}
    """)
    for k in range(1, 4):
        a(f"s_add_u32 {sAT[k]}, {sAT[0]}, {k*0x2000}\n s_add_u32 {sAT[4+k]}, {sAT[4]}, {k*0x2000}")
    wtile_tr_addr(a, 218, 4, sWL, sLB)
    a1_wpk_setup(a)
    a(f"""
    s_lshl_b32 {sT[5]}, {sDT}, 1
    s_add_u32 {sT[5]}, {sT[5]}, {sWH}
    s_mul_i32 {sT[8]}, {sT[7]}, {28*1024}
    s_lshl_b32 {sT[1]}, {sT[5]}, 11
    s_add_u32 {sT[8]}, {sT[8]}, {sT[1]}
    s_add_u32 {sT[8]}, {sT[8]}, {XF}
    s_mul_i32 {sT[9]}, {sT[7]}, 3584
    s_lshl_b32 {sT[1]}, {sT[5]}, 8
    s_add_u32 {sT[9]}, {sT[9]}, {sT[1]}
    s_add_u32 {sT[9]}, {sT[9]}, {ST2}
    s_mul_i32 {sT[12]}, {sT[7]}, {32*896}
    s_lshl_b32 {sT[1]}, {sT[5]}, 6
    s_add_u32 {sT[12]}, {sT[12]}, {sT[1]}
    s_mul_i32 {sW2X}, {sIT}, {16*16*4096}
    s_add_u32 {sW2X}, {sW2X}, {sW2B}
    """)

def phase_b(a):
    L = a.label("B")
    st = Stream(a)
    a(f"s_cmp_ge_u32 {sACT}, 7\n s_cbranch_scc1 {L}_skip")
    if OPT.get("p1m", 0):
        a(f"s_cmp_eq_u32 {sIT}, 0\n s_cbranch_scc1 {L}_p1\n {L}_p1r:")
        main = a.lines; a.lines = a.stubs
        a(f"{L}_p1:")
        for o in big_dma_ops(1, 0, 8, 0): a(o)
        a(f"s_branch {L}_p1r")
        a.lines = main
    P2F = OPT.get("p2f", 16)
    for o in a.p2rest[:P2F]: a(o)
    a.counter_issue(4, 1)
    a(f"""
    v_lshlrev_b32 v3, 3, v{vHH}
    s_lshl_b32 {sT[0]}, {sFT}, 7
    s_lshl_b32 {sT[1]}, {sW}, 5
    s_add_u32 {sT[0]}, {sT[0]}, {sT[1]}
    """)
    for q in range(2): a(f"buffer_load_dwordx2 {vr(24+2*q,2)}, v3, {SB1}, {sT[0]} offen offset:{16*q}")
    b2_setup(a)
    c0 = -2 * 0.7978845608028654 * LOG2E
    c1 = c0 * 0.044715
    a(f"""
    s_cmp_lt_u32 {sFT}, 14
    s_cselect_b32 {sT[4]}, {sIT}, 0
    s_lshl_b32 {sT[10]}, {sDT1}, 18
    s_lshl_b32 {sT[3]}, {sW}, 15
    s_add_u32 {sT[10]}, {sT[10]}, {sT[3]}
    s_add_u32 {sT[10]}, {sT[10]}, {sITO}
    s_add_u32 {sT[10]}, {sT[10]}, {HF}
    s_lshl_b32 {sT[0]}, {sT[4]}, 17
    s_add_u32 {sA1[0]}, {sT[10]}, {sT[0]}
    s_xor_b32 {sT[0]}, {sT[0]}, 0x20000
    s_add_u32 {sA1[4]}, {sT[10]}, {sT[0]}
    """)
    for k in range(1, 4):
        a(f"s_add_u32 {sA1[k]}, {sA1[0]}, {k*0x2000}\n s_add_u32 {sA1[4+k]}, {sA1[4]}, {k*0x2000}")
    a(f"""
    s_mul_i32 {sT[11]}, {sDT1}, {224*1024}
    s_lshl_b32 {sT[1]}, {sFT}, 12
    s_add_u32 {sT[11]}, {sT[11]}, {sT[1]}
    s_lshl_b32 {sT[1]}, {sW}, 10
    s_add_u32 {sT[11]}, {sT[11]}, {sT[1]}
    s_add_u32 {sT[11]}, {sT[11]}, {sITO}
    s_add_u32 {sT[11]}, {sT[11]}, {UF}
    s_mul_i32 {sT[0]}, {sT[4]}, {112*1024}
    s_add_u32 {sT[3]}, {sT[11]}, {sT[0]}
    s_sub_u32 {sT[0]}, {112*1024}, {sT[0]}
    s_add_u32 {sT[4]}, {sT[11]}, {sT[0]}
    v_lshlrev_b32 v{vPB}, 10, v{vL31}
    v_lshl_add_u32 v{vPB}, v{vHH}, 17, v{vPB}
    v_add_u32 v{vPB}, 1020, v{vPB}
    v_mov_b32 v216, {fbits(c1)}
    v_mov_b32 v217, {fbits(c0)}
    """)
    b1_tr_addr(a, vTR, sLB)
    for r_ in range(4):
        a(f"s_xor_b32 {sT[0]}, {sW}, {r_}\n s_mul_i32 {sT[0]}, {sT[0]}, 0x1800\n s_add_u32 {sT[0]}, {sT[0]}, 0x20000\n v_add_u32 v{r_}, {sT[0]}, v{vL16}")
    NO = OPT.get("no", 8)
    a.probe(vPB, sT[10], 5, 1, extra=lambda: [a(st.ld(x)) for x in range(NO)], nextra=NO)
    a.stamp("probe")
    st.q = [("a", x) for x in range(NO)]; st.issued = NO
    st.issue_upto(st.LOOK)
    for q in range(4):
        for p in (1, 0):
            a(f"v_lshlrev_b32 v{ACC+32*p+2*q}, 16, v{24+q}\n v_and_b32 v{ACC+32*p+2*q+1}, 0xffff0000, v{24+q}")
    for r in range(8): a(f"v_mov_b32 v{ACC+8+r}, 0\n v_mov_b32 v{ACC+40+r}, 0")
    sch0 = {}
    for k in range(P2F, 16): sch0.setdefault((k - P2F) // 2, []).append((a.p2rest[k], ("w", 8 + k // 2)))
    run_steps(a, st, 0, 32, 1, sch0, vTR)
    a.stamp("b1_p0")
    b1_epilogue(a, st, 0, sT[3])
    ent = {}
    def body(it):
        s2 = Stream(a); s2.q = list(st.q); s2.issued = st.issued; s2.dirty = True; s2.lq = list(st.lq)
        sched = {}; later = []; pre = []
        def put(s_, ops, tag):
            sched.setdefault(s_, []).extend((o, tag) for o in ops)
            if s_ < 64: pre.extend(ops)
        if it == 0:
            W2S = OPT.get("w2s", 48)
            for p in range(16): put(max(W2S + p, 33 + p), big_dma_ops(2, p, 1, ringoff(p)), ("w", 64 + p))
            for k in range(16, 28): put(64 + k - OPT.get("rfl", 14), big_dma_ops(2, k, 1, ringoff(k)), ("w", 64 + k))
            s2.perm = True
            hi = a1_wpk_hi_ops(); own = a1_wpk_own_ops()
            WQS = OPT.get("wqs", 102)
            for p in range(8): put(max(WQS + p, 93 + p), own[2*p:2*p+2], ("x", 0))
            for k, o in enumerate(hi): put(max(WQS + 8, 101) + k // 2, [o], ("x", 0))
            class C: pass
            xe = []
            for n in range(8): xload(xe.append, n)
            for n in range(8): put(OPT.get("xes", 114) + n // 2, [xe[n]], ("x", 0))
        else:
            W2S = OPT.get("w2s1", 60)
            for k in range(16, 28): put(W2S + k - 16, big_dma_ops(2, k, 1, ringoff(k)), ("w", 64 + k))
        run_steps(a, s2, 32, 64, 1, sched, vTR, {48: lambda: a("s_barrier"), 56: lambda: (a.counter_issue(68, 1), s2.q.append(("c", 0)))})
        a.stamp("b1_p1")
        b1_epilogue(a, s2, 1, sT[4])
        a(f"{L}_e{it}:")
        ent[it] = (pre, s2.issued)
        a.stamp("b1_end")
        def init():
            a(f"s_waitcnt vmcnt({s2.cnt(('c', 0))})")
            a.counter_check(68, 32)
            a(f"v_lshlrev_b32 v5, 16, v{vKRS}")
            for r in range(16): a(f"v_add_f32 v{(B2ACC[0] if it else RES)+r}, v{RES+r}, v5")
            a(f"v_add_u32 v0, {sLB}, v{vL16}\n v_xor_b32 v1, 0x4000, v0\n v_xor_b32 v2, 0x10000, v0\n v_xor_b32 v3, 0x14000, v0")
            if it == 0: x_tables(a)
        def wr(r_, off):
            for k in range(4): a(f"ds_write_b128 v0, {vr(B2ACC[r_]+4*k,4)} offset:{off+1024*k}")
        if it == 1:
            def early():
                wr(2, 0xA000); wr(3, 0xB000)
            run_steps(a, s2, 64, 120, it, sched, 218, {72: init, 64 + 28 + 8: early})
            a.stamp("mm")
            wr(1, 0x9000)
            a("s_waitcnt lgkmcnt(0)\n s_barrier")
            for r_, of in ((2, 0xA000), (3, 0xB000), (1, 0x9000)):
                for k in range(4): a(f"ds_read_b128 {vr(B2ACC[r_]+4*k,4)}, v{r_} offset:{of+1024*k}")
            return
        def owner_epi(p, K0, R, PK, T, off, stats=True, other=None):
            LL = a.label("OE")
            a(f"s_cmp_eq_u32 {sWH}, {p}\n s_cbranch_scc1 {LL}")
            if other: other()
            a(f"{LL}_r:")
            main = a.lines; blk = []; a.lines = blk
            a(f"{LL}:")
            for n_, (va_, of) in enumerate(((1, off + 0x1000), (2, off), (3, off + 0x1000))):
                for k in range(4): a(f"ds_read_b128 {vr(R+16*n_+4*k,4)}, v{va_} offset:{of+1024*k}")
            for k in range(8): a(f"v_pk_add_f32 {vr(RES+2*k,2)}, {vr(RES+2*k,2)}, {vr(K0+2*k,2)}")
            for n_ in range(3):
                a(f"s_waitcnt lgkmcnt({4*(2-n_)})")
                for k in range(8): a(f"v_pk_add_f32 {vr(RES+2*k,2)}, {vr(RES+2*k,2)}, {vr(R+16*n_+2*k,2)}")
            for r in range(8): a(f"v_cvt_pk_bf16_f32 v{PK+r}, v{RES+2*r}, v{RES+2*r+1}")
            a.lstore([f"buffer_store_dwordx4 {vr(PK,4)}, v{vL16}, {SWS}, {sT[8]} offen", f"buffer_store_dwordx4 {vr(PK+4,4)}, v{vL16}, {SWS}, {sT[8]} offen offset:1024"])
            if stats: stats_publish(a, RES, T, sT[9])
            a(f"s_branch {LL}_r")
            a.lines = main; a.stubs += blk
        def ex0w():
            a("s_waitcnt lgkmcnt(0)")
            wr(2, 0xA000); wr(3, 0xB000)
        def ex0r():
            a("s_waitcnt lgkmcnt(0)\n s_barrier")
            live = {x % NWF for x in range(100, s2.issued)}
            assert not live & set(range(2, 14)), live
            owner_epi(0, B2ACC[2], WIN + 8, 24, WIN + 8, 0xA000, stats=False)
        run_steps(a, s2, 64, 120, it, sched, 218, {72: init, 97: ex0w, 100: ex0r})
        a.stamp("mm")
        wr(0, 0x8000); wr(1, 0x9000)
        a("s_waitcnt vmcnt(8) lgkmcnt(0)\n s_barrier")
        owner_epi(1, B2ACC[0], 176, 152, 128, 0x8000, stats=False)
        for n in range(8, 14): xload(a, n)
        stats_publish(a, RES, 128, sT[9])
        a(f"s_branch {L}_end")
    later = two_its(a, L, body)
    main = a.lines; blk = []; a.lines = blk
    a(f"{L}_skip:")
    if OPT.get("g1", 0): hf_gate(a, 12)
    b2_setup(a)
    a(f"s_cmp_eq_u32 {sIT}, 0\n s_cbranch_scc0 {L}_sk1")
    if OPT.get("iw", 6):
        a(f"""
        v_lshrrev_b32 v13, 2, v{vLANE}
        v_lshlrev_b32 v13, 12, v13
        v_and_b32 v14, 3, v{vLANE}
        v_lshl_add_u32 v13, v14, 7, v13
        s_lshr_b32 {sT[0]}, s2, 3
        s_sub_u32 {sT[0]}, {sT[0]}, 21
        s_min_u32 {sT[0]}, {sT[0]}, 3
        s_mul_i32 {sT[0]}, {sT[0]}, {16*4096}
        s_mul_i32 {sT[1]}, {sW}, {448*4096}
        s_add_u32 {sT[0]}, {sT[0]}, {sT[1]}
        s_and_b32 {sT[1]}, s2, 7
        s_lshl_b32 {sT[1]}, {sT[1]}, 9
        s_add_u32 {sT[0]}, {sT[0]}, {sT[1]}
        """)
        for i in range(OPT.get("iw", 6)):
            a(f"s_add_u32 {sT[1]}, {sT[0]}, {i*48*4096}\n buffer_load_dword v15, v13, {SW2}, {sT[1]} offen")
    for o in ent[0][0]: a(o)
    a(f"s_branch {L}_sk2\n {L}_sk1:")
    for o in ent[1][0]: a(o)
    a(f"{L}_sk2:")
    a.counter_wait(4, 1, 32, 2)
    a.counter_issue(68, 1)
    a(f"v_min_u32 v{vPB}, 27, v{vLANE}\n v_lshlrev_b32 v{vPB}, 10, v{vPB}\n v_add_u32 v{vPB}, 1020, v{vPB}")
    a.probe(vPB, sAT[OPT.get('skp', 0)], 5, 1, sleep=4)
    assert ent[0][1] == ent[1][1]
    for x in range(64, ent[0][1]): a(st.ld(x))
    a(f"s_waitcnt vmcnt(0)\n s_cmp_eq_u32 {sIT}, 0\n s_cbranch_scc1 {L}_e0\n s_branch {L}_e1")
    a.lines = main; a.stubs += blk
    K0 = B2ACC[0]
    a(f"v_mul_u32_u24 v0, 896, v{vL31}\n v_lshl_add_u32 v0, v{vHH}, 3, v0")
    for n_, r_ in enumerate((2, 3, 1)):
        a(f"s_waitcnt lgkmcnt({4*(2-n_)})")
        for k in range(8): a(f"v_pk_add_f32 {vr(K0+2*k,2)}, {vr(K0+2*k,2)}, {vr(B2ACC[r_]+2*k,2)}")
    for r in range(8): a(f"v_cvt_pk_bf16_f32 v{112+r}, v{K0+2*r}, v{K0+2*r+1}")
    for q in range(4): a(f"buffer_store_dwordx2 {vr(112+2*q,2)}, v0, {SOUT}, {sT[12]} offen offset:{16*q}")
    a(f"{L}_end:")

def two_its(a, L, body):
    n0 = a.nstamp; names0 = list(getattr(a, "names", []))
    a(f"s_cmp_eq_u32 {sIT}, 0\n s_cbranch_scc0 {L}_i1")
    r0 = body(0)
    a(f"s_branch {L}_j\n {L}_i1:")
    a.nstamp = n0
    if STAMPS: a.names = names0
    r1 = body(1)
    a(f"{L}_j:")
    return r0, r1

def build():
    a = K(); a.stubs = []
    kernel_begin(a, KNAME)
    prologue(a)
    if STAMPS: a("v_mov_b32 v255, 0")
    if "echo" in OPT: a("s_memrealtime s[80:81]\n s_waitcnt lgkmcnt(0)\n s_mov_b32 s82, s80")
    a("L_iter:")
    a.stamp("start")
    phase_a1(a)
    a(f"s_cmp_ge_u32 {sACT}, 8\n s_cbranch_scc1 L_helper")
    phase_a2(a)
    a.stamp("a2_end")
    phase_b(a)
    a.stamp("b2_end")
    a(f"""
    L_next:
    s_cmp_eq_u32 {sIT}, 1
    s_cbranch_scc1 L_fin
    s_mov_b32 {sIT}, 1
    s_mov_b32 {sITO}, {ITB}
    s_branch L_iter
    L_helper:
    """)
    a(f"s_cmp_eq_u32 {sIT}, 0\n s_cbranch_scc1 L_hnl")
    kvr_loads(a)
    a("L_hnl:\n s_waitcnt vmcnt(0)")
    kvr_finish(a)
    helper_index(a)
    if not OPT.get('sub'): a.xstamp(53)
    a("s_waitcnt vmcnt(0)\n s_barrier")
    a(f"""
    s_cmp_eq_u32 {sIT}, 1
    s_cbranch_scc0 L_h0
    """)
    LW = OPT.get("lw", 1)
    if LW: l2_warm(a, ([(1, 0, 128)] if LW == 2 else []) + [(1, 128, 128), (2, 256, 192)])
    a("s_branch L_fin\n L_h0:")
    helper_work(a)
    a("s_branch L_next")
    a("L_fin:")
    a.stamp_dump()
    if "echo" in OPT:
        a("""
        s_memrealtime s[84:85]
        s_sub_u32 s82, s82, s80
        s_waitcnt lgkmcnt(0)
        s_mov_b32 s83, s84
        L_echo:
        s_memrealtime s[84:85]
        s_waitcnt lgkmcnt(0)
        s_sub_u32 s86, s84, s83
        s_cmp_lt_u32 s86, s82
        s_cbranch_scc1 L_echo
        """)
    a("L_end:\n s_endpgm")
    a.lines += a.stubs
    a.lines.append('L_codeend:')
    if STAMPS: open("stamps.txt", "w").write("\n".join(a.names))
    for i in range(len(a.lines) - 1):
        if a.lines[i].strip().startswith(f"s_add_u32 {sT[2]},") and a.lines[i+1].strip().startswith("s_add_u32 m0,"):
            a.lines[i], a.lines[i+1] = a.lines[i+1], a.lines[i]
    lines, n = haz.fix(a.lines)
    if OPT.get('align', 1):
        lines, st_ = align.align(lines, OPT.get('minrun', 5)); print('align', st_)
    hdr = f"; @launch grid=(256,1,1) block=(256,1,1) lds=163840\n"
    return hdr + '.amdgcn_target "amdgcn-amd-amdhsa--gfx950"\n.text\n' + "\n".join(lines) + "\n" + '.section .rodata,"a"\n' + descriptor(KNAME, 512, accum=256)

if __name__ == "__main__":
    out = sys.argv[1]
    for o in sys.argv[2:]:
        if o == "stamps": STAMPS = True
        else:
            k_, v_ = o.split("="); OPT[k_] = int(v_)
    open(out, "w").write(build())
```
